```python
import torch

def _softmax(x, axis=-1):
    return torch.softmax(x, dim=axis)

def _gelu(x):
    return torch.nn.functional.gelu(x, approximate='tanh')

def _silu(x):
    return torch.nn.functional.silu(x)

def _sigmoid(x):
    return torch.sigmoid(x)

def _layernorm(x, axis=-1, eps=1e-05):
    m = x.mean(dim=axis, keepdim=True)
    v = x.var(dim=axis, keepdim=True, unbiased=False)
    return (x - m) / torch.sqrt(v + eps)

def _scatter_add(tgt, idx, src, axis=0):
    return tgt.clone().index_add_(axis, idx, src)

def _segment_sum(src, seg, n):
    out = torch.zeros((n,) + src.shape[1:], dtype=src.dtype)
    return out.index_add_(0, seg, src)

def _pad(x, pw):
    flat = tuple((v for pair in reversed(pw) for v in pair))
    return torch.nn.functional.pad(x, flat)
kernel_name = 'adaLN_cond__ssm_conv_h3__mixer_gmlp__prompt'

def setup_inputs():

    _w = lambda a: (lambda t: t.to(torch.bfloat16) if t.is_floating_point() else t)(torch.as_tensor(a))

    def _A_setup():
        B, S, D = (1, 2048, 640)
        ks = 4
        return {'q': _w((lambda *s: torch.randn(*s, dtype=torch.bfloat16) * 0.05)(B, S, D)), 'k': _w((lambda *s: torch.randn(*s, dtype=torch.bfloat16) * 1.6)(B, S, D)), 'v': _w((lambda *s: torch.randn(*s, dtype=torch.bfloat16) * 1.6)(B, S, D)), 'shift_k': _w((lambda *s: torch.randn(*s, dtype=torch.bfloat16) * 1.6)(D, ks) * 0.5), 'ssm_k': _w((lambda *s: torch.randn(*s, dtype=torch.bfloat16) * 1.6)(D, S) * (1.0 / S ** 0.5)), 'ssm_D': _w((lambda *s: torch.randn(*s, dtype=torch.bfloat16) * 1.6)(D))}
    _A_in = _A_setup()

    def _B_setup():
        B, S, D, F = (1, 2048, 640, 1728)
        Fh = F // 2
        return {'x': _w((lambda *s: torch.randn(*s, dtype=torch.bfloat16) * 0.05)(B, S, D)), 'w_in': _w((lambda *s: torch.randn(*s, dtype=torch.bfloat16) * 0.8)(D, 2 * Fh)), 'w_sp': _w(0.01 * (lambda *s: torch.randn(*s, dtype=torch.bfloat16) * 0.8)(S, S)), 'b_sp': _w(1.0 + 0.01 * (lambda *s: torch.randn(*s, dtype=torch.bfloat16) * 0.1)(S)), 'w_out': _w((lambda *s: torch.randn(*s, dtype=torch.bfloat16) * 0.1)(Fh, D))}
    _B_in = _B_setup()
    return {'A_q': _A_in['q'], 'A_k': _A_in['k'], 'A_v': _A_in['v'], 'A_shift_k': _A_in['shift_k'], 'A_ssm_k': _A_in['ssm_k'], 'A_ssm_D': _A_in['ssm_D'], 'B_x': _B_in['x'], 'B_w_in': _B_in['w_in'], 'B_w_sp': _B_in['w_sp'], 'B_b_sp': _B_in['b_sp'], 'B_w_out': _B_in['w_out'], 'c': _w((lambda *s: torch.randn(*s, dtype=torch.bfloat16) * 0.1)(1, 640) * 8.0), 'w_mod': _w((lambda *s: torch.randn(*s, dtype=torch.bfloat16) * 0.1)(640, 6 * 640) * 640 ** (-0.5) * 8.0)}

def reference(A_q, A_k, A_v, A_shift_k, A_ssm_k, A_ssm_D, B_x, B_w_in, B_w_sp, B_b_sp, B_w_out, c, w_mod):

    def _A_ref(q, k, v, shift_k, ssm_k, ssm_D):
        B, S, D = q.shape
        ks = shift_k.shape[-1]
        k_pad = _pad(k, ((0, 0), (ks - 1, 0), (0, 0)))
        k_shift = torch.zeros_like(k)
        for t in range(ks):
            k_shift = k_shift + k_pad[:, t:t + S, :] * shift_k[:, ks - 1 - t][None, None, :]
        kv = k_shift * v
        L = 2 * S
        kv_pad = _pad(kv, ((0, 0), (0, S), (0, 0)))
        kf_pad = _pad(ssm_k, ((0, 0), (0, S)))
        kv_f = (lambda x, axes=(-2, -1): torch.fft.rfft2(x.float(), dim=axes))(kv_pad[:, None, :, :], axes=(1, 2))
        kf_f = (lambda x, axes=(-2, -1): torch.fft.rfft2(x.float(), dim=axes))(kf_pad[:, None, :], axes=(1, 2))
        kf_f = (lambda x, *d: x.permute(*d))(kf_f, 1, 2, 0)
        y_f = kv_f * kf_f[None, :, :, :]
        y = (lambda x, s, axes=(-2, -1): torch.fft.irfft2(x, s=s, dim=axes).to(torch.bfloat16))(y_f, (1, L), axes=(1, 2))[:, 0, :S, :]
        y = y + kv * ssm_D[None, None, :]
        return q * y

    def _B_ref(x, w_in, w_sp, b_sp, w_out):
        B, S, D = x.shape
        F = w_in.shape[-1]
        Fh = F // 2
        z = _gelu(torch.einsum('bsd,df->bsf', x, w_in))
        z1 = z[..., :Fh].clone()
        z2 = _layernorm(z[..., Fh:], axis=-1)
        g = torch.einsum('ts,bsf->btf', w_sp, z2) + b_sp[None, :, None]
        return torch.einsum('bsf,fd->bsd', z1 * g, w_out)
    x = A_q
    mod = (_silu(c) @ w_mod).reshape(c.shape[0], 6, 1, -1)
    sa, ca, ga, sb, cb, gb = (mod[:, 0].clone(), mod[:, 1].clone(), mod[:, 2].clone(), mod[:, 3].clone(), mod[:, 4].clone(), mod[:, 5].clone())
    h = _layernorm(x, axis=-1) * (1 + ca) + sa
    x = x + ga * _A_ref(h, A_k, A_v, A_shift_k, A_ssm_k, A_ssm_D)
    h = _layernorm(x, axis=-1) * (1 + cb) + sb
    x = x + gb * _B_ref(h, B_w_in, B_w_sp, B_b_sp, B_w_out)
    return x
```

```python
import re

TRANS = ("v_exp_f32", "v_log_f32", "v_rcp_f32", "v_rsq_f32", "v_sqrt_f32", "v_sin_f32", "v_cos_f32")
RMW = ("v_fmac_", "v_dot2c_", "v_pk_fmac", "v_writelane")


def v(i, n=1):
    return f"v{i}" if n == 1 else f"v[{i}:{i + n - 1}]"


def a(i, n=1):
    return f"a{i}" if n == 1 else f"a[{i}:{i + n - 1}]"


def s(i, n=1):
    return f"s{i}" if n == 1 else f"s[{i}:{i + n - 1}]"


_REG = re.compile(r"^(-|\|)?(?:abs\()?([vas])(?:(\d+)|\[(\d+):(\d+)\])\)?\|?$")


def regs_of(op):
    op = op.strip()
    if op == "vcc":
        return {("s", "vcc")}
    if op in ("vcc_lo", "vcc_hi"):
        return {("s", "vcc")}
    if op in ("exec", "exec_lo", "exec_hi"):
        return {("s", "exec")}
    if op == "m0":
        return {("s", "m0")}
    m = _REG.match(op)
    if not m:
        return set()
    k = m.group(2)
    if m.group(3) is not None:
        return {(k, int(m.group(3)))}
    return {(k, i) for i in range(int(m.group(4)), int(m.group(5)) + 1)}


def split_ops(text):
    out, depth, cur = [], 0, ""
    for ch in text:
        if ch in "[(":
            depth += 1
        if ch in "])":
            depth -= 1
        if ch == "," and depth == 0:
            out.append(cur.strip())
            cur = ""
        else:
            cur += ch
    if cur.strip():
        out.append(cur.strip())
    return out


class Ins:
    __slots__ = ("text", "mn", "cls", "defs", "uses", "srcc", "srcab", "dpp", "wide_store", "tok", "waitfor", "data", "keep", "pkcross")

    def __init__(self, text):
        self.text = text
        self.tok = None
        self.waitfor = None
        self.keep = False
        self.pkcross = False
        self.defs, self.uses = set(), set()
        self.srcc, self.srcab, self.data = set(), set(), set()
        self.dpp = False
        self.wide_store = False
        t = text.split(";")[0].strip()
        if not t or t.endswith(":") or t.startswith("."):
            self.mn, self.cls = "", ("label" if t.endswith(":") else "none")
            return
        parts = t.split(None, 1)
        mn = parts[0]
        self.mn = mn
        rest = parts[1] if len(parts) > 1 else ""
        ops = split_ops(rest)
        if ops:
            last = ops[-1].split()
            mods = " ".join(last[1:])
            ops[-1] = last[0] if last else ""
        else:
            mods = ""
        R = [regs_of(o) for o in ops]
        allsrc = lambda lst: set().union(*lst) if lst else set()
        if mn.startswith("v_mfma"):
            self.cls = "mfma"
            self.defs = R[0]
            self.srcab = R[1] | R[2]
            self.srcc = R[3]
            self.uses = self.srcab | self.srcc
        elif mn.startswith("v_"):
            self.cls = "valu"
            self.dpp = "_dpp" in mn
            if mn.startswith("v_permlane") and "swap" in mn:
                self.defs = R[0] | R[1]
                self.uses = R[0] | R[1]
            elif mn.startswith(("v_add_co", "v_sub_co", "v_addc_co", "v_subb_co")):
                self.defs = R[0] | R[1]
                self.uses = allsrc(R[2:])
            elif mn == "v_nop":
                pass
            else:
                self.defs = R[0]
                self.uses = allsrc(R[1:])
                if mn.startswith(RMW) or self.dpp or "_sdwa" in mn:
                    self.uses |= R[0]
                if mn.startswith("v_cndmask") and len(ops) == 3:
                    self.uses |= {("s", "vcc")}
                if mn.startswith("v_dot"):
                    self.srcab = R[1] | R[2]
                if mn.startswith("v_pk_") and mn.endswith("_f32"):
                    m = re.search(r"op_sel:\[([01,]+)\]", mods)
                    sel = [int(b) for b in m.group(1).split(",")] if m else []
                    self.pkcross = any(b and ops[1 + i] == ops[2] for i, b in enumerate(sel))
        elif mn.startswith("ds_"):
            self.cls = "ds"
            if mn.startswith(("ds_read", "ds_bpermute", "ds_permute", "ds_swizzle")):
                self.defs = R[0]
                self.uses = allsrc(R[1:])
            else:
                self.uses = allsrc(R)
        elif mn.startswith(("global_", "buffer_")):
            self.cls = "vmem"
            if mn.startswith(("buffer_wbl2", "buffer_inv")):
                pass
            elif mn.startswith("global_load_lds"):
                self.uses = allsrc(R) | {("s", "m0")}
            elif mn.startswith("global_load"):
                self.defs = R[0]
                self.uses = allsrc(R[1:])
            elif mn.startswith("global_store"):
                self.uses = allsrc(R)
                self.data = R[1]
                self.wide_store = mn.endswith(("x3", "x4"))
            elif mn.startswith("global_atomic"):
                if "sc0" in mods.split():
                    self.defs = R[0]
                    self.uses = allsrc(R[1:])
                else:
                    self.uses = allsrc(R)
            else:
                raise ValueError("unsupported vmem: " + text)
        elif mn.startswith(("s_load", "s_memtime", "s_memrealtime")):
            self.cls = "smem"
            self.defs = R[0]
            self.uses = allsrc(R[1:])
        elif mn in ("s_waitcnt", "s_nop", "s_barrier", "s_endpgm", "s_sleep", "s_setprio"):
            self.cls = mn
        elif mn.startswith(("s_cbranch", "s_branch")):
            self.cls = "branch"
            if "vcc" in mn:
                self.uses = {("s", "vcc")}
        elif mn.startswith("s_"):
            self.cls = "salu"
            if mn.startswith(("s_cmp", "s_bitcmp")):
                self.uses = allsrc(R)
            else:
                self.defs = R[0]
                self.uses = allsrc(R[1:])
                if "saveexec" in mn:
                    self.defs |= {("s", "exec")}
        else:
            raise ValueError("unknown instruction: " + text)


class Stream:
    def __init__(self):
        self.ins = []

    def __call__(self, text):
        last = None
        for line in text.split("\n"):
            line = line.strip()
            if not line:
                continue
            last = Ins(line)
            self.ins.append(last)
        return last

    def wait(self, *toks):
        i = Ins("; wait")
        i.cls = "tokwait"
        i.waitfor = [t for t in toks if t is not None]
        self.ins.append(i)

    def drain(self, vm=True, lgkm=True):
        parts = []
        if vm:
            parts.append("vmcnt(0)")
        if lgkm:
            parts.append("lgkmcnt(0)")
        self("s_waitcnt " + " ".join(parts))

    def barrier(self):
        self("s_waitcnt lgkmcnt(0)")
        self("s_barrier")

    def extend(self, other):
        self.ins.extend(other.ins)
        return self

    def __len__(self):
        return len(self.ins)


def interleave(main, side, start=0.0, end=1.0, only_after=("mfma",)):
    out = Stream()
    anchors = [i for i, x in enumerate(main.ins) if x.cls in only_after]
    lo, hi = int(len(anchors) * start), max(int(len(anchors) * end), 1)
    use = anchors[lo:hi]
    n = len(side.ins)
    pos = {}
    for j in range(n):
        idx = use[min(len(use) - 1, (j * len(use)) // n)]
        pos.setdefault(idx, []).append(side.ins[j])
    for i, x in enumerate(main.ins):
        out.ins.append(x)
        out.ins.extend(pos.get(i, []))
    return out


_WAIT = re.compile(r"(vmcnt|lgkmcnt)\((\d+)\)")


def insert_waits(ins):
    out = []
    vm, lg = [], []

    def need(queue, regs, toks):
        idx = -1
        for i, e in enumerate(queue):
            if (regs and (e.defs & regs)) or (toks and any(e is t for t in toks)):
                idx = i
        return idx

    for x in ins:
        if x.cls == "s_waitcnt":
            for name, n in _WAIT.findall(x.text):
                n = int(n)
                q = vm if name == "vmcnt" else lg
                if name == "lgkmcnt" and n > 0 and any(e.cls == "smem" for e in lg):
                    continue
                del q[: max(0, len(q) - n)]
            out.append(x)
            continue
        regs = x.defs | x.uses
        toks = x.waitfor
        parts = []
        i = need(vm, regs, toks)
        if i >= 0:
            n = min(len(vm) - 1 - i, 63)
            parts.append(f"vmcnt({n})")
            del vm[: len(vm) - n]
        i = need(lg, regs, toks)
        if i >= 0:
            n = min(len(lg) - 1 - i, 15)
            if any(e.cls == "smem" for e in lg):
                n = 0
            parts.append(f"lgkmcnt({n})")
            del lg[: len(lg) - n]
        if parts:
            out.append(Ins("s_waitcnt " + " ".join(parts)))
        if x.cls == "tokwait":
            continue
        out.append(x)
        if x.cls == "vmem":
            vm.append(x)
        elif x.cls in ("ds", "smem"):
            lg.append(x)
    return out


def _states(x):
    if x.cls in ("label", "none"):
        return 0
    if x.cls == "s_nop":
        return int(x.text.split()[1], 0) + 1
    return 1


def _isv(r):
    return r[0] in ("v", "a")


def required_gap(p, c):
    need = 0
    if p.cls == "valu":
        vdef = {r for r in p.defs if _isv(r)}
        sdef = {r for r in p.defs if r[0] == "s"}
        if c.cls == "mfma" and vdef & c.uses:
            need = max(need, 2)
        if c.cls == "mfma" and p.pkcross:
            need = max(need, 1)
        if c.cls == "valu":
            if c.dpp and vdef & c.uses:
                need = max(need, 2)
            if c.mn.startswith("v_permlane") and vdef & c.uses:
                need = max(need, 2)
            if c.mn.startswith(("v_readlane", "v_readfirstlane")) and vdef & c.uses:
                need = max(need, 1)
            if p.mn.startswith(TRANS) and vdef & c.uses:
                need = max(need, 1)
            if ("_sdwa" in p.mn or p.mn.startswith("v_fma_mix")) and vdef & (c.uses | c.defs):
                need = max(need, 1)
            if sdef & c.uses:
                need = max(need, 4 if c.mn.startswith(("v_readlane", "v_writelane")) else 2)
            if p.mn.startswith("v_dot") and vdef & (c.uses | c.defs):
                chain = p.mn == c.mn and not (vdef & c.srcab) and (vdef & c.uses)
                need = max(need, 0 if chain else 3)
        if p.mn.startswith("v_dot") and c.cls in ("ds", "vmem", "mfma") and vdef & c.uses:
            need = max(need, 3)
        if c.cls == "vmem" and sdef & c.uses:
            need = max(need, 5)
        if c.cls in ("salu", "branch", "smem") and sdef & c.uses:
            need = max(need, 1)
    elif p.cls == "mfma":
        if c.cls == "mfma":
            if p.defs & c.srcab:
                need = max(need, 8)
            if p.defs & c.srcc and p.defs != c.srcc:
                need = max(need, 6)
            if p.defs & c.defs and not (p.defs & c.srcc):
                need = max(need, 6)
        elif c.cls in ("valu", "ds", "vmem"):
            if p.defs & (c.uses | c.defs):
                need = max(need, 8)
            if c.cls == "valu" and p.srcc & c.defs:
                need = max(need, 3)
    elif p.cls == "vmem":
        if p.wide_store and (p.data & c.defs):
            need = max(need, 2)
    elif p.cls == "salu":
        if ("s", "m0") in p.defs and c.cls == "vmem" and ("s", "m0") in c.uses:
            need = max(need, 1)
    return need


def insert_nops(ins):
    out = []
    for x in ins:
        if x.cls not in ("label", "none", "s_nop", "s_waitcnt", "s_barrier"):
            dist, pad = 0, 0
            for p in reversed(out):
                if dist >= 10:
                    break
                if p.cls not in ("label", "none"):
                    pad = max(pad, required_gap(p, x) - dist)
                dist += _states(p)
            if pad > 0:
                out.append(Ins(f"s_nop {pad - 1}"))
        out.append(x)
    return out


def finalize(stream):
    ins = insert_nops(insert_waits(stream.ins))
    lines = []
    for x in ins:
        lines.append(x.text if x.cls == "label" else "    " + x.text)
    return "\n".join(lines) + "\n"


class Alloc:
    def __init__(self, lo, hi):
        self.lo, self.hi, self.p = lo, hi, lo

    def __call__(self, n=1, align=None):
        al = align or (1 if n == 1 else 2 if n < 4 else 4)
        p = (self.p + al - 1) // al * al
        assert p + n <= self.hi, f"out of registers: need {n} at {p}, limit {self.hi}"
        self.p = p + n
        return p

    def mark(self):
        return self.p

    def reset(self, m):
        self.p = m
```

```python
from asmlib import Stream, Alloc, v, a, s, interleave

S, D, FH = 2048, 640, 864
Q, K, V, SHK, SSM, SD, BX, WIN, WSP, BSP, WOUT, C, WMOD, OUT, DBG, WS = range(8, 40, 2)
WAVE = 3
LANE = 1
MODP = 0x0
ST1 = 0x8000
U = 0xC000
ST3 = 0x10000
XB = 0x100000
X1 = 0x400000
WP = 0x700000
WO = 0xA00000
Z2 = 0xC00000
P = 0x1000000
Z1 = 0x1400000
STAMP = 0x2000000

ONES = 0x3F803F80
LOG2E = 0x3FB8AA3B
SEL_LO = 0x05040100
SEL_HI = 0x07060302


def fbits(x):
    import struct
    return struct.unpack("<I", struct.pack("<f", x))[0]


def sp(i):
    return s(i, 2)


def prologue(k):
    k(f"s_load_dwordx16 s[8:23], s[0:1], 0")
    k(f"s_load_dwordx16 s[24:39], s[0:1], 64")
    k(f"v_lshrrev_b32 v2, 6, v0")
    k(f"v_and_b32 {v(LANE)}, 63, v0")
    k(f"v_readfirstlane_b32 {s(WAVE)}, v2")


def unpack(k, lo, hi, src):
    k(f"v_lshlrev_b32 {v(lo)}, 16, {v(src)}")
    k(f"v_and_b32 {v(hi)}, 0xffff0000, {v(src)}")


def bsel(r):
    return v(r & ~1, 2), r & 1


def pk(k, op, dst, srcs, neg=None):
    ops, lo, hi = [], [], []
    if srcs[1][0] == "b" and srcs[0][0] != "b" and not neg:
        srcs = [srcs[1], srcs[0]] + list(srcs[2:])
    for kind, r in srcs:
        if kind == "p":
            ops.append(v(r, 2)); lo.append(0); hi.append(1)
        elif kind == "sp":
            ops.append(s(r, 2)); lo.append(0); hi.append(1)
        elif kind == "b":
            t, b = bsel(r)
            ops.append(t); lo.append(b); hi.append(b)
        elif kind == "sb":
            ops.append(s(r & ~1, 2)); lo.append(r & 1); hi.append(r & 1)
        else:
            ops.append(r); lo.append(0); hi.append(0)
    m = f" op_sel:[{','.join(map(str, lo))}] op_sel_hi:[{','.join(map(str, hi))}]"
    if neg:
        m += f" neg_lo:[{','.join(map(str, neg))}] neg_hi:[{','.join(map(str, neg))}]"
    return k(f"v_pk_{op}_f32 {v(dst, 2)}, {', '.join(ops)}{m}")


def round_bf16(k, r):
    k(f"v_cvt_pk_bf16_f32 {v(r)}, {v(r)}, {v(r)}")
    k(f"v_lshlrev_b32 {v(r)}, 16, {v(r)}")


def mod_unit(k, su, st="sc1"):
    R = Alloc(2, 250)
    k(f"s_cmp_ge_u32 {s(su)}, 60")
    k(f"s_cselect_b32 s4, 1, 0")
    k(f"s_mul_i32 s5, s4, 60")
    k(f"s_sub_u32 s5, {s(su)}, s5")
    k(f"s_mul_i32 s6, s4, 320")
    k(f"s_mul_i32 s7, {s(WAVE)}, 80")
    k(f"s_add_u32 s6, s6, s7")
    row, off, coff = R(), R(), R()
    k(f"v_lshrrev_b32 {v(row)}, 3, {v(LANE)}")
    k(f"v_add_u32 {v(row)}, s6, {v(row)}")
    k(f"v_lshlrev_b32 {v(coff)}, 1, {v(row)}")
    k(f"v_mul_u32_u24 {v(off)}, 7680, {v(row)}")
    k(f"v_and_b32 {v(row)}, 7, {v(LANE)}")
    k(f"v_lshl_add_u32 {v(off)}, {v(row)}, 4, {v(off)}")
    k(f"s_lshl_b32 s7, s5, 7")
    k(f"v_add_u32 {v(off)}, s7, {v(off)}")
    cv = R(10, 2)
    w = R(40, 4)
    for i in range(10):
        k(f"global_load_ushort {v(cv + i)}, {v(coff)}, {sp(C)} offset:{16 * i}")
    for i in range(10):
        k(f"global_load_dwordx4 {v(w + 4 * i, 4)}, {v(off)}, {sp(WMOD)} nt")
        if i < 9:
            k(f"v_add_u32 {v(off)}, {8 * 7680}, {v(off)}")
    t = R(10, 2)
    for i in range(10):
        k(f"v_lshlrev_b32 {v(cv + i)}, 16, {v(cv + i)}")
        k(f"v_mul_f32 {v(t + i)}, {hex(LOG2E | 0x80000000)}, {v(cv + i)}")
    for i in range(10):
        k(f"v_exp_f32 {v(t + i)}, {v(t + i)}")
    for i in range(10):
        k(f"v_add_f32 {v(t + i)}, 1.0, {v(t + i)}")
    for i in range(10):
        k(f"v_rcp_f32 {v(t + i)}, {v(t + i)}")
    for i in range(10):
        k(f"v_mul_f32 {v(cv + i)}, {v(cv + i)}, {v(t + i)}")
    for i in range(10):
        round_bf16(k, cv + i)
    acc = R(8, 2)
    u = R(8, 2)
    for i in range(10):
        for j in range(4):
            unpack(k, u + 2 * j, u + 2 * j + 1, w + 4 * i + j)
        for j in range(4):
            if i == 0:
                pk(k, "mul", acc + 2 * j, [("p", u + 2 * j), ("b", cv + i)])
            else:
                pk(k, "fma", acc + 2 * j, [("p", u + 2 * j), ("b", cv + i), ("p", acc + 2 * j)])
    for j in range(4):
        k(f"v_permlane32_swap_b32 {v(acc + j)}, {v(acc + j + 4)}")
    for j in range(4):
        k(f"v_add_f32 {v(acc + j)}, {v(acc + j)}, {v(acc + j + 4)}")
    for j in range(2):
        k(f"v_permlane16_swap_b32 {v(acc + j)}, {v(acc + j + 2)}")
    for j in range(2):
        k(f"v_add_f32 {v(acc + j)}, {v(acc + j)}, {v(acc + j + 2)}")
    res = u
    k(f"v_add_f32_dpp {v(res)}, {v(acc)}, {v(acc)} row_ror:8 row_mask:0xf bank_mask:0x3")
    k(f"v_add_f32_dpp {v(res)}, {v(acc + 1)}, {v(acc + 1)} row_ror:8 row_mask:0xf bank_mask:0xc")
    ad = u + 1
    k(f"v_and_b32 {v(ad)}, 7, {v(LANE)}")
    k(f"v_lshrrev_b32 {v(u + 2)}, 3, {v(LANE)}")
    k(f"v_lshl_add_u32 {v(ad)}, {v(ad)}, 3, {v(u + 2)}")
    k(f"s_lshl_b32 s7, {s(WAVE)}, 6")
    k(f"v_add_lshl_u32 {v(ad)}, {v(ad)}, s7, 2")
    k(f"ds_write_b32 {v(ad)}, {v(res)}")
    k.barrier()
    k(f"v_lshlrev_b32 {v(ad)}, 2, {v(LANE)}")
    for i in range(4):
        k(f"ds_read_b32 {v(acc + i)}, {v(ad)} offset:{256 * i}")
    k(f"s_mul_i32 s6, s4, {3840 * 4}")
    k(f"s_lshl_b32 s7, s5, 8")
    k(f"s_add_u32 s6, s6, s7")
    k(f"s_add_u32 s6, s6, {MODP}")
    k(f"v_add_u32 {v(ad)}, s6, {v(ad)}")
    k(f"v_add_f32 {v(acc)}, {v(acc)}, {v(acc + 1)}")
    k(f"v_add_f32 {v(acc + 2)}, {v(acc + 2)}, {v(acc + 3)}")
    k(f"v_add_f32 {v(acc)}, {v(acc)}, {v(acc + 2)}")
    k(f"s_cmp_lg_u32 {s(WAVE)}, 0")
    lab = f"Lmod_skip_{id(k) & 0xffff}_{len(k)}"
    k(f"s_cbranch_scc1 {lab}")
    k(f"global_store_dword {v(ad)}, {v(acc)}, {sp(WS)} {st}")
    k(f"{lab}:")


def row_stats(k, sm, sq, n, tmp):
    inv = hex(fbits(1.0 / n))
    k(f"v_mul_f32 {v(sm)}, {inv}, {v(sm)}")
    k(f"v_mul_f32 {v(sq)}, {inv}, {v(sq)}")
    k(f"v_fma_f32 {v(sq)}, -{v(sm)}, {v(sm)}, {v(sq)}")
    k(f"v_max_f32 {v(sq)}, 0, {v(sq)}")
    k(f"v_add_f32 {v(sq)}, {hex(fbits(1e-5))}, {v(sq)}")
    k(f"v_rsq_f32 {v(tmp)}, {v(sq)}")
    k(f"v_mul_f32 {v(sq)}, -{v(sm)}, {v(tmp)}".replace("v_mul_f32", "v_mul_f32_e64"))
    k(f"v_mov_b32 {v(sm)}, {v(tmp)}")


def x_unit(k, su, st="sc1"):
    R = Alloc(2, 250)
    off, a0, a1 = R(), R(), R()
    k(f"s_lshl_b32 s4, {s(su)}, 2")
    k(f"s_add_u32 s4, s4, {s(WAVE)}")
    k(f"s_mul_i32 s4, s4, {8 * 1280}")
    k(f"s_add_u32 s4, s4, 4096")
    k(f"v_lshl_add_u32 {v(off)}, {v(LANE)}, 4, s4")
    d = R(40, 4)
    for i in range(10):
        if i == 8:
            k(f"v_add_u32 {v(off)}, 8192, {v(off)}")
        k(f"global_load_dwordx4 {v(d + 4 * i, 4)}, {v(off)}, {sp(Q)} offset:{1024 * (i % 8) - 4096} nt")
    k(f"s_mul_i32 s5, {s(WAVE)}, 10304")
    k(f"v_lshl_add_u32 {v(a0)}, {v(LANE)}, 4, s5")
    k(f"v_lshrrev_b32 {v(a1)}, 5, {v(LANE)}")
    k(f"v_lshl_add_u32 {v(a1)}, {v(a1)}, 4, {v(a0)}")
    for i in range(10):
        pad = (64 * i) // 160
        k(f"ds_write_b128 {v(a1 if i in (2, 7) else a0)}, {v(d + 4 * i, 4)} offset:{1024 * i + 16 * pad}")
    k.barrier()
    rho, gq = R(), R()
    k(f"v_and_b32 {v(rho)}, 15, {v(LANE)}")
    k(f"v_lshrrev_b32 {v(gq)}, 4, {v(LANE)}")
    k(f"v_mul_u32_u24 {v(a0)}, 2576, {v(rho)}")
    k(f"v_lshl_add_u32 {v(a0)}, {v(gq)}, 3, {v(a0)}")
    k(f"s_mul_i32 s5, {s(WAVE)}, 320")
    k(f"v_add_u32 {v(a0)}, s5, {v(a0)}")
    for i in range(10):
        k(f"ds_read2_b64 {v(d + 4 * i, 4)}, {v(a0)} offset0:{4 * i} offset1:{160 + 4 * i}")
    k(f"s_mul_i32 s5, {s(WAVE)}, {40 * 16384}")
    k(f"s_lshl_b32 s6, {s(su)}, 8")
    k(f"s_add_u32 s5, s5, s6")
    k(f"s_add_u32 s5, s5, {XB}")
    k(f"v_lshlrev_b32 {v(off)}, 14, {v(gq)}")
    k(f"v_lshl_add_u32 {v(off)}, {v(rho)}, 4, {v(off)}")
    k(f"v_add_u32 {v(off)}, s5, {v(off)}")
    st4 = R(4, 2)
    k(f"s_mov_b32 s7, {hex(ONES)}")
    for j in range(4):
        k(f"v_mov_b32 {v(st4 + j)}, 0")
    for i in range(10):
        k(f"global_store_dwordx4 {v(off)}, {v(d + 4 * i, 4)}, {sp(WS)} {st}")
        if i < 9:
            k(f"v_add_u32 {v(off)}, 65536, {v(off)}")
        for j in range(2):
            for r in range(2):
                src = d + 4 * i + 2 * r + j
                k(f"v_dot2_f32_bf16 {v(st4 + 2 * r)}, {v(src)}, s7, {v(st4 + 2 * r)}")
                k(f"v_dot2_f32_bf16 {v(st4 + 2 * r + 1)}, {v(src)}, {v(src)}, {v(st4 + 2 * r + 1)}")
    k(f"v_permlane32_swap_b32 {v(st4)}, {v(st4 + 2)}")
    k(f"v_permlane32_swap_b32 {v(st4 + 1)}, {v(st4 + 3)}")
    k(f"v_add_f32 {v(st4)}, {v(st4)}, {v(st4 + 2)}")
    k(f"v_add_f32 {v(st4 + 1)}, {v(st4 + 1)}, {v(st4 + 3)}")
    k(f"v_permlane16_swap_b32 {v(st4)}, {v(st4 + 1)}")
    k(f"v_add_f32 {v(st4)}, {v(st4)}, {v(st4 + 1)}")
    SB = 41472
    k(f"v_lshlrev_b32 {v(a0)}, 4, {v(rho)}")
    k(f"v_lshl_add_u32 {v(a0)}, {v(gq)}, 2, {v(a0)}")
    k(f"s_lshl_b32 s5, {s(WAVE)}, 8")
    k(f"v_add_u32 {v(a0)}, s5, {v(a0)}")
    k(f"ds_write_b32 {v(a0)}, {v(st4)} offset:{SB}")
    k.barrier()
    pr = R(8, 2)
    k(f"v_and_b32 {v(a0)}, 31, {v(LANE)}")
    k(f"v_lshlrev_b32 {v(a0)}, 3, {v(a0)}")
    for i in range(4):
        k(f"ds_read_b64 {v(pr + 2 * i, 2)}, {v(a0)} offset:{SB + 256 * i}")
    pk(k, "add", pr, [("p", pr), ("p", pr + 2)])
    pk(k, "add", pr + 4, [("p", pr + 4), ("p", pr + 6)])
    pk(k, "add", pr, [("p", pr), ("p", pr + 4)])
    row_stats(k, pr, pr + 1, D, pr + 2)
    k(f"s_lshl_b32 s5, {s(su)}, 8")
    k(f"s_add_u32 s5, s5, {ST1}")
    k(f"v_add_u32 {v(a0)}, s5, {v(a0)}")
    lab = f"Lx_skip_{id(k) & 0xffff}_{len(k)}"
    k(f"s_cmp_lg_u32 {s(WAVE)}, 0")
    k(f"s_cbranch_scc1 {lab}")
    k(f"global_store_dwordx2 {v(a0)}, {v(pr, 2)}, {sp(WS)} {st}")
    k(f"{lab}:")


def wout_unit(k, su, st="sc1"):
    R = Alloc(2, 250)
    off, ap, aq = R(), R(), R()
    k(f"s_mul_i32 s4, {s(su)}, 40960")
    k(f"s_mul_i32 s5, {s(WAVE)}, 10240")
    k(f"s_add_u32 s4, s4, s5")
    k(f"v_lshl_add_u32 {v(off)}, {v(LANE)}, 4, s4")
    toks = []
    for i in range(10):
        if i % 4 == 0:
            k(f"s_add_u32 m0, s5, {1024 * i}")
            if i:
                k(f"v_add_u32 {v(off)}, 4096, {v(off)}")
        toks.append(k(f"global_load_lds_dwordx4 {v(off)}, {sp(WOUT)} offset:{1024 * (i % 4)} nt"))
    m, q = R(), R()
    k(f"v_and_b32 {v(m)}, 15, {v(LANE)}")
    k(f"v_lshrrev_b32 {v(q)}, 4, {v(LANE)}")
    k(f"v_mul_u32_u24 {v(q)}, {8 * 1280}, {v(q)}")
    k(f"s_mul_i32 s5, {s(WAVE)}, 320")
    k(f"v_add_u32 {v(q)}, s5, {v(q)}")
    k(f"v_lshl_add_u32 {v(ap)}, {v(m)}, 2, {v(q)}")
    k(f"v_lshl_add_u32 {v(aq)}, {v(m)}, 1, {v(q)}")
    k(f"s_mul_i32 s5, {s(WAVE)}, {2 * 27 * 5120}")
    k(f"s_mul_i32 s6, {s(su)}, 5120")
    k(f"s_add_u32 s5, s5, s6")
    k(f"s_add_u32 s5, s5, {WO + 2048}")
    k(f"v_lshl_add_u32 {v(off)}, {v(LANE)}, 4, s5")
    k(f"s_mov_b32 s6, {hex(SEL_LO)}")
    k(f"s_mov_b32 s7, {hex(SEL_HI)}")
    k.wait(*toks)
    k("s_barrier")
    order = [0, 2, 4, 6, 1, 3, 5, 7]
    for c in range(2):
        t = R(24, 4)
        o = R(20, 4)
        for b in range(2):
            for e in range(8):
                k(f"ds_read_b32 {v(t + 8 * b + e)}, {v(ap)} offset:{order[e] * 1280 + 160 * c + 64 * b}")
        for e in range(8):
            k(f"ds_read_u16 {v(t + 16 + e)}, {v(aq)} offset:{order[e] * 1280 + 160 * c + 128}")
        for b in range(2):
            for par in range(2):
                for j in range(4):
                    k(f"v_perm_b32 {v(o + 8 * b + 4 * par + j)}, {v(t + 8 * b + 2 * j + 1)}, {v(t + 8 * b + 2 * j)}, s{6 + par}")
        for j in range(4):
            k(f"v_perm_b32 {v(o + 16 + j)}, {v(t + 16 + 2 * j + 1)}, {v(t + 16 + 2 * j)}, s6")
        for dt in range(5):
            k(f"global_store_dwordx4 {v(off)}, {v(o + 4 * dt, 4)}, {sp(WS)} offset:{1024 * dt - 2048} {st}")
        if c == 0:
            k(f"v_add_u32 {v(off)}, {27 * 5120}, {v(off)}")


def load_mod4(k, dst, tmp, voff, row, ld=""):
    base = MODP + row * D * 4
    k(f"v_add_u32 {v(tmp + 4)}, {base}, {v(voff)}")
    k(f"global_load_dwordx4 {v(dst, 4)}, {v(tmp + 4)}, {sp(WS)} {ld}")
    k(f"v_add_u32 {v(tmp + 4)}, {base + 3840 * 4}, {v(voff)}")
    k(f"global_load_dwordx4 {v(tmp, 4)}, {v(tmp + 4)}, {sp(WS)} {ld}")


def fin_mod4(k, dst, tmp, plus1=False):
    for j in range(4):
        k(f"v_add_f32 {v(dst + j)}, {v(dst + j)}, {v(tmp + j)}")
    for j in range(4):
        round_bf16(k, dst + j)
    if plus1:
        for j in range(4):
            k(f"v_add_f32 {v(dst + j)}, 1.0, {v(dst + j)}")
        for j in range(4):
            round_bf16(k, dst + j)


def wp_unit(k, su, st="sc1"):
    R = Alloc(2, 250)
    n, q, off = R(), R(), R()
    k(f"v_and_b32 {v(n)}, 15, {v(LANE)}")
    k(f"v_lshrrev_b32 {v(q)}, 4, {v(LANE)}")
    k(f"s_mul_i32 s4, {s(WAVE)}, {160 * 3456}")
    k(f"s_lshl_b32 s5, {s(su)}, 6")
    k(f"s_add_u32 s4, s4, s5")
    k(f"s_add_u32 s4, s4, 3456")
    k(f"v_mul_u32_u24 {v(off)}, {8 * 3456}, {v(q)}")
    k(f"v_lshl_add_u32 {v(off)}, {v(n)}, 2, {v(off)}")
    k(f"v_add_u32 {v(off)}, s4, {v(off)}")
    w = R(40, 4)
    cur = 1
    for ks in range(5):
        for e in range(8):
            row = 32 * ks + e
            if row - cur > 1:
                k(f"v_add_u32 {v(off)}, {(row + 1 - cur) * 3456}, {v(off)}")
                cur = row + 1
            k(f"global_load_dword {v(w + 8 * ks + e)}, {v(off)}, {sp(WIN)} offset:{(row - cur) * 3456} nt")
    mo = R()
    cb4, t0 = R(4, 4), R(5, 4)
    sb4, t1 = R(4, 4), R(5, 4)
    k(f"v_min_u32 {v(mo)}, 39, {v(LANE)}")
    k(f"s_mul_i32 s5, {s(WAVE)}, 640")
    k(f"v_lshl_add_u32 {v(mo)}, {v(mo)}, 4, s5")
    load_mod4(k, cb4, t0, mo, 4)
    load_mod4(k, sb4, t1, mo, 3)
    fin_mod4(k, cb4, t0, plus1=True)
    fin_mod4(k, sb4, t1)
    k(f"ds_write_b128 {v(mo)}, {v(cb4, 4)}")
    k(f"ds_write_b128 {v(mo)}, {v(sb4, 4)} offset:2560")
    ta = R()
    k(f"v_lshl_add_u32 {v(ta)}, {v(q)}, 5, s5")
    k(f"s_cmp_ge_u32 {s(su)}, 27")
    k(f"s_cselect_b32 s6, -54, 56")
    k(f"s_lshl_b32 s7, {s(su)}, 1")
    k(f"s_add_u32 s6, s6, s7")
    k(f"s_mul_i32 s4, s6, 20480")
    k(f"s_mul_i32 s5, {s(WAVE)}, 5120")
    k(f"s_add_u32 s4, s4, s5")
    k(f"s_add_u32 s4, s4, {WP + 2048}")
    oe, oo = R(), R()
    k(f"v_lshl_add_u32 {v(oe)}, {v(LANE)}, 4, s4")
    k(f"v_add_u32 {v(oo)}, 20480, {v(oe)}")
    k(f"s_mov_b32 s7, {hex(ONES)}")
    uu = R(4, 2)
    for j in range(4):
        k(f"v_mov_b32 {v(uu + j)}, 0")
    cst = [R(16, 4) for _ in range(2)]
    un = R(16, 2)
    pr = R(16, 2)
    outs = [R(8, 4) for _ in range(2)]
    for ks in range(5):
        cc = cst[ks & 1]
        o = outs[ks & 1]
        for h in range(2):
            k(f"ds_read_b128 {v(cc + 4 * h, 4)}, {v(ta)} offset:{128 * ks + 16 * h}")
            k(f"ds_read_b128 {v(cc + 8 + 4 * h, 4)}, {v(ta)} offset:{2560 + 128 * ks + 16 * h}")
        for e in range(8):
            unpack(k, un + 2 * e, un + 2 * e + 1, w + 8 * ks + e)
        for e in range(8):
            pk(k, "mul", pr + 2 * e, [("p", un + 2 * e), ("b", cc + e)])
        for par in range(2):
            for j in range(4):
                k(f"v_cvt_pk_bf16_f32 {v(o + 4 * par + j)}, {v(pr + 4 * j + par)}, {v(pr + 4 * j + 2 + par)}")
        k(f"global_store_dwordx4 {v(oe)}, {v(o, 4)}, {sp(WS)} offset:{1024 * ks - 2048} {st}")
        k(f"global_store_dwordx4 {v(oo)}, {v(o + 4, 4)}, {sp(WS)} offset:{1024 * ks - 2048} {st}")
        for e in range(8):
            pk(k, "fma", uu + 2, [("p", un + 2 * e), ("b", cc + 8 + e), ("p", uu + 2)])
        for j in range(4):
            for par in range(2):
                k(f"v_dot2_f32_bf16 {v(uu + par)}, {v(o + 4 * par + j)}, s7, {v(uu + par)}")
    k(f"v_permlane32_swap_b32 {v(uu)}, {v(uu + 1)}")
    k(f"v_permlane32_swap_b32 {v(uu + 2)}, {v(uu + 3)}")
    k(f"v_add_f32 {v(uu)}, {v(uu)}, {v(uu + 1)}")
    k(f"v_add_f32 {v(uu + 2)}, {v(uu + 2)}, {v(uu + 3)}")
    k(f"v_permlane16_swap_b32 {v(uu)}, {v(uu + 2)}")
    k(f"v_add_f32 {v(uu)}, {v(uu)}, {v(uu + 2)}")
    k(f"v_lshlrev_b32 {v(ta)}, 2, v0")
    k(f"ds_write_b32 {v(ta)}, {v(uu)} offset:5120")
    k.barrier()
    k(f"v_lshlrev_b32 {v(ta)}, 2, {v(LANE)}")
    for i in range(4):
        k(f"ds_read_b32 {v(un + i)}, {v(ta)} offset:{5120 + 256 * i}")
    k(f"s_lshl_b32 s6, s6, 7")
    k(f"s_add_u32 s6, s6, {U}")
    k(f"v_add_u32 {v(ta)}, s6, {v(ta)}")
    k(f"v_add_f32 {v(un)}, {v(un)}, {v(un + 1)}")
    k(f"v_add_f32 {v(un + 2)}, {v(un + 2)}, {v(un + 3)}")
    k(f"v_add_f32 {v(un)}, {v(un)}, {v(un + 2)}")
    lab = f"Lwp_skip_{id(k) & 0xffff}_{len(k)}"
    k(f"s_cmp_lg_u32 {s(WAVE)}, 0")
    k(f"s_cbranch_scc1 {lab}")
    k(f"global_store_dword {v(ta)}, {v(un)}, {sp(WS)} {st}")
    k(f"{lab}:")


def wp_zero_unit(k, su, st="sc1"):
    R = Alloc(2, 250)
    off = R()
    z = R(4, 4)
    for j in range(4):
        k(f"v_mov_b32 {v(z + j)}, 0")
    k(f"s_mul_i32 s4, {s(su)}, {56 * 20480}")
    k(f"s_add_u32 s4, s4, {WP + 54 * 20480}")
    k(f"v_lshl_add_u32 {v(off)}, v0, 4, s4")
    for i in range(10):
        k(f"global_store_dwordx4 {v(off)}, {v(z, 4)}, {sp(WS)} {st}")
        k(f"v_add_u32 {v(off)}, 4096, {v(off)}")
    k(f"s_mul_i32 s4, {s(su)}, {56 * 128}")
    k(f"s_add_u32 s4, s4, {U + 54 * 128}")
    k(f"v_lshl_add_u32 {v(off)}, {v(LANE)}, 2, s4")
    k(f"global_store_dword {v(off)}, {v(z)}, {sp(WS)} {st}")


def fill_unit(k, base, nbytes_per_wg, su, val=-1, st="sc1"):
    R = Alloc(2, 250)
    off = R()
    z = R(4, 4)
    for j in range(4):
        k(f"v_mov_b32 {v(z + j)}, {val}")
    k(f"s_mul_i32 s4, {s(su)}, {nbytes_per_wg}")
    k(f"s_add_u32 s4, s4, {base}")
    k(f"v_lshl_add_u32 {v(off)}, v0, 4, s4")
    for i in range(nbytes_per_wg // 4096):
        k(f"global_store_dwordx4 {v(off)}, {v(z, 4)}, {sp(WS)} {st}")
        k(f"v_add_u32 {v(off)}, 4096, {v(off)}")
```

```python
from asmlib import Stream, Alloc, v, a, s, interleave
from blocks import *

KT = 0
KSTR = 4224
YT = 16896
YCH = 1056
UT = YT + 2 * 4 * YCH
UCP = 4640
UCH = 4 * UCP
CONV_LDS = UT + 4 * UCH


def conv_block(k, sg, st="sc1", ld=""):
    R = Alloc(2, 256)
    n, q = R(), R()
    k(f"v_and_b32 {v(n)}, 15, {v(LANE)}")
    k(f"v_lshrrev_b32 {v(q)}, 4, {v(LANE)}")
    t0 = R()
    k(f"s_lshl_b32 s4, {s(sg)}, 2")
    k(f"s_add_u32 s4, s4, {s(WAVE)}")
    k(f"s_lshl_b32 s4, s4, 12")
    k(f"v_lshl_add_u32 {v(t0)}, {v(LANE)}, 4, s4")
    k(f"s_mul_i32 s5, {s(WAVE)}, {KSTR}")
    k(f"s_add_u32 m0, s5, {KT + 128}")
    ktok = [k(f"global_load_lds_dwordx4 {v(t0)}, {sp(SSM)} offset:{1024 * i} nt") for i in range(4)]
    go = R()
    k(f"s_mul_i32 s6, {s(WAVE)}, {128 * 1280}")
    k(f"s_lshl_b32 s7, {s(sg)}, 3")
    k(f"s_add_u32 s6, s6, s7")
    k(f"v_mul_u32_u24 {v(go)}, 2560, {v(LANE)}")
    k(f"v_add_u32 {v(go)}, s6, {v(go)}")
    kr = [R(4, 4) for _ in range(4)]
    vr = [R(4, 4) for _ in range(4)]
    for c in range(4):
        for r in range(2):
            k(f"global_load_dwordx2 {v(kr[c] + 2 * r, 2)}, {v(go)}, {sp(K)} offset:{1280 * r}")
            k(f"global_load_dwordx2 {v(vr[c] + 2 * r, 2)}, {v(go)}, {sp(V)} offset:{1280 * r}")
        if c < 3:
            k(f"v_add_u32 {v(go)}, {512 * 1280}, {v(go)}")
    SH, SDv, HAL = 40, 48, 52
    k(f"s_lshl_b32 s4, {s(sg)}, 5")
    k(f"s_load_dwordx8 s[{SH}:{SH + 7}], {sp(SHK)}, s4")
    k(f"s_load_dwordx2 s[{SDv}:{SDv + 1}], {sp(SD)}, s7")
    for c in range(4):
        for j in range(3):
            k(f"s_add_i32 s4, s6, {(512 * c - 3 + j) * 1280}")
            if c == 0:
                k(f"s_max_i32 s4, s4, 0")
            k(f"s_load_dwordx2 s[{HAL + 6 * c + 2 * j}:{HAL + 6 * c + 2 * j + 1}], {sp(K)}, s4")
    z = R(4, 4)
    for j in range(4):
        k(f"v_mov_b32 {v(z + j)}, 0")
    k(f"v_and_b32 {v(t0)}, 7, {v(LANE)}")
    k(f"v_lshl_add_u32 {v(t0)}, {v(t0)}, 4, s5")
    k(f"ds_write_b128 {v(t0)}, {v(z, 4)} offset:{KT}")
    k(f"v_min_u32 {v(t0)}, 25, {v(LANE)}")
    k(f"s_mul_i32 s4, {s(WAVE)}, {UCH}")
    k(f"v_lshl_add_u32 {v(t0)}, {v(t0)}, 4, s4")
    for rho in range(4):
        k(f"ds_write_b128 {v(t0)}, {v(z, 4)} offset:{UT + rho * UCP + 4080}")
    mo = R()
    Ac, Bc, Gc = R(4, 4), R(4, 4), R(4, 4)
    tA, tB, tG = R(5, 4), R(5, 4), R(5, 4)
    k(f"s_lshl_b32 s4, {s(sg)}, 4")
    k(f"v_mov_b32 {v(mo)}, s4")
    load_mod4(k, Bc, tB, mo, 0, ld)
    load_mod4(k, Ac, tA, mo, 1, ld)
    load_mod4(k, Gc, tG, mo, 2, ld)
    xo, so = R(), R()
    k(f"s_lshl_b32 s4, {s(sg)}, 14")
    k(f"v_lshl_add_u32 {v(xo)}, v0, 4, s4")
    k(f"v_lshlrev_b32 {v(so)}, 4, v0")
    xr = [R(4, 4) for _ in range(4)]
    sr = [R(4, 4) for _ in range(4)]
    for c in range(4):
        k(f"v_add_u32 {v(t0)}, {XB + 4096 * c}, {v(xo)}")
        k(f"global_load_dwordx4 {v(xr[c], 4)}, {v(t0)}, {sp(WS)} {ld}")
        k(f"v_add_u32 {v(t0)}, {ST1 + 4096 * c}, {v(so)}")
        k(f"global_load_dwordx4 {v(sr[c], 4)}, {v(t0)}, {sp(WS)} {ld}")
    k(f"v_add_u32 {v(xo)}, {X1}, {v(xo)}")
    ka = R()
    k(f"v_lshlrev_b32 {v(ka)}, 3, {v(n)}")
    k(f"v_lshl_add_u32 {v(ka)}, {v(q)}, 4, {v(ka)}")
    k(f"v_add_u32 {v(ka)}, s5, {v(ka)}")
    k.wait(*ktok)
    for j in range(64):
        for h in range(2):
            k(f"ds_read_b64 {a(4 * j + 2 * h, 2)}, {v(ka)} offset:{KT + 8 + 64 * j + 8 * h}")
    TP = 76
    for j in range(4):
        for ch in range(4):
            src = SH + 2 * ch + (j >> 1)
            if j & 1:
                k(f"s_and_b32 s{TP + 4 * j + ch}, s{src}, 0xffff0000")
            else:
                k(f"s_lshl_b32 s{TP + 4 * j + ch}, s{src}, 16")
    DP = 92
    for ch in range(4):
        if ch & 1:
            k(f"s_and_b32 s{DP + ch}, s{SDv + (ch >> 1)}, 0xffff0000")
        else:
            k(f"s_lshl_b32 s{DP + ch}, s{SDv + (ch >> 1)}, 16")
    k(f"s_cmp_eq_u32 {s(WAVE)}, 0")
    for j in range(6):
        k(f"s_cselect_b32 s{HAL + j}, 0, s{HAL + j}")
    ua, uw0, uw1, yw, yr = R(), R(), R(), R(), R()
    k(f"v_and_b32 {v(t0)}, 3, {v(n)}")
    k(f"v_mul_u32_u24 {v(ua)}, {UCP}, {v(t0)}")
    k(f"v_lshrrev_b32 {v(t0)}, 2, {v(n)}")
    k(f"v_lshlrev_b32 {v(t0)}, 7, {v(t0)}")
    k(f"v_sub_u32 {v(ua)}, {v(ua)}, {v(t0)}")
    k(f"v_lshl_add_u32 {v(ua)}, {v(q)}, 4, {v(ua)}")
    k(f"s_mul_i32 s4, {s(WAVE)}, {UCH}")
    k(f"s_add_u32 s4, s4, {UT + 16 + 384}")
    k(f"v_add_u32 {v(ua)}, s4, {v(ua)}")
    k(f"v_lshlrev_b32 {v(t0)}, 2, v0")
    k(f"v_sub_u32 {v(uw0)}, {UT + 16 + 2 * (2043 - 1536)}, {v(t0)}")
    k(f"v_add_u32 {v(uw1)}, {2 * UCH}, {v(uw0)}")
    k(f"s_mul_i32 s4, {s(WAVE)}, {YCH}")
    k(f"v_lshl_add_u32 {v(yw)}, {v(LANE)}, 3, s4")
    k(f"v_mov_b32 {v(yr)}, {v(t0)}")
    k.barrier()

    acc = R(32, 4)
    af = R(64, 4)
    kv = R(8, 2)
    hp = R(6, 2)
    un = R(20, 2)
    pkd = z
    started = set()
    for c in range(4):
        H = HAL + 6 * c
        for j in range(2):
            k(f"v_mov_b32 {v(hp + j)}, s{H + j}")
            k(f"v_mov_b32 {v(hp + 2 + j)}, s{H + 2 + j}")
            k(f"v_mov_b32 {v(hp + 4 + j)}, s{H + 4 + j}")
        for j in range(4):
            k(f"v_mov_b32_dpp {v(hp + 2 + j)}, {v(kr[c] + j)} wave_shr:1 row_mask:0xf bank_mask:0xf")
        for j in range(2):
            k(f"v_mov_b32_dpp {v(hp + j)}, {v(hp + 4 + j)} wave_shr:1 row_mask:0xf bank_mask:0xf")
        rows = [hp, hp + 2, hp + 4, kr[c], kr[c] + 2]
        for i in range(5):
            for p in range(2):
                unpack(k, un + 4 * i + 2 * p, un + 4 * i + 2 * p + 1, rows[i] + p)
        for j in range(4):
            for r in range(2):
                for p in range(2):
                    src = un + 4 * (3 + r - j) + 2 * p
                    d = kv + 4 * r + 2 * p
                    if j == 0:
                        pk(k, "mul", d, [("p", src), ("sp", TP + 2 * p)])
                    else:
                        pk(k, "fma", d, [("p", src), ("sp", TP + 4 * j + 2 * p), ("p", d)])
        for r in range(2):
            for p in range(2):
                unpack(k, un + 4 * r + 2 * p, un + 4 * r + 2 * p + 1, vr[c] + 2 * r + p)
        for i in range(4):
            pk(k, "mul", kv + 2 * i, [("p", kv + 2 * i), ("p", un + 2 * i)])
        for ch in range(4):
            k(f"v_cvt_pk_bf16_f32 {v(pkd + ch)}, {v(kv + 4 + ch)}, {v(kv + ch)}")
        for ch in range(4):
            base = uw1 if ch >= 2 else uw0
            for rho in range(4):
                o = (ch & 1) * UCH + rho * (UCP + 2) + 1024 * (3 - c)
                if rho & 1:
                    k(f"ds_write_b32 {v(base)}, {v(pkd + ch)} offset:{o}")
                else:
                    k(f"ds_write_b16 {v(base)}, {v(pkd + ch)} offset:{o}")
                    k(f"ds_write_b16_d16_hi {v(base)}, {v(pkd + ch)} offset:{o + 2}")
        k.barrier()
        for wl in range(2):
            w = 2 * c + wl
            for r in range(8):
                k(f"ds_read_b128 {v(af + 32 * wl + 4 * r, 4)}, {v(ua)} offset:{2 * (1792 - 256 * w + 32 * r)}")

        def mm(st_, wl, r, t):
            i = 2 * c + wl + t
            cin = v(acc + 4 * i, 4) if i in started else "0"
            started.add(i)
            st_(f"v_mfma_f32_16x16x32_bf16 {v(acc + 4 * i, 4)}, {v(af + 32 * wl + 4 * r, 4)}, {a(4 * (r + 8 * t), 4)}, {cin}")

        for r in range(8):
            mm(k, 0, r, 0)
            mm(k, 0, r, 1)
        for r in range(8):
            mm(k, 1, r, 0)
        rest = Stream()
        for r in range(8):
            for t in range(2, 8 - 2 * c):
                mm(rest, 0, r, t)
            for t in range(1, 7 - 2 * c):
                mm(rest, 1, r, t)
        ep = Stream()
        yb = YT + (c & 1) * 4 * YCH
        for wl in range(2):
            i = 2 * c + wl
            ep(f"v_cvt_pk_bf16_f32 {v(pkd + 2 * wl)}, {v(acc + 4 * i)}, {v(acc + 4 * i + 1)}")
            ep(f"v_cvt_pk_bf16_f32 {v(pkd + 2 * wl + 1)}, {v(acc + 4 * i + 2)}, {v(acc + 4 * i + 3)}")
            ep(f"ds_write_b64 {v(yw)}, {v(pkd + 2 * wl, 2)} offset:{yb + 512 * wl}")
        ep.barrier()
        for ch in range(4):
            ep(f"ds_read_b32 {v(pkd + ch)}, {v(yr)} offset:{yb + YCH * ch}")
        if c == 0:
            fin_mod4(ep, Bc, tB)
            fin_mod4(ep, Ac, tA, plus1=True)
            fin_mod4(ep, Gc, tG)
            for p in range(2):
                pk(ep, "mul", Ac + 2 * p, [("p", Ac + 2 * p), ("p", Gc + 2 * p)])
                pk(ep, "mul", Bc + 2 * p, [("p", Bc + 2 * p), ("p", Gc + 2 * p)])
        X, Hh = un, un + 8
        for i in range(4):
            unpack(ep, X + 2 * i, X + 2 * i + 1, xr[c] + i)
        for i in range(4):
            r = i >> 1
            pk(ep, "fma", Hh + 2 * i, [("p", X + 2 * i), ("b", sr[c] + 2 * r), ("b", sr[c] + 2 * r + 1)])
        for i in range(4):
            p = i & 1
            pk(ep, "fma", Hh + 2 * i, [("p", Hh + 2 * i), ("p", Ac + 2 * p), ("p", Bc + 2 * p)])
        Y = [kr[c], vr[c]]
        for ch in range(4):
            unpack(ep, Y[0] + ch, Y[1] + ch, pkd + ch)
        for i in range(4):
            r, p = i >> 1, i & 1
            pk(ep, "fma", Y[r] + 2 * p, [("p", kv + 2 * i), ("sp", DP + 2 * p), ("p", Y[r] + 2 * p)])
        for i in range(4):
            r, p = i >> 1, i & 1
            pk(ep, "fma", X + 2 * i, [("p", Hh + 2 * i), ("p", Y[r] + 2 * p), ("p", X + 2 * i)])
        for i in range(4):
            ep(f"v_cvt_pk_bf16_f32 {v(xr[c] + i)}, {v(X + 2 * i)}, {v(X + 2 * i + 1)}")
        for i in range(4):
            ep(f"v_min_u32 {v(xr[c] + i)}, -2, {v(xr[c] + i)}")
        ep(f"global_store_dwordx4 {v(xo)}, {v(xr[c], 4)}, {sp(WS)} {st}")
        if c < 3:
            ep(f"v_add_u32 {v(xo)}, 4096, {v(xo)}")
        if len(rest):
            k.extend(interleave(rest, ep, 0.05, min(1.0, 0.05 + len(ep) / (1.6 * len(rest)))))
        else:
            k.extend(ep)
```

```python
from asmlib import Stream, Alloc, v, a, s, interleave
from blocks import *
import math

C0 = -2.0 * math.sqrt(2.0 / math.pi) * math.log2(math.e)
C1 = C0 * 0.044715
GC = 44


def gelu_consts(k):
    k(f"s_mov_b32 s{GC}, {hex(fbits(C0))}")
    k(f"s_mov_b32 s{GC + 1}, {hex(fbits(C1))}")


def gelu(k, regs, tmp):
    n = len(regs)
    for i, r in enumerate(regs):
        pk(k, "mul", tmp + 2 * i, [("p", r), ("p", r)])
    for i, r in enumerate(regs):
        pk(k, "fma", tmp + 2 * i, [("p", tmp + 2 * i), ("sb", GC + 1), ("sb", GC)])
    for i, r in enumerate(regs):
        pk(k, "mul", tmp + 2 * i, [("p", tmp + 2 * i), ("p", r)])
    for i in range(2 * n):
        k(f"v_exp_f32 {v(tmp + i)}, {v(tmp + i)}")
    for i in range(n):
        pk(k, "add", tmp + 2 * i, [("p", tmp + 2 * i), ("c", "1.0")])
    for i in range(2 * n):
        k(f"v_rcp_f32 {v(tmp + i)}, {v(tmp + i)}")
    for i, r in enumerate(regs):
        pk(k, "mul", r, [("p", r), ("p", tmp + 2 * i)])


def tile_row(k, dst, n, tmp):
    k(f"v_lshrrev_b32 {v(tmp)}, 2, {v(n)}")
    k(f"v_and_b32 {v(dst)}, 3, {v(n)}")
    k(f"v_lshl_add_u32 {v(dst)}, {v(tmp)}, 3, {v(dst)}")


AI = 0
AFR = 1040
SX = 80 * AFR
TB = SX + 2048
G1_LDS = TB + 2048


def g1_block(k, srb, scb, uid, st="sc1", ld="sc1"):
    R = Alloc(2, 256)
    n, q, t0, t1 = R(), R(), R(), R()
    k(f"v_and_b32 {v(n)}, 15, {v(LANE)}")
    k(f"v_lshrrev_b32 {v(q)}, 4, {v(LANE)}")
    xo = R()
    k(f"v_and_b32 {v(t0)}, 7, {v(LANE)}")
    k(f"v_lshl_add_u32 {v(t0)}, {v(q)}, 3, {v(t0)}")
    k(f"v_bfe_u32 {v(t1)}, {v(LANE)}, 3, 1")
    k(f"v_lshlrev_b32 {v(xo)}, 14, {v(t1)}")
    k(f"v_lshl_add_u32 {v(xo)}, {v(t0)}, 4, {v(xo)}")
    k(f"s_lshl_b32 s4, {s(WAVE)}, 15")
    k(f"s_lshl_b32 s5, {s(srb)}, 9")
    k(f"s_add_u32 s4, s4, s5")
    k(f"s_add_u32 s4, s4, {X1}")
    k(f"v_add_u32 {v(xo)}, s4, {v(xo)}")
    srow = R()
    k(f"v_lshl_add_u32 {v(srow)}, {v(t0)}, 1, {v(t1)}")
    k(f"s_mul_i32 s40, {s(scb)}, 7")
    k(f"s_lshl_b32 s5, {s(WAVE)}, 1")
    k(f"s_add_u32 s40, s40, s5")
    k(f"s_add_u32 s41, s40, 1")
    k(f"s_cmp_eq_u32 {s(WAVE)}, 3")
    k(f"s_cselect_b32 s41, 55, s41")
    wo = [R(), R()]
    for sl in range(2):
        k(f"s_mul_i32 s4, s{40 + sl}, 20480")
        k(f"s_add_u32 s4, s4, {WP + 4096}")
        k(f"v_lshl_add_u32 {v(wo[sl])}, {v(LANE)}, 4, s4")
    xr = R(80, 4)

    def wload(st_, ks):
        for sl in range(2):
            st_(f"global_load_dwordx4 {a(8 * ks + 4 * sl, 4)}, {v(wo[sl])}, {sp(WS)} offset:{1024 * (ks % 8) - 4096} {ld}")
        if ks % 8 == 7:
            for sl in range(2):
                st_(f"v_add_u32 {v(wo[sl])}, 8192, {v(wo[sl])}")
        if ks == 19:
            for sl in range(2):
                st_(f"v_add_u32 {v(wo[sl])}, {56 * 20480 - 16384}, {v(wo[sl])}")

    for i in range(20):
        k(f"global_load_dwordx4 {v(xr + 4 * i, 4)}, {v(xo)}, {sp(WS)} {ld}")
        k(f"v_add_u32 {v(xo)}, {8 * 16384}, {v(xo)}")
    for ks in range(20):
        wload(k, ks)
    uz2 = R(4, 2)
    uz1 = R(16, 4)
    for sl in range(2):
        k(f"s_lshl_b32 s4, s{40 + sl}, 7")
        k(f"s_add_u32 s4, s4, {U}")
        k(f"v_lshl_add_u32 {v(t0)}, {v(n)}, 2, s4")
        k(f"global_load_dword {v(uz2 + 2 * sl)}, {v(t0)}, {sp(WS)} {ld}")
        k(f"global_load_dword {v(uz2 + 2 * sl + 1)}, {v(t0)}, {sp(WS)} offset:64 {ld}")
        k(f"s_add_u32 s4, s4, {56 * 128}")
        k(f"v_lshl_add_u32 {v(t0)}, {v(q)}, 4, s4")
        k(f"global_load_dwordx4 {v(uz1 + 8 * sl, 4)}, {v(t0)}, {sp(WS)} {ld}")
        k(f"global_load_dwordx4 {v(uz1 + 8 * sl + 4, 4)}, {v(t0)}, {sp(WS)} offset:64 {ld}")
    aw = R()
    k(f"v_lshrrev_b32 {v(t0)}, 5, {v(LANE)}")
    k(f"v_bfe_u32 {v(aw)}, {v(LANE)}, 1, 1")
    k(f"v_lshl_add_u32 {v(t0)}, {v(t0)}, 1, {v(aw)}")
    k(f"v_mul_u32_u24 {v(aw)}, {AFR}, {v(t0)}")
    k(f"v_lshl_add_u32 {v(aw)}, {v(t1)}, 3, {v(aw)}")
    k(f"v_bfe_u32 {v(t0)}, {v(LANE)}, 2, 1")
    k(f"v_lshl_add_u32 {v(aw)}, {v(t0)}, 6, {v(aw)}")
    k(f"v_bfe_u32 {v(t0)}, {v(LANE)}, 4, 1")
    k(f"v_lshl_add_u32 {v(aw)}, {v(t0)}, 7, {v(aw)}")
    k(f"v_and_b32 {v(t0)}, 1, {v(LANE)}")
    k(f"v_lshl_add_u32 {v(aw)}, {v(t0)}, 5, {v(aw)}")
    k(f"s_lshl_b32 s4, {s(WAVE)}, 8")
    k(f"s_add_u32 s4, s4, {AI}")
    k(f"v_add_u32 {v(aw)}, s4, {v(aw)}")
    st4 = R(4, 2)
    k(f"s_mov_b32 s7, {hex(ONES)}")
    for j in range(4):
        k(f"v_mov_b32 {v(st4 + j)}, 0")
    for i in range(20):
        k(f"ds_write2_b64 {v(aw)}, {v(xr + 4 * i, 2)}, {v(xr + 4 * i + 2, 2)} offset0:0 offset1:2")
        k(f"v_add_u32 {v(aw)}, {4 * AFR}, {v(aw)}")
        for j in range(2):
            for r in range(2):
                src = xr + 4 * i + 2 * r + j
                k(f"v_dot2_f32_bf16 {v(st4 + 2 * r)}, {v(src)}, s7, {v(st4 + 2 * r)}")
                k(f"v_dot2_f32_bf16 {v(st4 + 2 * r + 1)}, {v(src)}, {v(src)}, {v(st4 + 2 * r + 1)}")
    pr = R(8, 2)
    for j in range(2):
        k(f"v_add_f32_dpp {v(pr + j)}, {v(st4 + j)}, {v(st4 + j)} row_ror:8 row_mask:0xf bank_mask:0x3")
        k(f"v_add_f32_dpp {v(pr + j)}, {v(st4 + 2 + j)}, {v(st4 + 2 + j)} row_ror:8 row_mask:0xf bank_mask:0xc")
    k(f"s_lshl_b32 s42, {s(WAVE)}, 9")
    k(f"v_lshl_add_u32 {v(t0)}, {v(srow)}, 3, s42")
    k(f"v_add_u32 {v(t0)}, {SX}, {v(t0)}")
    k(f"ds_write_b64 {v(t0)}, {v(pr, 2)}")
    k.barrier()
    l8 = R()
    k(f"v_lshlrev_b32 {v(l8)}, 3, {v(LANE)}")
    k(f"v_add_u32 {v(t0)}, {SX}, {v(l8)}")
    for i in range(4):
        k(f"ds_read_b64 {v(pr + 2 * i, 2)}, {v(t0)} offset:{512 * i}")
    pk(k, "add", pr, [("p", pr), ("p", pr + 2)])
    pk(k, "add", pr + 4, [("p", pr + 4), ("p", pr + 6)])
    pk(k, "add", pr, [("p", pr), ("p", pr + 4)])
    row_stats(k, pr, pr + 1, D, pr + 2)
    tw, tq, tn = R(), R(), R()
    k(f"s_add_u32 s43, s42, {TB}")
    k(f"v_lshl_add_u32 {v(tw)}, {v(LANE)}, 2, s43")
    k(f"v_lshl_add_u32 {v(tq)}, {v(q)}, 5, s43")
    tile_row(k, tn, n, t0)
    k(f"v_lshl_add_u32 {v(tn)}, {v(tn)}, 2, s43")
    k(f"ds_write2st64_b32 {v(tw)}, {v(pr)}, {v(pr + 1)} offset0:0 offset1:1")
    F = Alloc(xr, xr + 80)
    rs = F(32, 4)
    tmp = F(32, 2)
    rz1 = F(8, 2)
    acc2 = R(32, 4)
    acc1 = R(32, 4)
    af = [R(16, 4), R(16, 4)]
    ar = [R(), R()]
    k(f"v_lshlrev_b32 {v(ar[0])}, 4, {v(LANE)}")
    k(f"v_add_u32 {v(ar[1])}, {40 * AFR}, {v(ar[0])}")

    def read_rs(st_):
        for tbl in range(2):
            for h in range(2):
                for o in range(2):
                    st_(f"ds_read_b128 {v(rs + 16 * tbl + 8 * h + 4 * o, 4)}, {v(tq)} offset:{256 * tbl + 128 * h + 16 * o}")

    read_rs(k)
    for mt in range(4):
        off = 128 * (mt >> 1) + 16 * (mt & 1)
        k(f"ds_read2st64_b32 {v(rz1 + 2 * mt, 2)}, {v(tn)} offset0:0 offset1:1" if off == 0 else
          f"ds_read_b32 {v(rz1 + 2 * mt)}, {v(tn)} offset:{off}\nds_read_b32 {v(rz1 + 2 * mt + 1)}, {v(tn)} offset:{256 + off}")
    gelu_consts(k)

    def aread(st_, ks):
        for mt in range(4):
            st_(f"ds_read_b128 {v(af[ks & 1] + 4 * mt, 4)}, {v(ar[ks // 10])} offset:{AI + (4 * (ks % 10) + mt) * AFR}")

    def mainloop(acc, swap, reload):
        aread(k, 0)
        for ks in range(20):
            if ks < 19:
                aread(k, ks + 1)
            for mt in range(4):
                for sl in range(2):
                    d = v(acc + 16 * sl + 4 * mt, 4)
                    x, w = v(af[ks & 1] + 4 * mt, 4), a(8 * ks + 4 * sl, 4)
                    k(f"v_mfma_f32_16x16x32_bf16 {d}, {w if swap else x}, {x if swap else w}, {d if ks else 0}")
            if reload:
                wload(k, ks)

    mainloop(acc2, False, True)
    for sl in range(2):
        for i in range(8):
            pk(k, "fma", tmp + 2 * i, [("p", rs + 16 + 2 * i), ("b", uz2 + 2 * sl), ("b", uz2 + 2 * sl + 1)])
        for i in range(8):
            pk(k, "fma", acc2 + 16 * sl + 2 * i, [("p", acc2 + 16 * sl + 2 * i), ("p", rs + 2 * i), ("p", tmp + 2 * i)])
    gelu(k, [acc2 + 2 * i for i in range(16)], tmp)
    for i in range(8):
        pk(k, "add", tmp + 2 * i, [("p", acc2 + 2 * i), ("p", acc2 + 16 + 2 * i)])
        pk(k, "mul", tmp + 16 + 2 * i, [("p", acc2 + 2 * i), ("p", acc2 + 2 * i)])
    for i in range(8):
        pk(k, "fma", tmp + 16 + 2 * i, [("p", acc2 + 16 + 2 * i), ("p", acc2 + 16 + 2 * i), ("p", tmp + 16 + 2 * i)])
    for i in range(16):
        k(f"v_add_f32_dpp {v(rs + i)}, {v(tmp + i)}, {v(tmp + i)} row_ror:8 row_mask:0xf bank_mask:0x3")
    for i in range(16):
        k(f"v_add_f32_dpp {v(rs + i)}, {v(tmp + 16 + i)}, {v(tmp + 16 + i)} row_ror:8 row_mask:0xf bank_mask:0xc")
    for i in range(8):
        k(f"v_add_f32_dpp {v(tmp + i)}, {v(rs + i)}, {v(rs + i)} row_half_mirror row_mask:0xf bank_mask:0x5")
    for i in range(8):
        k(f"v_add_f32_dpp {v(tmp + i)}, {v(rs + 8 + i)}, {v(rs + 8 + i)} row_half_mirror row_mask:0xf bank_mask:0xa")
    for i in range(8):
        k(f"v_add_f32_dpp {v(tmp + i)}, {v(tmp + i)}, {v(tmp + i)} quad_perm:[1,0,3,2] row_mask:0xf bank_mask:0xf")
    for i in range(8):
        k(f"v_add_f32_dpp {v(tmp + i)}, {v(tmp + i)}, {v(tmp + i)} quad_perm:[2,3,0,1] row_mask:0xf bank_mask:0xf")
    k(f"v_lshrrev_b32 {v(t0)}, 2, {v(n)}")
    k(f"v_lshlrev_b32 {v(t0)}, 7, {v(t0)}")
    k(f"v_lshl_add_u32 {v(t0)}, {v(q)}, 5, {v(t0)}")
    k(f"s_add_u32 s4, s42, {SX}")
    k(f"v_add_u32 {v(t0)}, s4, {v(t0)}")
    k("s_barrier")
    k(f"ds_write_b128 {v(t0)}, {v(tmp, 4)}")
    k(f"ds_write_b128 {v(t0)}, {v(tmp + 4, 4)} offset:16")
    k.barrier()
    k(f"v_lshlrev_b32 {v(t0)}, 2, {v(LANE)}")
    k(f"v_add_u32 {v(t0)}, {SX}, {v(t0)}")
    for i in range(4):
        k(f"ds_read2st64_b32 {v(pr + 2 * i, 2)}, {v(t0)} offset0:{2 * i} offset1:{2 * i + 1}")
    so = R()
    k(f"s_lshl_b32 s4, {s(srb)}, 12")
    k(f"s_add_u32 s4, s4, {ST3}")
    k(f"v_add_u32 {v(so)}, s4, {v(l8)}")
    k(f"s_lshl_b32 s4, {s(scb)}, 9")
    k(f"v_add_u32 {v(t0)}, s4, {v(so)}")
    pk(k, "add", pr, [("p", pr), ("p", pr + 2)])
    pk(k, "add", pr + 4, [("p", pr + 4), ("p", pr + 6)])
    pk(k, "add", pr, [("p", pr), ("p", pr + 4)])
    k(f"v_min_u32 {v(pr)}, -2, {v(pr)}")
    k(f"v_min_u32 {v(pr + 1)}, -2, {v(pr + 1)}")
    k(f"s_cmp_eq_u32 {s(WAVE)}, 0")
    k(f"s_cselect_b64 exec, -1, 1")
    k(f"global_store_dwordx2 {v(t0)}, {v(pr, 2)}, {sp(WS)} sc1")
    k(f"s_mov_b64 exec, -1")
    mainloop(acc1, True, False)
    for sl in range(2):
        for mt in range(4):
            for p in range(2):
                pk(k, "fma", tmp + 4 * mt + 2 * p, [("p", uz1 + 8 * sl + 2 * p), ("b", rz1 + 2 * mt + 1), ("p", uz1 + 8 * sl + 4 + 2 * p)])
        for mt in range(4):
            for p in range(2):
                r = acc1 + 16 * sl + 4 * mt + 2 * p
                pk(k, "fma", r, [("p", r), ("b", rz1 + 2 * mt), ("p", tmp + 4 * mt + 2 * p)])
    gelu(k, [acc1 + 2 * i for i in range(16)], tmp)
    for i in range(16):
        k(f"v_cvt_pk_bf16_f32 {v(tmp + i)}, {v(acc1 + 2 * i)}, {v(acc1 + 2 * i + 1)}")
    k(f"s_lshl_b32 s4, {s(srb)}, 3")
    k(f"s_add_u32 s4, s4, {s(scb)}")
    k(f"s_mul_i32 s4, s4, {28 * 512}")
    k(f"s_lshl_b32 s5, {s(WAVE)}, 10")
    k(f"s_add_u32 s4, s4, s5")
    k(f"s_add_u32 s4, s4, {Z1}")
    k(f"v_add_u32 {v(t0)}, s4, {v(l8)}")
    k(f"s_cmp_eq_u32 {s(WAVE)}, 3")
    k(f"s_cselect_b64 s[46:47], 0, -1")
    for mt in range(4):
        k(f"global_store_dwordx2 {v(t0)}, {v(tmp + 2 * mt, 2)}, {sp(WS)} {st}")
        k(f"s_mov_b64 exec, s[46:47]")
        k(f"global_store_dwordx2 {v(t0)}, {v(tmp + 8 + 2 * mt, 2)}, {sp(WS)} offset:512 {st}")
        k(f"s_mov_b64 exec, -1")
        k(f"v_add_u32 {v(t0)}, {7 * 512}, {v(t0)}")
    pl = acc1
    k.drain()
    k(f"s_mov_b32 s5, 0")
    k(f"Lg1_poll_{uid}:")
    for i in range(8):
        k(f"global_load_dwordx2 {v(pl + 2 * i, 2)}, {v(so)}, {sp(WS)} offset:{512 * i} sc1")
    k(f"v_max_u32 {v(t0)}, {v(pl)}, {v(pl + 1)}")
    for i in range(1, 8):
        k(f"v_max3_u32 {v(t0)}, {v(pl + 2 * i)}, {v(pl + 2 * i + 1)}, {v(t0)}")
    k(f"v_cmp_eq_u32 vcc, -1, {v(t0)}")
    k(f"s_add_u32 s5, s5, 1")
    k(f"s_cmp_ge_u32 s5, 0x40000")
    k(f"s_cbranch_scc1 Lg1_go_{uid}")
    k(f"s_cbranch_vccnz Lg1_poll_{uid}")
    k(f"Lg1_go_{uid}:")
    for stp in (2, 4, 8):
        for i in range(0, 16, 2 * stp):
            pk(k, "add", pl + i, [("p", pl + i), ("p", pl + i + stp)])
    row_stats(k, pl, pl + 1, FH, pl + 2)
    k(f"ds_write2st64_b32 {v(tw)}, {v(pl)}, {v(pl + 1)} offset0:0 offset1:1")
    read_rs(k)
    k(f"s_lshl_b32 s4, {s(scb)}, 6")
    k(f"s_lshl_b32 s5, {s(srb)}, 1")
    k(f"s_add_u32 s4, s4, s5")
    k(f"s_mul_i32 s4, s4, 7168")
    k(f"s_lshl_b32 s5, {s(WAVE)}, 11")
    k(f"s_add_u32 s4, s4, s5")
    k(f"s_add_u32 s4, s4, {Z2}")
    k(f"v_lshl_add_u32 {v(t0)}, {v(LANE)}, 4, s4")
    k(f"v_add_u32 {v(t1)}, 7168, {v(t0)}")
    for sl in range(2):
        for i in range(8):
            r = acc2 + 16 * sl + 2 * i
            pk(k, "fma", r, [("p", r), ("p", rs + 2 * i), ("p", rs + 16 + 2 * i)])
    for i in range(16):
        k(f"v_cvt_pk_bf16_f32 {v(tmp + i)}, {v(acc2 + 2 * i)}, {v(acc2 + 2 * i + 1)}")
    for i in range(16):
        k(f"v_min_u32 {v(tmp + i)}, -2, {v(tmp + i)}")
    k(f"global_store_dwordx4 {v(t0)}, {v(tmp, 4)}, {sp(WS)} {st}")
    k(f"global_store_dwordx4 {v(t1)}, {v(tmp + 4, 4)}, {sp(WS)} {st}")
    k(f"s_mov_b64 exec, s[46:47]")
    k(f"global_store_dwordx4 {v(t0)}, {v(tmp + 8, 4)}, {sp(WS)} offset:1024 {st}")
    k(f"global_store_dwordx4 {v(t1)}, {v(tmp + 12, 4)}, {sp(WS)} offset:1024 {st}")
    k(f"s_mov_b64 exec, -1")


G2_LDS = 7 * 12288


def g2_block(k, srb, scb, uid, st="sc1", ld="sc1"):
    R = Alloc(2, 256)
    n, q, t0, t1 = R(), R(), R(), R()
    k(f"v_and_b32 {v(n)}, 15, {v(LANE)}")
    k(f"v_lshrrev_b32 {v(q)}, 4, {v(LANE)}")
    JB = 48
    for i in range(8):
        k(f"s_add_u32 s4, {s(srb)}, {i}")
        k(f"s_lshl_b32 s4, s4, 2")
        k(f"s_add_u32 s4, s4, {s(WAVE)}")
        k(f"s_and_b32 s{JB + i}, s4, 31")
    do = [R() for _ in range(4)]
    k(f"v_lshrrev_b32 {v(t0)}, 3, {v(LANE)}")
    k(f"v_bfe_u32 {v(t1)}, {v(LANE)}, 4, 1")
    k(f"v_xor_b32 {v(t1)}, {v(t1)}, {v(LANE)}")
    k(f"v_and_b32 {v(t1)}, 7, {v(t1)}")
    k(f"s_lshl_b32 s4, {s(srb)}, 18")
    k(f"v_lshl_add_u32 {v(t0)}, {v(t0)}, 12, s4")
    for pi in range(4):
        k(f"v_xor_b32 {v(do[pi])}, {2 * pi}, {v(t1)}")
        k(f"v_lshl_add_u32 {v(do[pi])}, {v(do[pi])}, 4, {v(t0)}")
        k(f"v_add_u32 {v(do[pi])}, {pi * 8 * 4096}, {v(do[pi])}")
    ra = [[R() for _ in range(2)] for _ in range(4)]
    trow = R()
    tile_row(k, trow, n, t0)
    k(f"v_lshrrev_b32 {v(t1)}, 1, {v(n)}")
    k(f"v_xor_b32 {v(t1)}, {v(t1)}, {v(q)}")
    k(f"s_lshl_b32 s6, {s(WAVE)}, 14")
    for tau in range(4):
        k(f"s_xor_b32 s4, {s(WAVE)}, {tau}")
        k(f"s_lshr_b32 s5, s4, 1")
        k(f"s_lshl_b32 s5, s5, 5")
        k(f"s_and_b32 s4, s4, 1")
        k(f"s_lshl_b32 s4, s4, 2")
        k(f"s_add_u32 s4, s4, s5")
        k(f"s_lshl_b32 s4, s4, 7")
        k(f"s_add_u32 s4, s4, s6")
        k(f"v_lshl_add_u32 {v(t0)}, {v(trow)}, 7, s4")
        k(f"v_lshl_add_u32 {v(ra[tau][0])}, {v(t1)}, 4, {v(t0)}")
        k(f"v_xor_b32 {v(ra[tau][1])}, 64, {v(ra[tau][0])}")
    ta = R()

    def dma(st_, i):
        toks = []
        st_(f"s_lshl_b32 s4, s{JB + i}, 7")
        for pi in range(8):
            st_(f"s_add_u32 m0, s6, {(i & 1) * 8192 + 1024 * pi}")
            if pi == 4:
                st_(f"s_add_u32 s4, s4, {32 * 4096}")
            st_(f"v_add_u32 {v(ta)}, s4, {v(do[pi & 3])}")
            toks.append(st_(f"global_load_lds_dwordx4 {v(ta)}, {sp(WSP)} nt"))
        return toks

    def frag(st_, i):
        last = None
        for ksl in range(2):
            for tau in range(4):
                last = st_(f"ds_read_b128 {a(32 * i + 16 * ksl + 4 * tau, 4)}, {v(ra[tau][ksl])} offset:{(i & 1) * 8192}")
        return last

    acc = R(112, 4)
    NB = 3
    br = [R(28, 4) for _ in range(NB)]
    zo, zb = R(), R()
    k(f"s_mul_i32 s4, {s(scb)}, {64 * 7168}")
    k(f"s_add_u32 s4, s4, {Z2 + 3072}")
    k(f"v_lshl_add_u32 {v(zb)}, {v(LANE)}, 4, s4")

    def bload(st_, step):
        i, ksl = step >> 1, step & 1
        st_(f"s_mul_i32 s5, s{JB + i}, 14336")
        if ksl:
            st_(f"s_add_u32 s5, s5, 7168")
        st_(f"v_add_u32 {v(zo)}, s5, {v(zb)}")
        for sl in range(7):
            st_(f"global_load_dwordx4 {v(br[step % NB] + 4 * sl, 4)}, {v(zo)}, {sp(WS)} offset:{1024 * sl - 3072} {ld}")

    tk = {0: dma(k, 0)}
    bload(k, 0)
    tk[1] = dma(k, 1)
    bload(k, 1)
    rd = {}
    for step in range(16):
        i, ksl = step >> 1, step & 1
        if ksl == 0:
            k.wait(*tk[i])
            rd[i] = frag(k, i)
        if step + 2 < 16:
            bload(k, step + 2)
        if ksl == 1 and i + 2 < 8:
            k.wait(rd[i])
            tk[i + 2] = dma(k, i + 2)
        for sl in range(7):
            for tau in range(4):
                d = v(acc + 16 * sl + 4 * tau, 4)
                k(f"v_mfma_f32_16x16x32_bf16 {d}, {v(br[step % NB] + 4 * sl, 4)}, {a(32 * i + 16 * ksl + 4 * tau, 4)}, {d if step else 0}")
    z1 = br[0]
    bs = R()
    k(f"s_lshl_b32 s4, {s(srb)}, 3")
    k(f"s_add_u32 s4, s4, {s(scb)}")
    k(f"s_lshl_b32 s4, s4, 2")
    k(f"s_add_u32 s4, s4, {s(WAVE)}")
    k(f"s_mul_i32 s4, s4, {7 * 512}")
    k(f"s_add_u32 s4, s4, {Z1}")
    k(f"v_lshl_add_u32 {v(t0)}, {v(LANE)}, 3, s4")
    z1 = br[1]
    for sl in range(7):
        k(f"global_load_dwordx2 {v(z1 + 2 * sl, 2)}, {v(t0)}, {sp(WS)} offset:{512 * sl} {ld}")
    k(f"s_lshr_b32 s5, {s(WAVE)}, 1")
    k(f"s_lshl_b32 s5, s5, 5")
    k(f"s_and_b32 s4, {s(WAVE)}, 1")
    k(f"s_lshl_b32 s4, s4, 2")
    k(f"s_add_u32 s4, s4, s5")
    k(f"s_lshl_b32 s5, {s(srb)}, 6")
    k(f"s_add_u32 s4, s4, s5")
    k(f"v_add_lshl_u32 {v(t0)}, {v(trow)}, s4, 1")
    k(f"global_load_ushort {v(bs)}, {v(t0)}, {sp(BSP)}")
    k.barrier()
    wa = [R() for _ in range(3)]
    for tau in range(1, 4):
        k(f"s_xor_b32 s4, {s(WAVE)}, {tau}")
        k(f"s_mul_i32 s4, s4, {7 * 3072}")
        k(f"s_add_u32 s4, s4, {1024 * (tau - 1)}")
        k(f"v_lshl_add_u32 {v(wa[tau - 1])}, {v(LANE)}, 4, s4")
    for sl in range(7):
        for tau in range(1, 4):
            k(f"ds_write_b128 {v(wa[tau - 1])}, {v(acc + 16 * sl + 4 * tau, 4)} offset:{3072 * sl}")
    k.barrier()
    k(f"s_mul_i32 s4, {s(WAVE)}, {7 * 3072}")
    k(f"v_lshl_add_u32 {v(t0)}, {v(LANE)}, 4, s4")
    for sl in range(7):
        for tau in range(1, 4):
            k(f"ds_read_b128 {v(acc + 16 * sl + 4 * tau, 4)}, {v(t0)} offset:{3072 * sl + 1024 * (tau - 1)}")
    k(f"v_lshlrev_b32 {v(bs)}, 16, {v(bs)}")
    pkd = br[2]
    un = br[0]
    for sl in range(7):
        A = acc + 16 * sl
        for p in range(2):
            pk(k, "add", A + 2 * p, [("p", A + 2 * p), ("b", bs)])
            pk(k, "add", A + 4 + 2 * p, [("p", A + 4 + 2 * p), ("p", A + 8 + 2 * p)])
            unpack(k, un + 4 * sl + 2 * p, un + 4 * sl + 2 * p + 1, z1 + 2 * sl + p)
        for p in range(2):
            pk(k, "add", A + 2 * p, [("p", A + 2 * p), ("p", A + 12 + 2 * p)])
        for p in range(2):
            pk(k, "add", A + 2 * p, [("p", A + 2 * p), ("p", A + 4 + 2 * p)])
        for p in range(2):
            pk(k, "mul", A + 2 * p, [("p", A + 2 * p), ("p", un + 4 * sl + 2 * p)])
        for p in range(2):
            k(f"v_cvt_pk_bf16_f32 {v(pkd + 2 * sl + p)}, {v(A + 2 * p)}, {v(A + 2 * p + 1)}")
        for p in range(2):
            k(f"v_min_u32 {v(pkd + 2 * sl + p)}, -2, {v(pkd + 2 * sl + p)}")
    k(f"s_lshl_b32 s4, {s(srb)}, 2")
    k(f"s_add_u32 s4, s4, {s(WAVE)}")
    k(f"s_mul_i32 s4, s4, 28")
    k(f"s_mul_i32 s5, {s(scb)}, 7")
    k(f"s_lshr_b32 s5, s5, 1")
    k(f"s_add_u32 s4, s4, s5")
    k(f"s_lshl_b32 s4, s4, 10")
    k(f"s_add_u32 s4, s4, {P}")
    k(f"v_lshl_add_u32 {v(t0)}, {v(LANE)}, 4, s4")
    k(f"s_bitcmp1_b32 {s(scb)}, 0")
    k(f"s_cbranch_scc1 Lg2_odd_{uid}")
    for j in range(3):
        k(f"global_store_dwordx4 {v(t0)}, {v(pkd + 4 * j, 4)}, {sp(WS)} offset:{1024 * j} {st}")
    k(f"global_store_dwordx2 {v(t0)}, {v(pkd + 12, 2)}, {sp(WS)} offset:3072 {st}")
    k(f"s_branch Lg2_end_{uid}")
    k(f"Lg2_odd_{uid}:")
    k(f"global_store_dwordx2 {v(t0)}, {v(pkd, 2)}, {sp(WS)} offset:8 {st}")
    for j in range(3):
        k(f"global_store_dwordx4 {v(t0)}, {v(pkd + 2 + 4 * j, 4)}, {sp(WS)} offset:{1024 * (j + 1)} {st}")
    k(f"Lg2_end_{uid}:")


G3_LDS = 136 * 1024


def g3_block(k, srb, scb, uid, st="", ld="sc1"):
    R = Alloc(2, 256)
    n, q, t0, t1 = R(), R(), R(), R()
    k(f"v_and_b32 {v(n)}, 15, {v(LANE)}")
    k(f"v_lshrrev_b32 {v(q)}, 4, {v(LANE)}")
    po = R()
    k(f"s_lshl_b32 s4, {s(srb)}, 2")
    k(f"s_add_u32 s4, s4, {s(WAVE)}")
    k(f"s_mul_i32 s4, s4, {28 * 1024}")
    k(f"s_add_u32 s4, s4, {P + 4096}")
    k(f"v_lshl_add_u32 {v(po)}, {v(LANE)}, 4, s4")
    wo = R()
    k(f"s_mul_i32 s4, {s(scb)}, {135 * 1024}")
    k(f"s_lshl_b32 s6, {s(WAVE)}, 10")
    k(f"s_add_u32 s4, s4, s6")
    k(f"s_add_u32 s4, s4, {WO}")
    k(f"v_lshl_add_u32 {v(wo)}, {v(LANE)}, 4, s4")
    pf = R(108, 4)
    toks = []
    pl = 0
    for r in range(34):
        k(f"s_add_u32 m0, s6, {4096 * r}")
        toks.append(k(f"global_load_lds_dwordx4 {v(wo)}, {sp(WS)} {ld}"))
        k(f"v_add_u32 {v(wo)}, 4096, {v(wo)}")
        while pl < 27 and 5 * pl <= 4 * r + 3:
            k(f"global_load_dwordx4 {v(pf + 4 * pl, 4)}, {v(po)}, {sp(WS)} offset:{1024 * (pl % 8) - 4096} {ld}")
            if pl % 8 == 7:
                k(f"v_add_u32 {v(po)}, 8192, {v(po)}")
            pl += 1
    trow = R()
    tile_row(k, trow, n, t0)
    k(f"s_lshr_b32 s5, {s(WAVE)}, 1")
    k(f"s_lshl_b32 s5, s5, 5")
    k(f"s_and_b32 s4, {s(WAVE)}, 1")
    k(f"s_lshl_b32 s4, s4, 2")
    k(f"s_add_u32 s4, s4, s5")
    k(f"s_lshl_b32 s5, {s(srb)}, 6")
    k(f"s_add_u32 s4, s4, s5")
    k(f"v_add_u32 {v(trow)}, s4, {v(trow)}")
    acc = R(20, 4)
    wf = [R(20, 4), R(20, 4)]
    ra = [R() for _ in range(3)]
    k(f"v_lshlrev_b32 {v(ra[0])}, 4, {v(LANE)}")
    k(f"v_add_u32 {v(ra[1])}, {45 * 1024}, {v(ra[0])}")
    k(f"v_add_u32 {v(ra[2])}, {90 * 1024}, {v(ra[0])}")
    xr = R(10, 2)
    gb = R(20, 4)
    tm = R(5, 4)
    stages = [(0, 9), (9, 18), (18, 27)]
    for si, (k0, k1) in enumerate(stages):
        k.wait(toks[min(33, (5 * k1 - 1) // 4)])
        k("s_barrier")
        if si == 2:
            k(f"s_mul_i32 s4, {s(scb)}, {20 * 16384}")
            k(f"s_add_u32 s4, s4, {X1}")
            k(f"v_lshl_add_u32 {v(t0)}, {v(trow)}, 3, s4")
            k(f"v_lshl_add_u32 {v(t1)}, {v(q)}, 15, {v(t0)}")
            for j in range(4):
                k(f"global_load_dwordx2 {v(xr + 2 * j, 2)}, {v(t1)}, {sp(WS)} {ld}")
                k(f"v_add_u32 {v(t1)}, {16384 if j % 2 == 0 else 7 * 16384}, {v(t1)}")
            k(f"v_lshl_add_u32 {v(t1)}, {v(q)}, 14, {v(t0)}")
            k(f"v_add_u32 {v(t1)}, {16 * 16384}, {v(t1)}")
            k(f"global_load_dwordx2 {v(xr + 8, 2)}, {v(t1)}, {sp(WS)} {ld}")

        def wread(ks):
            for dt in range(5):
                k(f"ds_read_b128 {v(wf[ks & 1] + 4 * dt, 4)}, {v(ra[si])} offset:{1024 * (5 * (ks - k0) + dt)}")

        wread(k0)
        for ks in range(k0, k1):
            if ks + 1 < k1:
                wread(ks + 1)
            for dt in range(5):
                d = v(acc + 4 * dt, 4)
                k(f"v_mfma_f32_16x16x32_bf16 {d}, {v(wf[ks & 1] + 4 * dt, 4)}, {v(pf + 4 * ks, 4)}, {d if ks else 0}")
    tms = [pf + 8 * j for j in range(5)]
    k(f"s_mul_i32 s4, {s(scb)}, 320")
    k(f"v_lshl_add_u32 {v(t0)}, {v(q)}, 5, s4")
    for j in range(4):
        load_mod4(k, gb + 4 * j, tms[j], t0, 5, ld)
        k(f"v_add_u32 {v(t0)}, {16 if j % 2 == 0 else 112}, {v(t0)}")
    k(f"s_add_u32 s4, s4, 256")
    k(f"v_lshl_add_u32 {v(t0)}, {v(q)}, 4, s4")
    load_mod4(k, gb + 16, tms[4], t0, 5, ld)
    for j in range(5):
        fin_mod4(k, gb + 4 * j, tms[j])
    X = wf[0]
    for j in range(10):
        unpack(k, X + 2 * j, X + 2 * j + 1, xr + j)
    for B in range(2):
        for j in range(8):
            k(f"v_fma_f32 {v(X + 8 * B + j)}, {v(acc + 4 * (2 * B + (j & 1)) + (j >> 1))}, {v(gb + 8 * B + j)}, {v(X + 8 * B + j)}")
    for j in range(4):
        k(f"v_fma_f32 {v(X + 16 + j)}, {v(acc + 16 + j)}, {v(gb + 16 + j)}, {v(X + 16 + j)}")
    o = wf[1]
    for j in range(10):
        k(f"v_cvt_pk_bf16_f32 {v(o + j)}, {v(X + 2 * j)}, {v(X + 2 * j + 1)}")
    k(f"v_mul_u32_u24 {v(t0)}, 1280, {v(trow)}")
    k(f"s_mul_i32 s4, {s(scb)}, 160")
    k(f"v_add_u32 {v(t0)}, s4, {v(t0)}")
    k(f"v_lshl_add_u32 {v(t1)}, {v(q)}, 4, {v(t0)}")
    k(f"global_store_dwordx4 {v(t1)}, {v(o, 4)}, {sp(OUT)} {st}")
    k(f"global_store_dwordx4 {v(t1)}, {v(o + 4, 4)}, {sp(OUT)} offset:64 {st}")
    k(f"v_lshl_add_u32 {v(t1)}, {v(q)}, 3, {v(t0)}")
    k(f"global_store_dwordx2 {v(t1)}, {v(o + 8, 2)}, {sp(OUT)} offset:128 {st}")
```

```python
import sys, os
sys.path.insert(0, os.path.dirname(__file__))
from asmlib import *
from blocks import *
from conv import *
from gemms import *

NAME = "adaLN_cond__ssm_conv_h3__mixer_gmlp__prompt"
EXTRA = int(os.environ.get("EXTRA", "0"))
STAMPS = int(os.environ.get("STAMPS", "0"))


def stamp(k, idx):
    if not STAMPS:
        return
    k("s_memrealtime s[98:99]")
    k("s_waitcnt lgkmcnt(0)")
    k(f"s_lshl_b32 s100, s2, 7")
    k(f"s_add_u32 s100, s100, {STAMP + 8 * idx}")
    k("v_mov_b32 v252, s98")
    k("v_mov_b32 v253, s99")
    k("v_mov_b32 v254, s100")
    k(f"global_store_dwordx2 v254, v[252:253], {sp(WS)}")


def kernel(name, nwg, body, idx):
    head = Stream()
    head(f"s_cmp_ge_u32 s2, {nwg}")
    head(f"s_cbranch_scc1 Lend_{name}")
    if STAMPS:
        head("s_memrealtime s[96:97]")
    prologue(head)
    head.drain(vm=False)
    txt = f".p2align 8\n.globl {name}\n.type {name},@function\n{name}:\n" + finalize(head)
    txt += body()
    tail = Stream()
    tail(f"Ldone_{name}:")
    if STAMPS:
        stamp(tail, 2 * idx + 1)
        tail("v_mov_b32 v252, s96")
        tail("v_mov_b32 v253, s97")
        tail(f"global_store_dwordx2 v254, v[252:253], {sp(WS)} offset:-8")
    tail(f"Lend_{name}:")
    tail("s_endpgm")
    return txt + finalize(tail)


def roles(name, table):
    txt, base = "", 0
    for i, (cnt, fn) in enumerate(table):
        k = Stream()
        k(f"s_cmp_ge_u32 s40, {cnt}")
        k(f"s_cbranch_scc1 Lrole_{name}_{i}")
        fn(k, 40)
        k(f"s_branch Ldone_{name}")
        k(f"Lrole_{name}_{i}:")
        k(f"s_sub_u32 s40, s40, {cnt}")
        txt += finalize(k)
    return txt


def body_side():
    k = Stream()
    k("s_mov_b32 s40, s2")
    return finalize(k) + roles("side_kernel", [
        (120, mod_unit), (64, x_unit), (27, wout_unit), (2, wp_zero_unit),
        (32, lambda k, su: fill_unit(k, ST3, 4096, su)),
    ])


def body_conv():
    k = Stream()
    k("s_and_b32 s4, s2, 7")
    k("s_lshr_b32 s5, s2, 3")
    k("s_cmp_ge_u32 s5, 20")
    k("s_cbranch_scc1 Lconv_spare")
    k("s_mul_i32 s4, s4, 20")
    k("s_add_u32 s50, s4, s5")
    conv_block(k, 50)
    k("s_branch Ldone_conv_kernel")
    k("Lconv_spare:")
    k("s_sub_u32 s40, s2, 160")
    return finalize(k) + roles("conv_kernel", [(54, wp_unit)])


def tile_ids(k):
    k("s_and_b32 s4, s2, 7")
    k("s_lshr_b32 s5, s2, 3")
    k("s_lshr_b32 s60, s4, 1")
    k("s_lshl_b32 s60, s60, 3")
    k("s_lshr_b32 s6, s5, 2")
    k("s_add_u32 s60, s60, s6")
    k("s_and_b32 s61, s4, 1")
    k("s_lshl_b32 s61, s61, 2")
    k("s_and_b32 s6, s5, 3")
    k("s_add_u32 s61, s61, s6")


def body_g(fn):
    def f():
        k = Stream()
        tile_ids(k)
        fn(k, 60, 61, "a")
        return finalize(k)
    return f


def desc(name):
    return f""".p2align 6
.amdhsa_kernel {name}
  .amdhsa_next_free_vgpr 512
  .amdhsa_next_free_sgpr 102
  .amdhsa_accum_offset 256
  .amdhsa_group_segment_fixed_size 0
  .amdhsa_kernarg_size 128
  .amdhsa_user_sgpr_count 2
  .amdhsa_user_sgpr_kernarg_segment_ptr 1
  .amdhsa_system_sgpr_workgroup_id_x 1
  .amdhsa_float_denorm_mode_32 3
.end_amdhsa_kernel
"""


ks = [("side_kernel", 245, body_side, 43008), ("conv_kernel", 256, body_conv, CONV_LDS),
      ("g1_kernel", 256, body_g(g1_block), G1_LDS), ("g2_kernel", 256, body_g(g2_block), G2_LDS),
      ("g3_kernel", 256, body_g(g3_block), G3_LDS)]
ref = open(os.path.join(os.path.dirname(__file__), "..", NAME + ".s.ref")).read().split("\n")
hdr = [l for l in ref if l.startswith(";") and "@launch" not in l and "Override launch" not in l and "grid=ceil" not in l]
out = "\n".join(hdr) + "\n"
for name, nwg, _, lds in ks:
    out += f"; @launch kernel={name} grid=({nwg},1,1) block=(256,1,1) lds={lds}\n"
for i in range(EXTRA):
    out += f"; @launch kernel=nop_kernel grid=(256,1,1) block=(256,1,1) lds=0\n"
out += '.amdgcn_target "amdgcn-amd-amdhsa--gfx950"\n.text\n'
for i, (name, nwg, body, lds) in enumerate(ks):
    out += kernel(name, nwg, body, i)
if EXTRA:
    out += ".p2align 8\n.globl nop_kernel\n.type nop_kernel,@function\nnop_kernel:\n    s_endpgm\n"
out += '.section .rodata,"a"\n'
for name, *_ in ks:
    out += desc(name)
if EXTRA:
    out += desc("nop_kernel")
open(sys.argv[1], "w").write(out)
```

```python
import re

TRANS = ("v_exp_f32", "v_log_f32", "v_rcp_f32", "v_rsq_f32", "v_sqrt_f32", "v_sin_f32", "v_cos_f32")
RMW = ("v_fmac_", "v_dot2c_", "v_pk_fmac", "v_writelane")


def v(i, n=1):
    return f"v{i}" if n == 1 else f"v[{i}:{i + n - 1}]"


def a(i, n=1):
    return f"a{i}" if n == 1 else f"a[{i}:{i + n - 1}]"


def s(i, n=1):
    return f"s{i}" if n == 1 else f"s[{i}:{i + n - 1}]"


_REG = re.compile(r"^(-|\|)?(?:abs\()?([vas])(?:(\d+)|\[(\d+):(\d+)\])\)?\|?$")


def regs_of(op):
    op = op.strip()
    if op == "vcc":
        return {("s", "vcc")}
    if op in ("vcc_lo", "vcc_hi"):
        return {("s", "vcc")}
    if op in ("exec", "exec_lo", "exec_hi"):
        return {("s", "exec")}
    if op == "m0":
        return {("s", "m0")}
    m = _REG.match(op)
    if not m:
        return set()
    k = m.group(2)
    if m.group(3) is not None:
        return {(k, int(m.group(3)))}
    return {(k, i) for i in range(int(m.group(4)), int(m.group(5)) + 1)}


def split_ops(text):
    out, depth, cur = [], 0, ""
    for ch in text:
        if ch in "[(":
            depth += 1
        if ch in "])":
            depth -= 1
        if ch == "," and depth == 0:
            out.append(cur.strip())
            cur = ""
        else:
            cur += ch
    if cur.strip():
        out.append(cur.strip())
    return out


class Ins:
    __slots__ = ("text", "mn", "cls", "defs", "uses", "srcc", "srcab", "dpp", "wide_store", "tok", "waitfor", "data", "keep", "pkcross")

    def __init__(self, text):
        self.text = text
        self.tok = None
        self.waitfor = None
        self.keep = False
        self.pkcross = False
        self.defs, self.uses = set(), set()
        self.srcc, self.srcab, self.data = set(), set(), set()
        self.dpp = False
        self.wide_store = False
        t = text.split(";")[0].strip()
        if not t or t.endswith(":") or t.startswith("."):
            self.mn, self.cls = "", ("label" if t.endswith(":") else "none")
            return
        parts = t.split(None, 1)
        mn = parts[0]
        self.mn = mn
        rest = parts[1] if len(parts) > 1 else ""
        ops = split_ops(rest)
        if ops:
            last = ops[-1].split()
            mods = " ".join(last[1:])
            ops[-1] = last[0] if last else ""
        else:
            mods = ""
        R = [regs_of(o) for o in ops]
        allsrc = lambda lst: set().union(*lst) if lst else set()
        if mn.startswith("v_mfma"):
            self.cls = "mfma"
            self.defs = R[0]
            self.srcab = R[1] | R[2]
            self.srcc = R[3]
            self.uses = self.srcab | self.srcc
        elif mn.startswith("v_"):
            self.cls = "valu"
            self.dpp = "_dpp" in mn
            if mn.startswith("v_permlane") and "swap" in mn:
                self.defs = R[0] | R[1]
                self.uses = R[0] | R[1]
            elif mn.startswith(("v_add_co", "v_sub_co", "v_addc_co", "v_subb_co")):
                self.defs = R[0] | R[1]
                self.uses = allsrc(R[2:])
            elif mn == "v_nop":
                pass
            else:
                self.defs = R[0]
                self.uses = allsrc(R[1:])
                if mn.startswith(RMW) or self.dpp or "_sdwa" in mn:
                    self.uses |= R[0]
                if mn.startswith("v_cndmask") and len(ops) == 3:
                    self.uses |= {("s", "vcc")}
                if mn.startswith("v_dot"):
                    self.srcab = R[1] | R[2]
                if mn.startswith("v_pk_") and mn.endswith("_f32"):
                    m = re.search(r"op_sel:\[([01,]+)\]", mods)
                    sel = [int(b) for b in m.group(1).split(",")] if m else []
                    self.pkcross = any(b and ops[1 + i] == ops[2] for i, b in enumerate(sel))
        elif mn.startswith("ds_"):
            self.cls = "ds"
            if mn.startswith(("ds_read", "ds_bpermute", "ds_permute", "ds_swizzle")):
                self.defs = R[0]
                self.uses = allsrc(R[1:])
            else:
                self.uses = allsrc(R)
        elif mn.startswith(("global_", "buffer_")):
            self.cls = "vmem"
            if mn.startswith(("buffer_wbl2", "buffer_inv")):
                pass
            elif mn.startswith("global_load_lds"):
                self.uses = allsrc(R) | {("s", "m0")}
            elif mn.startswith("global_load"):
                self.defs = R[0]
                self.uses = allsrc(R[1:])
            elif mn.startswith("global_store"):
                self.uses = allsrc(R)
                self.data = R[1]
                self.wide_store = mn.endswith(("x3", "x4"))
            elif mn.startswith("global_atomic"):
                if "sc0" in mods.split():
                    self.defs = R[0]
                    self.uses = allsrc(R[1:])
                else:
                    self.uses = allsrc(R)
            else:
                raise ValueError("unsupported vmem: " + text)
        elif mn.startswith(("s_load", "s_memtime", "s_memrealtime")):
            self.cls = "smem"
            self.defs = R[0]
            self.uses = allsrc(R[1:])
        elif mn in ("s_waitcnt", "s_nop", "s_barrier", "s_endpgm", "s_sleep", "s_setprio"):
            self.cls = mn
        elif mn.startswith(("s_cbranch", "s_branch")):
            self.cls = "branch"
            if "vcc" in mn:
                self.uses = {("s", "vcc")}
        elif mn.startswith("s_"):
            self.cls = "salu"
            if mn.startswith(("s_cmp", "s_bitcmp")):
                self.uses = allsrc(R)
            else:
                self.defs = R[0]
                self.uses = allsrc(R[1:])
                if "saveexec" in mn:
                    self.defs |= {("s", "exec")}
        else:
            raise ValueError("unknown instruction: " + text)


class Stream:
    def __init__(self):
        self.ins = []

    def __call__(self, text):
        last = None
        for line in text.split("\n"):
            line = line.strip()
            if not line:
                continue
            last = Ins(line)
            self.ins.append(last)
        return last

    def wait(self, *toks):
        i = Ins("; wait")
        i.cls = "tokwait"
        i.waitfor = [t for t in toks if t is not None]
        self.ins.append(i)

    def drain(self, vm=True, lgkm=True):
        parts = []
        if vm:
            parts.append("vmcnt(0)")
        if lgkm:
            parts.append("lgkmcnt(0)")
        self("s_waitcnt " + " ".join(parts))

    def barrier(self):
        self("s_waitcnt lgkmcnt(0)")
        self("s_barrier")

    def extend(self, other):
        self.ins.extend(other.ins)
        return self

    def __len__(self):
        return len(self.ins)


def interleave(main, side, start=0.0, end=1.0, only_after=("mfma",)):
    out = Stream()
    anchors = [i for i, x in enumerate(main.ins) if x.cls in only_after]
    lo, hi = int(len(anchors) * start), max(int(len(anchors) * end), 1)
    use = anchors[lo:hi]
    n = len(side.ins)
    pos = {}
    for j in range(n):
        idx = use[min(len(use) - 1, (j * len(use)) // n)]
        pos.setdefault(idx, []).append(side.ins[j])
    for i, x in enumerate(main.ins):
        out.ins.append(x)
        out.ins.extend(pos.get(i, []))
    return out


def weave(main, sides):
    anchors = [i for i, x in enumerate(main.ins) if x.cls == "mfma"]
    pos = {}
    for side, first, last in sides:
        first = max(0, min(first, len(anchors) - 1))
        last = max(first, min(last, len(anchors) - 1))
        cost = [0 if x.cls in ("salu", "tokwait", "label", "none", "s_waitcnt") else 1 for x in side.ins]
        total = max(sum(cost), 1)
        acc = 0
        for x, c in zip(side.ins, cost):
            idx = first + min(last - first, (acc * (last - first + 1)) // total)
            pos.setdefault(anchors[idx], []).append(x)
            acc += c
    out = Stream()
    for i, x in enumerate(main.ins):
        out.ins.append(x)
        out.ins.extend(pos.get(i, []))
    return out


def sprinkle(main, side, first=0.0, last=1.0):
    n = len(main.ins)
    lo, hi = int(n * first), max(int(n * last), int(n * first) + 1)
    cost = [0 if x.cls in ("salu", "tokwait", "label", "none", "s_waitcnt") else 1 for x in side.ins]
    total = max(sum(cost), 1)
    pos, acc = {}, 0
    for x, c in zip(side.ins, cost):
        pos.setdefault(min(n - 1, lo + (acc * (hi - lo)) // total), []).append(x)
        acc += c
    out = Stream()
    for i, x in enumerate(main.ins):
        out.ins.extend(pos.get(i, []))
        out.ins.append(x)
    return out


_WAIT = re.compile(r"(vmcnt|lgkmcnt)\((\d+)\)")


def insert_waits(ins):
    out = []
    vm, lg = [], []

    def need(queue, regs, toks):
        idx = -1
        for i, e in enumerate(queue):
            if (regs and (e.defs & regs)) or (toks and any(e is t for t in toks)):
                idx = i
        return idx

    seen = set()
    for x in ins:
        seen.add(id(x))
        if x.waitfor:
            assert all(id(t) in seen for t in x.waitfor), "wait placed before its instruction"
        if x.cls == "s_waitcnt":
            for name, n in _WAIT.findall(x.text):
                n = int(n)
                q = vm if name == "vmcnt" else lg
                if name == "lgkmcnt" and n > 0 and any(e.cls == "smem" for e in lg):
                    continue
                del q[: max(0, len(q) - n)]
            out.append(x)
            continue
        regs = x.defs | x.uses
        toks = x.waitfor
        parts = []
        i = need(vm, regs, toks)
        if i >= 0:
            n = min(len(vm) - 1 - i, 63)
            parts.append(f"vmcnt({n})")
            del vm[: len(vm) - n]
        i = need(lg, regs, toks)
        if i >= 0:
            n = min(len(lg) - 1 - i, 15)
            if any(e.cls == "smem" for e in lg):
                n = 0
            parts.append(f"lgkmcnt({n})")
            del lg[: len(lg) - n]
        if parts:
            out.append(Ins("s_waitcnt " + " ".join(parts)))
        if x.cls == "tokwait":
            continue
        out.append(x)
        if x.cls == "vmem":
            vm.append(x)
        elif x.cls in ("ds", "smem"):
            lg.append(x)
    return out


def _states(x):
    if x.cls in ("label", "none"):
        return 0
    if x.cls == "s_nop":
        return int(x.text.split()[1], 0) + 1
    return 1


def _isv(r):
    return r[0] in ("v", "a")


def required_gap(p, c):
    need = 0
    if p.cls == "valu":
        vdef = {r for r in p.defs if _isv(r)}
        sdef = {r for r in p.defs if r[0] == "s"}
        if c.cls == "mfma" and vdef & c.uses:
            need = max(need, 2)
        if c.cls == "mfma" and p.pkcross:
            need = max(need, 1)
        if c.cls == "valu":
            if c.dpp and vdef & c.uses:
                need = max(need, 2)
            if c.mn.startswith("v_permlane") and vdef & c.uses:
                need = max(need, 2)
            if c.mn.startswith(("v_readlane", "v_readfirstlane")) and vdef & c.uses:
                need = max(need, 1)
            if p.mn.startswith(TRANS) and vdef & c.uses:
                need = max(need, 1)
            if ("_sdwa" in p.mn or p.mn.startswith("v_fma_mix")) and vdef & (c.uses | c.defs):
                need = max(need, 1)
            if sdef & c.uses:
                need = max(need, 4 if c.mn.startswith(("v_readlane", "v_writelane")) else 2)
            if p.mn.startswith("v_dot") and vdef & (c.uses | c.defs):
                chain = p.mn == c.mn and not (vdef & c.srcab) and (vdef & c.uses)
                need = max(need, 0 if chain else 3)
        if p.mn.startswith("v_dot") and c.cls in ("ds", "vmem", "mfma") and vdef & c.uses:
            need = max(need, 3)
        if c.cls == "vmem" and sdef & c.uses:
            need = max(need, 5)
        if c.cls in ("salu", "branch", "smem") and sdef & c.uses:
            need = max(need, 1)
    elif p.cls == "mfma":
        if c.cls == "mfma":
            if p.defs & c.srcab:
                need = max(need, 8)
            if p.defs & c.srcc and p.defs != c.srcc:
                need = max(need, 6)
            if p.defs & c.defs and not (p.defs & c.srcc):
                need = max(need, 6)
        elif c.cls in ("valu", "ds", "vmem"):
            if p.defs & (c.uses | c.defs):
                need = max(need, 8)
            if c.cls == "valu" and p.srcc & c.defs:
                need = max(need, 3)
    elif p.cls == "vmem":
        if p.wide_store and (p.data & c.defs):
            need = max(need, 2)
    elif p.cls == "salu":
        if ("s", "m0") in p.defs and c.cls == "vmem" and ("s", "m0") in c.uses:
            need = max(need, 1)
    return need


def insert_nops(ins):
    out = []
    for x in ins:
        if x.cls not in ("label", "none", "s_nop", "s_waitcnt", "s_barrier"):
            dist, pad = 0, 0
            for p in reversed(out):
                if dist >= 10:
                    break
                if p.cls not in ("label", "none"):
                    pad = max(pad, required_gap(p, x) - dist)
                dist += _states(p)
            if pad > 0:
                out.append(Ins(f"s_nop {pad - 1}"))
        out.append(x)
    return out


def finalize(stream):
    ins = insert_nops(insert_waits(stream.ins))
    lines = []
    for x in ins:
        lines.append(x.text if x.cls == "label" else "    " + x.text)
    return "\n".join(lines) + "\n"


class Alloc:
    def __init__(self, lo, hi):
        self.lo, self.hi, self.p = lo, hi, lo

    def __call__(self, n=1, align=None):
        al = align or (1 if n == 1 else 2 if n < 4 else 4)
        p = (self.p + al - 1) // al * al
        assert p + n <= self.hi, f"out of registers: need {n} at {p}, limit {self.hi}"
        self.p = p + n
        return p

    def mark(self):
        return self.p

    def reset(self, m):
        self.p = m
```

```python
from asmlib import Stream, Alloc, v, a, s, interleave

S, D, FH = 2048, 640, 864
Q, K, V, SHK, SSM, SD, BX, WIN, WSP, BSP, WOUT, C, WMOD, OUT, DBG, WS = range(8, 40, 2)
WAVE = 3
LANE = 1
MODP = 0x0
ST1 = 0x8000
U = 0xC000
ST3 = 0x10000
XB = 0x100000
X1 = 0x400000
WP = 0x700000
WO = 0xA00000
Z2 = 0xC00000
P = 0x1000000
Z1 = 0x1400000
STAMP = 0x2000000

ONES = 0x3F803F80
LOG2E = 0x3FB8AA3B
SEL_LO = 0x05040100
SEL_HI = 0x07060302


def fbits(x):
    import struct
    return struct.unpack("<I", struct.pack("<f", x))[0]


def sp(i):
    return s(i, 2)


import os
STAMPS = int(os.environ.get("STAMPS", "0"))
VTOP = 255
CLK = [1, 16, 17, 23, 25, 41]


def stamp(k, idx):
    if STAMPS:
        k("s_memrealtime s[98:99]")
        k("s_waitcnt lgkmcnt(0)")
        k(f"v_writelane_b32 v255, s98, {idx}")
        if idx in CLK:
            k("s_memtime s[98:99]")
            k("s_waitcnt lgkmcnt(0)")
            k(f"v_writelane_b32 v255, s98, {52 + CLK.index(idx)}")


def stamp_flush(k, kidx):
    if STAMPS:
        k(f"s_lshl_b32 s98, s2, 10")
        k(f"s_add_u32 s98, s98, {STAMP + kidx * 262144}")
        k(f"v_lshl_add_u32 v254, v0, 2, s98")
        k(f"global_store_dword v254, v255, {sp(WS)}")


def code_prefetch(k, lab0, lab1, tmp, nparts=32):
    k(f"s_getpc_b64 s[4:5]")
    k(f"Lpf_{lab0}_{len(k)}:")
    here = f"Lpf_{lab0}_{len(k) - 1}"
    k(f"s_add_u32 s4, s4, {lab0}-{here}")
    k(f"s_addc_u32 s5, s5, -1")
    k(f"s_lshr_b32 s6, s2, 3")
    k(f"s_and_b32 s6, s6, {nparts - 1}")
    k(f"v_mul_u32_u24 {v(tmp)}, {nparts}, v0")
    k(f"v_add_lshl_u32 {v(tmp)}, {v(tmp)}, s6, 7")
    k(f"v_min_u32 {v(tmp)}, ({lab1}-{lab0}-4), {v(tmp)}")
    k(f"global_load_dword {v(tmp)}, {v(tmp)}, s[4:5]")


def prologue(k):
    k(f"s_load_dwordx16 s[8:23], s[0:1], 0")
    k(f"s_load_dwordx16 s[24:39], s[0:1], 64")
    k(f"v_lshrrev_b32 v2, 6, v0")
    k(f"v_and_b32 {v(LANE)}, 63, v0")
    k(f"v_readfirstlane_b32 {s(WAVE)}, v2")


def unpack(k, lo, hi, src):
    k(f"v_lshlrev_b32 {v(lo)}, 16, {v(src)}")
    k(f"v_and_b32 {v(hi)}, 0xffff0000, {v(src)}")


def bsel(r):
    return v(r & ~1, 2), r & 1


def pk(k, op, dst, srcs, neg=None):
    ops, lo, hi = [], [], []
    if srcs[1][0] == "b" and srcs[0][0] != "b" and not neg:
        srcs = [srcs[1], srcs[0]] + list(srcs[2:])
    for kind, r in srcs:
        if kind == "p":
            ops.append(v(r, 2)); lo.append(0); hi.append(1)
        elif kind == "sp":
            ops.append(s(r, 2)); lo.append(0); hi.append(1)
        elif kind == "b":
            t, b = bsel(r)
            ops.append(t); lo.append(b); hi.append(b)
        elif kind == "sb":
            ops.append(s(r & ~1, 2)); lo.append(r & 1); hi.append(r & 1)
        else:
            ops.append(r); lo.append(0); hi.append(0)
    m = f" op_sel:[{','.join(map(str, lo))}] op_sel_hi:[{','.join(map(str, hi))}]"
    if neg:
        m += f" neg_lo:[{','.join(map(str, neg))}] neg_hi:[{','.join(map(str, neg))}]"
    return k(f"v_pk_{op}_f32 {v(dst, 2)}, {', '.join(ops)}{m}")


def vop(k, op, dst, srcs, packed=True):
    if packed:
        return pk(k, op, dst, srcs)
    for h in range(2):
        ops = []
        for kind, r in srcs:
            ops.append({"p": lambda: v(r + h), "sp": lambda: s(r + h), "b": lambda: v(r), "sb": lambda: s(r), "c": lambda: r}[kind]())
        if op != "fma" and not ops[1].startswith("v"):
            ops = [ops[1], ops[0]]
        k(f"v_{op}_f32 {v(dst + h)}, {', '.join(ops)}")


def round_bf16(k, r):
    k(f"v_cvt_pk_bf16_f32 {v(r)}, {v(r)}, {v(r)}")
    k(f"v_lshlrev_b32 {v(r)}, 16, {v(r)}")


def mod_unit(k, su, st="sc1"):
    R = Alloc(2, 250)
    k(f"s_cmp_ge_u32 {s(su)}, 60")
    k(f"s_cselect_b32 s4, 1, 0")
    k(f"s_mul_i32 s5, s4, 60")
    k(f"s_sub_u32 s5, {s(su)}, s5")
    k(f"s_mul_i32 s6, s4, 320")
    k(f"s_mul_i32 s7, {s(WAVE)}, 80")
    k(f"s_add_u32 s6, s6, s7")
    row, off, coff = R(), R(), R()
    k(f"v_lshrrev_b32 {v(row)}, 3, {v(LANE)}")
    k(f"v_add_u32 {v(row)}, s6, {v(row)}")
    k(f"v_lshlrev_b32 {v(coff)}, 1, {v(row)}")
    k(f"v_mul_u32_u24 {v(off)}, 7680, {v(row)}")
    k(f"v_and_b32 {v(row)}, 7, {v(LANE)}")
    k(f"v_lshl_add_u32 {v(off)}, {v(row)}, 4, {v(off)}")
    k(f"s_lshl_b32 s7, s5, 7")
    k(f"v_add_u32 {v(off)}, s7, {v(off)}")
    cv = R(10, 2)
    w = R(40, 4)
    for i in range(10):
        k(f"global_load_ushort {v(cv + i)}, {v(coff)}, {sp(C)} offset:{16 * i}")
    for i in range(10):
        k(f"global_load_dwordx4 {v(w + 4 * i, 4)}, {v(off)}, {sp(WMOD)} nt")
        if i < 9:
            k(f"v_add_u32 {v(off)}, {8 * 7680}, {v(off)}")
    t = R(10, 2)
    for i in range(10):
        k(f"v_lshlrev_b32 {v(cv + i)}, 16, {v(cv + i)}")
        k(f"v_mul_f32 {v(t + i)}, {hex(LOG2E | 0x80000000)}, {v(cv + i)}")
    for i in range(10):
        k(f"v_exp_f32 {v(t + i)}, {v(t + i)}")
    for i in range(10):
        k(f"v_add_f32 {v(t + i)}, 1.0, {v(t + i)}")
    for i in range(10):
        k(f"v_rcp_f32 {v(t + i)}, {v(t + i)}")
    for i in range(10):
        k(f"v_mul_f32 {v(cv + i)}, {v(cv + i)}, {v(t + i)}")
    for i in range(10):
        round_bf16(k, cv + i)
    acc = R(8, 2)
    u = R(8, 2)
    for i in range(10):
        for j in range(4):
            unpack(k, u + 2 * j, u + 2 * j + 1, w + 4 * i + j)
        for j in range(4):
            if i == 0:
                pk(k, "mul", acc + 2 * j, [("p", u + 2 * j), ("b", cv + i)])
            else:
                pk(k, "fma", acc + 2 * j, [("p", u + 2 * j), ("b", cv + i), ("p", acc + 2 * j)])
    for j in range(4):
        k(f"v_permlane32_swap_b32 {v(acc + j)}, {v(acc + j + 4)}")
    for j in range(4):
        k(f"v_add_f32 {v(acc + j)}, {v(acc + j)}, {v(acc + j + 4)}")
    for j in range(2):
        k(f"v_permlane16_swap_b32 {v(acc + j)}, {v(acc + j + 2)}")
    for j in range(2):
        k(f"v_add_f32 {v(acc + j)}, {v(acc + j)}, {v(acc + j + 2)}")
    res = u
    k(f"v_add_f32_dpp {v(res)}, {v(acc)}, {v(acc)} row_ror:8 row_mask:0xf bank_mask:0x3")
    k(f"v_add_f32_dpp {v(res)}, {v(acc + 1)}, {v(acc + 1)} row_ror:8 row_mask:0xf bank_mask:0xc")
    ad = u + 1
    k(f"v_and_b32 {v(ad)}, 7, {v(LANE)}")
    k(f"v_lshrrev_b32 {v(u + 2)}, 3, {v(LANE)}")
    k(f"v_lshl_add_u32 {v(ad)}, {v(ad)}, 3, {v(u + 2)}")
    k(f"s_lshl_b32 s7, {s(WAVE)}, 6")
    k(f"v_add_lshl_u32 {v(ad)}, {v(ad)}, s7, 2")
    k(f"ds_write_b32 {v(ad)}, {v(res)}")
    k.barrier()
    k(f"v_lshlrev_b32 {v(ad)}, 2, {v(LANE)}")
    for i in range(4):
        k(f"ds_read_b32 {v(acc + i)}, {v(ad)} offset:{256 * i}")
    k(f"s_mul_i32 s6, s4, {3840 * 4}")
    k(f"s_lshl_b32 s7, s5, 8")
    k(f"s_add_u32 s6, s6, s7")
    k(f"s_add_u32 s6, s6, {MODP}")
    k(f"v_add_u32 {v(ad)}, s6, {v(ad)}")
    k(f"v_add_f32 {v(acc)}, {v(acc)}, {v(acc + 1)}")
    k(f"v_add_f32 {v(acc + 2)}, {v(acc + 2)}, {v(acc + 3)}")
    k(f"v_add_f32 {v(acc)}, {v(acc)}, {v(acc + 2)}")
    k(f"s_cmp_lg_u32 {s(WAVE)}, 0")
    lab = f"Lmod_skip_{id(k) & 0xffff}_{len(k)}"
    k(f"s_cbranch_scc1 {lab}")
    k(f"global_store_dword {v(ad)}, {v(acc)}, {sp(WS)} {st}")
    k(f"{lab}:")


def row_stats(k, sm, sq, n, tmp):
    inv = hex(fbits(1.0 / n))
    k(f"v_mul_f32 {v(sm)}, {inv}, {v(sm)}")
    k(f"v_mul_f32 {v(sq)}, {inv}, {v(sq)}")
    k(f"v_fma_f32 {v(sq)}, -{v(sm)}, {v(sm)}, {v(sq)}")
    k(f"v_max_f32 {v(sq)}, 0, {v(sq)}")
    k(f"v_add_f32 {v(sq)}, {hex(fbits(1e-5))}, {v(sq)}")
    k(f"v_rsq_f32 {v(tmp)}, {v(sq)}")
    k(f"v_mul_f32 {v(sq)}, -{v(sm)}, {v(tmp)}".replace("v_mul_f32", "v_mul_f32_e64"))
    k(f"v_mov_b32 {v(sm)}, {v(tmp)}")


def x_unit(k, su, st="sc1"):
    R = Alloc(2, 250)
    off, a0, a1 = R(), R(), R()
    k(f"s_lshl_b32 s4, {s(su)}, 2")
    k(f"s_add_u32 s4, s4, {s(WAVE)}")
    k(f"s_mul_i32 s4, s4, {8 * 1280}")
    k(f"s_add_u32 s4, s4, 4096")
    k(f"v_lshl_add_u32 {v(off)}, {v(LANE)}, 4, s4")
    d = R(40, 4)
    for i in range(10):
        if i == 8:
            k(f"v_add_u32 {v(off)}, 8192, {v(off)}")
        k(f"global_load_dwordx4 {v(d + 4 * i, 4)}, {v(off)}, {sp(Q)} offset:{1024 * (i % 8) - 4096} nt")
    k(f"s_mul_i32 s5, {s(WAVE)}, 10304")
    k(f"v_lshl_add_u32 {v(a0)}, {v(LANE)}, 4, s5")
    k(f"v_lshrrev_b32 {v(a1)}, 5, {v(LANE)}")
    k(f"v_lshl_add_u32 {v(a1)}, {v(a1)}, 4, {v(a0)}")
    for i in range(10):
        pad = (64 * i) // 160
        k(f"ds_write_b128 {v(a1 if i in (2, 7) else a0)}, {v(d + 4 * i, 4)} offset:{1024 * i + 16 * pad}")
    k.barrier()
    rho, gq = R(), R()
    k(f"v_and_b32 {v(rho)}, 15, {v(LANE)}")
    k(f"v_lshrrev_b32 {v(gq)}, 4, {v(LANE)}")
    k(f"v_mul_u32_u24 {v(a0)}, 2576, {v(rho)}")
    k(f"v_lshl_add_u32 {v(a0)}, {v(gq)}, 3, {v(a0)}")
    k(f"s_mul_i32 s5, {s(WAVE)}, 320")
    k(f"v_add_u32 {v(a0)}, s5, {v(a0)}")
    for i in range(10):
        k(f"ds_read2_b64 {v(d + 4 * i, 4)}, {v(a0)} offset0:{4 * i} offset1:{160 + 4 * i}")
    k(f"s_mul_i32 s5, {s(WAVE)}, {40 * 16384}")
    k(f"s_lshl_b32 s6, {s(su)}, 8")
    k(f"s_add_u32 s5, s5, s6")
    k(f"s_add_u32 s5, s5, {XB}")
    k(f"v_lshlrev_b32 {v(off)}, 14, {v(gq)}")
    k(f"v_lshl_add_u32 {v(off)}, {v(rho)}, 4, {v(off)}")
    k(f"v_add_u32 {v(off)}, s5, {v(off)}")
    st4 = R(4, 2)
    k(f"s_mov_b32 s7, {hex(ONES)}")
    for j in range(4):
        k(f"v_mov_b32 {v(st4 + j)}, 0")
    for i in range(10):
        k(f"global_store_dwordx4 {v(off)}, {v(d + 4 * i, 4)}, {sp(WS)} {st}")
        if i < 9:
            k(f"v_add_u32 {v(off)}, 65536, {v(off)}")
        for j in range(2):
            for r in range(2):
                src = d + 4 * i + 2 * r + j
                k(f"v_dot2_f32_bf16 {v(st4 + 2 * r)}, {v(src)}, s7, {v(st4 + 2 * r)}")
                k(f"v_dot2_f32_bf16 {v(st4 + 2 * r + 1)}, {v(src)}, {v(src)}, {v(st4 + 2 * r + 1)}")
    k(f"v_permlane32_swap_b32 {v(st4)}, {v(st4 + 2)}")
    k(f"v_permlane32_swap_b32 {v(st4 + 1)}, {v(st4 + 3)}")
    k(f"v_add_f32 {v(st4)}, {v(st4)}, {v(st4 + 2)}")
    k(f"v_add_f32 {v(st4 + 1)}, {v(st4 + 1)}, {v(st4 + 3)}")
    k(f"v_permlane16_swap_b32 {v(st4)}, {v(st4 + 1)}")
    k(f"v_add_f32 {v(st4)}, {v(st4)}, {v(st4 + 1)}")
    SB = 41472
    k(f"v_lshlrev_b32 {v(a0)}, 4, {v(rho)}")
    k(f"v_lshl_add_u32 {v(a0)}, {v(gq)}, 2, {v(a0)}")
    k(f"s_lshl_b32 s5, {s(WAVE)}, 8")
    k(f"v_add_u32 {v(a0)}, s5, {v(a0)}")
    k(f"ds_write_b32 {v(a0)}, {v(st4)} offset:{SB}")
    k.barrier()
    pr = R(8, 2)
    k(f"v_and_b32 {v(a0)}, 31, {v(LANE)}")
    k(f"v_lshlrev_b32 {v(a0)}, 3, {v(a0)}")
    for i in range(4):
        k(f"ds_read_b64 {v(pr + 2 * i, 2)}, {v(a0)} offset:{SB + 256 * i}")
    pk(k, "add", pr, [("p", pr), ("p", pr + 2)])
    pk(k, "add", pr + 4, [("p", pr + 4), ("p", pr + 6)])
    pk(k, "add", pr, [("p", pr), ("p", pr + 4)])
    row_stats(k, pr, pr + 1, D, pr + 2)
    k(f"s_lshl_b32 s5, {s(su)}, 8")
    k(f"s_add_u32 s5, s5, {ST1}")
    k(f"v_add_u32 {v(a0)}, s5, {v(a0)}")
    lab = f"Lx_skip_{id(k) & 0xffff}_{len(k)}"
    k(f"s_cmp_lg_u32 {s(WAVE)}, 0")
    k(f"s_cbranch_scc1 {lab}")
    k(f"global_store_dwordx2 {v(a0)}, {v(pr, 2)}, {sp(WS)} {st}")
    k(f"{lab}:")


def wout_unit(k, su, st="sc1"):
    R = Alloc(2, 250)
    off, ap, aq = R(), R(), R()
    k(f"s_mul_i32 s4, {s(su)}, 40960")
    k(f"s_mul_i32 s5, {s(WAVE)}, 10240")
    k(f"s_add_u32 s4, s4, s5")
    k(f"v_lshl_add_u32 {v(off)}, {v(LANE)}, 4, s4")
    toks = []
    for i in range(10):
        if i % 4 == 0:
            k(f"s_add_u32 m0, s5, {1024 * i}")
            if i:
                k(f"v_add_u32 {v(off)}, 4096, {v(off)}")
        toks.append(k(f"global_load_lds_dwordx4 {v(off)}, {sp(WOUT)} offset:{1024 * (i % 4)} nt"))
    m, q = R(), R()
    k(f"v_and_b32 {v(m)}, 15, {v(LANE)}")
    k(f"v_lshrrev_b32 {v(q)}, 4, {v(LANE)}")
    k(f"v_mul_u32_u24 {v(q)}, {8 * 1280}, {v(q)}")
    k(f"s_mul_i32 s5, {s(WAVE)}, 320")
    k(f"v_add_u32 {v(q)}, s5, {v(q)}")
    k(f"v_lshl_add_u32 {v(ap)}, {v(m)}, 2, {v(q)}")
    k(f"v_lshl_add_u32 {v(aq)}, {v(m)}, 1, {v(q)}")
    k(f"s_mul_i32 s5, {s(WAVE)}, {2 * 27 * 5120}")
    k(f"s_mul_i32 s6, {s(su)}, 5120")
    k(f"s_add_u32 s5, s5, s6")
    k(f"s_add_u32 s5, s5, {WO + 2048}")
    k(f"v_lshl_add_u32 {v(off)}, {v(LANE)}, 4, s5")
    k(f"s_mov_b32 s6, {hex(SEL_LO)}")
    k(f"s_mov_b32 s7, {hex(SEL_HI)}")
    k.wait(*toks)
    k("s_barrier")
    order = [0, 2, 4, 6, 1, 3, 5, 7]
    for c in range(2):
        t = R(24, 4)
        o = R(20, 4)
        for b in range(2):
            for e in range(8):
                k(f"ds_read_b32 {v(t + 8 * b + e)}, {v(ap)} offset:{order[e] * 1280 + 160 * c + 64 * b}")
        for e in range(8):
            k(f"ds_read_u16 {v(t + 16 + e)}, {v(aq)} offset:{order[e] * 1280 + 160 * c + 128}")
        for b in range(2):
            for par in range(2):
                for j in range(4):
                    k(f"v_perm_b32 {v(o + 8 * b + 4 * par + j)}, {v(t + 8 * b + 2 * j + 1)}, {v(t + 8 * b + 2 * j)}, s{6 + par}")
        for j in range(4):
            k(f"v_perm_b32 {v(o + 16 + j)}, {v(t + 16 + 2 * j + 1)}, {v(t + 16 + 2 * j)}, s6")
        for dt in range(5):
            k(f"global_store_dwordx4 {v(off)}, {v(o + 4 * dt, 4)}, {sp(WS)} offset:{1024 * dt - 2048} {st}")
        if c == 0:
            k(f"v_add_u32 {v(off)}, {27 * 5120}, {v(off)}")


def load_mod4(k, dst, tmp, voff, row, ld=""):
    base = MODP + row * D * 4
    k(f"v_add_u32 {v(tmp + 4)}, {base}, {v(voff)}")
    k(f"global_load_dwordx4 {v(dst, 4)}, {v(tmp + 4)}, {sp(WS)} {ld}")
    k(f"v_add_u32 {v(tmp + 4)}, {base + 3840 * 4}, {v(voff)}")
    k(f"global_load_dwordx4 {v(tmp, 4)}, {v(tmp + 4)}, {sp(WS)} {ld}")


def fin_mod4(k, dst, tmp, plus1=False):
    for j in range(4):
        k(f"v_add_f32 {v(dst + j)}, {v(dst + j)}, {v(tmp + j)}")
    for j in range(4):
        round_bf16(k, dst + j)
    if plus1:
        for j in range(4):
            k(f"v_add_f32 {v(dst + j)}, 1.0, {v(dst + j)}")
        for j in range(4):
            round_bf16(k, dst + j)


def wp_unit(k, su, st="sc1"):
    R = Alloc(2, 250)
    n, q, off = R(), R(), R()
    k(f"v_and_b32 {v(n)}, 15, {v(LANE)}")
    k(f"v_lshrrev_b32 {v(q)}, 4, {v(LANE)}")
    k(f"s_mul_i32 s4, {s(WAVE)}, {160 * 3456}")
    k(f"s_lshl_b32 s5, {s(su)}, 6")
    k(f"s_add_u32 s4, s4, s5")
    k(f"s_add_u32 s4, s4, 3456")
    k(f"v_mul_u32_u24 {v(off)}, {8 * 3456}, {v(q)}")
    k(f"v_lshl_add_u32 {v(off)}, {v(n)}, 2, {v(off)}")
    k(f"v_add_u32 {v(off)}, s4, {v(off)}")
    w = R(40, 4)
    cur = 1
    for ks in range(5):
        for e in range(8):
            row = 32 * ks + e
            if row - cur > 1:
                k(f"v_add_u32 {v(off)}, {(row + 1 - cur) * 3456}, {v(off)}")
                cur = row + 1
            k(f"global_load_dword {v(w + 8 * ks + e)}, {v(off)}, {sp(WIN)} offset:{(row - cur) * 3456} nt")
    mo = R()
    cb4, t0 = R(4, 4), R(5, 4)
    sb4, t1 = R(4, 4), R(5, 4)
    k(f"v_min_u32 {v(mo)}, 39, {v(LANE)}")
    k(f"s_mul_i32 s5, {s(WAVE)}, 640")
    k(f"v_lshl_add_u32 {v(mo)}, {v(mo)}, 4, s5")
    load_mod4(k, cb4, t0, mo, 4)
    load_mod4(k, sb4, t1, mo, 3)
    fin_mod4(k, cb4, t0, plus1=True)
    fin_mod4(k, sb4, t1)
    k(f"ds_write_b128 {v(mo)}, {v(cb4, 4)}")
    k(f"ds_write_b128 {v(mo)}, {v(sb4, 4)} offset:2560")
    ta = R()
    k(f"v_lshl_add_u32 {v(ta)}, {v(q)}, 5, s5")
    k(f"s_cmp_ge_u32 {s(su)}, 27")
    k(f"s_cselect_b32 s6, -54, 56")
    k(f"s_lshl_b32 s7, {s(su)}, 1")
    k(f"s_add_u32 s6, s6, s7")
    k(f"s_mul_i32 s4, s6, 20480")
    k(f"s_mul_i32 s5, {s(WAVE)}, 5120")
    k(f"s_add_u32 s4, s4, s5")
    k(f"s_add_u32 s4, s4, {WP + 2048}")
    oe, oo = R(), R()
    k(f"v_lshl_add_u32 {v(oe)}, {v(LANE)}, 4, s4")
    k(f"v_add_u32 {v(oo)}, 20480, {v(oe)}")
    k(f"s_mov_b32 s7, {hex(ONES)}")
    uu = R(4, 2)
    for j in range(4):
        k(f"v_mov_b32 {v(uu + j)}, 0")
    cst = [R(16, 4) for _ in range(2)]
    un = R(16, 2)
    pr = R(16, 2)
    outs = [R(8, 4) for _ in range(2)]
    for ks in range(5):
        cc = cst[ks & 1]
        o = outs[ks & 1]
        for h in range(2):
            k(f"ds_read_b128 {v(cc + 4 * h, 4)}, {v(ta)} offset:{128 * ks + 16 * h}")
            k(f"ds_read_b128 {v(cc + 8 + 4 * h, 4)}, {v(ta)} offset:{2560 + 128 * ks + 16 * h}")
        for e in range(8):
            unpack(k, un + 2 * e, un + 2 * e + 1, w + 8 * ks + e)
        for e in range(8):
            pk(k, "mul", pr + 2 * e, [("p", un + 2 * e), ("b", cc + e)])
        for par in range(2):
            for j in range(4):
                k(f"v_cvt_pk_bf16_f32 {v(o + 4 * par + j)}, {v(pr + 4 * j + par)}, {v(pr + 4 * j + 2 + par)}")
        k(f"global_store_dwordx4 {v(oe)}, {v(o, 4)}, {sp(WS)} offset:{1024 * ks - 2048} {st}")
        k(f"global_store_dwordx4 {v(oo)}, {v(o + 4, 4)}, {sp(WS)} offset:{1024 * ks - 2048} {st}")
        for e in range(8):
            pk(k, "fma", uu + 2, [("p", un + 2 * e), ("b", cc + 8 + e), ("p", uu + 2)])
        for j in range(4):
            for par in range(2):
                k(f"v_dot2_f32_bf16 {v(uu + par)}, {v(o + 4 * par + j)}, s7, {v(uu + par)}")
    k(f"v_permlane32_swap_b32 {v(uu)}, {v(uu + 1)}")
    k(f"v_permlane32_swap_b32 {v(uu + 2)}, {v(uu + 3)}")
    k(f"v_add_f32 {v(uu)}, {v(uu)}, {v(uu + 1)}")
    k(f"v_add_f32 {v(uu + 2)}, {v(uu + 2)}, {v(uu + 3)}")
    k(f"v_permlane16_swap_b32 {v(uu)}, {v(uu + 2)}")
    k(f"v_add_f32 {v(uu)}, {v(uu)}, {v(uu + 2)}")
    k(f"v_lshlrev_b32 {v(ta)}, 2, v0")
    k(f"ds_write_b32 {v(ta)}, {v(uu)} offset:5120")
    k.drain()
    k("s_barrier")
    k(f"v_lshlrev_b32 {v(ta)}, 2, {v(LANE)}")
    for i in range(4):
        k(f"ds_read_b32 {v(un + i)}, {v(ta)} offset:{5120 + 256 * i}")
    k(f"s_lshl_b32 s6, s6, 7")
    k(f"s_add_u32 s6, s6, {U}")
    k(f"v_add_u32 {v(ta)}, s6, {v(ta)}")
    k(f"v_add_f32 {v(un)}, {v(un)}, {v(un + 1)}")
    k(f"v_add_f32 {v(un + 2)}, {v(un + 2)}, {v(un + 3)}")
    k(f"v_add_f32 {v(un)}, {v(un)}, {v(un + 2)}")
    k(f"v_min_u32 {v(un)}, -2, {v(un)}")
    lab = f"Lwp_skip_{id(k) & 0xffff}_{len(k)}"
    k(f"s_cmp_lg_u32 {s(WAVE)}, 0")
    k(f"s_cbranch_scc1 {lab}")
    k(f"global_store_dword {v(ta)}, {v(un)}, {sp(WS)} {st}")
    k(f"{lab}:")


def wp_zero_unit(k, su, st="sc1"):
    R = Alloc(2, 250)
    off = R()
    z = R(4, 4)
    for j in range(4):
        k(f"v_mov_b32 {v(z + j)}, 0")
    k(f"s_mul_i32 s4, {s(su)}, {56 * 20480}")
    k(f"s_add_u32 s4, s4, {WP + 54 * 20480}")
    k(f"v_lshl_add_u32 {v(off)}, v0, 4, s4")
    for i in range(10):
        k(f"global_store_dwordx4 {v(off)}, {v(z, 4)}, {sp(WS)} {st}")
        k(f"v_add_u32 {v(off)}, 4096, {v(off)}")
    k(f"s_mul_i32 s4, {s(su)}, {56 * 128}")
    k(f"s_add_u32 s4, s4, {U + 54 * 128}")
    k(f"v_lshl_add_u32 {v(off)}, {v(LANE)}, 2, s4")
    k(f"global_store_dword {v(off)}, {v(z)}, {sp(WS)} {st}")


def fill_unit(k, base, nbytes_per_wg, su, val=-1, st="sc1"):
    R = Alloc(2, 250)
    off = R()
    z = R(4, 4)
    for j in range(4):
        k(f"v_mov_b32 {v(z + j)}, {val}")
    k(f"s_mul_i32 s4, {s(su)}, {nbytes_per_wg}")
    k(f"s_add_u32 s4, s4, {base}")
    k(f"v_lshl_add_u32 {v(off)}, v0, 4, s4")
    for i in range(nbytes_per_wg // 4096):
        k(f"global_store_dwordx4 {v(off)}, {v(z, 4)}, {sp(WS)} {st}")
        k(f"v_add_u32 {v(off)}, 4096, {v(off)}")
```

```python
import math
from asmlib import Stream, Alloc, v, a, s, weave, sprinkle
from blocks import *

N_, Q_, L16, TROW, WO0, WO1 = 2, 3, 4, 5, 6, 7
UZ2, UZ1 = 8, 12
VFREE = 28
SRB, SCB, SUN, SRI = 40, 41, 42, 43
SPIN = 0x40000

KT, KCP = 0, 4224
UT, UCP = 8 * KCP, 4640
UCH = 2 * UCP
YT, YCH = 83200, 1056
AI, AFR = 0, 1040
STG = 80 * AFR
SX = STG + 65536
TB = SX + 2048
RED = 135 * 1024
MAIN_LDS = RED + 2 * 12288

C0 = -2.0 * math.sqrt(2.0 / math.pi) * math.log2(math.e)
C1 = C0 * 0.044715


def common_regs(k):
    k(f"v_and_b32 {v(N_)}, 15, {v(LANE)}")
    k(f"v_lshrrev_b32 {v(Q_)}, 4, {v(LANE)}")
    k(f"v_lshlrev_b32 {v(L16)}, 4, {v(LANE)}")
    k(f"v_lshrrev_b32 {v(WO0)}, 2, {v(N_)}")
    k(f"v_and_b32 {v(TROW)}, 3, {v(N_)}")
    k(f"v_lshl_add_u32 {v(TROW)}, {v(WO0)}, 3, {v(TROW)}")


def role_ids(k):
    k("s_mov_b32 s100, 0")
    k("s_and_b32 s4, s2, 7")
    k("s_lshr_b32 s5, s2, 3")
    k(f"s_lshr_b32 s{SRI}, s5, 2")
    k(f"s_lshr_b32 s6, s{SRI}, 1")
    k("s_lshl_b32 s6, s6, 3")
    k("s_and_b32 s7, s4, 6")
    k("s_add_u32 s6, s6, s7")
    k(f"s_and_b32 s7, s{SRI}, 1")
    k(f"s_add_u32 s{SRB}, s6, s7")
    k("s_and_b32 s6, s4, 1")
    k("s_lshl_b32 s6, s6, 2")
    k("s_and_b32 s7, s5, 3")
    k(f"s_add_u32 s{SCB}, s6, s7")


def kv_prefetch(k, tmp):
    k("s_and_b32 s4, s2, 7")
    k("s_mul_i32 s4, s4, 160")
    k("s_lshr_b32 s4, s4, 7")
    k(f"s_lshr_b32 s5, {s(WAVE)}, 1")
    k("s_add_u32 s4, s4, s5")
    k("s_lshl_b32 s4, s4, 7")
    k("s_lshr_b32 s5, s2, 3")
    k("s_mul_i32 s5, s5, 1280")
    k("s_add_u32 s4, s4, s5")
    k(f"v_mul_u32_u24 {v(tmp)}, {32 * 1280}, {v(LANE)}")
    k(f"v_add_u32 {v(tmp)}, s4, {v(tmp)}")
    k(f"s_bitcmp1_b32 {s(WAVE)}, 0")
    k(f"s_cselect_b64 s[6:7], {sp(V)}, {sp(K)}")
    k(f"global_load_dword {v(tmp)}, {v(tmp)}, s[6:7] nt")


def maxchain(k, dst, regs, first=True):
    regs = list(regs)
    if first:
        if len(regs) % 2:
            k(f"v_max3_u32 {v(dst)}, {v(regs[0])}, {v(regs[1])}, {v(regs[2])}" if len(regs) > 1 else f"v_mov_b32 {v(dst)}, {v(regs[0])}")
            regs = regs[3:]
        else:
            k(f"v_max_u32 {v(dst)}, {v(regs[0])}, {v(regs[1])}")
            regs = regs[2:]
    for i in range(0, len(regs), 2):
        k(f"v_max3_u32 {v(dst)}, {v(regs[i])}, {v(regs[i + 1])}, {v(dst)}")


def poll(k, name, loads, regs, tmp):
    k(f"{name}:")
    loads(k)
    k.drain(lgkm=False)
    maxchain(k, tmp, regs)
    k(f"v_cmp_eq_u32 vcc, -1, {v(tmp)}")
    k("s_add_u32 s100, s100, 1")
    k(f"s_cmp_ge_u32 s100, {SPIN}")
    k(f"s_cbranch_scc1 {name}_x")
    k(f"s_cbranch_vccnz {name}")
    k(f"{name}_x:")


def check(k, stubs, name, loads, regs, tmp):
    k(f"v_cmp_eq_u32 vcc, -1, {v(tmp)}")
    k(f"s_cbranch_vccnz {name}_r")
    k(f"{name}_ok:")
    st = Stream()
    st(f"{name}_r:")
    st("s_nop 7")
    poll(st, name + "_p", loads, regs, tmp)
    st("s_nop 1")
    st(f"s_branch {name}_ok")
    stubs.append(st)


def w_setup(k):
    k(f"s_and_b32 s4, s{SCB}, 1")
    k(f"s_lshl_b32 s5, {s(WAVE)}, 1")
    k("s_add_u32 s5, s5, s4")
    k("s_cmp_eq_u32 s5, 7")
    k("s_cselect_b32 s5, 0, s5")
    k(f"s_mul_i32 s96, s{SCB}, 7")
    k("s_add_u32 s96, s96, s5")
    k("s_add_u32 s97, s96, 1")
    k(f"s_cmp_eq_u32 {s(WAVE)}, 3")
    k("s_cselect_b32 s97, 55, s97")
    k("s_cselect_b32 s5, 0, -1")
    k("s_mul_i32 s4, s96, 20480")
    k(f"s_add_u32 s4, s4, {WP + 4096}")
    k(f"v_add_u32 {v(WO0)}, s4, {v(L16)}")
    k("s_mul_i32 s4, s97, 20480")
    k(f"s_add_u32 s4, s4, {WP + 4096}")
    k(f"v_and_b32 {v(WO1)}, s5, {v(L16)}")
    k(f"v_add_u32 {v(WO1)}, s4, {v(WO1)}")


def u_loads(tmp):
    def f(k):
        for sl in range(2):
            k(f"s_lshl_b32 s4, s{96 + sl}, 7")
            k(f"s_add_u32 s4, s4, {U}")
            k(f"v_lshl_add_u32 {v(tmp)}, {v(N_)}, 2, s4")
            k(f"global_load_dword {v(UZ2 + 2 * sl)}, {v(tmp)}, {sp(WS)} sc1")
            k(f"global_load_dword {v(UZ2 + 2 * sl + 1)}, {v(tmp)}, {sp(WS)} offset:64 sc1")
            k(f"s_add_u32 s4, s4, {56 * 128}")
            k(f"v_lshl_add_u32 {v(tmp)}, {v(Q_)}, 4, s4")
            k(f"global_load_dwordx4 {v(UZ1 + 8 * sl, 4)}, {v(tmp)}, {sp(WS)} sc1")
            k(f"global_load_dwordx4 {v(UZ1 + 8 * sl + 4, 4)}, {v(tmp)}, {sp(WS)} offset:64 sc1")
    return f


UREGS = list(range(UZ2, UZ2 + 20))


def wreg(part, ks, sl):
    return (96 if part == 0 else 0) + 8 * ks + 4 * sl


def w_loads(k, part, k0, k1):
    for ks in range(k0, k1):
        for sl in range(2):
            k(f"global_load_dwordx4 {a(wreg(part, ks, sl), 4)}, {v(WO0 + sl)}, {sp(WS)} offset:{1024 * (ks % 8) - 4096} sc1")
        if ks % 8 == 7:
            for sl in range(2):
                k(f"v_add_u32 {v(WO0 + sl)}, 8192, {v(WO0 + sl)}")
        if ks == 19 and part == 0:
            for sl in range(2):
                k(f"v_add_u32 {v(WO0 + sl)}, {56 * 20480 - 16384}, {v(WO0 + sl)}")


def stream(fn, *args):
    st = Stream()
    fn(st, *args)
    return st


def conv_phase(k, stubs, cfg):
    sg = SUN
    R = Alloc(VFREE, 254)
    t0, t1, go = R(), R(), R()
    k(f"s_lshl_b32 s4, {s(sg)}, 2")
    k(f"s_add_u32 s4, s4, {s(WAVE)}")
    k(f"s_lshl_b32 s4, s4, 12")
    k(f"v_add_u32 {v(t0)}, s4, {v(L16)}")
    k(f"s_mul_i32 s5, {s(WAVE)}, {2 * KCP}")
    k(f"s_add_u32 m0, s5, {KT + KCP + 64}")
    ktok = [k(f"global_load_lds_dwordx4 {v(t0)}, {sp(SSM)} offset:{1024 * i} nt") for i in range(4)]
    k(f"s_mul_i32 s6, {s(WAVE)}, {128 * 1280}")
    k(f"s_lshl_b32 s7, {s(sg)}, 3")
    k(f"s_add_u32 s6, s6, s7")
    k(f"v_mul_u32_u24 {v(go)}, 2560, {v(LANE)}")
    k(f"v_add_u32 {v(go)}, s6, {v(go)}")
    kr = [R(4, 4) for _ in range(4)]
    vr = [R(4, 4) for _ in range(4)]

    def gather(st, c):
        for r in range(2):
            st(f"global_load_dwordx2 {v(kr[c] + 2 * r, 2)}, {v(go)}, {sp(K)} offset:{1280 * r} nt")
        for r in range(2):
            st(f"global_load_dwordx2 {v(vr[c] + 2 * r, 2)}, {v(go)}, {sp(V)} offset:{1280 * r} nt")
        if c < 3:
            st(f"v_add_u32 {v(go)}, {512 * 1280}, {v(go)}")

    gather(k, 0)
    stamp(k, 2)
    SH, SDv, HAL, TP, DP, AS = 44, 52, 54, 78, 44, 54
    k(f"s_lshl_b32 s4, {s(sg)}, 5")
    k(f"s_load_dwordx8 s[{SH}:{SH + 7}], {sp(SHK)}, s4")
    k(f"s_load_dwordx2 s[{SDv}:{SDv + 1}], {sp(SD)}, s7")
    for c in range(4):
        for j in range(3):
            k(f"s_add_i32 s4, s6, {(512 * c - 3 + j) * 1280}")
            if c == 0:
                k(f"s_max_i32 s4, s4, 0")
            k(f"s_load_dwordx2 s[{HAL + 6 * c + 2 * j}:{HAL + 6 * c + 2 * j + 1}], {sp(K)}, s4")
    yv = R(4, 4)
    for j in range(4):
        k(f"v_mov_b32 {v(yv + j)}, 0")
    k(f"v_and_b32 {v(t0)}, 48, {v(L16)}")
    k(f"v_add_u32 {v(t0)}, s5, {v(t0)}")
    for cp in range(2):
        k(f"ds_write_b128 {v(t0)}, {v(yv, 4)} offset:{KT + cp * KCP}")
    k(f"v_min_u32 {v(t0)}, {28 * 16}, {v(L16)}")
    k(f"s_mul_i32 s4, {s(WAVE)}, {UCH}")
    k(f"v_add_u32 {v(t0)}, s4, {v(t0)}")
    for cp in range(2):
        k(f"ds_write_b128 {v(t0)}, {v(yv, 4)} offset:{UT + cp * UCP + 4096}")
    ka, kc, ua, uw, yw, yr, xo, x1o = (R() for _ in range(8))
    k(f"v_add_u32 {v(kc)}, s5, {v(L16)}")
    k(f"v_and_b32 {v(t0)}, 1, {v(N_)}")
    k(f"v_lshrrev_b32 {v(t1)}, 1, {v(N_)}")
    k(f"v_mul_u32_u24 {v(ka)}, {KCP}, {v(t0)}")
    k(f"v_lshl_add_u32 {v(ka)}, {v(t1)}, 3, {v(ka)}")
    k(f"v_lshl_add_u32 {v(ka)}, {v(Q_)}, 4, {v(ka)}")
    k(f"v_add_u32 {v(ka)}, s5, {v(ka)}")
    k(f"v_mul_u32_u24 {v(ua)}, {UCP}, {v(t0)}")
    k(f"v_lshlrev_b32 {v(t1)}, 6, {v(t1)}")
    k(f"v_sub_u32 {v(ua)}, {v(ua)}, {v(t1)}")
    k(f"v_lshl_add_u32 {v(ua)}, {v(Q_)}, 4, {v(ua)}")
    k(f"s_add_u32 s4, s4, {UT + 16 + 448}")
    k(f"v_add_u32 {v(ua)}, s4, {v(ua)}")
    k(f"v_lshl_add_u32 {v(yw)}, {v(t0)}, 2, {v(t1)}")
    k(f"v_lshl_add_u32 {v(yw)}, {v(Q_)}, 4, {v(yw)}")
    k(f"s_mul_i32 s4, {s(WAVE)}, {YCH}")
    k(f"s_add_u32 s4, s4, {YT}")
    k(f"v_add_u32 {v(yw)}, s4, {v(yw)}")
    k(f"v_lshlrev_b32 {v(t0)}, 2, v0")
    k(f"v_sub_u32 {v(uw)}, {UT + 16 + 2 * (2044 - 1536)}, {v(t0)}")
    k(f"v_add_u32 {v(yr)}, {YT}, {v(t0)}")
    k(f"s_lshl_b32 s4, {s(sg)}, 14")
    k(f"s_add_u32 s4, s4, {XB + 4096}")
    k(f"v_lshl_add_u32 {v(xo)}, v0, 4, s4")
    k(f"v_add_u32 {v(x1o)}, {X1 - XB}, {v(xo)}")
    w_setup(k)
    for j in range(4):
        for ch in range(4):
            src = SH + 2 * ch + (j >> 1)
            if j & 1:
                k(f"s_and_b32 s{TP + 4 * j + ch}, s{src}, 0xffff0000")
            else:
                k(f"s_lshl_b32 s{TP + 4 * j + ch}, s{src}, 16")
    for ch in range(4):
        if ch & 1:
            k(f"s_and_b32 s{DP + ch}, s{SDv + (ch >> 1)}, 0xffff0000")
        else:
            k(f"s_lshl_b32 s{DP + ch}, s{SDv + (ch >> 1)}, 16")
        k(f"s_lshr_b32 s{DP + 4 + ch}, s{DP + ch}, 16")
    k(f"s_cmp_eq_u32 {s(WAVE)}, 0")
    for j in range(6):
        k(f"s_cselect_b32 s{HAL + j}, 0, s{HAL + j}")
    acc = R(32, 4)
    af = R(64, 4)
    pkd = [R(4, 4) for _ in range(4)]
    kv = R(8, 2)
    hp = R(6, 2)
    un = R(20, 2)
    Bc = R(4, 2)
    md = R(2, 2)
    xr = [R(4, 2) for _ in range(4)]
    sr = [vr[0], kr[0], acc, acc + 4]
    stamp(k, 3)
    k.wait(*ktok)
    stamp(k, 4)
    kf = Stream()
    for i in range(4):
        kf(f"ds_read_b128 {v(af + 8 * i + 2, 4)}, {v(kc)} offset:{KT + KCP + 64 + 1024 * i}")
        kf(f"ds_read_b32 {v(af + 8 * i + 1)}, {v(kc)} offset:{KT + KCP + 60 + 1024 * i}")
    for i in range(4):
        for j in range(4):
            kf(f"v_alignbit_b32 {v(af + 32 + 4 * i + j)}, {v(af + 8 * i + 2 + j)}, {v(af + 8 * i + 1 + j)}, 16")
        kf(f"ds_write_b128 {v(kc)}, {v(af + 32 + 4 * i, 4)} offset:{KT + 64 + 1024 * i}")
    for j in range(64):
        for h in range(2):
            kf(f"ds_read_b64 {a(4 * j + 2 * h, 2)}, {v(ka)} offset:{KT + 8 + 64 * j + 8 * h}")
    k.extend(sprinkle(kf, stream(gather, 1), cfg.get("g1a", 0.3), 1.0))
    k.barrier()
    stamp(k, 5)

    def KV(st, c, packed):
        H = HAL + 6 * c
        for j in range(6):
            st(f"v_mov_b32 {v(hp + j)}, s{H + j}")
        for j in range(4):
            st(f"v_mov_b32_dpp {v(hp + 2 + j)}, {v(kr[c] + j)} wave_shr:1 row_mask:0xf bank_mask:0xf")
        rows = [hp, hp + 2, hp + 4, kr[c], kr[c] + 2]
        for i in (3, 4):
            for p in range(2):
                unpack(st, un + 4 * i + 2 * p, un + 4 * i + 2 * p + 1, rows[i] + p)
        for j in range(2):
            st(f"v_mov_b32_dpp {v(hp + j)}, {v(hp + 4 + j)} wave_shr:1 row_mask:0xf bank_mask:0xf")
        for i in (2, 1, 0):
            for p in range(2):
                unpack(st, un + 4 * i + 2 * p, un + 4 * i + 2 * p + 1, rows[i] + p)
        for j in range(4):
            for r in range(2):
                for p in range(2):
                    src = un + 4 * (3 + r - j) + 2 * p
                    d = kv + 4 * r + 2 * p
                    if j == 0:
                        vop(st, "mul", d, [("p", src), ("sp", TP + 2 * p)], packed)
                    else:
                        vop(st, "fma", d, [("p", src), ("sp", TP + 4 * j + 2 * p), ("p", d)], packed)
        for r in range(2):
            for p in range(2):
                unpack(st, un + 4 * r + 2 * p, un + 4 * r + 2 * p + 1, vr[c] + 2 * r + p)
        for i in range(4):
            vop(st, "mul", kv + 2 * i, [("p", kv + 2 * i), ("p", un + 2 * i)], packed)
        for ch in range(4):
            st(f"v_cvt_pk_bf16_f32 {v(pkd[c] + ch)}, {v(kv + 4 + ch)}, {v(kv + ch)}")
        for ch in range(4):
            for cp in range(2):
                st(f"ds_write_b32 {v(uw)}, {v(pkd[c] + ch)} offset:{ch * UCH + cp * (UCP + 4) + 1024 * (3 - c)}")

    def areads(st, c, wl):
        w = 2 * c + wl
        for r in range(8):
            st(f"ds_read_b128 {v(af + 32 * wl + 4 * r, 4)}, {v(ua)} offset:{2 * (1792 - 256 * w + 32 * r)}")

    started = set()

    def M(c):
        st = Stream()

        def mm(wl, r, t):
            i = 2 * c + wl + t
            cin = v(acc + 4 * i, 4) if i in started else "0"
            started.add(i)
            st(f"v_mfma_f32_16x16x32_bf16 {v(acc + 4 * i, 4)}, {a(4 * (r + 8 * t), 4)}, {v(af + 32 * wl + 4 * r, 4)}, {cin}")

        for r in range(8):
            mm(0, r, 0)
            mm(0, r, 1)
        for r in range(8):
            mm(1, r, 0)
        for r in range(8):
            for t in range(2, 8 - 2 * c):
                mm(0, r, t)
        for r in range(8):
            for t in range(1, 7 - 2 * c):
                mm(1, r, t)
        return st

    def ywrite(st, c):
        for wl in range(2):
            i = 2 * c + wl
            st(f"v_cvt_pk_bf16_f32 {v(yv + 2 * wl)}, {v(acc + 4 * i)}, {v(acc + 4 * i + 1)}")
            st(f"v_cvt_pk_bf16_f32 {v(yv + 2 * wl + 1)}, {v(acc + 4 * i + 2)}, {v(acc + 4 * i + 3)}")
            st(f"ds_write2_b32 {v(yw)}, {v(yv + 2 * wl)}, {v(yv + 2 * wl + 1)} offset0:{128 * wl} offset1:{128 * wl + 2}")
        if c < 3:
            st(f"v_add_u32 {v(yw)}, {4 * YCH}, {v(yw)}")

    def EP(st, c, packed):
        yd = hp
        for ch in range(4):
            st(f"ds_read_b32 {v(yd + ch)}, {v(yr)} offset:{4 * YCH * c + YCH * ch}")
        X, Hh, Y = un, un + 8, kv
        for i in range(4):
            unpack(st, X + 2 * i, X + 2 * i + 1, xr[c] + i)
        for i in range(4):
            r = i >> 1
            vop(st, "fma", Hh + 2 * i, [("p", X + 2 * i), ("b", sr[c] + 2 * r), ("b", sr[c] + 2 * r + 1)], packed)
        for i in range(4):
            p = i & 1
            vop(st, "fma", Hh + 2 * i, [("p", Hh + 2 * i), ("sp", AS + 2 * p), ("p", Bc + 2 * p)], packed)
        for ch in range(4):
            unpack(st, Y + ch, Y + 4 + ch, yd + ch)
        if packed:
            for ch in range(4):
                st(f"v_dot2_f32_bf16 {v(Y + ch)}, {v(pkd[c] + ch)}, s{DP + ch}, {v(Y + ch)}")
            for ch in range(4):
                st(f"v_dot2_f32_bf16 {v(Y + 4 + ch)}, {v(pkd[c] + ch)}, s{DP + 4 + ch}, {v(Y + 4 + ch)}")
        else:
            T = un + 16
            for r in range(2):
                for ch in range(4):
                    st(f"v_and_b32 {v(T + ch)}, 0xffff0000, {v(pkd[c] + ch)}" if r == 0 else f"v_lshlrev_b32 {v(T + ch)}, 16, {v(pkd[c] + ch)}")
                for ch in range(4):
                    st(f"v_fmac_f32 {v(Y + 4 * r + ch)}, s{DP + ch}, {v(T + ch)}")
        for i in range(4):
            vop(st, "fma", X + 2 * i, [("p", Hh + 2 * i), ("p", Y + 2 * i), ("p", X + 2 * i)], packed)
        for i in range(4):
            st(f"v_cvt_pk_bf16_f32 {v(xr[c] + i)}, {v(X + 2 * i)}, {v(X + 2 * i + 1)}")
        for i in range(4):
            st(f"v_min_u32 {v(xr[c] + i)}, -2, {v(xr[c] + i)}")
        st(f"global_store_dwordx4 {v(x1o)}, {v(xr[c], 4)}, {sp(WS)} offset:{4096 * (c & 1) - 4096} sc1")
        if c == 1:
            st(f"v_add_u32 {v(x1o)}, 8192, {v(x1o)}")

    def nextq(c, packed):
        st = Stream()
        KV(st, c, packed)
        st.barrier()
        return st

    def aux(st):
        st(f"v_lshlrev_b32 {v(t0)}, 4, v0")
        st(f"v_add_u32 {v(t0)}, {ST1 + 4096}, {v(t0)}")
        for c in range(4):
            if c == 2:
                st(f"v_add_u32 {v(t0)}, 8192, {v(t0)}")
            st(f"global_load_dwordx4 {v(sr[c], 4)}, {v(t0)}, {sp(WS)} offset:{4096 * (c & 1) - 4096} sc1")
        st(f"v_min_u32 {v(t0)}, 11, {v(LANE)}")
        st(f"v_lshrrev_b32 {v(t1)}, 2, {v(t0)}")
        st(f"v_mul_u32_u24 {v(t1)}, {2560 - 16}, {v(t1)}")
        st(f"v_lshl_add_u32 {v(t0)}, {v(t0)}, 2, {v(t1)}")
        st(f"s_lshl_b32 s4, {s(sg)}, 4")
        st(f"s_add_u32 s4, s4, {MODP}")
        st(f"v_add_u32 {v(t0)}, s4, {v(t0)}")
        st(f"global_load_dword {v(md)}, {v(t0)}, {sp(WS)} sc1")
        st(f"v_add_u32 {v(t0)}, {3840 * 4}, {v(t0)}")
        st(f"global_load_dword {v(md + 1)}, {v(t0)}, {sp(WS)} sc1")
        for c in range(4):
            st(f"global_load_dwordx4 {v(xr[c], 4)}, {v(xo)}, {sp(WS)} offset:{4096 * (c & 1) - 4096} sc1")
            if c == 1:
                st(f"v_add_u32 {v(xo)}, 8192, {v(xo)}")

    def modfin(st):
        st(f"v_add_f32 {v(md)}, {v(md)}, {v(md + 1)}")
        round_bf16(st, md)
        st(f"v_mov_b32 {v(t1)}, 1.0")
        st(f"v_add_f32_dpp {v(md)}, {v(md)}, {v(t1)} quad_perm:[0,1,2,3] row_mask:0xf bank_mask:0x2")
        round_bf16(st, md)
        st(f"v_mul_f32_dpp {v(md + 1)}, {v(md)}, {v(md)} row_shl:8 row_mask:0xf bank_mask:0x1")
        st(f"v_mul_f32_dpp {v(md + 1)}, {v(md)}, {v(md)} row_shl:4 row_mask:0xf bank_mask:0x2")
        for ch in range(8):
            st(f"v_readlane_b32 s{AS + (ch + 4) % 8}, {v(md + 1)}, {ch}")
        for ch in range(4):
            st(f"v_mov_b32 {v(Bc + ch)}, s{AS + 4 + ch}")

    KV(k, 0, True)
    k.barrier()
    stamp(k, 6)
    areads(k, 0, 0)
    k.extend(weave(M(0), [(stream(areads, 0, 1), 0, 7), (stream(ywrite, 0), 28, 34), (stream(gather, 2), 4, cfg.get("g2e", 40)),
                          (stream(aux), cfg.get("auxa", 60), cfg.get("auxb", 118)),
                          (nextq(1, False), cfg.get("kv1", 50), 107), (stream(areads, 1, 0), 108, 115)]))
    stamp(k, 7)
    k.extend(weave(M(1), [(stream(areads, 1, 1), 0, 7), (stream(ywrite, 1), 28, 34), (stream(gather, 3), 2, cfg.get("g3e", 30)),
                          (nextq(2, False), cfg.get("kv2", 36), 79), (stream(areads, 2, 0), 80, 87)]))
    stamp(k, 8)
    e0 = Stream()
    modfin(e0)
    EP(e0, 0, False)
    k.extend(weave(M(2), [(stream(areads, 2, 1), 0, 7), (stream(u_loads(t0)), 30, 55), (stream(ywrite, 2), 28, 32), (e0, 6, 55)]))
    stamp(k, 9)
    EP(k, 1, True)
    KV(k, 3, True)
    k.barrier()
    stamp(k, 10)
    areads(k, 3, 0)
    areads(k, 3, 1)
    n0 = cfg.get("wearly", 8)
    if cfg.get("split"):
        n0 = 0
    else:
        maxchain(k, t0, UREGS)
        check(k, stubs, "Lcu", u_loads(go), UREGS, t0)
    tl = Stream()
    EP(tl, 2, True)
    tl.extend(M(3))
    ywrite(tl, 3)
    tl.barrier()
    stamp(tl, 11)
    EP(tl, 3, True)
    k.extend(sprinkle(tl, stream(w_loads, 0, 0, n0), 0.0, 0.95))
    stamp(k, 12)


def spare_pre(k):
    t = 250
    k("s_and_b32 s4, s2, 7")
    k("s_lshr_b32 s5, s2, 3")
    k("s_sub_u32 s5, s5, 20")
    k("s_mul_i32 s4, s4, 160")
    k("s_lshr_b32 s4, s4, 7")
    k("s_bfe_u32 s6, s5, 0x10001")
    k("s_add_u32 s4, s4, s6")
    k("s_lshl_b32 s4, s4, 7")
    k("s_bitcmp1_b32 s5, 0")
    k(f"s_cselect_b64 s[6:7], {sp(V)}, {sp(K)}")
    k("s_lshr_b32 s5, s5, 2")
    for i in range(3):
        k(f"v_mad_u32_u24 {v(t + i)}, v0, 3, s5")
        k(f"v_min_u32 {v(t + i)}, 2047, {v(t + i)}")
        k(f"v_mul_u32_u24 {v(t + i)}, 1280, {v(t + i)}")
        k(f"v_add_u32 {v(t + i)}, s4, {v(t + i)}")
        k(f"global_load_dword {v(t + i)}, {v(t + i)}, s[6:7] nt")
        k("s_add_u32 s5, s5, 768")


def wsp_touch(k, cfg):
    t, d = VFREE, VFREE + 2
    fl = cfg.get("wspfl", "nt")
    k("s_lshr_b32 s5, s2, 3")
    k("s_sub_u32 s5, s5, 20")
    k("s_lshl_b32 s5, s5, 2")
    k(f"s_add_u32 s5, s5, {s(WAVE)}")
    k("s_cmp_ge_u32 s5, 28")
    k("s_cselect_b32 s6, 20, 28")
    k("s_cselect_b32 s7, 8, 4")
    k("s_cselect_b32 s4, -28, 0")
    k("s_cselect_b32 s94, 0, 0xa0")
    k("s_add_u32 s5, s5, s4")
    k("s_add_u32 s5, s5, s94")
    k(f"v_lshlrev_b32 {v(t)}, 7, {v(LANE)}")
    k("Lwt:")
    k("s_min_u32 s4, s5, 255")
    k("s_lshr_b32 s94, s4, 6")
    k("s_lshl_b32 s94, s94, 3")
    k("s_and_b32 s95, s2, 6")
    k("s_add_u32 s94, s94, s95")
    k("s_lshl_b32 s94, s94, 18")
    k("s_and_b32 s4, s4, 63")
    k("s_lshl_b32 s4, s4, 13")
    k("s_add_u32 s4, s4, s94")
    k(f"v_add_u32 {v(t + 1)}, s4, {v(t)}")
    k(f"global_load_dword {v(d)}, {v(t + 1)}, {sp(WSP)} {fl}")
    k("s_add_u32 s5, s5, s6")
    k("s_sub_u32 s7, s7, 1")
    k("s_cmp_lg_u32 s7, 0")
    k("s_cbranch_scc1 Lwt")


def wsp_touch_all(k, t, fl=""):
    k("s_lshr_b32 s5, s2, 3")
    k("s_lshl_b32 s5, s5, 2")
    k(f"s_add_u32 s5, s5, {s(WAVE)}")
    k("s_lshr_b32 s6, s5, 5")
    k("s_lshl_b32 s6, s6, 3")
    k("s_and_b32 s7, s2, 6")
    k("s_add_u32 s6, s6, s7")
    k("s_lshl_b32 s6, s6, 18")
    k("s_and_b32 s5, s5, 31")
    k("s_lshl_b32 s5, s5, 14")
    k("s_add_u32 s5, s5, s6")
    k(f"v_lshl_add_u32 {v(t)}, {v(LANE)}, 7, s5")
    k(f"global_load_dword {v(t + 1)}, {v(t)}, {sp(WSP)} {fl}")
    k(f"v_add_u32 {v(t)}, 8192, {v(t)}")
    k(f"global_load_dword {v(t + 2)}, {v(t)}, {sp(WSP)} {fl}")


def spare_join(k, cfg):
    k.barrier()
    common_regs(k)
    w_setup(k)
    if cfg.get("pfw", 1):
        wsp_touch(k, cfg)
    stamp(k, 2)
    poll(k, "Lsu", u_loads(VFREE), UREGS, VFREE + 1)
    stamp(k, 3)
    t, d = VFREE, VFREE + 2
    if cfg.get("pfw", 1):
        k(f"s_sub_u32 s5, s{SRI}, 5")
        k(f"v_mad_u32_u24 {v(t)}, {v(LANE)}, 3, s5")
        k(f"v_min_u32 {v(t)}, 159, {v(t)}")
        k(f"v_lshlrev_b32 {v(t)}, 7, {v(t)}")
        for part in range(2):
            for sl in range(2):
                k(f"s_mul_i32 s4, s{96 + sl}, 20480")
                k(f"s_add_u32 s4, s4, {WP + part * 56 * 20480}")
                k(f"v_add_u32 {v(t + 1)}, s4, {v(t)}")
                k(f"global_load_dword {v(d + 2 * part + sl)}, {v(t + 1)}, {sp(WS)} sc1")
        k(f"s_mul_i32 s4, s{SCB}, {135 * 1024}")
        k(f"s_add_u32 s4, s4, {WO}")
        for i in range(2):
            k(f"v_mad_u32_u24 {v(t)}, v0, 3, s5")
            k(f"v_min_u32 {v(t)}, 1079, {v(t)}")
            k(f"v_lshl_add_u32 {v(t)}, {v(t)}, 7, s4")
            k(f"global_load_dword {v(d + 4 + i)}, {v(t)}, {sp(WS)} sc1")
            k("s_add_u32 s5, s5, 768")
        k.drain(lgkm=False)
    stamp(k, 4)
    w_loads(k, 0, 0, cfg.get("wearly", 8))


def gelu(k, regs, tmp, gc):
    n = len(regs)
    for i, r in enumerate(regs):
        pk(k, "mul", tmp + 2 * i, [("p", r), ("p", r)])
    for i, r in enumerate(regs):
        pk(k, "fma", tmp + 2 * i, [("p", tmp + 2 * i), ("sb", gc + 1), ("sb", gc)])
    for i, r in enumerate(regs):
        pk(k, "mul", tmp + 2 * i, [("p", tmp + 2 * i), ("p", r)])
    for i in range(2 * n):
        k(f"v_exp_f32 {v(tmp + i)}, {v(tmp + i)}")
    for i in range(n):
        pk(k, "add", tmp + 2 * i, [("p", tmp + 2 * i), ("c", "1.0")])
    for i in range(2 * n):
        k(f"v_rcp_f32 {v(tmp + i)}, {v(tmp + i)}")
    for i, r in enumerate(regs):
        pk(k, "mul", r, [("p", r), ("p", tmp + 2 * i)])


def gemm_phases(k, stubs, cfg):
    JB, ZB, WB, GC, MK, SW9, STGW = 44, 52, 68, 84, 86, 88, 89
    P_ = Alloc(VFREE, 254)
    t0, t1, l8 = P_(), P_(), P_()
    bs = P_(4, 4)
    xres = P_(10, 2)
    z1r = P_(14, 4)
    base = P_.mark()
    R = Alloc(base, 254)
    kk, k = k, Stream()
    k(f"s_mul_i32 s4, s{SRI}, 43")
    k(f"s_lshr_b32 s4, s4, 7")
    k(f"s_mul_i32 s4, s4, 3")
    k(f"s_sub_u32 s4, s{SRI}, s4")
    k(f"s_lshl_b32 s5, {s(WAVE)}, 1")
    if cfg.get("rot", 0):
        k(f"s_add_u32 s5, s5, s{SRI}")
    for qi in range(4):
        if qi == 3:
            k("s_mov_b32 s4, 3")
        elif qi:
            k("s_add_u32 s4, s4, 1")
            k("s_cmp_eq_u32 s4, 3")
            k("s_cselect_b32 s4, 0, s4")
        for e in range(2):
            k(f"s_add_u32 s6, s5, {e}")
            k("s_and_b32 s6, s6, 7")
            k("s_lshl_b32 s7, s4, 3")
            k(f"s_add_u32 s{JB + 2 * qi + e}, s6, s7")
    k(f"s_mul_i32 s4, s{SCB}, {64 * 7168}")
    k(f"s_add_u32 s4, s4, {Z2}")
    k(f"s_lshl_b32 s5, s{SRB}, 18")
    for i in range(8):
        k(f"s_mul_i32 s6, s{JB + i}, 14336")
        k("s_add_u32 s6, s6, s4")
        k(f"s_add_u32 s{ZB + 2 * i}, s{WS}, s6")
        k(f"s_addc_u32 s{ZB + 2 * i + 1}, s{WS + 1}, 0")
        k(f"s_lshl_b32 s6, s{JB + i}, 7")
        k("s_add_u32 s6, s6, s5")
        k(f"s_add_u32 s{WB + 2 * i}, s{WSP}, s6")
        k(f"s_addc_u32 s{WB + 2 * i + 1}, s{WSP + 1}, 0")
    k(f"s_mov_b32 s{GC}, {hex(fbits(C0))}")
    k(f"s_mov_b32 s{GC + 1}, {hex(fbits(C1))}")
    k(f"s_cmp_eq_u32 {s(WAVE)}, 3")
    k(f"s_cselect_b64 s[{MK}:{MK + 1}], 0, -1")
    k(f"s_lshl_b32 s{SW9}, {s(WAVE)}, 9")
    k(f"s_lshl_b32 s{STGW}, {s(WAVE)}, 14")
    k(f"s_add_u32 s{STGW}, s{STGW}, {STG}")
    k(f"v_lshlrev_b32 {v(l8)}, 3, {v(LANE)}")
    st4 = R(4, 2)
    xo0, xo, aw0, aw, srow, mx = (R() for _ in range(6))
    k(f"v_and_b32 {v(t0)}, 7, {v(LANE)}")
    k(f"v_lshl_add_u32 {v(t0)}, {v(Q_)}, 3, {v(t0)}")
    k(f"v_bfe_u32 {v(t1)}, {v(LANE)}, 3, 1")
    k(f"v_lshlrev_b32 {v(xo0)}, 14, {v(t1)}")
    k(f"v_lshl_add_u32 {v(xo0)}, {v(t0)}, 4, {v(xo0)}")
    k(f"s_lshl_b32 s4, {s(WAVE)}, 15")
    k(f"s_lshl_b32 s5, s{SRB}, 9")
    k("s_add_u32 s4, s4, s5")
    k(f"s_add_u32 s4, s4, {X1}")
    k(f"v_add_u32 {v(xo0)}, s4, {v(xo0)}")
    k(f"v_lshl_add_u32 {v(srow)}, {v(t0)}, 1, {v(t1)}")
    k(f"v_lshrrev_b32 {v(t0)}, 5, {v(LANE)}")
    k(f"v_bfe_u32 {v(aw0)}, {v(LANE)}, 1, 1")
    k(f"v_lshl_add_u32 {v(t0)}, {v(t0)}, 1, {v(aw0)}")
    k(f"v_mul_u32_u24 {v(aw0)}, {AFR}, {v(t0)}")
    k(f"v_lshl_add_u32 {v(aw0)}, {v(t1)}, 3, {v(aw0)}")
    for bit, sh in ((2, 6), (4, 7), (0, 5)):
        k(f"v_bfe_u32 {v(t0)}, {v(LANE)}, {bit}, 1")
        k(f"v_lshl_add_u32 {v(aw0)}, {v(t0)}, {sh}, {v(aw0)}")
    k(f"s_lshl_b32 s5, {s(WAVE)}, 8")
    k(f"v_add_u32 {v(aw0)}, s5, {v(aw0)}")
    pa = R()
    k(f"v_min_u32 {v(t0)}, 39, {v(LANE)}")
    k(f"v_lshrrev_b32 {v(pa)}, 1, {v(t0)}")
    k(f"v_lshlrev_b32 {v(pa)}, 17, {v(pa)}")
    k(f"v_and_b32 {v(t0)}, 1, {v(t0)}")
    k(f"v_lshl_add_u32 {v(pa)}, {v(t0)}, 14, {v(pa)}")
    k(f"v_add_u32 {v(pa)}, s4, {v(pa)}")
    do = R(8)
    ra = R(8)
    k(f"v_lshrrev_b32 {v(t0)}, 3, {v(LANE)}")
    k(f"v_lshlrev_b32 {v(t0)}, 12, {v(t0)}")
    k(f"v_bfe_u32 {v(t1)}, {v(LANE)}, 4, 1")
    k(f"v_xor_b32 {v(t1)}, {v(t1)}, {v(LANE)}")
    k(f"v_and_b32 {v(t1)}, 7, {v(t1)}")
    for pi in range(4):
        k(f"v_xor_b32 {v(do + pi)}, {2 * pi}, {v(t1)}")
        k(f"v_lshl_add_u32 {v(do + pi)}, {v(do + pi)}, 4, {v(t0)}")
        if pi:
            k(f"v_add_u32 {v(do + pi)}, {pi * 8 * 4096}, {v(do + pi)}")
        k(f"v_add_u32 {v(do + 4 + pi)}, {32 * 4096}, {v(do + pi)}")
    k(f"v_lshrrev_b32 {v(t1)}, 1, {v(N_)}")
    k(f"v_xor_b32 {v(t1)}, {v(t1)}, {v(Q_)}")
    k(f"v_lshlrev_b32 {v(t1)}, 4, {v(t1)}")
    k(f"v_lshl_add_u32 {v(t1)}, {v(TROW)}, 7, {v(t1)}")
    for tau in range(4):
        k(f"s_xor_b32 s4, {s(WAVE)}, {tau}")
        k("s_lshr_b32 s5, s4, 1")
        k("s_lshl_b32 s5, s5, 12")
        k("s_and_b32 s4, s4, 1")
        k("s_lshl_b32 s4, s4, 9")
        k("s_add_u32 s4, s4, s5")
        k(f"s_add_u32 s4, s4, s{STGW}")
        k(f"v_add_u32 {v(ra + 2 * tau)}, s4, {v(t1)}")
        k(f"v_xor_b32 {v(ra + 2 * tau + 1)}, 64, {v(ra + 2 * tau)}")
    k(f"s_lshr_b32 s5, {s(WAVE)}, 1")
    k("s_lshl_b32 s5, s5, 5")
    k(f"s_and_b32 s4, {s(WAVE)}, 1")
    k("s_lshl_b32 s4, s4, 2")
    k("s_add_u32 s4, s4, s5")
    k(f"s_lshl_b32 s5, s{SRB}, 6")
    k("s_add_u32 s90, s4, s5")
    k(f"v_add_lshl_u32 {v(t0)}, {v(TROW)}, s90, 1")
    k(f"global_load_ushort {v(bs)}, {v(t0)}, {sp(BSP)}")
    xr = R(80, 4)
    pr = R(8, 2)
    k(f"s_and_b32 s94, s{SCB}, 3")
    k("s_mul_i32 s94, s94, 5")
    kk.extend(sprinkle(k, stream(w_loads, 0, cfg.get("wearly", 8), 20), 0.0, 1.0))
    k = kk
    stamp(k, 14)
    k("Lx_redo:")
    poll(k, "Lxp", lambda st: st(f"global_load_dword {v(mx)}, {v(pa)}, {sp(WS)} offset:508 sc1"), [mx], t0)
    stamp(k, 15)
    k(f"s_mov_b32 s7, {hex(ONES)}")
    k("s_mov_b32 s5, s94")
    k("s_mov_b32 s6, s94")
    for j in range(4):
        k(f"v_mov_b32 {v(st4 + j)}, 0")
    k(f"v_mov_b32 {v(mx)}, 0")
    AHEAD = cfg.get("xahead", 8)

    def step(sreg, i):
        k(f"s_add_u32 s{sreg}, s{sreg}, 1")
        if i % 5 == 4:
            k(f"s_cmp_eq_u32 s{sreg}, 20")
            k(f"s_cselect_b32 s{sreg}, 0, s{sreg}")

    def xload(i):
        k("s_lshl_b32 s4, s5, 17")
        k(f"v_add_u32 {v(xo)}, s4, {v(xo0)}")
        k(f"global_load_dwordx4 {v(xr + 4 * i, 4)}, {v(xo)}, {sp(WS)} sc1")
        step(5, i)

    for i in range(AHEAD):
        xload(i)
    for i in range(20):
        if i + AHEAD < 20:
            xload(i + AHEAD)
        k(f"s_mul_i32 s4, s6, {4 * AFR}")
        k(f"v_add_u32 {v(aw)}, s4, {v(aw0)}")
        k(f"ds_write2_b64 {v(aw)}, {v(xr + 4 * i, 2)}, {v(xr + 4 * i + 2, 2)} offset0:0 offset1:2")
        step(6, i)
        maxchain(k, mx, range(xr + 4 * i, xr + 4 * i + 4), first=False)
        for j in range(2):
            for r in range(2):
                src = xr + 4 * i + 2 * r + j
                k(f"v_dot2_f32_bf16 {v(st4 + 2 * r)}, {v(src)}, s7, {v(st4 + 2 * r)}")
                k(f"v_dot2_f32_bf16 {v(st4 + 2 * r + 1)}, {v(src)}, {v(src)}, {v(st4 + 2 * r + 1)}")
    k(f"v_cmp_eq_u32 vcc, -1, {v(mx)}")
    k(f"s_cmp_ge_u32 s100, {SPIN}")
    k("s_cbranch_scc1 Lx_go")
    k("s_cbranch_vccnz Lx_redo")
    k("Lx_go:")
    for j in range(2):
        k(f"v_add_f32_dpp {v(pr + j)}, {v(st4 + j)}, {v(st4 + j)} row_ror:8 row_mask:0xf bank_mask:0x3")
        k(f"v_add_f32_dpp {v(pr + j)}, {v(st4 + 2 + j)}, {v(st4 + 2 + j)} row_ror:8 row_mask:0xf bank_mask:0xc")
    k(f"s_add_u32 s4, s{SW9}, {SX}")
    k(f"v_lshl_add_u32 {v(t0)}, {v(srow)}, 3, s4")
    k(f"ds_write_b64 {v(t0)}, {v(pr, 2)}")
    k.barrier()
    stamp(k, 16)
    F = Alloc(xr, xr + 80)
    rs = F(32, 4)
    tmp = F(32, 2)
    rz1 = F(8, 2)
    tw, tq, tn, ar0, ar1, so = (F() for _ in range(6))
    acc2 = R(32, 4)
    acc1 = R(32, 4)
    afr = z1r
    NAF = 6
    assert afr + 4 * NAF <= pa + 1
    k(f"v_mov_b32 {v(ar0)}, {v(L16)}")
    k(f"v_add_u32 {v(ar1)}, {40 * AFR}, {v(L16)}")

    def read_rs(st):
        for tbl in range(2):
            for h in range(2):
                for o in range(2):
                    st(f"ds_read_b128 {v(rs + 16 * tbl + 8 * h + 4 * o, 4)}, {v(tq)} offset:{256 * tbl + 128 * h + 16 * o}")

    def aread(st, f):
        ks, mt = f >> 2, f & 3
        st(f"ds_read_b128 {v(afr + 4 * (f % NAF), 4)}, {v(ar0 + ks // 10)} offset:{AI + (4 * (ks % 10) + mt) * AFR}")

    def mainloop(acc, part):
        st = Stream()
        for f in range(NAF - 1):
            aread(st, f)
        for f in range(80):
            ks, mt = f >> 2, f & 3
            for sl in range(2):
                d = v(acc + 16 * sl + 4 * mt, 4)
                x, w = v(afr + 4 * (f % NAF), 4), a(wreg(part, ks, sl), 4)
                st(f"v_mfma_f32_16x16x32_bf16 {d}, {w if part else x}, {x if part else w}, {d if ks else 0}")
                if sl == 0 and f + NAF - 1 < 80:
                    aread(st, f + NAF - 1)
        return st

    sf = Stream()
    sf(f"v_add_u32 {v(t0)}, {SX}, {v(l8)}")
    for i in range(4):
        sf(f"ds_read_b64 {v(pr + 2 * i, 2)}, {v(t0)} offset:{512 * i}")
    sf(f"s_add_u32 s4, s{SW9}, {TB}")
    sf(f"v_lshl_add_u32 {v(tw)}, {v(LANE)}, 2, s4")
    sf(f"v_lshl_add_u32 {v(tq)}, {v(Q_)}, 5, s4")
    sf(f"v_lshl_add_u32 {v(tn)}, {v(TROW)}, 2, s4")
    vop(sf, "add", pr, [("p", pr), ("p", pr + 2)], False)
    vop(sf, "add", pr + 4, [("p", pr + 4), ("p", pr + 6)], False)
    vop(sf, "add", pr, [("p", pr), ("p", pr + 4)], False)
    row_stats(sf, pr, pr + 1, D, pr + 2)
    sf(f"ds_write2st64_b32 {v(tw)}, {v(pr)}, {v(pr + 1)} offset0:0 offset1:1")
    read_rs(sf)
    for mt in range(4):
        off = 128 * (mt >> 1) + 16 * (mt & 1)
        sf(f"ds_read_b32 {v(rz1 + 2 * mt)}, {v(tn)} offset:{off}")
        sf(f"ds_read_b32 {v(rz1 + 2 * mt + 1)}, {v(tn)} offset:{256 + off}")
    for sl in range(2):
        for i in range(16):
            sf(f"v_fma_f32 {v(tmp + 16 * sl + i)}, {v(rs + 16 + i)}, {v(UZ2 + 2 * sl)}, {v(UZ2 + 2 * sl + 1)}")
    sf(f"v_lshlrev_b32 {v(bs)}, 16, {v(bs)}")
    for j in range(1, 4):
        sf(f"v_mov_b32 {v(bs + j)}, {v(bs)}")
    wa, wb = Stream(), Stream()
    w_loads(wa, 1, 0, 12)
    w_loads(wb, 1, 12, 20)
    k.extend(weave(mainloop(acc2, 0), [(sf, 4, 150), (wa, 0, 95), (wb, 96, 159)]))
    stamp(k, 17)

    apos = lambda i: 32 * ((i + 5) % 8)
    tk, rd = {}, {}

    def dma(st, i):
        if i >= 2:
            st.wait(rd[i - 2])
        tk[i] = []
        for pi in range(8):
            st(f"s_add_u32 m0, s{STGW}, {(i & 1) * 8192 + 1024 * pi}")
            tk[i].append(st(f"global_load_lds_dwordx4 {v(do + pi)}, s[{WB + 2 * i}:{WB + 2 * i + 1}] {cfg.get('wspld', '')}"))

    def frag(st, i):
        st.wait(*tk[i])
        for ksl in range(2):
            for tau in range(4):
                rd[i] = st(f"ds_read_b128 {a(apos(i) + 16 * ksl + 4 * tau, 4)}, {v(ra + 2 * tau + ksl)} offset:{(i & 1) * 8192}")

    e2 = Stream()
    for i in range(16):
        pk(e2, "fma", acc2 + 2 * i, [("p", acc2 + 2 * i), ("p", rs + 2 * (i % 8)), ("p", tmp + 2 * i)])
    gelu(e2, [acc2 + 2 * i for i in range(16)], tmp, GC)
    for i in range(8):
        pk(e2, "add", tmp + 2 * i, [("p", acc2 + 2 * i), ("p", acc2 + 16 + 2 * i)])
        pk(e2, "mul", tmp + 16 + 2 * i, [("p", acc2 + 2 * i), ("p", acc2 + 2 * i)])
    for i in range(8):
        pk(e2, "fma", tmp + 16 + 2 * i, [("p", acc2 + 16 + 2 * i), ("p", acc2 + 16 + 2 * i), ("p", tmp + 16 + 2 * i)])
    for i in range(16):
        e2(f"v_add_f32_dpp {v(rs + i)}, {v(tmp + i)}, {v(tmp + i)} row_ror:8 row_mask:0xf bank_mask:0x3")
    for i in range(16):
        e2(f"v_add_f32_dpp {v(rs + i)}, {v(tmp + 16 + i)}, {v(tmp + 16 + i)} row_ror:8 row_mask:0xf bank_mask:0xc")
    for i in range(8):
        e2(f"v_add_f32_dpp {v(tmp + i)}, {v(rs + i)}, {v(rs + i)} row_half_mirror row_mask:0xf bank_mask:0x5")
    for i in range(8):
        e2(f"v_add_f32_dpp {v(tmp + i)}, {v(rs + 8 + i)}, {v(rs + 8 + i)} row_half_mirror row_mask:0xf bank_mask:0xa")
    for i in range(8):
        e2(f"v_add_f32_dpp {v(tmp + i)}, {v(tmp + i)}, {v(tmp + i)} quad_perm:[1,0,3,2] row_mask:0xf bank_mask:0xf")
    for i in range(8):
        e2(f"v_add_f32_dpp {v(tmp + i)}, {v(tmp + i)}, {v(tmp + i)} quad_perm:[2,3,0,1] row_mask:0xf bank_mask:0xf")
    e2(f"v_lshrrev_b32 {v(t0)}, 2, {v(N_)}")
    e2(f"v_lshlrev_b32 {v(t0)}, 7, {v(t0)}")
    e2(f"v_lshl_add_u32 {v(t0)}, {v(Q_)}, 5, {v(t0)}")
    e2(f"s_add_u32 s4, s{SW9}, {TB}")
    e2(f"v_add_u32 {v(t0)}, s4, {v(t0)}")
    e2(f"ds_write_b128 {v(t0)}, {v(tmp, 4)}")
    e2(f"ds_write_b128 {v(t0)}, {v(tmp + 4, 4)} offset:16")
    sd = Stream()
    dma(sd, 0)
    dma(sd, 1)
    k.extend(sprinkle(e2, sd, 0.0, 0.6))
    k.barrier()
    k(f"v_lshlrev_b32 {v(t0)}, 2, {v(LANE)}")
    k(f"v_add_u32 {v(t0)}, {TB}, {v(t0)}")
    for i in range(4):
        k(f"ds_read2st64_b32 {v(pr + 2 * i, 2)}, {v(t0)} offset0:{2 * i} offset1:{2 * i + 1}")
    k(f"s_lshl_b32 s4, s{SRB}, 12")
    k(f"s_add_u32 s4, s4, {ST3}")
    k(f"v_add_u32 {v(so)}, s4, {v(l8)}")
    k(f"s_lshl_b32 s4, s{SCB}, 9")
    k(f"v_add_u32 {v(t0)}, s4, {v(so)}")
    k(f"s_add_u32 s4, s{SW9}, {SX}")
    k(f"v_lshl_add_u32 {v(tw)}, {v(LANE)}, 2, s4")
    k(f"v_lshl_add_u32 {v(tq)}, {v(Q_)}, 5, s4")
    pk(k, "add", pr, [("p", pr), ("p", pr + 2)])
    pk(k, "add", pr + 4, [("p", pr + 4), ("p", pr + 6)])
    pk(k, "add", pr, [("p", pr), ("p", pr + 4)])
    k(f"v_min_u32 {v(pr)}, -2, {v(pr)}")
    k(f"v_min_u32 {v(pr + 1)}, -2, {v(pr + 1)}")
    k(f"s_lshl_b32 s4, {s(WAVE)}, 4")
    k(f"s_lshl_b64 exec, 0xffff, s4")
    k(f"global_store_dwordx2 {v(t0)}, {v(pr, 2)}, {sp(WS)} sc1")
    k(f"s_mov_b64 exec, -1")
    stamp(k, 18)
    sides = []
    sched = cfg.get("wsp", [(0, 4), (10, 4), (40, 4), (62, 4), (84, 4), (106, 4), (134, 4)])
    for i in range(7):
        st = Stream()
        frag(st, i)
        if i + 2 < 8:
            dma(st, i + 2)
        nxt = sched[i + 1][0] - 1 if i < 6 else 150
        sides.append((st, sched[i][0], nxt))
    pl = tmp

    def st3_loads(st):
        for i in range(8):
            st(f"global_load_dwordx2 {v(pl + 2 * i, 2)}, {v(so)}, {sp(WS)} offset:{512 * i} sc1")

    s3 = Stream()
    st3_loads(s3)
    sides.append((s3, cfg.get("st3", 140), 150))
    rr = Stream()
    rr(f"s_mul_i32 s5, s{SCB}, 10")
    rr(f"s_mul_i32 s6, {s(WAVE)}, {AFR}")
    for j in range(3):
        if j < 2:
            rr(f"v_add_u32 {v(t0)}, s5, {v(Q_)}")
        else:
            rr(f"v_lshrrev_b32 {v(t0)}, 1, {v(Q_)}")
            rr(f"v_add_u32 {v(t0)}, s5, {v(t0)}")
        rr("s_add_u32 s5, s5, 4")
        rr(f"v_lshrrev_b32 {v(t1)}, 2, {v(t0)}")
        rr(f"v_mul_u32_u24 {v(t1)}, {4 * AFR}, {v(t1)}")
        rr(f"v_and_b32 {v(t0)}, 3, {v(t0)}")
        rr(f"v_lshl_add_u32 {v(t1)}, {v(t0)}, 8, {v(t1)}")
        rr(f"v_lshl_add_u32 {v(t1)}, {v(N_)}, 4, {v(t1)}")
        rr(f"v_add_u32 {v(t1)}, s6, {v(t1)}")
        if j < 2:
            rr(f"ds_read_b128 {v(xres + 4 * j, 4)}, {v(t1)} offset:{AI}")
        else:
            rr(f"v_and_b32 {v(t0)}, 1, {v(Q_)}")
            rr(f"v_lshl_add_u32 {v(t1)}, {v(t0)}, 3, {v(t1)}")
            rr(f"ds_read_b64 {v(xres + 8, 2)}, {v(t1)} offset:{AI}")
    sides.append((rr, 20, 130))
    k.extend(weave(mainloop(acc1, 1), sides))
    stamp(k, 19)
    maxchain(k, t0, range(pl, pl + 16))
    check(k, stubs, "Ls3", st3_loads, list(range(pl, pl + 16)), t0)
    stamp(k, 20)
    for stp in (2, 4, 8):
        for i in range(0, 16, 2 * stp):
            pk(k, "add", pl + i, [("p", pl + i), ("p", pl + i + stp)])
    row_stats(k, pl, pl + 1, FH, pl + 2)
    k(f"ds_write2st64_b32 {v(tw)}, {v(pl)}, {v(pl + 1)} offset0:0 offset1:1")
    read_rs(k)
    frag(k, 7)
    k(f"s_lshl_b32 s4, s{SCB}, 6")
    k(f"s_lshl_b32 s5, s{SRB}, 1")
    k("s_add_u32 s4, s4, s5")
    k("s_mul_i32 s4, s4, 7168")
    k(f"s_lshl_b32 s5, {s(WAVE)}, 11")
    k("s_add_u32 s4, s4, s5")
    k(f"s_add_u32 s4, s4, {Z2}")
    k(f"v_add_u32 {v(t0)}, s4, {v(L16)}")
    k(f"v_add_u32 {v(t1)}, 7168, {v(t0)}")
    for sl in range(2):
        for h in range(2):
            for i in range(4 * h, 4 * h + 4):
                r = acc2 + 16 * sl + 2 * i
                pk(k, "fma", r, [("p", r), ("p", rs + 2 * i), ("p", rs + 16 + 2 * i)])
            o = tmp + 8 * sl + 4 * h
            for i in range(4):
                r = acc2 + 16 * sl + 8 * h + 2 * i
                k(f"v_cvt_pk_bf16_f32 {v(o + i)}, {v(r)}, {v(r + 1)}")
            for i in range(4):
                k(f"v_min_u32 {v(o + i)}, -2, {v(o + i)}")
            if sl:
                k(f"s_mov_b64 exec, s[{MK}:{MK + 1}]")
            k(f"global_store_dwordx4 {v(t1 if h else t0)}, {v(o, 4)}, {sp(WS)} offset:{1024 * sl} sc1")
            if sl:
                k("s_mov_b64 exec, -1")
    stamp(k, 21)
    k.barrier()
    tmp1 = acc2
    e1 = Stream()
    for sl in range(2):
        for mt in range(4):
            for p in range(2):
                pk(e1, "fma", tmp1 + 4 * mt + 2 * p, [("p", UZ1 + 8 * sl + 2 * p), ("b", rz1 + 2 * mt + 1), ("p", UZ1 + 8 * sl + 4 + 2 * p)])
        for mt in range(4):
            for p in range(2):
                r = acc1 + 16 * sl + 4 * mt + 2 * p
                pk(e1, "fma", r, [("p", r), ("b", rz1 + 2 * mt), ("p", tmp1 + 4 * mt + 2 * p)])
    gelu(e1, [acc1 + 2 * i for i in range(16)], tmp1, GC)
    for i in range(16):
        e1(f"v_cvt_pk_bf16_f32 {v(tmp1 + i)}, {v(acc1 + 2 * i)}, {v(acc1 + 2 * i + 1)}")
    e1(f"s_lshl_b32 s4, {s(WAVE)}, 10")
    e1(f"s_add_u32 s4, s4, {RED}")
    e1(f"v_add_u32 {v(t0)}, s4, {v(l8)}")
    for sl in range(2):
        for mt in range(4):
            e1(f"ds_write_b64 {v(t0)}, {v(tmp1 + 8 * sl + 2 * mt, 2)} offset:{4096 * mt + 512 * sl}")
    wd = Stream()
    wd(f"s_mul_i32 s5, s{SCB}, {135 * 1024}")
    wd(f"s_add_u32 s5, s5, {WO}")
    wd(f"s_add_u32 s92, s{WS}, s5")
    wd(f"s_addc_u32 s93, s{WS + 1}, 0")
    wd(f"s_mul_i32 s95, {s(WAVE)}, {34 * 1024}")
    wd(f"s_min_u32 s95, s95, {101 * 1024}")
    wd("s_add_u32 s92, s92, s95")
    wd("s_addc_u32 s93, s93, 0")
    for r in range(34):
        if r % 4 == 0:
            wd(f"s_add_u32 m0, s95, {1024 * r}")
            if r:
                wd("s_add_u32 s92, s92, 4096")
                wd("s_addc_u32 s93, s93, 0")
        wd(f"global_load_lds_dwordx4 {v(L16)}, s[92:93] offset:{1024 * (r % 4)} sc1")
    vi = [i + 1 for i, x in enumerate(wd.ins) if x.cls == "vmem"]
    n1, n2 = cfg.get("wo1", 14), cfg.get("wo2", 18)
    wd1, wd2 = Stream(), Stream()
    wd1.ins, wd2.ins = wd.ins[:vi[n1 - 1]], wd.ins[vi[n1 - 1]:vi[n2 - 1]]
    cuts = [vi[n2 - 1 + ((34 - n2) * i) // 4] for i in range(5)]
    wd3 = [wd.ins[cuts[i]:cuts[i + 1]] for i in range(4)]
    k.extend(sprinkle(e1, wd1, 0.0, 1.0))
    k.barrier()
    k(f"s_lshl_b32 s4, {s(WAVE)}, 12")
    k(f"s_add_u32 s4, s4, {RED}")
    k(f"v_add_u32 {v(t0)}, s4, {v(l8)}")
    for sl in range(7):
        k(f"ds_read_b64 {v(z1r + 2 * sl, 2)}, {v(t0)} offset:{512 * sl}")
    k.extend(wd2)
    stamp(k, 22)

    R = Alloc(base, 254)
    stash = UZ2
    zv, wa3, rda, po, po6, mx = l8, stash + 12, stash + 15, stash + 16, stash + 17, t0
    acc = R(112, 2)
    G, NG = 4, 5
    ring = R(4 * G * NG, 2)
    k(f"v_add_u32 {v(zv)}, 3072, {v(L16)}")
    k(f"v_add_u32 {v(zv + 1)}, {3072 + 7168}, {v(L16)}")
    for tau in range(1, 4):
        k(f"s_xor_b32 s4, {s(WAVE)}, {tau}")
        k("s_mul_i32 s4, s4, 3072")
        k(f"s_add_u32 s4, s4, {RED + 1024 * (tau - 1)}")
        k(f"v_add_u32 {v(wa3 + tau - 1)}, s4, {v(L16)}")
    k(f"s_mul_i32 s4, {s(WAVE)}, 3072")
    k(f"s_add_u32 s4, s4, {RED}")
    k(f"v_add_u32 {v(rda)}, s4, {v(L16)}")
    k(f"s_lshl_b32 s4, s{SRB}, 2")
    k(f"s_add_u32 s4, s4, {s(WAVE)}")
    k(f"s_mul_i32 s4, s4, {28 * 1024}")
    k(f"s_add_u32 s91, s4, {P}")
    k(f"s_mul_i32 s5, s{SCB}, 7")
    k("s_add_u32 s5, s5, 1")
    k("s_lshr_b32 s5, s5, 1")
    k("s_lshl_b32 s5, s5, 10")
    k("s_add_u32 s4, s91, s5")
    k(f"v_add_u32 {v(po)}, s4, {v(L16)}")
    k("s_movk_i32 s5, 3072")
    k(f"s_bitcmp1_b32 s{SCB}, 0")
    k(f"s_cselect_b32 s5, {8 - 1024}, s5")
    k(f"v_add_u32 {v(po6)}, s5, {v(po)}")
    k(f"v_min_u32 {v(t1)}, 13, {v(LANE)}")
    k(f"v_lshlrev_b32 {v(t1)}, 10, {v(t1)}")

    def zprobe(st):
        for i in range(4):
            st(f"global_load_dword {v(ring + i)}, {v(t1)}, s[{ZB + 2 * i}:{ZB + 2 * i + 1}] offset:1020 sc1")

    poll(k, "Lzp", zprobe, [ring + i for i in range(4)], t0)
    k.barrier()
    stamp(k, 23)
    order = [(st_, sl) for st_ in range(8) for sl in range(7)] + [(st_, sl) for sl in range(7) for st_ in range(8, 16)]
    ngrp = len(order) // G
    freg = lambda f: ring + 4 * (f % (G * NG))

    def gloads(g):
        def f(st):
            for fi in range(G * g, G * g + G):
                step, sl = order[fi]
                i, ksl = step >> 1, step & 1
                st(f"global_load_dwordx4 {v(freg(fi), 4)}, {v(zv + ksl)}, s[{ZB + 2 * i}:{ZB + 2 * i + 1}] offset:{1024 * sl - 3072} sc1")
        return f

    gregs = lambda g: [freg(fi) + j for fi in range(G * g, G * g + G) for j in range(4)]

    def red_write(st, sl):
        for tau in range(1, 4):
            st(f"ds_write_b128 {v(wa3 + tau - 1)}, {v(acc + 16 * sl + 4 * tau, 4)} offset:{12288 * (sl & 1)}")
        st.barrier()

    def red_fin(st, sl, packed):
        A = acc + 16 * sl
        for tau in range(1, 4):
            st(f"ds_read_b128 {v(A + 4 * tau, 4)}, {v(rda)} offset:{12288 * (sl & 1) + 1024 * (tau - 1)}")
        un = stash + 4
        for p in range(2):
            unpack(st, un + 2 * p, un + 2 * p + 1, z1r + 2 * sl + p)
        for tau in range(1, 4):
            for p in range(2):
                vop(st, "add", A + 2 * p, [("p", A + 2 * p), ("p", A + 4 * tau + 2 * p)], packed)
        for p in range(2):
            vop(st, "mul", A + 2 * p, [("p", A + 2 * p), ("p", un + 2 * p)], packed)
        o = z1r + 2 * sl
        for p in range(2):
            st(f"v_cvt_pk_bf16_f32 {v(o + p)}, {v(A + 2 * p)}, {v(A + 2 * p + 1)}")
        for p in range(2):
            st(f"v_min_u32 {v(o + p)}, -2, {v(o + p)}")

    def pstore(st, j):
        if j == 3:
            st(f"global_store_dwordx2 {v(po6)}, {v(z1r + 12, 2)}, {sp(WS)} sc1")
        else:
            st(f"global_store_dwordx4 {v(po)}, {v(z1r + 4 * j, 4)}, {sp(WS)} offset:{1024 * j} sc1")

    kgrp = [[(7 * c + 1) // 2 + j for c in range(8) if (7 * c + 1) // 2 + j < 27] for j in range(3)] + [[3, 10, 17, 24]]
    pbase = [acc, acc + 32, acc + 64, acc + 96]

    def ploads(j):
        def f(st):
            for i, ks in enumerate(kgrp[j]):
                st(f"global_load_dwordx4 {v(pbase[j] + 4 * i, 4)}, {v(pvr[ks // 8])}, {sp(WS)} offset:{1024 * (ks % 8) - 4096} sc1")
        return f

    pvr = [WO0, WO1, UZ1 + 14, UZ1 + 15]
    k("s_add_u32 s4, s91, 4096")
    k(f"v_add_u32 {v(pvr[0])}, s4, {v(L16)}")
    for i in range(1, 4):
        k(f"v_add_u32 {v(pvr[i])}, {8192 * i}, {v(pvr[0])}")
    for g in range(NG - 1):
        gloads(g)(k)
    maxchain(k, mx, gregs(0))
    check(k, stubs, "Lz0", gloads(0), gregs(0), mx)
    for g in range(ngrp):
        m = Stream()
        for fi in range(G * g, G * g + G):
            step, sl = order[fi]
            i, ksl = step >> 1, step & 1
            for tau in range(4):
                d = v(acc + 16 * sl + 4 * tau, 4)
                cin = d if step else (v(bs, 4) if tau == 0 else "0")
                m(f"v_mfma_f32_16x16x32_bf16 {d}, {v(freg(fi), 4)}, {a(apos(i) + 16 * ksl + 4 * tau, 4)}, {cin}")
        sides = []
        if g + NG - 1 < ngrp:
            st = Stream()
            if not cfg.get("x_noload"):
                gloads(g + NG - 1)(st)
            sides.append((st, 0, 15))
        else:
            gi = g - (ngrp - NG + 1)
            st = Stream()
            if gi == cfg.get("pst", 0):
                pstore(st, 0)
                pstore(st, 1)
            st.ins += wd3[gi]
            sides.append((st, 0, 15))
        if g == cfg.get("q3t", 6):
            st = Stream()
            st(f"v_min_u32 {v(t1)}, 27, {v(LANE)}")
            st(f"s_mul_i32 s4, s{SRI}, 28")
            st(f"v_add_lshl_u32 {v(t1)}, {v(t1)}, s4, 7")
            st(f"global_load_dword {v(t1)}, {v(t1)}, s[{ZB + 12}:{ZB + 13}] sc1")
            sides.append((st, 0, 3))
        if g + 1 < ngrp and not cfg.get("x_noval"):
            st = Stream()
            maxchain(st, mx, gregs(g + 1))
            sides.append((st, 6, 14))
        if g >= 16 and not cfg.get("x_nored"):
            sl = (g - 16) >> 1
            st = Stream()
            if g & 1 == 0:
                red_write(st, sl)
                sides.append((st, 3, 12))
            else:
                red_fin(st, sl, False)
                sides.append((st, 0, 15))
        k.extend(weave(m, sides))
        if g + 1 < ngrp and not cfg.get("x_noval"):
            check(k, stubs, f"Lz{g + 1}", gloads(g + 1), gregs(g + 1), mx)
        if g == 13:
            stamp(k, 24)
        if cfg.get("x_st") and g in (1, 3, 6, 9, 17, 21, 24):
            stamp(k, 31 + (1, 3, 6, 9, 17, 21, 24).index(g))
    stamp(k, 25)
    pstore(k, 2)
    red_write(k, 6)
    red_fin(k, 6, True)
    pstore(k, 3)
    stamp(k, 26)

    F = Alloc(ring, ring + 80)
    acc3 = F(20, 2)
    NWF = 6
    wf = F(4 * NWF, 2)
    gb = F(20, 2)
    gt = F(16, 2)
    ra3 = [zv, zv + 1, wa3]
    k(f"v_mov_b32 {v(ra3[0])}, {v(L16)}")
    k(f"v_add_u32 {v(ra3[1])}, {60 * 1024}, {v(L16)}")
    k(f"v_add_u32 {v(ra3[2])}, {120 * 1024}, {v(L16)}")
    gl = Stream()
    gl(f"s_mul_i32 s5, s{SCB}, 320")
    gl(f"s_add_u32 s5, s5, {MODP + 5 * D * 4}")
    gtm = [gt, gt + 4, gt + 8, gt + 12, stash + 4]
    for half in range(2):
        gl(f"v_lshl_add_u32 {v(t0)}, {v(Q_)}, 5, s5")
        gl(f"v_lshl_add_u32 {v(t1)}, {v(Q_)}, 4, s5")
        for j in range(4):
            gl(f"global_load_dwordx4 {v(gtm[j] if half else gb + 4 * j, 4)}, {v(t0)}, {sp(WS)} offset:{128 * (j >> 1) + 16 * (j & 1)} sc1")
        gl(f"global_load_dwordx4 {v(gtm[4] if half else gb + 16, 4)}, {v(t1)}, {sp(WS)} offset:256 sc1")
        gl(f"s_add_u32 s5, s5, {3840 * 4}")
    k.extend(gl)
    ploads(0)(k)
    ploads(1)(k)
    k.wait(*[x for part in wd3 for x in part if x.cls == "vmem"])
    k("s_barrier")
    seq = [(j, i, ks, dt) for j in range(4) for i, ks in enumerate(kgrp[j]) for dt in range(5)]

    def wread(st, f):
        fr = 5 * seq[f][2] + seq[f][3]
        st(f"ds_read_b128 {v(wf + 4 * (f % NWF), 4)}, {v(ra3[fr // 60])} offset:{1024 * (fr % 60)}")

    for f in range(NWF - 1):
        wread(k, f)
    gf = Stream()
    for j in range(5):
        fin_mod4(gf, gb + 4 * j, gtm[j])
    f = 0
    for j in range(4):
        pregs = list(range(pbase[j], pbase[j] + 4 * len(kgrp[j])))
        maxchain(k, mx, pregs)
        check(k, stubs, f"Lp{j}", ploads(j), pregs, mx)
        stamp(k, 27 + j)
        m = Stream()
        while f < len(seq) and seq[f][0] == j:
            _, i, ks, dt = seq[f]
            d = v(acc3 + 4 * dt, 4)
            m(f"v_mfma_f32_16x16x32_bf16 {d}, {v(wf + 4 * (f % NWF), 4)}, {v(pbase[j] + 4 * i, 4)}, {d if f >= 5 else 0}")
            if f + NWF - 1 < len(seq):
                wread(m, f + NWF - 1)
            f += 1
        sides = []
        if j + 2 < 4:
            st = Stream()
            ploads(j + 2)(st)
            sides.append((st, cfg.get("pl", 24), 39))
        k.extend(weave(m, sides))
        if j == 1:
            k.extend(gf)
    X = acc
    for j in range(10):
        unpack(k, X + 2 * j, X + 2 * j + 1, xres + j)
    k(f"v_add_u32 {v(t0)}, s90, {v(TROW)}")
    k(f"v_mul_u32_u24 {v(t0)}, 1280, {v(t0)}")
    k(f"s_mul_i32 s4, s{SCB}, 160")
    k(f"v_add_u32 {v(t0)}, s4, {v(t0)}")
    k(f"v_lshl_add_u32 {v(t1)}, {v(Q_)}, 4, {v(t0)}")
    k(f"v_lshl_add_u32 {v(t0)}, {v(Q_)}, 3, {v(t0)}")
    o = acc + 32
    ost = cfg.get("ost", "")
    for B in range(2):
        for j in range(8):
            k(f"v_fmac_f32 {v(X + 8 * B + j)}, {v(acc3 + 4 * (2 * B + (j & 1)) + (j >> 1))}, {v(gb + 8 * B + j)}")
        for j in range(4):
            k(f"v_cvt_pk_bf16_f32 {v(o + 4 * B + j)}, {v(X + 8 * B + 2 * j)}, {v(X + 8 * B + 2 * j + 1)}")
        k(f"global_store_dwordx4 {v(t1)}, {v(o + 4 * B, 4)}, {sp(OUT)} offset:{64 * B} {ost}")
    for j in range(4):
        k(f"v_fmac_f32 {v(X + 16 + j)}, {v(acc3 + 16 + j)}, {v(gb + 16 + j)}")
    for j in range(2):
        k(f"v_cvt_pk_bf16_f32 {v(o + 8 + j)}, {v(X + 16 + 2 * j)}, {v(X + 16 + 2 * j + 1)}")
    k(f"global_store_dwordx2 {v(t0)}, {v(o + 8, 2)}, {sp(OUT)} offset:128 {ost}")
```

```python
import sys, os, json
sys.path.insert(0, os.path.dirname(__file__))
from asmlib import *
from blocks import *
from fused import *

NAME = "adaLN_cond__ssm_conv_h3__mixer_gmlp__prompt"
cfg = json.loads(os.environ.get("CFG", "{}"))
PROBE = os.environ.get("PROBE")


def head(name, nwg, endlab, nparts):
    h = Stream()
    h(f"s_cmp_ge_u32 s2, {nwg}")
    h(f"s_cbranch_scc1 Lend_{name}")
    if STAMPS:
        h("v_mov_b32 v255, 0")
    stamp(h, 0)
    prologue(h)
    code_prefetch(h, name, endlab, 254, nparts)
    h.drain(vm=False)
    stamp(h, 1)
    return f".p2align 8\n.globl {name}\n.type {name},@function\n{name}:\n" + finalize(h)


def tail(name, idx):
    t = Stream()
    t(f"Ldone_{name}:")
    stamp(t, 40)
    if STAMPS:
        t.drain()
    stamp(t, 41)
    if STAMPS and idx:
        t("v_writelane_b32 v255, s100, 50")
    stamp_flush(t, idx)
    t(f"Lend_{name}:")
    t("s_endpgm")
    return finalize(t)


def roles(name, table, done):
    txt = ""
    for i, (cnt, fn) in enumerate(table):
        k = Stream()
        k(f"s_cmp_ge_u32 s{SUN}, {cnt}")
        k(f"s_cbranch_scc1 Lrole_{name}_{i}")
        fn(k, SUN)
        k(f"s_branch {done}")
        k(f"Lrole_{name}_{i}:")
        k(f"s_sub_u32 s{SUN}, s{SUN}, {cnt}")
        txt += finalize(k)
    return txt


def u_fill(k, su):
    k("v_mov_b32 v4, -1")
    k(f"s_mul_i32 s4, s{su}, {56 * 128}")
    k(f"s_add_u32 s4, s4, {U}")
    k("v_lshl_add_u32 v2, v0, 2, s4")
    for i in range(7):
        if i == 6:
            k(f"v_min_u32 v3, 191, v0")
            k(f"v_lshl_add_u32 v2, v3, 2, s4")
            k(f"v_add_u32 v2, 6144, v2")
        k(f"global_store_dword v2, v4, {sp(WS)} sc1")
        k("v_add_u32 v2, 1024, v2")
    wp_zero_unit(k, su)


def side():
    name = "side_kernel"
    txt = head(name, 256, "Lcode_end", 32)
    k = Stream()
    fill_unit(k, X1, 12288, 2)
    fill_unit(k, Z2, 32768, 2)
    k(f"s_mov_b32 s{SUN}, s2")
    txt += finalize(k)
    txt += roles(name, [(120, mod_unit), (64, x_unit), (27, wout_unit), (2, u_fill),
                        (32, lambda k, su: fill_unit(k, ST3, 4096, su))], f"Ldone_{name}")
    return txt + tail(name, 0)


def main():
    name = "main_kernel"
    txt = head(name, 256, "Lcode_end", 32)
    stubs = []
    k = Stream()
    role_ids(k)
    k("s_cmp_ge_u32 s2, 160")
    k("s_cbranch_scc1 Lspare")
    k("s_mul_i32 s4, s4, 20")
    k(f"s_add_u32 s{SUN}, s4, s5")
    common_regs(k)
    conv_phase(k, stubs, cfg)
    k("Ljoin:")
    txt += finalize(k)
    g = Stream()
    stamp(g, 13)
    gemm_phases(g, stubs, cfg)
    txt += finalize(g)
    txt += tail(name, 1)
    k = Stream()
    k("Lspare:")
    spare_pre(k)
    k(f"s_sub_u32 s{SUN}, s2, 160")
    txt += finalize(k)
    txt += roles(name, [(54, wp_unit)], "Lspare_done")
    k = Stream()
    k("Lspare_done:")
    spare_join(k, cfg)
    k("s_branch Ljoin")
    txt += finalize(k)
    for st in stubs:
        txt += finalize(st)
    return txt


def mid():
    name = "mid_kernel"
    txt = head(name, 256, "Lcode_end", 32)
    k = Stream()
    role_ids(k)
    k("s_cmp_ge_u32 s2, 160")
    k("s_cbranch_scc1 Lspare")
    k("s_mul_i32 s4, s4, 20")
    k(f"s_add_u32 s{SUN}, s4, s5")
    common_regs(k)
    conv_phase(k, [], cfg)
    k("Lspare_done:")
    k.drain()
    if cfg.get("pfw3", 1):
        wsp_touch_all(k, 2)
    txt += finalize(k)
    txt += tail(name, 1)
    k = Stream()
    k("Lspare:")
    spare_pre(k)
    k(f"s_sub_u32 s{SUN}, s2, 160")
    txt += finalize(k)
    txt += roles(name, [(54, wp_unit)], "Lspare_done")
    txt += "    s_branch Lspare_done\n"
    return txt


def back():
    name = "back_kernel"
    txt = head(name, 256, "Lcode_end", 32)
    stubs = []
    k = Stream()
    role_ids(k)
    cfg["pfw"] = 0
    spare_join(k, cfg)
    stamp(k, 13)
    gemm_phases(k, stubs, cfg)
    txt += finalize(k)
    txt += tail(name, 2)
    for st in stubs:
        txt += finalize(st)
    return txt


def desc(name):
    return f""".p2align 6
.amdhsa_kernel {name}
  .amdhsa_next_free_vgpr 512
  .amdhsa_next_free_sgpr 102
  .amdhsa_accum_offset 256
  .amdhsa_group_segment_fixed_size 0
  .amdhsa_kernarg_size 128
  .amdhsa_user_sgpr_count 2
  .amdhsa_user_sgpr_kernarg_segment_ptr 1
  .amdhsa_system_sgpr_workgroup_id_x 1
  .amdhsa_float_denorm_mode_32 3
.end_amdhsa_kernel
"""


ref = open(os.path.join(os.path.dirname(__file__), "..", NAME + ".s.ref")).read().split("\n")
hdr = [l for l in ref if l.startswith(";") and "@launch" not in l and "Override launch" not in l and "grid=ceil" not in l]
out = "\n".join(hdr) + "\n"
out += "; @launch kernel=side_kernel grid=(256,1,1) block=(256,1,1) lds=43008\n"
names = ["side_kernel"] + (["mid_kernel", "back_kernel"] if cfg.get("split") else ["main_kernel"])
for n in names[1:]:
    out += f"; @launch kernel={n} grid=(256,1,1) block=(256,1,1) lds={MAIN_LDS}\n"
out += '.amdgcn_target "amdgcn-amd-amdhsa--gfx950"\n.text\n'
out += side() + (mid() + back() if cfg.get("split") else main())
out += "Lcode_end:\n    s_endpgm\n"
out += '.section .rodata,"a"\n' + "".join(desc(n) for n in names)
open(sys.argv[1], "w").write(out)
```

```python
from asmlib import Stream, Alloc, v, a, s, interleave

S, D, FH = 2048, 640, 864
Q, K, V, SHK, SSM, SD, BX, WIN, WSP, BSP, WOUT, C, WMOD, OUT, DBG, WS = range(8, 40, 2)
WAVE = 3
LANE = 1
MODP = 0x0
ST1 = 0x8000
U = 0xC000
ST3 = 0x10000
XB = 0x100000
X1 = 0x400000
WP = 0x700000
WO = 0xA00000
Z2 = 0xC00000
P = 0x1000000
Z1 = 0x1400000
STAMP = 0x2000000

import os
WSOFF = int(os.environ.get("WSOFF", "0")) << 20
MODP, ST1, U, ST3, XB, X1, WP, WO, Z2, P, Z1 = (x + WSOFF for x in (MODP, ST1, U, ST3, XB, X1, WP, WO, Z2, P, Z1))

ONES = 0x3F803F80
LOG2E = 0x3FB8AA3B
SEL_LO = 0x05040100
SEL_HI = 0x07060302


def fbits(x):
    import struct
    return struct.unpack("<I", struct.pack("<f", x))[0]


def sp(i):
    return s(i, 2)


import os
STAMPS = int(os.environ.get("STAMPS", "0"))
VTOP = 255
CLK = [1, 16, 17, 23, 25, 41]


def stamp(k, idx):
    if STAMPS:
        k("s_memrealtime s[98:99]")
        k("s_waitcnt lgkmcnt(0)")
        k(f"v_writelane_b32 v255, s98, {idx}")
        if idx in CLK:
            k("s_memtime s[98:99]")
            k("s_waitcnt lgkmcnt(0)")
            k(f"v_writelane_b32 v255, s98, {52 + CLK.index(idx)}")


def stamp_flush(k, kidx):
    if STAMPS:
        k(f"s_lshl_b32 s98, s2, 10")
        k(f"s_add_u32 s98, s98, {STAMP + kidx * 262144}")
        k(f"v_lshl_add_u32 v254, v0, 2, s98")
        k(f"global_store_dword v254, v255, {sp(WS)}")


def code_prefetch(k, lab0, lab1, tmp, nparts=32):
    k(f"s_getpc_b64 s[4:5]")
    k(f"Lpf_{lab0}_{len(k)}:")
    here = f"Lpf_{lab0}_{len(k) - 1}"
    k(f"s_add_u32 s4, s4, {lab0}-{here}")
    k(f"s_addc_u32 s5, s5, -1")
    k(f"s_lshr_b32 s6, s2, 3")
    k(f"s_and_b32 s6, s6, {nparts - 1}")
    k(f"v_mul_u32_u24 {v(tmp)}, {nparts}, v0")
    k(f"v_add_lshl_u32 {v(tmp)}, {v(tmp)}, s6, 7")
    k(f"v_min_u32 {v(tmp)}, ({lab1}-{lab0}-4), {v(tmp)}")
    k(f"global_load_dword {v(tmp)}, {v(tmp)}, s[4:5]")


def prologue(k):
    k(f"s_load_dwordx16 s[8:23], s[0:1], 0")
    k(f"s_load_dwordx16 s[24:39], s[0:1], 64")
    k(f"v_lshrrev_b32 v2, 6, v0")
    k(f"v_and_b32 {v(LANE)}, 63, v0")
    k(f"v_readfirstlane_b32 {s(WAVE)}, v2")


def unpack(k, lo, hi, src):
    k(f"v_lshlrev_b32 {v(lo)}, 16, {v(src)}")
    k(f"v_and_b32 {v(hi)}, 0xffff0000, {v(src)}")


def bsel(r):
    return v(r & ~1, 2), r & 1


def pk(k, op, dst, srcs, neg=None):
    ops, lo, hi = [], [], []
    if srcs[1][0] == "b" and srcs[0][0] != "b" and not neg:
        srcs = [srcs[1], srcs[0]] + list(srcs[2:])
    for kind, r in srcs:
        if kind == "p":
            ops.append(v(r, 2)); lo.append(0); hi.append(1)
        elif kind == "sp":
            ops.append(s(r, 2)); lo.append(0); hi.append(1)
        elif kind == "b":
            t, b = bsel(r)
            ops.append(t); lo.append(b); hi.append(b)
        elif kind == "sb":
            ops.append(s(r & ~1, 2)); lo.append(r & 1); hi.append(r & 1)
        else:
            ops.append(r); lo.append(0); hi.append(0)
    m = f" op_sel:[{','.join(map(str, lo))}] op_sel_hi:[{','.join(map(str, hi))}]"
    if neg:
        m += f" neg_lo:[{','.join(map(str, neg))}] neg_hi:[{','.join(map(str, neg))}]"
    return k(f"v_pk_{op}_f32 {v(dst, 2)}, {', '.join(ops)}{m}")


def vop(k, op, dst, srcs, packed=True):
    if packed:
        return pk(k, op, dst, srcs)
    for h in range(2):
        ops = []
        for kind, r in srcs:
            ops.append({"p": lambda: v(r + h), "sp": lambda: s(r + h), "b": lambda: v(r), "sb": lambda: s(r), "c": lambda: r}[kind]())
        if op != "fma" and not ops[1].startswith("v"):
            ops = [ops[1], ops[0]]
        k(f"v_{op}_f32 {v(dst + h)}, {', '.join(ops)}")


def round_bf16(k, r):
    k(f"v_cvt_pk_bf16_f32 {v(r)}, {v(r)}, {v(r)}")
    k(f"v_lshlrev_b32 {v(r)}, 16, {v(r)}")


def mod_unit(k, su, st="sc1"):
    R = Alloc(2, 250)
    k(f"s_cmp_ge_u32 {s(su)}, 60")
    k(f"s_cselect_b32 s4, 1, 0")
    k(f"s_mul_i32 s5, s4, 60")
    k(f"s_sub_u32 s5, {s(su)}, s5")
    k(f"s_mul_i32 s6, s4, 320")
    k(f"s_mul_i32 s7, {s(WAVE)}, 80")
    k(f"s_add_u32 s6, s6, s7")
    row, off, coff = R(), R(), R()
    k(f"v_lshrrev_b32 {v(row)}, 3, {v(LANE)}")
    k(f"v_add_u32 {v(row)}, s6, {v(row)}")
    k(f"v_lshlrev_b32 {v(coff)}, 1, {v(row)}")
    k(f"v_mul_u32_u24 {v(off)}, 7680, {v(row)}")
    k(f"v_and_b32 {v(row)}, 7, {v(LANE)}")
    k(f"v_lshl_add_u32 {v(off)}, {v(row)}, 4, {v(off)}")
    k(f"s_lshl_b32 s7, s5, 7")
    k(f"v_add_u32 {v(off)}, s7, {v(off)}")
    cv = R(10, 2)
    w = R(40, 4)
    for i in range(10):
        k(f"global_load_ushort {v(cv + i)}, {v(coff)}, {sp(C)} offset:{16 * i}")
    for i in range(10):
        k(f"global_load_dwordx4 {v(w + 4 * i, 4)}, {v(off)}, {sp(WMOD)} nt")
        if i < 9:
            k(f"v_add_u32 {v(off)}, {8 * 7680}, {v(off)}")
    t = R(10, 2)
    for i in range(10):
        k(f"v_lshlrev_b32 {v(cv + i)}, 16, {v(cv + i)}")
        k(f"v_mul_f32 {v(t + i)}, {hex(LOG2E | 0x80000000)}, {v(cv + i)}")
    for i in range(10):
        k(f"v_exp_f32 {v(t + i)}, {v(t + i)}")
    for i in range(10):
        k(f"v_add_f32 {v(t + i)}, 1.0, {v(t + i)}")
    for i in range(10):
        k(f"v_rcp_f32 {v(t + i)}, {v(t + i)}")
    for i in range(10):
        k(f"v_mul_f32 {v(cv + i)}, {v(cv + i)}, {v(t + i)}")
    for i in range(10):
        round_bf16(k, cv + i)
    acc = R(8, 2)
    u = R(8, 2)
    for i in range(10):
        for j in range(4):
            unpack(k, u + 2 * j, u + 2 * j + 1, w + 4 * i + j)
        for j in range(4):
            if i == 0:
                pk(k, "mul", acc + 2 * j, [("p", u + 2 * j), ("b", cv + i)])
            else:
                pk(k, "fma", acc + 2 * j, [("p", u + 2 * j), ("b", cv + i), ("p", acc + 2 * j)])
    for j in range(4):
        k(f"v_permlane32_swap_b32 {v(acc + j)}, {v(acc + j + 4)}")
    for j in range(4):
        k(f"v_add_f32 {v(acc + j)}, {v(acc + j)}, {v(acc + j + 4)}")
    for j in range(2):
        k(f"v_permlane16_swap_b32 {v(acc + j)}, {v(acc + j + 2)}")
    for j in range(2):
        k(f"v_add_f32 {v(acc + j)}, {v(acc + j)}, {v(acc + j + 2)}")
    res = u
    k(f"v_add_f32_dpp {v(res)}, {v(acc)}, {v(acc)} row_ror:8 row_mask:0xf bank_mask:0x3")
    k(f"v_add_f32_dpp {v(res)}, {v(acc + 1)}, {v(acc + 1)} row_ror:8 row_mask:0xf bank_mask:0xc")
    ad = u + 1
    k(f"v_and_b32 {v(ad)}, 7, {v(LANE)}")
    k(f"v_lshrrev_b32 {v(u + 2)}, 3, {v(LANE)}")
    k(f"v_lshl_add_u32 {v(ad)}, {v(ad)}, 3, {v(u + 2)}")
    k(f"s_lshl_b32 s7, {s(WAVE)}, 6")
    k(f"v_add_lshl_u32 {v(ad)}, {v(ad)}, s7, 2")
    k(f"ds_write_b32 {v(ad)}, {v(res)}")
    k.barrier()
    k(f"v_lshlrev_b32 {v(ad)}, 2, {v(LANE)}")
    for i in range(4):
        k(f"ds_read_b32 {v(acc + i)}, {v(ad)} offset:{256 * i}")
    k(f"s_mul_i32 s6, s4, {3840 * 4}")
    k(f"s_lshl_b32 s7, s5, 8")
    k(f"s_add_u32 s6, s6, s7")
    k(f"s_add_u32 s6, s6, {MODP}")
    k(f"v_add_u32 {v(ad)}, s6, {v(ad)}")
    k(f"v_add_f32 {v(acc)}, {v(acc)}, {v(acc + 1)}")
    k(f"v_add_f32 {v(acc + 2)}, {v(acc + 2)}, {v(acc + 3)}")
    k(f"v_add_f32 {v(acc)}, {v(acc)}, {v(acc + 2)}")
    k(f"s_cmp_lg_u32 {s(WAVE)}, 0")
    lab = f"Lmod_skip_{id(k) & 0xffff}_{len(k)}"
    k(f"s_cbranch_scc1 {lab}")
    k(f"global_store_dword {v(ad)}, {v(acc)}, {sp(WS)} {st}")
    k(f"{lab}:")


def row_stats(k, sm, sq, n, tmp):
    inv = hex(fbits(1.0 / n))
    k(f"v_mul_f32 {v(sm)}, {inv}, {v(sm)}")
    k(f"v_mul_f32 {v(sq)}, {inv}, {v(sq)}")
    k(f"v_fma_f32 {v(sq)}, -{v(sm)}, {v(sm)}, {v(sq)}")
    k(f"v_max_f32 {v(sq)}, 0, {v(sq)}")
    k(f"v_add_f32 {v(sq)}, {hex(fbits(1e-5))}, {v(sq)}")
    k(f"v_rsq_f32 {v(tmp)}, {v(sq)}")
    k(f"v_mul_f32 {v(sq)}, -{v(sm)}, {v(tmp)}".replace("v_mul_f32", "v_mul_f32_e64"))
    k(f"v_mov_b32 {v(sm)}, {v(tmp)}")


def x_unit(k, su, st="sc1"):
    R = Alloc(2, 250)
    off, a0, a1 = R(), R(), R()
    k(f"s_lshl_b32 s4, {s(su)}, 2")
    k(f"s_add_u32 s4, s4, {s(WAVE)}")
    k(f"s_mul_i32 s4, s4, {8 * 1280}")
    k(f"s_add_u32 s4, s4, 4096")
    k(f"v_lshl_add_u32 {v(off)}, {v(LANE)}, 4, s4")
    d = R(40, 4)
    for i in range(10):
        if i == 8:
            k(f"v_add_u32 {v(off)}, 8192, {v(off)}")
        k(f"global_load_dwordx4 {v(d + 4 * i, 4)}, {v(off)}, {sp(Q)} offset:{1024 * (i % 8) - 4096} nt")
    k(f"s_mul_i32 s5, {s(WAVE)}, 10304")
    k(f"v_lshl_add_u32 {v(a0)}, {v(LANE)}, 4, s5")
    k(f"v_lshrrev_b32 {v(a1)}, 5, {v(LANE)}")
    k(f"v_lshl_add_u32 {v(a1)}, {v(a1)}, 4, {v(a0)}")
    for i in range(10):
        pad = (64 * i) // 160
        k(f"ds_write_b128 {v(a1 if i in (2, 7) else a0)}, {v(d + 4 * i, 4)} offset:{1024 * i + 16 * pad}")
    k.barrier()
    rho, gq = R(), R()
    k(f"v_and_b32 {v(rho)}, 15, {v(LANE)}")
    k(f"v_lshrrev_b32 {v(gq)}, 4, {v(LANE)}")
    k(f"v_mul_u32_u24 {v(a0)}, 2576, {v(rho)}")
    k(f"v_lshl_add_u32 {v(a0)}, {v(gq)}, 3, {v(a0)}")
    k(f"s_mul_i32 s5, {s(WAVE)}, 320")
    k(f"v_add_u32 {v(a0)}, s5, {v(a0)}")
    for i in range(10):
        k(f"ds_read2_b64 {v(d + 4 * i, 4)}, {v(a0)} offset0:{4 * i} offset1:{160 + 4 * i}")
    k(f"s_mul_i32 s5, {s(WAVE)}, {40 * 16384}")
    k(f"s_lshl_b32 s6, {s(su)}, 8")
    k(f"s_add_u32 s5, s5, s6")
    k(f"s_add_u32 s5, s5, {XB}")
    k(f"v_lshlrev_b32 {v(off)}, 14, {v(gq)}")
    k(f"v_lshl_add_u32 {v(off)}, {v(rho)}, 4, {v(off)}")
    k(f"v_add_u32 {v(off)}, s5, {v(off)}")
    st4 = R(4, 2)
    k(f"s_mov_b32 s7, {hex(ONES)}")
    for j in range(4):
        k(f"v_mov_b32 {v(st4 + j)}, 0")
    for i in range(10):
        k(f"global_store_dwordx4 {v(off)}, {v(d + 4 * i, 4)}, {sp(WS)} {st}")
        if i < 9:
            k(f"v_add_u32 {v(off)}, 65536, {v(off)}")
        for j in range(2):
            for r in range(2):
                src = d + 4 * i + 2 * r + j
                k(f"v_dot2_f32_bf16 {v(st4 + 2 * r)}, {v(src)}, s7, {v(st4 + 2 * r)}")
                k(f"v_dot2_f32_bf16 {v(st4 + 2 * r + 1)}, {v(src)}, {v(src)}, {v(st4 + 2 * r + 1)}")
    k(f"v_permlane32_swap_b32 {v(st4)}, {v(st4 + 2)}")
    k(f"v_permlane32_swap_b32 {v(st4 + 1)}, {v(st4 + 3)}")
    k(f"v_add_f32 {v(st4)}, {v(st4)}, {v(st4 + 2)}")
    k(f"v_add_f32 {v(st4 + 1)}, {v(st4 + 1)}, {v(st4 + 3)}")
    k(f"v_permlane16_swap_b32 {v(st4)}, {v(st4 + 1)}")
    k(f"v_add_f32 {v(st4)}, {v(st4)}, {v(st4 + 1)}")
    SB = 41472
    k(f"v_lshlrev_b32 {v(a0)}, 4, {v(rho)}")
    k(f"v_lshl_add_u32 {v(a0)}, {v(gq)}, 2, {v(a0)}")
    k(f"s_lshl_b32 s5, {s(WAVE)}, 8")
    k(f"v_add_u32 {v(a0)}, s5, {v(a0)}")
    k(f"ds_write_b32 {v(a0)}, {v(st4)} offset:{SB}")
    k.barrier()
    pr = R(8, 2)
    k(f"v_and_b32 {v(a0)}, 31, {v(LANE)}")
    k(f"v_lshlrev_b32 {v(a0)}, 3, {v(a0)}")
    for i in range(4):
        k(f"ds_read_b64 {v(pr + 2 * i, 2)}, {v(a0)} offset:{SB + 256 * i}")
    pk(k, "add", pr, [("p", pr), ("p", pr + 2)])
    pk(k, "add", pr + 4, [("p", pr + 4), ("p", pr + 6)])
    pk(k, "add", pr, [("p", pr), ("p", pr + 4)])
    row_stats(k, pr, pr + 1, D, pr + 2)
    k(f"s_lshl_b32 s5, {s(su)}, 8")
    k(f"s_add_u32 s5, s5, {ST1}")
    k(f"v_add_u32 {v(a0)}, s5, {v(a0)}")
    lab = f"Lx_skip_{id(k) & 0xffff}_{len(k)}"
    k(f"s_cmp_lg_u32 {s(WAVE)}, 0")
    k(f"s_cbranch_scc1 {lab}")
    k(f"global_store_dwordx2 {v(a0)}, {v(pr, 2)}, {sp(WS)} {st}")
    k(f"{lab}:")


def wout_unit(k, su, st="sc1"):
    R = Alloc(2, 250)
    off, ap, aq = R(), R(), R()
    k(f"s_mul_i32 s4, {s(su)}, 40960")
    k(f"s_mul_i32 s5, {s(WAVE)}, 10240")
    k(f"s_add_u32 s4, s4, s5")
    k(f"v_lshl_add_u32 {v(off)}, {v(LANE)}, 4, s4")
    toks = []
    for i in range(10):
        if i % 4 == 0:
            k(f"s_add_u32 m0, s5, {1024 * i}")
            if i:
                k(f"v_add_u32 {v(off)}, 4096, {v(off)}")
        toks.append(k(f"global_load_lds_dwordx4 {v(off)}, {sp(WOUT)} offset:{1024 * (i % 4)} nt"))
    m, q = R(), R()
    k(f"v_and_b32 {v(m)}, 15, {v(LANE)}")
    k(f"v_lshrrev_b32 {v(q)}, 4, {v(LANE)}")
    k(f"v_mul_u32_u24 {v(q)}, {8 * 1280}, {v(q)}")
    k(f"s_mul_i32 s5, {s(WAVE)}, 320")
    k(f"v_add_u32 {v(q)}, s5, {v(q)}")
    k(f"v_lshl_add_u32 {v(ap)}, {v(m)}, 2, {v(q)}")
    k(f"v_lshl_add_u32 {v(aq)}, {v(m)}, 1, {v(q)}")
    k(f"s_mul_i32 s5, {s(WAVE)}, {2 * 27 * 5120}")
    k(f"s_mul_i32 s6, {s(su)}, 5120")
    k(f"s_add_u32 s5, s5, s6")
    k(f"s_add_u32 s5, s5, {WO + 2048}")
    k(f"v_lshl_add_u32 {v(off)}, {v(LANE)}, 4, s5")
    k(f"s_mov_b32 s6, {hex(SEL_LO)}")
    k(f"s_mov_b32 s7, {hex(SEL_HI)}")
    k.wait(*toks)
    k("s_barrier")
    order = [0, 2, 4, 6, 1, 3, 5, 7]
    for c in range(2):
        t = R(24, 4)
        o = R(20, 4)
        for b in range(2):
            for e in range(8):
                k(f"ds_read_b32 {v(t + 8 * b + e)}, {v(ap)} offset:{order[e] * 1280 + 160 * c + 64 * b}")
        for e in range(8):
            k(f"ds_read_u16 {v(t + 16 + e)}, {v(aq)} offset:{order[e] * 1280 + 160 * c + 128}")
        for b in range(2):
            for par in range(2):
                for j in range(4):
                    k(f"v_perm_b32 {v(o + 8 * b + 4 * par + j)}, {v(t + 8 * b + 2 * j + 1)}, {v(t + 8 * b + 2 * j)}, s{6 + par}")
        for j in range(4):
            k(f"v_perm_b32 {v(o + 16 + j)}, {v(t + 16 + 2 * j + 1)}, {v(t + 16 + 2 * j)}, s6")
        for dt in range(5):
            k(f"global_store_dwordx4 {v(off)}, {v(o + 4 * dt, 4)}, {sp(WS)} offset:{1024 * dt - 2048} {st}")
        if c == 0:
            k(f"v_add_u32 {v(off)}, {27 * 5120}, {v(off)}")


def load_mod4(k, dst, tmp, voff, row, ld=""):
    base = MODP + row * D * 4
    k(f"v_add_u32 {v(tmp + 4)}, {base}, {v(voff)}")
    k(f"global_load_dwordx4 {v(dst, 4)}, {v(tmp + 4)}, {sp(WS)} {ld}")
    k(f"v_add_u32 {v(tmp + 4)}, {base + 3840 * 4}, {v(voff)}")
    k(f"global_load_dwordx4 {v(tmp, 4)}, {v(tmp + 4)}, {sp(WS)} {ld}")


def fin_mod4(k, dst, tmp, plus1=False):
    for j in range(4):
        k(f"v_add_f32 {v(dst + j)}, {v(dst + j)}, {v(tmp + j)}")
    for j in range(4):
        round_bf16(k, dst + j)
    if plus1:
        for j in range(4):
            k(f"v_add_f32 {v(dst + j)}, 1.0, {v(dst + j)}")
        for j in range(4):
            round_bf16(k, dst + j)


def wp_unit(k, su, st="sc1"):
    R = Alloc(2, 250)
    n, q, off = R(), R(), R()
    k(f"v_and_b32 {v(n)}, 15, {v(LANE)}")
    k(f"v_lshrrev_b32 {v(q)}, 4, {v(LANE)}")
    k(f"s_mul_i32 s4, {s(WAVE)}, {160 * 3456}")
    k(f"s_lshl_b32 s5, {s(su)}, 6")
    k(f"s_add_u32 s4, s4, s5")
    k(f"s_add_u32 s4, s4, 3456")
    k(f"v_mul_u32_u24 {v(off)}, {8 * 3456}, {v(q)}")
    k(f"v_lshl_add_u32 {v(off)}, {v(n)}, 2, {v(off)}")
    k(f"v_add_u32 {v(off)}, s4, {v(off)}")
    w = R(40, 4)
    cur = 1
    for ks in range(5):
        for e in range(8):
            row = 32 * ks + e
            if row - cur > 1:
                k(f"v_add_u32 {v(off)}, {(row + 1 - cur) * 3456}, {v(off)}")
                cur = row + 1
            k(f"global_load_dword {v(w + 8 * ks + e)}, {v(off)}, {sp(WIN)} offset:{(row - cur) * 3456} nt")
    mo = R()
    cb4, t0 = R(4, 4), R(5, 4)
    sb4, t1 = R(4, 4), R(5, 4)
    k(f"v_min_u32 {v(mo)}, 39, {v(LANE)}")
    k(f"s_mul_i32 s5, {s(WAVE)}, 640")
    k(f"v_lshl_add_u32 {v(mo)}, {v(mo)}, 4, s5")
    load_mod4(k, cb4, t0, mo, 4)
    load_mod4(k, sb4, t1, mo, 3)
    fin_mod4(k, cb4, t0, plus1=True)
    fin_mod4(k, sb4, t1)
    k(f"ds_write_b128 {v(mo)}, {v(cb4, 4)}")
    k(f"ds_write_b128 {v(mo)}, {v(sb4, 4)} offset:2560")
    ta = R()
    k(f"v_lshl_add_u32 {v(ta)}, {v(q)}, 5, s5")
    k(f"s_cmp_ge_u32 {s(su)}, 27")
    k(f"s_cselect_b32 s6, -54, 56")
    k(f"s_lshl_b32 s7, {s(su)}, 1")
    k(f"s_add_u32 s6, s6, s7")
    k(f"s_mul_i32 s4, s6, 20480")
    k(f"s_mul_i32 s5, {s(WAVE)}, 5120")
    k(f"s_add_u32 s4, s4, s5")
    k(f"s_add_u32 s4, s4, {WP + 2048}")
    oe, oo = R(), R()
    k(f"v_lshl_add_u32 {v(oe)}, {v(LANE)}, 4, s4")
    k(f"v_add_u32 {v(oo)}, 20480, {v(oe)}")
    k(f"s_mov_b32 s7, {hex(ONES)}")
    uu = R(4, 2)
    for j in range(4):
        k(f"v_mov_b32 {v(uu + j)}, 0")
    cst = [R(16, 4) for _ in range(2)]
    un = R(16, 2)
    pr = R(16, 2)
    outs = [R(8, 4) for _ in range(2)]
    for ks in range(5):
        cc = cst[ks & 1]
        o = outs[ks & 1]
        for h in range(2):
            k(f"ds_read_b128 {v(cc + 4 * h, 4)}, {v(ta)} offset:{128 * ks + 16 * h}")
            k(f"ds_read_b128 {v(cc + 8 + 4 * h, 4)}, {v(ta)} offset:{2560 + 128 * ks + 16 * h}")
        for e in range(8):
            unpack(k, un + 2 * e, un + 2 * e + 1, w + 8 * ks + e)
        for e in range(8):
            pk(k, "mul", pr + 2 * e, [("p", un + 2 * e), ("b", cc + e)])
        for par in range(2):
            for j in range(4):
                k(f"v_cvt_pk_bf16_f32 {v(o + 4 * par + j)}, {v(pr + 4 * j + par)}, {v(pr + 4 * j + 2 + par)}")
        k(f"global_store_dwordx4 {v(oe)}, {v(o, 4)}, {sp(WS)} offset:{1024 * ks - 2048} {st}")
        k(f"global_store_dwordx4 {v(oo)}, {v(o + 4, 4)}, {sp(WS)} offset:{1024 * ks - 2048} {st}")
        for e in range(8):
            pk(k, "fma", uu + 2, [("p", un + 2 * e), ("b", cc + 8 + e), ("p", uu + 2)])
        for j in range(4):
            for par in range(2):
                k(f"v_dot2_f32_bf16 {v(uu + par)}, {v(o + 4 * par + j)}, s7, {v(uu + par)}")
    k(f"v_permlane32_swap_b32 {v(uu)}, {v(uu + 1)}")
    k(f"v_permlane32_swap_b32 {v(uu + 2)}, {v(uu + 3)}")
    k(f"v_add_f32 {v(uu)}, {v(uu)}, {v(uu + 1)}")
    k(f"v_add_f32 {v(uu + 2)}, {v(uu + 2)}, {v(uu + 3)}")
    k(f"v_permlane16_swap_b32 {v(uu)}, {v(uu + 2)}")
    k(f"v_add_f32 {v(uu)}, {v(uu)}, {v(uu + 2)}")
    k(f"v_lshlrev_b32 {v(ta)}, 2, v0")
    k(f"ds_write_b32 {v(ta)}, {v(uu)} offset:5120")
    k.drain()
    k("s_barrier")
    k(f"v_lshlrev_b32 {v(ta)}, 2, {v(LANE)}")
    for i in range(4):
        k(f"ds_read_b32 {v(un + i)}, {v(ta)} offset:{5120 + 256 * i}")
    k(f"s_lshl_b32 s6, s6, 7")
    k(f"s_add_u32 s6, s6, {U}")
    k(f"v_add_u32 {v(ta)}, s6, {v(ta)}")
    k(f"v_add_f32 {v(un)}, {v(un)}, {v(un + 1)}")
    k(f"v_add_f32 {v(un + 2)}, {v(un + 2)}, {v(un + 3)}")
    k(f"v_add_f32 {v(un)}, {v(un)}, {v(un + 2)}")
    k(f"v_min_u32 {v(un)}, -2, {v(un)}")
    lab = f"Lwp_skip_{id(k) & 0xffff}_{len(k)}"
    k(f"s_cmp_lg_u32 {s(WAVE)}, 0")
    k(f"s_cbranch_scc1 {lab}")
    k(f"global_store_dword {v(ta)}, {v(un)}, {sp(WS)} {st}")
    k(f"{lab}:")


def wp_zero_unit(k, su, st="sc1"):
    R = Alloc(2, 250)
    off = R()
    z = R(4, 4)
    for j in range(4):
        k(f"v_mov_b32 {v(z + j)}, 0")
    k(f"s_mul_i32 s4, {s(su)}, {56 * 20480}")
    k(f"s_add_u32 s4, s4, {WP + 54 * 20480}")
    k(f"v_lshl_add_u32 {v(off)}, v0, 4, s4")
    for i in range(10):
        k(f"global_store_dwordx4 {v(off)}, {v(z, 4)}, {sp(WS)} {st}")
        k(f"v_add_u32 {v(off)}, 4096, {v(off)}")
    k(f"s_mul_i32 s4, {s(su)}, {56 * 128}")
    k(f"s_add_u32 s4, s4, {U + 54 * 128}")
    k(f"v_lshl_add_u32 {v(off)}, {v(LANE)}, 2, s4")
    k(f"global_store_dword {v(off)}, {v(z)}, {sp(WS)} {st}")


def fill_unit(k, base, nbytes_per_wg, su, val=-1, st="sc1"):
    R = Alloc(2, 250)
    off = R()
    z = R(4, 4)
    for j in range(4):
        k(f"v_mov_b32 {v(z + j)}, {val}")
    k(f"s_mul_i32 s4, {s(su)}, {nbytes_per_wg}")
    k(f"s_add_u32 s4, s4, {base}")
    k(f"v_lshl_add_u32 {v(off)}, v0, 4, s4")
    for i in range(nbytes_per_wg // 4096):
        k(f"global_store_dwordx4 {v(off)}, {v(z, 4)}, {sp(WS)} {st}")
        k(f"v_add_u32 {v(off)}, 4096, {v(off)}")
```

```python
import re

TRANS = ("v_exp_f32", "v_log_f32", "v_rcp_f32", "v_rsq_f32", "v_sqrt_f32", "v_sin_f32", "v_cos_f32")
RMW = ("v_fmac_", "v_dot2c_", "v_pk_fmac", "v_writelane")


def v(i, n=1):
    return f"v{i}" if n == 1 else f"v[{i}:{i + n - 1}]"


def a(i, n=1):
    return f"a{i}" if n == 1 else f"a[{i}:{i + n - 1}]"


def s(i, n=1):
    return f"s{i}" if n == 1 else f"s[{i}:{i + n - 1}]"


_REG = re.compile(r"^(-|\|)?(?:abs\()?([vas])(?:(\d+)|\[(\d+):(\d+)\])\)?\|?$")


def regs_of(op):
    op = op.strip()
    if op == "vcc":
        return {("s", "vcc")}
    if op in ("vcc_lo", "vcc_hi"):
        return {("s", "vcc")}
    if op in ("exec", "exec_lo", "exec_hi"):
        return {("s", "exec")}
    if op == "m0":
        return {("s", "m0")}
    m = _REG.match(op)
    if not m:
        return set()
    k = m.group(2)
    if m.group(3) is not None:
        return {(k, int(m.group(3)))}
    return {(k, i) for i in range(int(m.group(4)), int(m.group(5)) + 1)}


def split_ops(text):
    out, depth, cur = [], 0, ""
    for ch in text:
        if ch in "[(":
            depth += 1
        if ch in "])":
            depth -= 1
        if ch == "," and depth == 0:
            out.append(cur.strip())
            cur = ""
        else:
            cur += ch
    if cur.strip():
        out.append(cur.strip())
    return out


class Ins:
    __slots__ = ("text", "mn", "cls", "defs", "uses", "srcc", "srcab", "dpp", "wide_store", "tok", "waitfor", "data", "keep", "pkcross")

    def __init__(self, text):
        self.text = text
        self.tok = None
        self.waitfor = None
        self.keep = False
        self.pkcross = False
        self.defs, self.uses = set(), set()
        self.srcc, self.srcab, self.data = set(), set(), set()
        self.dpp = False
        self.wide_store = False
        t = text.split(";")[0].strip()
        if not t or t.endswith(":") or t.startswith("."):
            self.mn, self.cls = "", ("label" if t.endswith(":") else "none")
            return
        parts = t.split(None, 1)
        mn = parts[0]
        self.mn = mn
        rest = parts[1] if len(parts) > 1 else ""
        ops = split_ops(rest)
        if ops:
            last = ops[-1].split()
            mods = " ".join(last[1:])
            ops[-1] = last[0] if last else ""
        else:
            mods = ""
        R = [regs_of(o) for o in ops]
        allsrc = lambda lst: set().union(*lst) if lst else set()
        if mn.startswith("v_mfma"):
            self.cls = "mfma"
            self.defs = R[0]
            self.srcab = R[1] | R[2]
            self.srcc = R[3]
            self.uses = self.srcab | self.srcc
        elif mn.startswith("v_"):
            self.cls = "valu"
            self.dpp = "_dpp" in mn
            if mn.startswith("v_permlane") and "swap" in mn:
                self.defs = R[0] | R[1]
                self.uses = R[0] | R[1]
            elif mn.startswith(("v_add_co", "v_sub_co", "v_addc_co", "v_subb_co")):
                self.defs = R[0] | R[1]
                self.uses = allsrc(R[2:])
            elif mn == "v_nop":
                pass
            else:
                self.defs = R[0]
                self.uses = allsrc(R[1:])
                if mn.startswith(RMW) or self.dpp or "_sdwa" in mn:
                    self.uses |= R[0]
                if mn.startswith("v_cndmask") and len(ops) == 3:
                    self.uses |= {("s", "vcc")}
                if mn.startswith("v_dot"):
                    self.srcab = R[1] | R[2]
                if mn.startswith("v_pk_") and mn.endswith("_f32"):
                    m = re.search(r"op_sel:\[([01,]+)\]", mods)
                    sel = [int(b) for b in m.group(1).split(",")] if m else []
                    self.pkcross = any(b and ops[1 + i] == ops[2] for i, b in enumerate(sel))
        elif mn.startswith("ds_"):
            self.cls = "ds"
            if mn.startswith(("ds_read", "ds_bpermute", "ds_permute", "ds_swizzle")):
                self.defs = R[0]
                self.uses = allsrc(R[1:])
            else:
                self.uses = allsrc(R)
        elif mn.startswith(("global_", "buffer_")):
            self.cls = "vmem"
            if mn.startswith(("buffer_wbl2", "buffer_inv")):
                pass
            elif mn.startswith("global_load_lds"):
                self.uses = allsrc(R) | {("s", "m0")}
            elif mn.startswith("global_load"):
                self.defs = R[0]
                self.uses = allsrc(R[1:])
            elif mn.startswith("global_store"):
                self.uses = allsrc(R)
                self.data = R[1]
                self.wide_store = mn.endswith(("x3", "x4"))
            elif mn.startswith("global_atomic"):
                if "sc0" in mods.split():
                    self.defs = R[0]
                    self.uses = allsrc(R[1:])
                else:
                    self.uses = allsrc(R)
            else:
                raise ValueError("unsupported vmem: " + text)
        elif mn.startswith(("s_load", "s_memtime", "s_memrealtime")):
            self.cls = "smem"
            self.defs = R[0]
            self.uses = allsrc(R[1:])
        elif mn in ("s_waitcnt", "s_nop", "s_barrier", "s_endpgm", "s_sleep", "s_setprio"):
            self.cls = mn
        elif mn.startswith(("s_cbranch", "s_branch")):
            self.cls = "branch"
            if "vcc" in mn:
                self.uses = {("s", "vcc")}
        elif mn.startswith("s_"):
            self.cls = "salu"
            if mn.startswith(("s_cmp", "s_bitcmp")):
                self.uses = allsrc(R)
            else:
                self.defs = R[0]
                self.uses = allsrc(R[1:])
                if "saveexec" in mn:
                    self.defs |= {("s", "exec")}
        else:
            raise ValueError("unknown instruction: " + text)


class Stream:
    def __init__(self):
        self.ins = []

    def __call__(self, text):
        last = None
        for line in text.split("\n"):
            line = line.strip()
            if not line:
                continue
            last = Ins(line)
            self.ins.append(last)
        return last

    def wait(self, *toks):
        i = Ins("; wait")
        i.cls = "tokwait"
        i.waitfor = [t for t in toks if t is not None]
        self.ins.append(i)

    def drain(self, vm=True, lgkm=True):
        parts = []
        if vm:
            parts.append("vmcnt(0)")
        if lgkm:
            parts.append("lgkmcnt(0)")
        self("s_waitcnt " + " ".join(parts))

    def barrier(self):
        self("s_waitcnt lgkmcnt(0)")
        self("s_barrier")

    def raw(self, other):
        i = Ins("; raw")
        i.cls = "none"
        i.text = finalize(other).strip()
        self.ins.append(i)

    def ghost(self, n):
        for _ in range(n):
            i = Ins("; ghost")
            i.cls = "ghost"
            self.ins.append(i)

    def forget(self):
        i = Ins("; forget")
        i.cls = "forget"
        self.ins.append(i)

    def extend(self, other):
        self.ins.extend(other.ins)
        return self

    def __len__(self):
        return len(self.ins)


def interleave(main, side, start=0.0, end=1.0, only_after=("mfma",)):
    out = Stream()
    anchors = [i for i, x in enumerate(main.ins) if x.cls in only_after]
    lo, hi = int(len(anchors) * start), max(int(len(anchors) * end), 1)
    use = anchors[lo:hi]
    n = len(side.ins)
    pos = {}
    for j in range(n):
        idx = use[min(len(use) - 1, (j * len(use)) // n)]
        pos.setdefault(idx, []).append(side.ins[j])
    for i, x in enumerate(main.ins):
        out.ins.append(x)
        out.ins.extend(pos.get(i, []))
    return out


def weave(main, sides):
    anchors = [i for i, x in enumerate(main.ins) if x.cls == "mfma"]
    pos = {}
    for side, first, last in sides:
        first = max(0, min(first, len(anchors) - 1))
        last = max(first, min(last, len(anchors) - 1))
        cost = [0 if x.cls in ("salu", "tokwait", "label", "none", "s_waitcnt") else 1 for x in side.ins]
        total = max(sum(cost), 1)
        acc = 0
        idx = first
        for x, c in zip(side.ins, cost):
            if x.cls != "label":
                idx = first + min(last - first, (acc * (last - first + 1)) // total)
            pos.setdefault(anchors[idx], []).append(x)
            acc += c
    out = Stream()
    for i, x in enumerate(main.ins):
        out.ins.append(x)
        out.ins.extend(pos.get(i, []))
    return out


def sprinkle(main, side, first=0.0, last=1.0):
    n = len(main.ins)
    lo, hi = int(n * first), max(int(n * last), int(n * first) + 1)
    cost = [0 if x.cls in ("salu", "tokwait", "label", "none", "s_waitcnt") else 1 for x in side.ins]
    total = max(sum(cost), 1)
    pos, acc = {}, 0
    for x, c in zip(side.ins, cost):
        pos.setdefault(min(n - 1, lo + (acc * (hi - lo)) // total), []).append(x)
        acc += c
    assert not any(x.cls == "label" for x in side.ins + main.ins)
    out = Stream()
    for i, x in enumerate(main.ins):
        out.ins.extend(pos.get(i, []))
        out.ins.append(x)
    return out


_WAIT = re.compile(r"(vmcnt|lgkmcnt)\((\d+)\)")


def insert_waits(ins):
    out = []
    vm, lg = [], []

    def need(queue, regs, toks):
        idx = -1
        for i, e in enumerate(queue):
            if (regs and (e.defs & regs)) or (toks and any(e is t for t in toks)):
                idx = i
        return idx

    seen = set()
    for x in ins:
        seen.add(id(x))
        if x.waitfor:
            assert all(id(t) in seen for t in x.waitfor), "wait placed before its instruction"
        if x.cls == "ghost":
            vm.append(x)
            continue
        if x.cls == "forget":
            del vm[:]
            continue
        if x.cls == "s_waitcnt":
            for name, n in _WAIT.findall(x.text):
                n = int(n)
                q = vm if name == "vmcnt" else lg
                if name == "lgkmcnt" and n > 0 and any(e.cls == "smem" for e in lg):
                    continue
                del q[: max(0, len(q) - n)]
            out.append(x)
            continue
        regs = x.defs | x.uses
        toks = x.waitfor
        parts = []
        i = need(vm, regs, toks)
        if i >= 0:
            n = min(len(vm) - 1 - i, 63)
            parts.append(f"vmcnt({n})")
            del vm[: len(vm) - n]
        i = need(lg, regs, toks)
        if i >= 0:
            n = min(len(lg) - 1 - i, 15)
            if any(e.cls == "smem" for e in lg):
                n = 0
            parts.append(f"lgkmcnt({n})")
            del lg[: len(lg) - n]
        if parts:
            out.append(Ins("s_waitcnt " + " ".join(parts)))
        if x.cls == "tokwait":
            continue
        out.append(x)
        if x.cls == "vmem":
            vm.append(x)
        elif x.cls in ("ds", "smem"):
            lg.append(x)
    return out


def _states(x):
    if x.cls in ("label", "none"):
        return 0
    if x.cls == "s_nop":
        return int(x.text.split()[1], 0) + 1
    return 1


def _isv(r):
    return r[0] in ("v", "a")


def required_gap(p, c):
    need = 0
    if p.cls == "valu":
        vdef = {r for r in p.defs if _isv(r)}
        sdef = {r for r in p.defs if r[0] == "s"}
        if c.cls == "mfma" and vdef & c.uses:
            need = max(need, 2)
        if c.cls == "mfma" and p.pkcross:
            need = max(need, 1)
        if c.cls == "valu":
            if c.dpp and vdef & c.uses:
                need = max(need, 2)
            if c.mn.startswith("v_permlane") and vdef & c.uses:
                need = max(need, 2)
            if c.mn.startswith(("v_readlane", "v_readfirstlane")) and vdef & c.uses:
                need = max(need, 1)
            if p.mn.startswith(TRANS) and vdef & c.uses:
                need = max(need, 1)
            if ("_sdwa" in p.mn or p.mn.startswith("v_fma_mix")) and vdef & (c.uses | c.defs):
                need = max(need, 1)
            if sdef & c.uses:
                need = max(need, 4 if c.mn.startswith(("v_readlane", "v_writelane")) else 2)
            if p.mn.startswith("v_dot") and vdef & (c.uses | c.defs):
                chain = p.mn == c.mn and not (vdef & c.srcab) and (vdef & c.uses)
                need = max(need, 0 if chain else 3)
        if p.mn.startswith("v_dot") and c.cls in ("ds", "vmem", "mfma") and vdef & c.uses:
            need = max(need, 3)
        if c.cls == "vmem" and sdef & c.uses:
            need = max(need, 5)
        if c.cls in ("salu", "branch", "smem") and sdef & c.uses:
            need = max(need, 1)
    elif p.cls == "mfma":
        if c.cls == "mfma":
            if p.defs & c.srcab:
                need = max(need, 8)
            if p.defs & c.srcc and p.defs != c.srcc:
                need = max(need, 6)
            if p.defs & c.defs and not (p.defs & c.srcc):
                need = max(need, 6)
        elif c.cls in ("valu", "ds", "vmem"):
            if p.defs & (c.uses | c.defs):
                need = max(need, 8)
            if c.cls == "valu" and p.srcc & c.defs:
                need = max(need, 3)
    elif p.cls == "vmem":
        if p.wide_store and (p.data & c.defs):
            need = max(need, 2)
    elif p.cls == "salu":
        if ("s", "m0") in p.defs and c.cls == "vmem" and ("s", "m0") in c.uses:
            need = max(need, 1)
    return need


def insert_nops(ins):
    out = []
    for x in ins:
        if x.cls not in ("label", "none", "s_nop", "s_waitcnt", "s_barrier"):
            dist, pad = 0, 0
            for p in reversed(out):
                if dist >= 10:
                    break
                if p.cls not in ("label", "none"):
                    pad = max(pad, required_gap(p, x) - dist)
                dist += _states(p)
            if pad > 0:
                out.append(Ins(f"s_nop {pad - 1}"))
        out.append(x)
    return out


def finalize(stream):
    ins = insert_nops(insert_waits(stream.ins))
    lines = []
    for x in ins:
        lines.append(x.text if x.cls == "label" else "    " + x.text)
    return "\n".join(lines) + "\n"


class Alloc:
    def __init__(self, lo, hi):
        self.lo, self.hi, self.p = lo, hi, lo

    def __call__(self, n=1, align=None):
        al = align or (1 if n == 1 else 2 if n < 4 else 4)
        p = (self.p + al - 1) // al * al
        assert p + n <= self.hi, f"out of registers: need {n} at {p}, limit {self.hi}"
        self.p = p + n
        return p

    def mark(self):
        return self.p

    def reset(self, m):
        self.p = m
```

```python
from asmlib import Stream, Alloc, v, a, s, interleave

S, D, FH = 2048, 640, 864
Q, K, V, SHK, SSM, SD, BX, WIN, WSP, BSP, WOUT, C, WMOD, OUT, DBG, WS = range(8, 40, 2)
WAVE = 3
LANE = 1
MODP = 0x0
MODS = 3840 * 4
ST1 = 0xC000
U = 0x10000
US = 2 * 56 * 128
KF = 0x18000
SDF = 0x1D000
INIT_BYTES = 0x20000
XB = 0x100000
X1 = 0x400000
WP = 0x700000
WO = 0xA00000
ST3 = 0xBE0000
Z2 = 0xC00000
P = Z2 + 8 * 64 * 7168
KVT = 0x1400000
STAMP = 0x2000000

ONES = 0x3F803F80
LOG2E = 0x3FB8AA3B
SEL_LO = 0x05040100
SEL_HI = 0x07060302


def fbits(x):
    import struct
    return struct.unpack("<I", struct.pack("<f", x))[0]


def sp(i):
    return s(i, 2)


import os
STAMPS = int(os.environ.get("STAMPS", "0"))
VTOP = 255
CLK = [1, 16, 17, 23, 25, 41]


def stamp(k, idx):
    if STAMPS:
        k("s_memrealtime s[98:99]")
        k("s_waitcnt lgkmcnt(0)")
        k(f"v_writelane_b32 v255, s98, {idx}")
        if idx in CLK:
            k("s_memtime s[98:99]")
            k("s_waitcnt lgkmcnt(0)")
            k(f"v_writelane_b32 v255, s98, {52 + CLK.index(idx)}")


def stamp_flush(k, kidx):
    if STAMPS:
        k(f"s_lshl_b32 s98, s2, 10")
        k(f"s_add_u32 s98, s98, {STAMP + kidx * 262144}")
        k(f"v_lshl_add_u32 v254, v0, 2, s98")
        k(f"global_store_dword v254, v255, {sp(WS)}")


def code_prefetch(k, lab0, lab1, tmp, nparts=32):
    k(f"s_getpc_b64 s[4:5]")
    k(f"Lpf_{lab0}_{len(k)}:")
    here = f"Lpf_{lab0}_{len(k) - 1}"
    k(f"s_add_u32 s4, s4, {lab0}-{here}")
    k(f"s_addc_u32 s5, s5, -1")
    k(f"s_lshr_b32 s6, s2, 3")
    k(f"s_and_b32 s6, s6, {nparts - 1}")
    k(f"v_mul_u32_u24 {v(tmp)}, {nparts}, v0")
    k(f"v_add_lshl_u32 {v(tmp)}, {v(tmp)}, s6, 7")
    k(f"v_min_u32 {v(tmp)}, ({lab1}-{lab0}-4), {v(tmp)}")
    k(f"global_load_dword {v(tmp)}, {v(tmp)}, s[4:5]")


def prologue(k):
    k(f"s_load_dwordx16 s[8:23], s[0:1], 0")
    k(f"s_load_dwordx16 s[24:39], s[0:1], 64")
    k(f"v_lshrrev_b32 v2, 6, v0")
    k(f"v_and_b32 {v(LANE)}, 63, v0")
    k(f"v_readfirstlane_b32 {s(WAVE)}, v2")


def unpack(k, lo, hi, src):
    k(f"v_lshlrev_b32 {v(lo)}, 16, {v(src)}")
    k(f"v_and_b32 {v(hi)}, 0xffff0000, {v(src)}")


def bsel(r):
    return v(r & ~1, 2), r & 1


def pk(k, op, dst, srcs, neg=None):
    ops, lo, hi = [], [], []
    if srcs[1][0] == "b" and srcs[0][0] != "b" and not neg:
        srcs = [srcs[1], srcs[0]] + list(srcs[2:])
    for kind, r in srcs:
        if kind == "p":
            ops.append(v(r, 2)); lo.append(0); hi.append(1)
        elif kind == "sp":
            ops.append(s(r, 2)); lo.append(0); hi.append(1)
        elif kind == "b":
            t, b = bsel(r)
            ops.append(t); lo.append(b); hi.append(b)
        elif kind == "sb":
            ops.append(s(r & ~1, 2)); lo.append(r & 1); hi.append(r & 1)
        else:
            ops.append(r); lo.append(0); hi.append(0)
    m = f" op_sel:[{','.join(map(str, lo))}] op_sel_hi:[{','.join(map(str, hi))}]"
    if neg:
        m += f" neg_lo:[{','.join(map(str, neg))}] neg_hi:[{','.join(map(str, neg))}]"
    return k(f"v_pk_{op}_f32 {v(dst, 2)}, {', '.join(ops)}{m}")


def vop(k, op, dst, srcs, packed=True):
    if packed:
        return pk(k, op, dst, srcs)
    for h in range(2):
        ops = []
        for kind, r in srcs:
            ops.append({"p": lambda: v(r + h), "sp": lambda: s(r + h), "b": lambda: v(r), "sb": lambda: s(r), "c": lambda: r}[kind]())
        if op != "fma" and not ops[1].startswith("v"):
            ops = [ops[1], ops[0]]
        k(f"v_{op}_f32 {v(dst + h)}, {', '.join(ops)}")


def round_bf16(k, r):
    k(f"v_cvt_pk_bf16_f32 {v(r)}, {v(r)}, {v(r)}")
    k(f"v_lshlrev_b32 {v(r)}, 16, {v(r)}")


def mod_unit(k, su, st="sc1"):
    R = Alloc(2, 250)
    k(f"s_cmp_ge_u32 {s(su)}, 60")
    k(f"s_cselect_b32 s4, 1, 0")
    k(f"s_mul_i32 s5, s4, 60")
    k(f"s_sub_u32 s5, {s(su)}, s5")
    k(f"s_mul_i32 s6, s4, 320")
    k(f"s_mul_i32 s7, {s(WAVE)}, 80")
    k(f"s_add_u32 s6, s6, s7")
    row, off, coff = R(), R(), R()
    k(f"v_lshrrev_b32 {v(row)}, 3, {v(LANE)}")
    k(f"v_add_u32 {v(row)}, s6, {v(row)}")
    k(f"v_lshlrev_b32 {v(coff)}, 1, {v(row)}")
    k(f"v_mul_u32_u24 {v(off)}, 7680, {v(row)}")
    k(f"v_and_b32 {v(row)}, 7, {v(LANE)}")
    k(f"v_lshl_add_u32 {v(off)}, {v(row)}, 4, {v(off)}")
    k(f"s_lshl_b32 s7, s5, 7")
    k(f"v_add_u32 {v(off)}, s7, {v(off)}")
    cv = R(10, 2)
    w = R(40, 4)
    for i in range(10):
        k(f"global_load_ushort {v(cv + i)}, {v(coff)}, {sp(C)} offset:{16 * i}")
    for i in range(10):
        k(f"global_load_dwordx4 {v(w + 4 * i, 4)}, {v(off)}, {sp(WMOD)} nt")
        if i < 9:
            k(f"v_add_u32 {v(off)}, {8 * 7680}, {v(off)}")
    t = R(10, 2)
    for i in range(10):
        k(f"v_lshlrev_b32 {v(cv + i)}, 16, {v(cv + i)}")
        k(f"v_mul_f32 {v(t + i)}, {hex(LOG2E | 0x80000000)}, {v(cv + i)}")
    for i in range(10):
        k(f"v_exp_f32 {v(t + i)}, {v(t + i)}")
    for i in range(10):
        k(f"v_add_f32 {v(t + i)}, 1.0, {v(t + i)}")
    for i in range(10):
        k(f"v_rcp_f32 {v(t + i)}, {v(t + i)}")
    for i in range(10):
        k(f"v_mul_f32 {v(cv + i)}, {v(cv + i)}, {v(t + i)}")
    for i in range(10):
        round_bf16(k, cv + i)
    acc = R(8, 2)
    u = R(8, 2)
    for i in range(10):
        for j in range(4):
            unpack(k, u + 2 * j, u + 2 * j + 1, w + 4 * i + j)
        for j in range(4):
            if i == 0:
                pk(k, "mul", acc + 2 * j, [("p", u + 2 * j), ("b", cv + i)])
            else:
                pk(k, "fma", acc + 2 * j, [("p", u + 2 * j), ("b", cv + i), ("p", acc + 2 * j)])
    for j in range(4):
        k(f"v_permlane32_swap_b32 {v(acc + j)}, {v(acc + j + 4)}")
    for j in range(4):
        k(f"v_add_f32 {v(acc + j)}, {v(acc + j)}, {v(acc + j + 4)}")
    for j in range(2):
        k(f"v_permlane16_swap_b32 {v(acc + j)}, {v(acc + j + 2)}")
    for j in range(2):
        k(f"v_add_f32 {v(acc + j)}, {v(acc + j)}, {v(acc + j + 2)}")
    res = u
    k(f"v_add_f32_dpp {v(res)}, {v(acc)}, {v(acc)} row_ror:8 row_mask:0xf bank_mask:0x3")
    k(f"v_add_f32_dpp {v(res)}, {v(acc + 1)}, {v(acc + 1)} row_ror:8 row_mask:0xf bank_mask:0xc")
    ad = u + 1
    k(f"v_and_b32 {v(ad)}, 7, {v(LANE)}")
    k(f"v_lshrrev_b32 {v(u + 2)}, 3, {v(LANE)}")
    k(f"v_lshl_add_u32 {v(ad)}, {v(ad)}, 3, {v(u + 2)}")
    k(f"s_lshl_b32 s7, {s(WAVE)}, 6")
    k(f"v_add_lshl_u32 {v(ad)}, {v(ad)}, s7, 2")
    k(f"ds_write_b32 {v(ad)}, {v(res)}")
    k.barrier()
    k(f"v_lshlrev_b32 {v(ad)}, 2, {v(LANE)}")
    for i in range(4):
        k(f"ds_read_b32 {v(acc + i)}, {v(ad)} offset:{256 * i}")
    k(f"s_mul_i32 s6, s4, {3840 * 4}")
    k(f"s_lshl_b32 s7, s5, 8")
    k(f"s_add_u32 s6, s6, s7")
    k(f"s_add_u32 s6, s6, {MODP}")
    k(f"v_add_u32 {v(ad)}, s6, {v(ad)}")
    k(f"v_add_f32 {v(acc)}, {v(acc)}, {v(acc + 1)}")
    k(f"v_add_f32 {v(acc + 2)}, {v(acc + 2)}, {v(acc + 3)}")
    k(f"v_add_f32 {v(acc)}, {v(acc)}, {v(acc + 2)}")
    k(f"s_cmp_lg_u32 {s(WAVE)}, 0")
    lab = f"Lmod_skip_{id(k) & 0xffff}_{len(k)}"
    k(f"s_cbranch_scc1 {lab}")
    k(f"global_store_dword {v(ad)}, {v(acc)}, {sp(WS)} {st}")
    k(f"{lab}:")


def row_stats(k, sm, sq, n, tmp):
    inv = hex(fbits(1.0 / n))
    k(f"v_mul_f32 {v(sm)}, {inv}, {v(sm)}")
    k(f"v_mul_f32 {v(sq)}, {inv}, {v(sq)}")
    k(f"v_fma_f32 {v(sq)}, -{v(sm)}, {v(sm)}, {v(sq)}")
    k(f"v_max_f32 {v(sq)}, 0, {v(sq)}")
    k(f"v_add_f32 {v(sq)}, {hex(fbits(1e-5))}, {v(sq)}")
    k(f"v_rsq_f32 {v(tmp)}, {v(sq)}")
    k(f"v_mul_f32 {v(sq)}, -{v(sm)}, {v(tmp)}".replace("v_mul_f32", "v_mul_f32_e64"))
    k(f"v_mov_b32 {v(sm)}, {v(tmp)}")


def x_unit(k, su, st="sc1"):
    R = Alloc(2, 250)
    off, a0, a1 = R(), R(), R()
    k(f"s_lshl_b32 s4, {s(su)}, 2")
    k(f"s_add_u32 s4, s4, {s(WAVE)}")
    k(f"s_mul_i32 s4, s4, {8 * 1280}")
    k(f"s_add_u32 s4, s4, 4096")
    k(f"v_lshl_add_u32 {v(off)}, {v(LANE)}, 4, s4")
    d = R(40, 4)
    for i in range(10):
        if i == 8:
            k(f"v_add_u32 {v(off)}, 8192, {v(off)}")
        k(f"global_load_dwordx4 {v(d + 4 * i, 4)}, {v(off)}, {sp(Q)} offset:{1024 * (i % 8) - 4096} nt")
    k(f"s_mul_i32 s5, {s(WAVE)}, 10304")
    k(f"v_lshl_add_u32 {v(a0)}, {v(LANE)}, 4, s5")
    k(f"v_lshrrev_b32 {v(a1)}, 5, {v(LANE)}")
    k(f"v_lshl_add_u32 {v(a1)}, {v(a1)}, 4, {v(a0)}")
    for i in range(10):
        pad = (64 * i) // 160
        k(f"ds_write_b128 {v(a1 if i in (2, 7) else a0)}, {v(d + 4 * i, 4)} offset:{1024 * i + 16 * pad}")
    k.barrier()
    rho, gq = R(), R()
    k(f"v_and_b32 {v(rho)}, 15, {v(LANE)}")
    k(f"v_lshrrev_b32 {v(gq)}, 4, {v(LANE)}")
    k(f"v_mul_u32_u24 {v(a0)}, 2576, {v(rho)}")
    k(f"v_lshl_add_u32 {v(a0)}, {v(gq)}, 3, {v(a0)}")
    k(f"s_mul_i32 s5, {s(WAVE)}, 320")
    k(f"v_add_u32 {v(a0)}, s5, {v(a0)}")
    for i in range(10):
        k(f"ds_read2_b64 {v(d + 4 * i, 4)}, {v(a0)} offset0:{4 * i} offset1:{160 + 4 * i}")
    k(f"s_mul_i32 s5, {s(WAVE)}, {40 * 16384}")
    k(f"s_lshl_b32 s6, {s(su)}, 8")
    k(f"s_add_u32 s5, s5, s6")
    k(f"s_add_u32 s5, s5, {XB}")
    k(f"v_lshlrev_b32 {v(off)}, 14, {v(gq)}")
    k(f"v_lshl_add_u32 {v(off)}, {v(rho)}, 4, {v(off)}")
    k(f"v_add_u32 {v(off)}, s5, {v(off)}")
    st4 = R(4, 2)
    k(f"s_mov_b32 s7, {hex(ONES)}")
    for j in range(4):
        k(f"v_mov_b32 {v(st4 + j)}, 0")
    for i in range(10):
        k(f"global_store_dwordx4 {v(off)}, {v(d + 4 * i, 4)}, {sp(WS)} {st}")
        if i < 9:
            k(f"v_add_u32 {v(off)}, 65536, {v(off)}")
        for j in range(2):
            for r in range(2):
                src = d + 4 * i + 2 * r + j
                k(f"v_dot2_f32_bf16 {v(st4 + 2 * r)}, {v(src)}, s7, {v(st4 + 2 * r)}")
                k(f"v_dot2_f32_bf16 {v(st4 + 2 * r + 1)}, {v(src)}, {v(src)}, {v(st4 + 2 * r + 1)}")
    k(f"v_permlane32_swap_b32 {v(st4)}, {v(st4 + 2)}")
    k(f"v_permlane32_swap_b32 {v(st4 + 1)}, {v(st4 + 3)}")
    k(f"v_add_f32 {v(st4)}, {v(st4)}, {v(st4 + 2)}")
    k(f"v_add_f32 {v(st4 + 1)}, {v(st4 + 1)}, {v(st4 + 3)}")
    k(f"v_permlane16_swap_b32 {v(st4)}, {v(st4 + 1)}")
    k(f"v_add_f32 {v(st4)}, {v(st4)}, {v(st4 + 1)}")
    SB = 41472
    k(f"v_lshlrev_b32 {v(a0)}, 4, {v(rho)}")
    k(f"v_lshl_add_u32 {v(a0)}, {v(gq)}, 2, {v(a0)}")
    k(f"s_lshl_b32 s5, {s(WAVE)}, 8")
    k(f"v_add_u32 {v(a0)}, s5, {v(a0)}")
    k(f"ds_write_b32 {v(a0)}, {v(st4)} offset:{SB}")
    k.barrier()
    pr = R(8, 2)
    k(f"v_and_b32 {v(a0)}, 31, {v(LANE)}")
    k(f"v_lshlrev_b32 {v(a0)}, 3, {v(a0)}")
    for i in range(4):
        k(f"ds_read_b64 {v(pr + 2 * i, 2)}, {v(a0)} offset:{SB + 256 * i}")
    pk(k, "add", pr, [("p", pr), ("p", pr + 2)])
    pk(k, "add", pr + 4, [("p", pr + 4), ("p", pr + 6)])
    pk(k, "add", pr, [("p", pr), ("p", pr + 4)])
    row_stats(k, pr, pr + 1, D, pr + 2)
    k(f"s_lshl_b32 s5, {s(su)}, 8")
    k(f"s_add_u32 s5, s5, {ST1}")
    k(f"v_add_u32 {v(a0)}, s5, {v(a0)}")
    lab = f"Lx_skip_{id(k) & 0xffff}_{len(k)}"
    k(f"s_cmp_lg_u32 {s(WAVE)}, 0")
    k(f"s_cbranch_scc1 {lab}")
    k(f"global_store_dwordx2 {v(a0)}, {v(pr, 2)}, {sp(WS)} {st}")
    k(f"{lab}:")


def wout_unit(k, su, st="sc1"):
    R = Alloc(2, 250)
    off, ap, aq = R(), R(), R()
    k(f"s_mul_i32 s4, {s(su)}, 40960")
    k(f"s_mul_i32 s5, {s(WAVE)}, 10240")
    k(f"s_add_u32 s4, s4, s5")
    k(f"v_lshl_add_u32 {v(off)}, {v(LANE)}, 4, s4")
    toks = []
    for i in range(10):
        if i % 4 == 0:
            k(f"s_add_u32 m0, s5, {1024 * i}")
            if i:
                k(f"v_add_u32 {v(off)}, 4096, {v(off)}")
        toks.append(k(f"global_load_lds_dwordx4 {v(off)}, {sp(WOUT)} offset:{1024 * (i % 4)} nt"))
    m, q = R(), R()
    k(f"v_and_b32 {v(m)}, 15, {v(LANE)}")
    k(f"v_lshrrev_b32 {v(q)}, 4, {v(LANE)}")
    k(f"v_mul_u32_u24 {v(q)}, {8 * 1280}, {v(q)}")
    k(f"s_mul_i32 s5, {s(WAVE)}, 320")
    k(f"v_add_u32 {v(q)}, s5, {v(q)}")
    k(f"v_lshl_add_u32 {v(ap)}, {v(m)}, 2, {v(q)}")
    k(f"v_lshl_add_u32 {v(aq)}, {v(m)}, 1, {v(q)}")
    k(f"s_mul_i32 s5, {s(WAVE)}, {2 * 27 * 5120}")
    k(f"s_mul_i32 s6, {s(su)}, 5120")
    k(f"s_add_u32 s5, s5, s6")
    k(f"s_add_u32 s5, s5, {WO + 2048}")
    k(f"v_lshl_add_u32 {v(off)}, {v(LANE)}, 4, s5")
    k(f"s_mov_b32 s6, {hex(SEL_LO)}")
    k(f"s_mov_b32 s7, {hex(SEL_HI)}")
    k.wait(*toks)
    k("s_barrier")
    order = [0, 2, 4, 6, 1, 3, 5, 7]
    for c in range(2):
        t = R(24, 4)
        o = R(20, 4)
        for b in range(2):
            for e in range(8):
                k(f"ds_read_b32 {v(t + 8 * b + e)}, {v(ap)} offset:{order[e] * 1280 + 160 * c + 64 * b}")
        for e in range(8):
            k(f"ds_read_u16 {v(t + 16 + e)}, {v(aq)} offset:{order[e] * 1280 + 160 * c + 128}")
        for b in range(2):
            for par in range(2):
                for j in range(4):
                    k(f"v_perm_b32 {v(o + 8 * b + 4 * par + j)}, {v(t + 8 * b + 2 * j + 1)}, {v(t + 8 * b + 2 * j)}, s{6 + par}")
        for j in range(4):
            k(f"v_perm_b32 {v(o + 16 + j)}, {v(t + 16 + 2 * j + 1)}, {v(t + 16 + 2 * j)}, s6")
        for dt in range(5):
            k(f"global_store_dwordx4 {v(off)}, {v(o + 4 * dt, 4)}, {sp(WS)} offset:{1024 * dt - 2048} {st}")
        if c == 0:
            k(f"v_add_u32 {v(off)}, {27 * 5120}, {v(off)}")


def load_mod4(k, dst, tmp, voff, row, ld=""):
    base = MODP + row * D * 4
    k(f"v_add_u32 {v(tmp + 4)}, {base}, {v(voff)}")
    k(f"global_load_dwordx4 {v(dst, 4)}, {v(tmp + 4)}, {sp(WS)} {ld}")
    k(f"v_add_u32 {v(tmp + 4)}, {base + 3840 * 4}, {v(voff)}")
    k(f"global_load_dwordx4 {v(tmp, 4)}, {v(tmp + 4)}, {sp(WS)} {ld}")


def fin_mod4(k, dst, tmp, plus1=False):
    for j in range(4):
        k(f"v_add_f32 {v(dst + j)}, {v(dst + j)}, {v(tmp + j)}")
    for j in range(4):
        round_bf16(k, dst + j)
    if plus1:
        for j in range(4):
            k(f"v_add_f32 {v(dst + j)}, 1.0, {v(dst + j)}")
        for j in range(4):
            round_bf16(k, dst + j)


def wp_unit(k, su, st="sc1"):
    R = Alloc(2, 250)
    n, q, off = R(), R(), R()
    k(f"v_and_b32 {v(n)}, 15, {v(LANE)}")
    k(f"v_lshrrev_b32 {v(q)}, 4, {v(LANE)}")
    k(f"s_mul_i32 s4, {s(WAVE)}, {160 * 3456}")
    k(f"s_lshl_b32 s5, {s(su)}, 6")
    k(f"s_add_u32 s4, s4, s5")
    k(f"s_add_u32 s4, s4, 3456")
    k(f"v_mul_u32_u24 {v(off)}, {8 * 3456}, {v(q)}")
    k(f"v_lshl_add_u32 {v(off)}, {v(n)}, 2, {v(off)}")
    k(f"v_add_u32 {v(off)}, s4, {v(off)}")
    w = R(40, 4)
    cur = 1
    for ks in range(5):
        for e in range(8):
            row = 32 * ks + e
            if row - cur > 1:
                k(f"v_add_u32 {v(off)}, {(row + 1 - cur) * 3456}, {v(off)}")
                cur = row + 1
            k(f"global_load_dword {v(w + 8 * ks + e)}, {v(off)}, {sp(WIN)} offset:{(row - cur) * 3456} nt")
    mo = R()
    cb4, t0 = R(4, 4), R(5, 4)
    sb4, t1 = R(4, 4), R(5, 4)
    k(f"v_min_u32 {v(mo)}, 39, {v(LANE)}")
    k(f"s_mul_i32 s5, {s(WAVE)}, 640")
    k(f"v_lshl_add_u32 {v(mo)}, {v(mo)}, 4, s5")
    load_mod4(k, cb4, t0, mo, 4)
    load_mod4(k, sb4, t1, mo, 3)
    fin_mod4(k, cb4, t0, plus1=True)
    fin_mod4(k, sb4, t1)
    k(f"ds_write_b128 {v(mo)}, {v(cb4, 4)}")
    k(f"ds_write_b128 {v(mo)}, {v(sb4, 4)} offset:2560")
    ta = R()
    k(f"v_lshl_add_u32 {v(ta)}, {v(q)}, 5, s5")
    k(f"s_cmp_ge_u32 {s(su)}, 27")
    k(f"s_cselect_b32 s6, -54, 56")
    k(f"s_lshl_b32 s7, {s(su)}, 1")
    k(f"s_add_u32 s6, s6, s7")
    k(f"s_mul_i32 s4, s6, 20480")
    k(f"s_mul_i32 s5, {s(WAVE)}, 5120")
    k(f"s_add_u32 s4, s4, s5")
    k(f"s_add_u32 s4, s4, {WP + 2048}")
    oe, oo = R(), R()
    k(f"v_lshl_add_u32 {v(oe)}, {v(LANE)}, 4, s4")
    k(f"v_add_u32 {v(oo)}, 20480, {v(oe)}")
    k(f"s_mov_b32 s7, {hex(ONES)}")
    uu = R(4, 2)
    for j in range(4):
        k(f"v_mov_b32 {v(uu + j)}, 0")
    cst = [R(16, 4) for _ in range(2)]
    un = R(16, 2)
    pr = R(16, 2)
    outs = [R(8, 4) for _ in range(2)]
    for ks in range(5):
        cc = cst[ks & 1]
        o = outs[ks & 1]
        for h in range(2):
            k(f"ds_read_b128 {v(cc + 4 * h, 4)}, {v(ta)} offset:{128 * ks + 16 * h}")
            k(f"ds_read_b128 {v(cc + 8 + 4 * h, 4)}, {v(ta)} offset:{2560 + 128 * ks + 16 * h}")
        for e in range(8):
            unpack(k, un + 2 * e, un + 2 * e + 1, w + 8 * ks + e)
        for e in range(8):
            pk(k, "mul", pr + 2 * e, [("p", un + 2 * e), ("b", cc + e)])
        for par in range(2):
            for j in range(4):
                k(f"v_cvt_pk_bf16_f32 {v(o + 4 * par + j)}, {v(pr + 4 * j + par)}, {v(pr + 4 * j + 2 + par)}")
        k(f"global_store_dwordx4 {v(oe)}, {v(o, 4)}, {sp(WS)} offset:{1024 * ks - 2048} {st}")
        k(f"global_store_dwordx4 {v(oo)}, {v(o + 4, 4)}, {sp(WS)} offset:{1024 * ks - 2048} {st}")
        for e in range(8):
            pk(k, "fma", uu + 2, [("p", un + 2 * e), ("b", cc + 8 + e), ("p", uu + 2)])
        for j in range(4):
            for par in range(2):
                k(f"v_dot2_f32_bf16 {v(uu + par)}, {v(o + 4 * par + j)}, s7, {v(uu + par)}")
    k(f"v_permlane32_swap_b32 {v(uu)}, {v(uu + 1)}")
    k(f"v_permlane32_swap_b32 {v(uu + 2)}, {v(uu + 3)}")
    k(f"v_add_f32 {v(uu)}, {v(uu)}, {v(uu + 1)}")
    k(f"v_add_f32 {v(uu + 2)}, {v(uu + 2)}, {v(uu + 3)}")
    k(f"v_permlane16_swap_b32 {v(uu)}, {v(uu + 2)}")
    k(f"v_add_f32 {v(uu)}, {v(uu)}, {v(uu + 2)}")
    k(f"v_lshlrev_b32 {v(ta)}, 2, v0")
    k(f"ds_write_b32 {v(ta)}, {v(uu)} offset:5120")
    k.drain()
    k("s_barrier")
    k(f"v_lshlrev_b32 {v(ta)}, 2, {v(LANE)}")
    for i in range(4):
        k(f"ds_read_b32 {v(un + i)}, {v(ta)} offset:{5120 + 256 * i}")
    k(f"s_lshl_b32 s6, s6, 7")
    k(f"s_add_u32 s6, s6, {U}")
    k(f"v_add_u32 {v(ta)}, s6, {v(ta)}")
    k(f"v_add_f32 {v(un)}, {v(un)}, {v(un + 1)}")
    k(f"v_add_f32 {v(un + 2)}, {v(un + 2)}, {v(un + 3)}")
    k(f"v_add_f32 {v(un)}, {v(un)}, {v(un + 2)}")
    k(f"v_min_u32 {v(un)}, -2, {v(un)}")
    lab = f"Lwp_skip_{id(k) & 0xffff}_{len(k)}"
    k(f"s_cmp_lg_u32 {s(WAVE)}, 0")
    k(f"s_cbranch_scc1 {lab}")
    k(f"global_store_dword {v(ta)}, {v(un)}, {sp(WS)} {st}")
    k(f"{lab}:")


def wp_zero_unit(k, su, st="sc1"):
    R = Alloc(2, 250)
    off = R()
    z = R(4, 4)
    for j in range(4):
        k(f"v_mov_b32 {v(z + j)}, 0")
    k(f"s_mul_i32 s4, {s(su)}, {56 * 20480}")
    k(f"s_add_u32 s4, s4, {WP + 54 * 20480}")
    k(f"v_lshl_add_u32 {v(off)}, v0, 4, s4")
    for i in range(10):
        k(f"global_store_dwordx4 {v(off)}, {v(z, 4)}, {sp(WS)} {st}")
        k(f"v_add_u32 {v(off)}, 4096, {v(off)}")
    k(f"s_mul_i32 s4, {s(su)}, {56 * 128}")
    k(f"s_add_u32 s4, s4, {U + 54 * 128}")
    k(f"v_lshl_add_u32 {v(off)}, {v(LANE)}, 2, s4")
    k(f"global_store_dword {v(off)}, {v(z)}, {sp(WS)} {st}")


def fill_unit(k, base, nbytes_per_wg, su, val=-1, st="sc1"):
    R = Alloc(2, 250)
    off = R()
    z = R(4, 4)
    for j in range(4):
        k(f"v_mov_b32 {v(z + j)}, {val}")
    k(f"s_mul_i32 s4, {s(su)}, {nbytes_per_wg}")
    k(f"s_add_u32 s4, s4, {base}")
    k(f"v_lshl_add_u32 {v(off)}, v0, 4, s4")
    for i in range(nbytes_per_wg // 4096):
        k(f"global_store_dwordx4 {v(off)}, {v(z, 4)}, {sp(WS)} {st}")
        k(f"v_add_u32 {v(off)}, 4096, {v(off)}")
```

```python
from asmlib import Stream, Alloc, v, a, s, weave, sprinkle
from blocks import *
from fused import *

TRB = 104448
XSB = 122880


def init_check(k, name, t):
    k(f"v_min_u32 {v(t)}, 7, {v(LANE)}")
    k(f"v_lshlrev_b32 {v(t)}, 2, {v(t)}")
    k(f"{name}:")
    k(f"global_load_dword {v(t + 1)}, {v(t)}, {sp(DBG)} sc1")
    k.drain(lgkm=False)
    k(f"v_cmp_eq_u32 vcc, 0, {v(t + 1)}")
    k("s_add_u32 s100, s100, 1")
    k(f"s_cmp_ge_u32 s100, {SPIN}")
    k(f"s_cbranch_scc1 {name}_x")
    k(f"s_cbranch_vccnz {name}")
    k(f"{name}_x:")


def init_fill(k, su):
    for j in range(4):
        k(f"v_mov_b32 {v(8 + j)}, -1")
    k(f"s_lshl_b32 s4, s{su}, 14")
    k("s_add_u32 s4, s4, 4096")
    k("v_lshl_add_u32 v6, v0, 4, s4")
    k("v_add_u32 v7, 8192, v6")
    for i in range(4):
        k(f"global_store_dwordx4 {v(6 + (i >> 1))}, v[8:11], {sp(WS)} offset:{4096 * (i & 1) - 4096} sc1")
    k(f"s_lshl_b32 s4, s{su}, 2")
    k("v_mov_b32 v6, s4")
    k.drain(lgkm=False)
    k("s_barrier")
    k(f"s_cmp_lg_u32 {s(WAVE)}, 0")
    k("s_cbranch_scc1 Linit_skip")
    k(f"global_store_dword v6, v8, {sp(DBG)} sc1")
    k("Linit_skip:")


class Mod:
    def __init__(self, R, sA):
        self.off, self.coff, self.mx = R(), R(), R()
        self.cv = R(8, 2)
        self.w = R(28, 4)
        self.t = R(8, 2)
        self.acc = R(8, 2)
        self.sA = sA

    def issue(self, k, smu, nc=1):
        sA, off, coff, mx = self.sA, self.off, self.coff, self.mx
        k(f"s_mul_i32 s4, s{smu}, 171")
        k("s_lshr_b32 s4, s4, 9")
        k("s_mul_i32 s5, s4, 3")
        k(f"s_sub_u32 s5, s{smu}, s5")
        k("s_cmp_lt_u32 s4, 50")
        k("s_cselect_b32 s6, -20, 0")
        k("s_cmp_lt_u32 s4, 20")
        k("s_cselect_b32 s6, 30, s6")
        k("s_add_u32 s4, s4, s6")
        k(f"s_mul_i32 s6, s5, {MODS}")
        k("s_lshl_b32 s7, s4, 8")
        k(f"s_add_u32 s{sA}, s6, s7")
        k("s_mul_i32 s5, s5, 224")
        k(f"s_mul_i32 s6, {s(WAVE)}, 56")
        k("s_add_u32 s5, s5, s6")
        k("s_lshl_b32 s4, s4, 7")
        k(f"v_lshrrev_b32 {v(coff)}, 3, {v(LANE)}")
        k(f"v_mul_u32_u24 {v(off)}, 7680, {v(coff)}")
        k(f"v_and_b32 {v(mx)}, 7, {v(LANE)}")
        k(f"v_lshl_add_u32 {v(off)}, {v(mx)}, 4, {v(off)}")
        k(f"v_add_u32 {v(off)}, s4, {v(off)}")
        k(f"v_add_u32 {v(mx)}, {632 * 7680}, {v(off)}")
        k("s_mul_i32 s6, s5, 7680")
        k(f"v_add_u32 {v(off)}, s6, {v(off)}")
        for i in range(7):
            k(f"global_load_dwordx4 {v(self.w + 4 * i, 4)}, {v(off)}, {sp(WMOD)} nt")
            if i < 6:
                k(f"v_add_u32 {v(off)}, {8 * 7680}, {v(off)}")
                if i >= 2:
                    k(f"v_min_u32 {v(off)}, {v(off)}, {v(mx)}")
        k(f"v_add_u32 {v(mx)}, s5, {v(LANE)}")
        k(f"v_min_u32 {v(off)}, 639, {v(mx)}")
        k(f"v_lshlrev_b32 {v(off)}, 1, {v(off)}")
        for i in range(nc):
            k(f"global_load_ushort {v(self.t + i)}, {v(off)}, {sp(C)}")

    def finish(self, k, lds, before_store, uid):
        cv, t, acc, w, sA = self.cv, self.t, self.acc, self.w, self.sA
        k(f"v_cmp_gt_u32 vcc, 640, {v(self.mx)}")
        k(f"v_lshlrev_b32 {v(t)}, 16, {v(t)}")
        k(f"v_lshlrev_b32 {v(self.coff)}, 2, {v(self.coff)}")
        k(f"v_cndmask_b32 {v(t)}, 0, {v(t)}, vcc")
        k(f"v_mul_f32 {v(t + 1)}, {hex(LOG2E | 0x80000000)}, {v(t)}")
        k(f"v_exp_f32 {v(t + 1)}, {v(t + 1)}")
        k(f"v_add_f32 {v(t + 1)}, 1.0, {v(t + 1)}")
        k(f"v_rcp_f32 {v(t + 1)}, {v(t + 1)}")
        k(f"v_mul_f32 {v(t)}, {v(t)}, {v(t + 1)}")
        round_bf16(k, t)
        for i in range(7):
            k(f"ds_bpermute_b32 {v(cv + i)}, {v(self.coff)}, {v(t)} offset:{32 * i}")
        k.drain(vm=False)
        u = t
        for i in range(7):
            for j in range(4):
                unpack(k, u + 2 * j, u + 2 * j + 1, w + 4 * i + j)
            for j in range(4):
                if i == 0:
                    pk(k, "mul", acc + 2 * j, [("p", u + 2 * j), ("b", cv + i)])
                else:
                    pk(k, "fma", acc + 2 * j, [("p", u + 2 * j), ("b", cv + i), ("p", acc + 2 * j)])
        for j in range(4):
            k(f"v_permlane32_swap_b32 {v(acc + j)}, {v(acc + j + 4)}")
        for j in range(4):
            k(f"v_add_f32 {v(acc + j)}, {v(acc + j)}, {v(acc + j + 4)}")
        for j in range(2):
            k(f"v_permlane16_swap_b32 {v(acc + j)}, {v(acc + j + 2)}")
        for j in range(2):
            k(f"v_add_f32 {v(acc + j)}, {v(acc + j)}, {v(acc + j + 2)}")
        ad = u + 1
        k(f"v_and_b32 {v(ad)}, 7, {v(LANE)}")
        k(f"v_lshrrev_b32 {v(u + 2)}, 3, {v(LANE)}")
        k(f"v_add_f32_dpp {v(u)}, {v(acc)}, {v(acc)} row_ror:8 row_mask:0xf bank_mask:0x3")
        k(f"v_add_f32_dpp {v(u)}, {v(acc + 1)}, {v(acc + 1)} row_ror:8 row_mask:0xf bank_mask:0xc")
        k(f"v_lshl_add_u32 {v(ad)}, {v(ad)}, 3, {v(u + 2)}")
        k(f"s_lshl_b32 s7, {s(WAVE)}, 8")
        k(f"s_add_u32 s7, s7, {lds}")
        k(f"v_lshl_add_u32 {v(ad)}, {v(ad)}, 2, s7")
        k(f"ds_write_b32 {v(ad)}, {v(u)}")
        k.barrier()
        k(f"v_lshlrev_b32 {v(ad)}, 2, {v(LANE)}")
        k(f"v_add_u32 {v(u + 2)}, {lds}, {v(ad)}")
        for i in range(4):
            k(f"ds_read_b32 {v(acc + i)}, {v(u + 2)} offset:{256 * i}")
        k(f"v_add_u32 {v(ad)}, s{sA}, {v(ad)}")
        k(f"v_add_f32 {v(acc)}, {v(acc)}, {v(acc + 1)}")
        k(f"v_add_f32 {v(acc + 2)}, {v(acc + 2)}, {v(acc + 3)}")
        k(f"v_add_f32 {v(acc)}, {v(acc)}, {v(acc + 2)}")
        k(f"v_min_u32 {v(acc)}, -2, {v(acc)}")
        before_store(k)
        st = Stream()
        st(f"s_cmp_lg_u32 {s(WAVE)}, 0")
        st(f"s_cbranch_scc1 Lmod_skip_{uid}")
        st(f"global_store_dword {v(ad)}, {v(acc)}, {sp(WS)} offset:{MODP} sc1")
        st(f"Lmod_skip_{uid}:")
        k.raw(st)


class X16:
    def __init__(self, R):
        self.d = R(20, 4)
        self.off, self.a0, self.a1, self.rho, self.gq = (R() for _ in range(5))
        self.st4 = R(4, 4)
        self.pr = R(8, 2)

    def prefill(self, k, su):
        rho, gq, off, z = self.rho, self.gq, self.off, self.st4
        k(f"v_and_b32 {v(rho)}, 7, {v(LANE)}")
        k(f"v_lshrrev_b32 {v(gq)}, 3, {v(LANE)}")
        for j in range(4):
            k(f"v_mov_b32 {v(z + j)}, -1")
        k(f"s_lshr_b32 s4, s{su}, 2")
        k("s_mul_i32 s4, s4, 81920")
        k(f"s_and_b32 s5, s{su}, 3")
        k("s_lshl_b32 s5, s5, 7")
        k("s_add_u32 s4, s4, s5")
        k(f"s_mul_i32 s5, {s(WAVE)}, 20480")
        k("s_add_u32 s4, s4, s5")
        k(f"s_add_u32 s4, s4, {X1 + 4096}")
        k(f"v_lshl_add_u32 {v(off)}, {v(gq)}, 9, s4")
        k(f"v_lshl_add_u32 {v(off)}, {v(rho)}, 4, {v(off)}")
        for i in range(5):
            k(f"global_store_dwordx4 {v(off)}, {v(z, 4)}, {sp(WS)} offset:{4096 * (i & 1) - 4096} sc1")
            if i & 1:
                k(f"v_add_u32 {v(off)}, 8192, {v(off)}")

    def issue(self, k, su):
        k(f"s_lshl_b32 s4, s{su}, 2")
        k(f"s_add_u32 s4, s4, {s(WAVE)}")
        k("s_mul_i32 s4, s4, 5120")
        k("s_add_u32 s4, s4, 2048")
        k(f"v_add_u32 {v(self.a0)}, s4, {v(L16)}")
        for i in range(5):
            k(f"global_load_dwordx4 {v(self.d + 4 * i, 4)}, {v(self.a0)}, {sp(Q)} offset:{1024 * i - 2048} nt")

    def stage(self, k):
        a0, a1, d = self.a0, self.a1, self.d
        k(f"s_mul_i32 s5, {s(WAVE)}, 5152")
        k(f"s_add_u32 s5, s5, {XSB}")
        k(f"v_add_u32 {v(a0)}, s5, {v(L16)}")
        k(f"v_lshrrev_b32 {v(a1)}, 5, {v(LANE)}")
        k(f"v_lshl_add_u32 {v(a1)}, {v(a1)}, 4, {v(a0)}")
        for i in range(5):
            k(f"ds_write_b128 {v(a1 if i == 2 else a0)}, {v(d + 4 * i, 4)} offset:{1024 * i + 16 * ((64 * i) // 160)}")

    def emit(self, k, su):
        a0, d, off, rho, gq, st4 = self.a0, self.d, self.off, self.rho, self.gq, self.st4
        k(f"v_mul_u32_u24 {v(a0)}, 2576, {v(rho)}")
        k(f"v_lshl_add_u32 {v(a0)}, {v(gq)}, 3, {v(a0)}")
        k(f"s_mul_i32 s5, {s(WAVE)}, 320")
        k(f"s_add_u32 s5, s5, {XSB}")
        k(f"v_add_u32 {v(a0)}, s5, {v(a0)}")
        for i in range(5):
            k(f"ds_read2_b64 {v(d + 4 * i, 4)}, {v(a0)} offset0:{8 * i} offset1:{160 + 8 * i}")
        k(f"s_mul_i32 s5, {s(WAVE)}, {40 * 16384}")
        k(f"s_lshl_b32 s6, s{su}, 7")
        k("s_add_u32 s5, s5, s6")
        k(f"s_add_u32 s5, s5, {XB}")
        k(f"v_lshl_add_u32 {v(off)}, {v(gq)}, 14, s5")
        k(f"v_lshl_add_u32 {v(off)}, {v(rho)}, 4, {v(off)}")
        k(f"s_mov_b32 s7, {hex(ONES)}")
        for j in range(4):
            k(f"v_mov_b32 {v(st4 + j)}, 0")
        toks = []
        for i in range(5):
            toks.append(k(f"global_store_dwordx4 {v(off)}, {v(d + 4 * i, 4)}, {sp(WS)} sc1"))
            if i < 4:
                k(f"v_add_u32 {v(off)}, {8 * 16384}, {v(off)}")
        for i in range(5):
            for j in range(2):
                for r in range(2):
                    src = d + 4 * i + 2 * r + j
                    k(f"v_dot2_f32_bf16 {v(st4 + 2 * r)}, {v(src)}, s7, {v(st4 + 2 * r)}")
                    k(f"v_dot2_f32_bf16 {v(st4 + 2 * r + 1)}, {v(src)}, {v(src)}, {v(st4 + 2 * r + 1)}")
        k(f"v_permlane32_swap_b32 {v(st4)}, {v(st4 + 2)}")
        k(f"v_permlane32_swap_b32 {v(st4 + 1)}, {v(st4 + 3)}")
        k(f"v_add_f32 {v(st4)}, {v(st4)}, {v(st4 + 2)}")
        k(f"v_add_f32 {v(st4 + 1)}, {v(st4 + 1)}, {v(st4 + 3)}")
        k(f"v_permlane16_swap_b32 {v(st4)}, {v(st4 + 1)}")
        k(f"v_add_f32 {v(st4)}, {v(st4)}, {v(st4 + 1)}")
        k(f"v_lshlrev_b32 {v(a0)}, 4, {v(rho)}")
        k(f"v_lshl_add_u32 {v(a0)}, {v(Q_)}, 2, {v(a0)}")
        k(f"v_add_f32_dpp {v(st4)}, {v(st4)}, {v(st4)} row_ror:8 row_mask:0xf bank_mask:0xf")
        k(f"s_lshl_b32 s5, {s(WAVE)}, 7")
        k(f"s_add_u32 s5, s5, {XSB + 20736}")
        k(f"v_add_u32 {v(a0)}, s5, {v(a0)}")
        k(f"ds_write_b32 {v(a0)}, {v(st4)}")
        return toks

    def publish(self, k, su):
        a0, pr = self.a0, self.pr
        k(f"v_lshlrev_b32 {v(a0)}, 3, {v(N_)}")
        k(f"v_add_u32 {v(self.a1)}, {XSB + 20736}, {v(a0)}")
        for i in range(4):
            k(f"ds_read_b64 {v(pr + 2 * i, 2)}, {v(self.a1)} offset:{128 * i}")
        pk(k, "add", pr, [("p", pr), ("p", pr + 2)])
        pk(k, "add", pr + 4, [("p", pr + 4), ("p", pr + 6)])
        pk(k, "add", pr, [("p", pr), ("p", pr + 4)])
        row_stats(k, pr, pr + 1, D, pr + 2)
        k(f"v_min_u32 {v(pr)}, -2, {v(pr)}")
        k(f"v_min_u32 {v(pr + 1)}, -2, {v(pr + 1)}")
        k(f"s_lshl_b32 s5, s{su}, 7")
        k(f"s_add_u32 s5, s5, {ST1}")
        k(f"v_add_u32 {v(a0)}, s5, {v(a0)}")
        st = Stream()
        st(f"s_cmp_lg_u32 {s(WAVE)}, 0")
        st("s_cbranch_scc1 Lx16_skip")
        st(f"global_store_dwordx2 {v(a0)}, {v(pr, 2)}, {sp(WS)} sc1")
        st("Lx16_skip:")
        k.raw(st)


class KVTile:
    def __init__(self, R):
        self.o0, self.o1, self.t = R(), R(), R()
        self.kr = R(22, 2)
        self.vr = R(16, 2)
        self.tr = R(8, 4)
        self.tp = R(16, 2)
        self.un = R(44, 2)
        self.kv = R(32, 4)

    def issue(self, k, sg):
        o0, o1, t = self.o0, self.o1, self.t
        k(f"s_and_b32 s4, s{sg}, 15")
        k(f"s_lshl_b32 s4, s4, 2")
        k(f"s_add_u32 s4, s4, {s(WAVE)}")
        k(f"s_mul_i32 s4, s4, {32 * 1280}")
        k(f"s_lshr_b32 s5, s{sg}, 4")
        k("s_lshl_b32 s6, s5, 7")
        k("s_add_u32 s4, s4, s6")
        k(f"v_mul_u32_u24 {v(o0)}, {8 * 1280}, {v(Q_)}")
        k(f"v_lshl_add_u32 {v(o0)}, {v(N_)}, 3, {v(o0)}")
        k(f"v_add_u32 {v(o0)}, s4, {v(o0)}")
        k(f"v_add_u32 {v(o1)}, {4 * 1280}, {v(o0)}")
        for r in range(8):
            k(f"global_load_dwordx2 {v(self.kr + 6 + 2 * r, 2)}, {v(o1 if r >= 4 else o0)}, {sp(K)} offset:{1280 * (r % 4)}")
        k(f"v_max_u32 {v(t)}, {3 * 1280}, {v(o0)}")
        for r in range(3):
            k(f"global_load_dwordx2 {v(self.kr + 2 * r, 2)}, {v(t)}, {sp(K)} offset:{1280 * (r - 3)}")
        k("s_lshl_b32 s5, s5, 9")
        k(f"v_lshl_add_u32 {v(t)}, {v(N_)}, 5, s5")
        for h in range(2):
            k(f"global_load_dwordx4 {v(self.tr + 4 * h, 4)}, {v(t)}, {sp(SHK)} offset:{16 * h}")
        for r in range(8):
            k(f"global_load_dwordx2 {v(self.vr + 2 * r, 2)}, {v(o1 if r >= 4 else o0)}, {sp(V)} offset:{1280 * (r % 4)} nt")

    def compute(self, k):
        kr, vr, tr, tp, un, kv, t = self.kr, self.vr, self.tr, self.tp, self.un, self.kv, self.t
        for i in list(range(3, 11)):
            for p in range(2):
                unpack(k, un + 4 * i + 2 * p, un + 4 * i + 2 * p + 1, kr + 2 * i + p)
        k(f"v_cmp_le_u32 vcc, 1280, {v(self.o0)}")
        for j in range(6):
            k(f"v_cndmask_b32 {v(kr + j)}, 0, {v(kr + j)}, vcc")
        for i in range(3):
            for p in range(2):
                unpack(k, un + 4 * i + 2 * p, un + 4 * i + 2 * p + 1, kr + 2 * i + p)
        for ch in range(4):
            for h in range(2):
                unpack(k, tp + 8 * h + ch, tp + 8 * h + 4 + ch, tr + 2 * ch + h)
        for j in range(4):
            for r in range(8):
                for p in range(2):
                    src = un + 4 * (3 + r - j) + 2 * p
                    d = kv + 4 * r + 2 * p
                    if j == 0:
                        pk(k, "mul", d, [("p", src), ("p", tp + 2 * p)])
                    else:
                        pk(k, "fma", d, [("p", src), ("p", tp + 4 * j + 2 * p), ("p", d)])
        k(f"s_lshl_b32 s4, {s(WAVE)}, 6")
        k(f"s_sub_u32 s4, {TRB + 240}, s4")
        k(f"v_mul_u32_u24 {v(t)}, 272, {v(N_)}")
        k(f"v_add_u32 {v(t)}, s4, {v(t)}")
        k(f"v_lshlrev_b32 {v(self.o1)}, 4, {v(Q_)}")
        k(f"v_sub_u32 {v(t)}, {v(t)}, {v(self.o1)}")
        for r in range(8):
            for p in range(2):
                unpack(k, un + 4 * r + 2 * p, un + 4 * r + 2 * p + 1, vr + 2 * r + p)
            for p in range(2):
                pk(k, "mul", kv + 4 * r + 2 * p, [("p", kv + 4 * r + 2 * p), ("p", un + 4 * r + 2 * p)])
        o = tp
        for ch in range(4):
            for j in range(4):
                k(f"v_cvt_pk_bf16_f32 {v(o + 4 * ch + j)}, {v(kv + 4 * (7 - 2 * j) + ch)}, {v(kv + 4 * (6 - 2 * j) + ch)}")
            k(f"ds_write_b128 {v(t)}, {v(o + 4 * ch, 4)} offset:{16 * 272 * ch}")

    def store(self, k, sg):
        t, o0, kv = self.t, self.o0, self.kv
        k(f"s_mul_i32 s4, {s(WAVE)}, {16 * 272}")
        k(f"s_add_u32 s4, s4, {TRB}")
        k(f"v_mul_u32_u24 {v(t)}, 272, {v(Q_)}")
        k(f"v_lshl_add_u32 {v(t)}, {v(N_)}, 4, {v(t)}")
        k(f"v_add_u32 {v(t)}, s4, {v(t)}")
        for i in range(4):
            k(f"ds_read_b128 {v(kv + 4 * i, 4)}, {v(t)} offset:{4 * 272 * i}")
        k(f"s_lshr_b32 s4, s{sg}, 4")
        k("s_lshl_b32 s4, s4, 6")
        k(f"s_add_u32 s4, s4, {s(WAVE)}")
        k("s_lshl_b32 s4, s4, 12")
        k(f"s_and_b32 s5, s{sg}, 15")
        k("s_lshl_b32 s5, s5, 8")
        k("s_sub_u32 s4, s4, s5")
        k(f"s_add_u32 s4, s4, {KVT + 15 * 256}")
        k(f"v_lshl_add_u32 {v(o0)}, {v(Q_)}, 14, s4")
        k(f"v_lshl_add_u32 {v(o0)}, {v(N_)}, 4, {v(o0)}")
        toks = []
        for i in range(4):
            toks.append(k(f"global_store_dwordx4 {v(o0)}, {v(kv + 4 * i, 4)}, {sp(WS)} sc1"))
            if i < 3:
                k(f"v_add_u32 {v(o0)}, 65536, {v(o0)}")
        return toks


def wp_unit2(k, su):
    R = Alloc(VFREE, 250)
    off = R()
    k(f"s_and_b32 s4, s{su}, 1")
    k("s_lshl_b32 s4, s4, 1")
    k(f"s_and_b32 s5, {s(WAVE)}, 1")
    k("s_add_u32 s44, s4, s5")
    k(f"s_and_b32 s4, s{su}, -2")
    k(f"s_lshr_b32 s5, {s(WAVE)}, 1")
    k("s_add_u32 s45, s4, s5")
    k(f"s_mul_i32 s4, s44, {160 * 3456}")
    k("s_lshl_b32 s5, s45, 6")
    k("s_add_u32 s4, s4, s5")
    k("s_add_u32 s4, s4, 3456")
    k(f"v_mul_u32_u24 {v(off)}, {8 * 3456}, {v(Q_)}")
    k(f"v_lshl_add_u32 {v(off)}, {v(N_)}, 2, {v(off)}")
    k(f"v_add_u32 {v(off)}, s4, {v(off)}")
    w = R(40, 4)
    cur = 1
    for ks in range(5):
        for e in range(8):
            row = 32 * ks + e
            if row - cur > 1:
                k(f"v_add_u32 {v(off)}, {(row + 1 - cur) * 3456}, {v(off)}")
                cur = row + 1
            k(f"global_load_dword {v(w + 8 * ks + e)}, {v(off)}, {sp(WIN)} offset:{(row - cur) * 3456}")
    mo, m2, ta, oe, oo, tm = (R() for _ in range(6))
    mp = R(24, 4)
    k(f"v_min_u32 {v(mo)}, {39 * 16}, {v(L16)}")
    k("s_mul_i32 s5, s44, 640")
    k(f"s_add_u32 s5, s5, {MODP + 3 * 2560}")
    k(f"v_add_u32 {v(m2)}, s5, {v(mo)}")
    k(f"s_mul_i32 s5, {s(WAVE)}, 1280")
    k(f"s_add_u32 s5, s5, {XSB + 2048}")
    k(f"v_add_u32 {v(mo)}, s5, {v(mo)}")
    k(f"v_lshl_add_u32 {v(ta)}, {v(Q_)}, 5, s5")
    k("s_cmp_ge_u32 s45, 27")
    k("s_cselect_b32 s6, -54, 56")
    k("s_lshl_b32 s7, s45, 1")
    k("s_add_u32 s46, s6, s7")
    k("s_mul_i32 s4, s46, 20480")
    k("s_mul_i32 s5, s44, 5120")
    k("s_add_u32 s4, s4, s5")
    k(f"s_add_u32 s4, s4, {WP + 2048}")
    k(f"v_add_u32 {v(oe)}, s4, {v(L16)}")
    k(f"v_add_u32 {v(oo)}, 20480, {v(oe)}")
    un = R(80, 2)
    for i in range(40):
        unpack(k, un + 2 * i, un + 2 * i + 1, w + i)
    stamp(k, 4)

    def mloads(st):
        for part in range(3):
            st(f"v_add_u32 {v(tm)}, {part * MODS}, {v(m2)}")
            st(f"global_load_dwordx4 {v(mp + 8 * part, 4)}, {v(tm)}, {sp(WS)} sc1")
            st(f"global_load_dwordx4 {v(mp + 8 * part + 4, 4)}, {v(tm)}, {sp(WS)} offset:2560 sc1")

    poll(k, "Lwm", mloads, list(range(mp, mp + 24)), tm)
    stamp(k, 5)
    for part in (1, 2):
        for j in range(4):
            pk(k, "add", mp + 2 * j, [("p", mp + 2 * j), ("p", mp + 8 * part + 2 * j)])
    for j in range(8):
        round_bf16(k, mp + j)
    for j in range(4, 8):
        k(f"v_add_f32 {v(mp + j)}, 1.0, {v(mp + j)}")
    for j in range(4, 8):
        round_bf16(k, mp + j)
    k(f"ds_write_b128 {v(mo)}, {v(mp + 4, 4)}")
    k(f"ds_write_b128 {v(mo)}, {v(mp, 4)} offset:640")
    cc = w
    for ks in range(5):
        for h in range(2):
            k(f"ds_read_b128 {v(cc + 8 * ks + 4 * h, 4)}, {v(ta)} offset:{128 * ks + 16 * h}")
    pr = R(16, 2)
    outs = R(40, 4)
    for ks in range(5):
        o = outs + 8 * ks
        for e in range(8):
            pk(k, "mul", pr + 2 * e, [("p", un + 16 * ks + 2 * e), ("b", cc + 8 * ks + e)])
        for par in range(2):
            for j in range(4):
                k(f"v_cvt_pk_bf16_f32 {v(o + 4 * par + j)}, {v(pr + 4 * j + par)}, {v(pr + 4 * j + 2 + par)}")
        k(f"global_store_dwordx4 {v(oe)}, {v(o, 4)}, {sp(WS)} offset:{1024 * ks - 2048} sc1")
        k(f"global_store_dwordx4 {v(oo)}, {v(o + 4, 4)}, {sp(WS)} offset:{1024 * ks - 2048} sc1")
    for ks in range(5):
        for h in range(2):
            k(f"ds_read_b128 {v(cc + 8 * ks + 4 * h, 4)}, {v(ta)} offset:{640 + 128 * ks + 16 * h}")
    uu = mp + 8
    k(f"s_mov_b32 s7, {hex(ONES)}")
    for j in range(8):
        k(f"v_mov_b32 {v(uu + j)}, 0")
    for i in range(20):
        for par in range(2):
            k(f"v_dot2_f32_bf16 {v(uu + par)}, {v(outs + 8 * (i // 4) + 4 * par + i % 4)}, s7, {v(uu + par)}")
    for i in range(40):
        d = uu + 2 + 2 * (i % 3)
        pk(k, "fma", d, [("p", un + 2 * i), ("b", cc + i), ("p", d)])
    pk(k, "add", uu + 2, [("p", uu + 2), ("p", uu + 4)])
    pk(k, "add", uu + 2, [("p", uu + 2), ("p", uu + 6)])
    k(f"v_permlane32_swap_b32 {v(uu)}, {v(uu + 1)}")
    k(f"v_permlane32_swap_b32 {v(uu + 2)}, {v(uu + 3)}")
    k(f"v_add_f32 {v(uu)}, {v(uu)}, {v(uu + 1)}")
    k(f"v_add_f32 {v(uu + 2)}, {v(uu + 2)}, {v(uu + 3)}")
    k(f"v_permlane16_swap_b32 {v(uu)}, {v(uu + 2)}")
    k(f"v_add_f32 {v(uu)}, {v(uu)}, {v(uu + 2)}")
    k(f"v_lshlrev_b32 {v(ta)}, 2, v0")
    k(f"v_add_u32 {v(ta)}, {XSB + 8192}, {v(ta)}")
    k(f"ds_write_b32 {v(ta)}, {v(uu)}")
    k(f"v_xor_b32 {v(ta)}, 256, {v(ta)}")
    k.drain()
    k("s_barrier")
    k(f"ds_read_b32 {v(uu + 1)}, {v(ta)}")
    k("s_lshl_b32 s6, s46, 7")
    k("s_lshr_b32 s5, s44, 1")
    k(f"s_mul_i32 s5, s5, {US}")
    k("s_add_u32 s6, s6, s5")
    k(f"s_add_u32 s6, s6, {U}")
    k(f"v_lshl_add_u32 {v(ta)}, {v(LANE)}, 2, s6")
    k(f"v_add_f32 {v(uu)}, {v(uu)}, {v(uu + 1)}")
    k(f"v_min_u32 {v(uu)}, -2, {v(uu)}")
    st = Stream()
    st(f"s_bitcmp1_b32 {s(WAVE)}, 0")
    st("s_cbranch_scc1 Lwp_skip")
    st(f"global_store_dword {v(ta)}, {v(uu)}, {sp(WS)} sc1")
    st("Lwp_skip:")
    k.raw(st)


def zero_unit(k, su):
    for j in range(4):
        k(f"v_mov_b32 {v(8 + j)}, 0")
    k(f"s_mul_i32 s4, s{su}, {56 * 20480}")
    k(f"s_add_u32 s4, s4, {WP + 54 * 20480}")
    k("v_lshl_add_u32 v6, v0, 4, s4")
    for i in range(10):
        k(f"global_store_dwordx4 v6, v[8:11], {sp(WS)} sc1")
        k("v_add_u32 v6, 4096, v6")
    k(f"s_mul_i32 s4, s{su}, {56 * 128}")
    k(f"s_and_b32 s5, {s(WAVE)}, 1")
    k(f"s_mul_i32 s5, s5, {US}")
    k("s_add_u32 s4, s4, s5")
    k(f"s_add_u32 s4, s4, {U + 54 * 128}")
    k(f"v_lshl_add_u32 v6, {v(LANE)}, 2, s4")
    k.drain()
    k("s_barrier")
    k(f"global_store_dword v6, v8, {sp(WS)} sc1")


def conv_path(k, stubs, cfg):
    sg = SUN
    R = Alloc(VFREE, 254)
    t0, t1 = R(), R()
    ka, kc, ua, uw, yw, yr, xo, x1o = (R() for _ in range(8))
    base = R.mark()
    kt = KVTile(R)
    m0_ = R.mark()
    x16 = X16(R)
    R.reset(m0_)
    md7 = Mod(R, 44)
    kt.issue(k, sg)
    SDv, DP, AS = 52, 56, 64
    k(f"s_lshl_b32 s7, {s(sg)}, 3")
    k(f"s_load_dwordx2 s[{SDv}:{SDv + 1}], {sp(SD)}, s7")
    a_, b_ = Stream(), Stream()
    x16.issue(a_, sg)
    x16.prefill(a_, sg)
    a_("s_branch Lc_j1")
    b_("Lc_m1:")
    b_(f"s_add_u32 s46, s{sg}, 2")
    md7.issue(b_, 46, 3)
    k(f"s_cmp_ge_u32 s{sg}, 128")
    k("s_cbranch_scc1 Lc_m1")
    k.raw(a_)
    k.raw(b_)
    k("Lc_j1:")
    NX = 10
    k.ghost(NX)
    stamp(k, 2)
    yv = kt.kv
    for j in range(4):
        k(f"v_mov_b32 {v(yv + j)}, 0")
    k(f"s_mul_i32 s5, {s(WAVE)}, {2 * KCP}")
    k(f"v_and_b32 {v(t0)}, 48, {v(L16)}")
    k(f"v_add_u32 {v(t0)}, s5, {v(t0)}")
    for cp in range(2):
        k(f"ds_write_b128 {v(t0)}, {v(yv, 4)} offset:{KT + cp * KCP}")
    k(f"v_min_u32 {v(t0)}, {28 * 16}, {v(L16)}")
    k(f"s_mul_i32 s4, {s(WAVE)}, {UCH}")
    k(f"v_add_u32 {v(t0)}, s4, {v(t0)}")
    for cp in range(2):
        k(f"ds_write_b128 {v(t0)}, {v(yv, 4)} offset:{UT + cp * UCP + 4096}")
    k(f"v_add_u32 {v(kc)}, s5, {v(L16)}")
    k(f"v_and_b32 {v(t0)}, 1, {v(N_)}")
    k(f"v_lshrrev_b32 {v(t1)}, 1, {v(N_)}")
    k(f"v_mul_u32_u24 {v(ka)}, {KCP}, {v(t0)}")
    k(f"v_lshl_add_u32 {v(ka)}, {v(t1)}, 3, {v(ka)}")
    k(f"v_lshl_add_u32 {v(ka)}, {v(Q_)}, 4, {v(ka)}")
    k(f"v_add_u32 {v(ka)}, s5, {v(ka)}")
    k(f"v_mul_u32_u24 {v(ua)}, {UCP}, {v(t0)}")
    k(f"v_lshlrev_b32 {v(t1)}, 6, {v(t1)}")
    k(f"v_sub_u32 {v(ua)}, {v(ua)}, {v(t1)}")
    k(f"v_lshl_add_u32 {v(ua)}, {v(Q_)}, 4, {v(ua)}")
    k(f"s_add_u32 s4, s4, {UT + 16 + 448}")
    k(f"v_add_u32 {v(ua)}, s4, {v(ua)}")
    k(f"v_lshl_add_u32 {v(yw)}, {v(t0)}, 2, {v(t1)}")
    k(f"v_lshl_add_u32 {v(yw)}, {v(Q_)}, 4, {v(yw)}")
    k(f"s_mul_i32 s4, {s(WAVE)}, {YCH}")
    k(f"s_add_u32 s4, s4, {YT}")
    k(f"v_add_u32 {v(yw)}, s4, {v(yw)}")
    k(f"v_lshlrev_b32 {v(t0)}, 2, v0")
    k(f"v_sub_u32 {v(uw)}, {UT + 16 + 2 * (2044 - 1536)}, {v(t0)}")
    k(f"v_add_u32 {v(yr)}, {YT}, {v(t0)}")
    k(f"s_lshl_b32 s4, {s(sg)}, 14")
    k(f"s_add_u32 s4, s4, {XB + 4096}")
    k(f"v_lshl_add_u32 {v(xo)}, v0, 4, s4")
    k(f"v_lshrrev_b32 {v(t0)}, 5, v0")
    k(f"v_mul_u32_u24 {v(x1o)}, 81920, {v(t0)}")
    k(f"v_and_b32 {v(t0)}, 31, v0")
    k(f"v_lshl_add_u32 {v(x1o)}, {v(t0)}, 4, {v(x1o)}")
    k(f"s_lshl_b32 s4, {s(sg)}, 9")
    k(f"s_add_u32 s4, s4, {X1}")
    k(f"v_add_u32 {v(x1o)}, s4, {v(x1o)}")
    for ch in range(4):
        if ch & 1:
            k(f"s_and_b32 s{DP + ch}, s{SDv + (ch >> 1)}, 0xffff0000")
        else:
            k(f"s_lshl_b32 s{DP + ch}, s{SDv + (ch >> 1)}, 16")
        k(f"s_lshr_b32 s{DP + 4 + ch}, s{DP + ch}, 16")
    stamp(k, 3)
    kt.compute(k)
    k.barrier()
    stamp(k, 4)
    stoks = kt.store(k, sg)
    ic = kt.un
    k(f"v_min_u32 {v(ic)}, 7, {v(LANE)}")
    k(f"v_lshlrev_b32 {v(ic)}, 2, {v(ic)}")
    k(f"global_load_dword {v(ic + 1)}, {v(ic)}, {sp(DBG)} sc1")
    k(f"s_lshl_b32 s4, {s(sg)}, 2")
    k(f"s_add_u32 s4, s4, {s(WAVE)}")
    k(f"s_lshl_b32 s47, s4, 12")
    k(f"v_add_u32 {v(t0)}, s47, {v(L16)}")
    k(f"s_mul_i32 s5, {s(WAVE)}, {2 * KCP}")
    k(f"s_add_u32 m0, s5, {KT + KCP + 64}")
    ktok = [k(f"global_load_lds_dwordx4 {v(t0)}, {sp(SSM)} offset:{1024 * i} nt") for i in range(4)]
    st = Stream()
    st(f"s_cmp_ge_u32 s{sg}, 128")
    st("s_cbranch_scc1 Lc_j2")
    st("s_waitcnt vmcnt(14)")
    x16.stage(st)
    st("Lc_j2:")
    k.raw(st)
    k(f"v_cmp_eq_u32 vcc, 0, {v(ic + 1)}")
    k("s_cbranch_vccnz Lic_r")
    k("Lic_ok:")
    st = Stream()
    st("Lic_r:")
    init_check(st, "Lic_p", ic)
    st("s_branch Lic_ok")
    stubs.append(st)
    k.barrier()
    stamp(k, 5)
    k(f"s_lshl_b32 s4, {s(sg)}, 7")
    k(f"s_add_u32 s4, s4, {KF}")
    k(f"v_mov_b32 {v(t0)}, s4")
    k(f"v_mov_b32 {v(t1)}, 0")
    st = Stream()
    st(f"s_cmp_lg_u32 {s(WAVE)}, 0")
    st("s_cbranch_scc1 Lkf_skip")
    st(f"global_store_dword {v(t0)}, {v(t1)}, {sp(WS)} sc1")
    st("Lkf_skip:")
    k.raw(st)
    a_, b_ = Stream(), Stream()
    x16.emit(a_, sg)
    a_("s_branch Lc_j3")
    b_("Lc_m3:")
    md7.finish(b_, XSB, lambda st_: None, "c")
    k(f"s_cmp_ge_u32 s{sg}, 128")
    k("s_cbranch_scc1 Lc_m3")
    k.raw(a_)
    k.raw(b_)
    k("Lc_j3:")
    stamp(k, 6)
    st = Stream()
    st(f"s_cmp_ge_u32 s{sg}, 128")
    st("s_cbranch_scc0 Lc_j4")
    st("s_waitcnt vmcnt(0)")
    st("Lc_j4:")
    st("s_waitcnt vmcnt(5)")
    k.raw(st)
    k.forget()
    R.reset(base)
    acc = R(32, 4)
    af = R(64, 4)
    assert R.mark() <= m0_
    for i in range(4):
        k(f"ds_read_b128 {v(af + 8 * i + 2, 4)}, {v(kc)} offset:{KT + KCP + 64 + 1024 * i}")
        k(f"ds_read_b32 {v(af + 8 * i + 1)}, {v(kc)} offset:{KT + KCP + 60 + 1024 * i}")
    for i in range(4):
        for j in range(4):
            k(f"v_alignbit_b32 {v(af + 32 + 4 * i + j)}, {v(af + 8 * i + 2 + j)}, {v(af + 8 * i + 1 + j)}, 16")
        k(f"ds_write_b128 {v(kc)}, {v(af + 32 + 4 * i, 4)} offset:{KT + 64 + 1024 * i}")

    def kfrags(st, j0, j1):
        for j in range(j0, j1):
            for h in range(2):
                st(f"ds_read_b64 {a(4 * j + 2 * h, 2)}, {v(ka)} offset:{KT + 8 + 64 * j + 8 * h}")

    nk = cfg.get("kf1", 24)
    kfrags(k, 0, nk)
    k(f"s_and_b32 s4, s{sg}, -16")
    k("s_lshl_b32 s4, s4, 7")
    k(f"s_add_u32 s4, s4, {KF}")
    k(f"v_lshl_add_u32 {v(t1)}, {v(N_)}, 7, s4")
    stamp(k, 7)
    poll(k, "Lkfp", lambda st_: st_(f"global_load_dword {v(acc)}, {v(t1)}, {sp(WS)} sc1"), [acc], t0)
    stamp(k, 8)
    k(f"s_add_u32 s4, s47, {KVT}")
    k(f"v_add_u32 {v(t0)}, s4, {v(L16)}")
    k(f"s_mul_i32 s5, {s(WAVE)}, {UCH}")
    utok = {}
    for c in range(4):
        utok[c] = []
        for cp in range(2):
            k(f"s_add_u32 m0, s5, {UT + cp * (UCP + 4) + 12}")
            utok[c].append(k(f"global_load_lds_dwordx4 {v(t0)}, {sp(WS)} offset:{1024 * (3 - c)} {'sc1' if cp == 0 else cfg.get('u2', 'sc1')}"))
    k.barrier()
    st = Stream()
    st(f"s_cmp_ge_u32 s{sg}, 128")
    st("s_cbranch_scc1 Lc_j5")
    x16.publish(st, sg)
    st("Lc_j5:")
    k.raw(st)
    kfrags(k, nk, 64)
    yv = R(4, 2)
    kv = R(8, 2)
    hp = R(8, 2)
    un = R(20, 2)
    Bc = R(4, 2)
    md = R(3, 2)
    xr = [R(4, 2) for _ in range(4)]
    sr = [R(4, 2) for _ in range(4)]
    ut = R(20, 2)
    mxr = R()
    w_setup(k)

    def areads(st, c, wl):
        w = 2 * c + wl
        if wl == 0:
            st.wait(*utok[c])
        for r in range(8):
            st(f"ds_read_b128 {v(af + 32 * wl + 4 * r, 4)}, {v(ua)} offset:{2 * (1792 - 256 * w + 32 * r)}")

    started = set()

    def M(c):
        st = Stream()

        def mm(wl, r, t):
            i = 2 * c + wl + t
            cin = v(acc + 4 * i, 4) if i in started else "0"
            started.add(i)
            st(f"v_mfma_f32_16x16x32_bf16 {v(acc + 4 * i, 4)}, {a(4 * (r + 8 * t), 4)}, {v(af + 32 * wl + 4 * r, 4)}, {cin}")

        for r in range(8):
            mm(0, r, 0)
            mm(0, r, 1)
        for r in range(8):
            mm(1, r, 0)
        for r in range(8):
            for t in range(2, 8 - 2 * c):
                mm(0, r, t)
        for r in range(8):
            for t in range(1, 7 - 2 * c):
                mm(1, r, t)
        return st

    def ywrite(st, c):
        if c == 0:
            st.wait(*utok[3])
        for wl in range(2):
            i = 2 * c + wl
            st(f"v_cvt_pk_bf16_f32 {v(yv + 2 * wl)}, {v(acc + 4 * i)}, {v(acc + 4 * i + 1)}")
            st(f"v_cvt_pk_bf16_f32 {v(yv + 2 * wl + 1)}, {v(acc + 4 * i + 2)}, {v(acc + 4 * i + 3)}")
            st(f"ds_write2_b32 {v(yw)}, {v(yv + 2 * wl)}, {v(yv + 2 * wl + 1)} offset0:{128 * wl} offset1:{128 * wl + 2}")
        if c < 3:
            st(f"v_add_u32 {v(yw)}, {4 * YCH}, {v(yw)}")
        st.barrier()

    def EP(st, c, packed):
        yd, pkd = hp, hp + 4
        for ch in range(4):
            st(f"ds_read_b32 {v(yd + ch)}, {v(yr)} offset:{4 * YCH * c + YCH * ch}")
        for ch in range(4):
            st(f"ds_read_b32 {v(pkd + ch)}, {v(uw)} offset:{ch * UCH + 1024 * (3 - c)}")
        X, Hh, Y = un, un + 8, kv
        for i in range(4):
            unpack(st, X + 2 * i, X + 2 * i + 1, xr[c] + i)
        for i in range(4):
            r = i >> 1
            vop(st, "fma", Hh + 2 * i, [("p", X + 2 * i), ("b", sr[c] + 2 * r), ("b", sr[c] + 2 * r + 1)], packed)
        for i in range(4):
            p = i & 1
            vop(st, "fma", Hh + 2 * i, [("p", Hh + 2 * i), ("sp", AS + 2 * p), ("p", Bc + 2 * p)], packed)
        for ch in range(4):
            unpack(st, Y + ch, Y + 4 + ch, yd + ch)
        if packed:
            for ch in range(4):
                st(f"v_dot2_f32_bf16 {v(Y + ch)}, {v(pkd + ch)}, s{DP + ch}, {v(Y + ch)}")
            for ch in range(4):
                st(f"v_dot2_f32_bf16 {v(Y + 4 + ch)}, {v(pkd + ch)}, s{DP + 4 + ch}, {v(Y + 4 + ch)}")
        else:
            T = un + 16
            for r in range(2):
                for ch in range(4):
                    st(f"v_and_b32 {v(T + ch)}, 0xffff0000, {v(pkd + ch)}" if r == 0 else f"v_lshlrev_b32 {v(T + ch)}, 16, {v(pkd + ch)}")
                for ch in range(4):
                    st(f"v_fmac_f32 {v(Y + 4 * r + ch)}, s{DP + ch}, {v(T + ch)}")
        for i in range(4):
            vop(st, "fma", X + 2 * i, [("p", Hh + 2 * i), ("p", Y + 2 * i), ("p", X + 2 * i)], packed)
        for i in range(4):
            st(f"v_cvt_pk_bf16_f32 {v(xr[c] + i)}, {v(X + 2 * i)}, {v(X + 2 * i + 1)}")
        for i in range(4):
            st(f"v_min_u32 {v(xr[c] + i)}, -2, {v(xr[c] + i)}")
        st(f"global_store_dwordx4 {v(x1o)}, {v(xr[c], 4)}, {sp(WS)} sc1")
        if c < 3:
            st(f"v_add_u32 {v(x1o)}, {8 * 81920}, {v(x1o)}")

    def aux(st):
        st(f"v_lshlrev_b32 {v(t0)}, 4, v0")
        st(f"v_add_u32 {v(t0)}, {ST1 + 4096}, {v(t0)}")
        for c in range(4):
            if c == 2:
                st(f"v_add_u32 {v(t0)}, 8192, {v(t0)}")
            st(f"global_load_dwordx4 {v(sr[c], 4)}, {v(t0)}, {sp(WS)} offset:{4096 * (c & 1) - 4096} sc1")
        st(f"v_min_u32 {v(t0)}, 11, {v(LANE)}")
        st(f"v_lshrrev_b32 {v(t1)}, 2, {v(t0)}")
        st(f"v_mul_u32_u24 {v(t1)}, {2560 - 16}, {v(t1)}")
        st(f"v_lshl_add_u32 {v(t0)}, {v(t0)}, 2, {v(t1)}")
        st(f"s_lshl_b32 s4, {s(sg)}, 4")
        st(f"s_add_u32 s4, s4, {MODP}")
        st(f"v_add_u32 {v(t0)}, s4, {v(t0)}")
        for part in range(3):
            st(f"global_load_dword {v(md + part)}, {v(t0)}, {sp(WS)} sc1")
            if part < 2:
                st(f"v_add_u32 {v(t0)}, {MODS}, {v(t0)}")

    auxregs = [sr[c] + j for c in range(4) for j in (1, 3)] + [md, md + 1, md + 2]

    def aux2(st):
        maxchain(st, mxr, auxregs)
        check(st, stubs, "Lax", aux, auxregs, mxr)
        for c in range(4):
            st(f"global_load_dwordx4 {v(xr[c], 4)}, {v(xo)}, {sp(WS)} offset:{4096 * (c & 1) - 4096} sc1")
            if c == 1:
                st(f"v_add_u32 {v(xo)}, 8192, {v(xo)}")
        st(f"v_add_f32 {v(md)}, {v(md)}, {v(md + 1)}")
        st(f"v_add_f32 {v(md)}, {v(md)}, {v(md + 2)}")
        round_bf16(st, md)
        st(f"v_mov_b32 {v(t1)}, 1.0")
        st(f"v_add_f32_dpp {v(md)}, {v(md)}, {v(t1)} quad_perm:[0,1,2,3] row_mask:0xf bank_mask:0x2")
        round_bf16(st, md)
        st(f"v_mul_f32_dpp {v(md + 1)}, {v(md)}, {v(md)} row_shl:8 row_mask:0xf bank_mask:0x1")
        st(f"v_mul_f32_dpp {v(md + 1)}, {v(md)}, {v(md)} row_shl:4 row_mask:0xf bank_mask:0x2")
        for ch in range(8):
            st(f"v_readlane_b32 s{AS + (ch + 4) % 8}, {v(md + 1)}, {ch}")
        for ch in range(4):
            st(f"v_mov_b32 {v(Bc + ch)}, s{AS + 4 + ch}")

    def uchk(st):
        maxchain(st, mxr, uregs(ut))
        check(st, stubs, "Lcu", u_loads(t0, ut), uregs(ut), mxr)
        w_loads(st, 0, 12, 20)

    stamp(k, 9)
    areads(k, 0, 0)
    a0 = cfg.get("aux0", 36)
    k.extend(weave(M(0), [(stream(areads, 0, 1), 0, 7), (stream(ywrite, 0), 28, 35), (stream(aux), a0, a0 + 14),
                          (stream(aux2), a0 + 50, 119), (stream(areads, 1, 0), 108, 115)]))
    stamp(k, 10)
    k.extend(weave(M(1), [(stream(areads, 1, 1), 0, 7), (stream(u_loads(t0, ut)), 0, 20), (stream(ywrite, 1), 28, 35),
                          (stream(EP, 0, False), 22, 60), (stream(uchk), 56, 87), (stream(areads, 2, 0), 76, 83)]))
    stamp(k, 11)
    k.extend(weave(M(2), [(stream(areads, 2, 1), 0, 7), (stream(EP, 1, False), 0, 44), (stream(ywrite, 2), 28, 35),
                          (stream(w_loads, 0, 8, 12), 20, 55), (stream(areads, 3, 0), 44, 51)]))
    stamp(k, 12)
    tl = Stream()
    areads(tl, 3, 1)
    EP(tl, 2, True)
    tl.extend(M(3))
    ywrite(tl, 3)
    EP(tl, 3, True)
    k.extend(sprinkle(tl, stream(w_loads, 0, cfg.get("wlate", 4), 8), 0.0, 0.6))
    u_sum(k, ut)


def wsp_touch(k, t):
    k("s_lshr_b32 s5, s2, 3")
    k("s_sub_u32 s5, s5, 20")
    k("s_lshl_b32 s5, s5, 2")
    k(f"s_add_u32 s5, s5, {s(WAVE)}")
    k(f"v_lshlrev_b32 {v(t)}, 7, {v(LANE)}")
    k("Lwt:")
    k("s_lshr_b32 s6, s5, 6")
    k("s_lshl_b32 s6, s6, 3")
    k("s_and_b32 s7, s2, 6")
    k("s_add_u32 s6, s6, s7")
    k("s_lshl_b32 s6, s6, 18")
    k("s_and_b32 s4, s5, 63")
    k("s_lshl_b32 s4, s4, 13")
    k("s_add_u32 s4, s4, s6")
    k(f"v_add_u32 {v(t + 1)}, s4, {v(t)}")
    k(f"global_load_dword {v(t + 2)}, {v(t + 1)}, {sp(WSP)}")
    k("s_add_u32 s5, s5, 48")
    k("s_cmp_lt_u32 s5, 256")
    k("s_cbranch_scc1 Lwt")


def spare_path(cfg):
    out = []
    k = Stream()
    k("Lspare:")
    k(f"s_sub_u32 s{SUN}, s2, 160")
    k(f"s_mov_b32 s48, s{SUN}")
    k("s_movk_i32 s49, 255")
    k("s_movk_i32 s50, 255")
    k(f"s_cmp_lt_u32 s{SUN}, 54")
    k("s_cbranch_scc1 Lsp_loop")
    k(f"s_add_u32 s49, s{SUN}, 34")
    k(f"s_add_u32 s50, s{SUN}, 108")
    k(f"s_cmp_lt_u32 s{SUN}, 88")
    k("s_cbranch_scc1 Lsp_loop")
    k(f"s_sub_u32 s48, s{SUN}, 88")
    init_fill(k, 48)
    k("s_mov_b32 s48, s49")
    k("s_movk_i32 s49, 255")
    out.append(k)
    k = Stream()
    k("Lsp_loop:")
    R = Alloc(VFREE, 250)
    md7 = Mod(R, 44)
    ic = R(2)
    md7.issue(k, 48)
    md7.finish(k, XSB, lambda st: init_check(st, "Lsic", ic), "s")
    k("s_barrier")
    k("s_mov_b32 s48, s49")
    k("s_mov_b32 s49, s50")
    k("s_movk_i32 s50, 255")
    k("s_cmp_lt_u32 s48, 180")
    k("s_cbranch_scc1 Lsp_loop")
    stamp(k, 2)
    k(f"s_cmp_lt_u32 s{SUN}, 54")
    k("s_cbranch_scc0 Lsp_b")
    out.append(k)
    k = Stream()
    wp_unit2(k, SUN)
    k("s_branch Lsp_c")
    out.append(k)
    k = Stream()
    k("Lsp_b:")
    k(f"s_cmp_lt_u32 s{SUN}, 94")
    k("s_cbranch_scc1 Lsp_b2")
    k(f"s_sub_u32 s48, s{SUN}, 94")
    zero_unit(k, 48)
    k("s_branch Lsp_c")
    out.append(k)
    k = Stream()
    k("Lsp_b2:")
    k(f"s_cmp_lt_u32 s{SUN}, 67")
    k("s_cbranch_scc1 Lsp_c")
    k(f"s_sub_u32 s48, s{SUN}, 67")
    wout_unit(k, 48)
    out.append(k)
    k = Stream()
    k("Lsp_c:")
    stamp(k, 6)
    fill_unit(k, ST3, 19 * 4096, SUN)
    k(f"s_lshl_b32 s4, s{SUN}, 2")
    k(f"s_add_u32 s4, s4, {SDF}")
    k("v_mov_b32 v8, s4")
    k("v_mov_b32 v9, 0")
    k.drain()
    k("s_barrier")
    st = Stream()
    st(f"s_cmp_lg_u32 {s(WAVE)}, 0")
    st("s_cbranch_scc1 Lsd_skip")
    st(f"global_store_dword v8, v9, {sp(WS)} sc1")
    st("Lsd_skip:")
    k.raw(st)
    stamp(k, 7)
    common_regs(k)
    w_setup(k)
    t, d, ut = VFREE, VFREE + 2, VFREE + 12
    poll(k, "Lsu", u_loads(t, ut), uregs(ut), t + 1)
    stamp(k, 8)
    k(f"s_sub_u32 s5, s{SRI}, 5")
    k(f"v_mad_u32_u24 {v(t)}, {v(LANE)}, 3, s5")
    k(f"v_min_u32 {v(t)}, 159, {v(t)}")
    k(f"v_lshlrev_b32 {v(t)}, 7, {v(t)}")
    for part in range(2):
        for sl in range(2):
            k(f"s_mul_i32 s4, s{96 + sl}, 20480")
            k(f"s_add_u32 s4, s4, {WP + part * 56 * 20480}")
            k(f"v_add_u32 {v(t + 1)}, s4, {v(t)}")
            k(f"global_load_dword {v(d + 2 * part + sl)}, {v(t + 1)}, {sp(WS)} sc1")
    u_sum(k, ut)
    w_loads(k, 0, cfg.get("wlate", 4), 20)
    stamp(k, 9)
    if cfg.get("pfw", 1):
        wsp_touch(k, d + 4)
    k(f"s_lshl_b32 s4, s{SRB}, 9")
    k(f"s_add_u32 s4, s4, {ST1}")
    k(f"v_lshl_add_u32 {v(t)}, {v(LANE)}, 3, s4")
    poll(k, "Lss", lambda st_: st_(f"global_load_dwordx2 {v(d, 2)}, {v(t)}, {sp(WS)} sc1"), [d, d + 1], t + 1)
    stamp(k, 10)
    k("s_branch Ljoin")
    out.append(k)
    return out
```

```python
import math
from asmlib import Stream, Alloc, v, a, s, weave, sprinkle
from blocks import *

N_, Q_, L16, TROW, WO0, WO1 = 2, 3, 4, 5, 6, 7
UZ2, UZ1 = 8, 12
VFREE = 28
SRB, SCB, SUN, SRI = 40, 41, 42, 43
SPIN = 0x40000

KT, KCP = 0, 4224
UT, UCP = 8 * KCP, 4640
UCH = 2 * UCP
YT, YCH = 83200, 1056
AI, AFR = 0, 1040
STG = 80 * AFR
SX = STG + 65536
TB = SX + 2048
RED = 135 * 1024
MAIN_LDS = RED + 2 * 12288

C0 = -2.0 * math.sqrt(2.0 / math.pi) * math.log2(math.e)
C1 = C0 * 0.044715


def common_regs(k):
    k(f"v_and_b32 {v(N_)}, 15, {v(LANE)}")
    k(f"v_lshrrev_b32 {v(Q_)}, 4, {v(LANE)}")
    k(f"v_lshlrev_b32 {v(L16)}, 4, {v(LANE)}")
    k(f"v_lshrrev_b32 {v(WO0)}, 2, {v(N_)}")
    k(f"v_and_b32 {v(TROW)}, 3, {v(N_)}")
    k(f"v_lshl_add_u32 {v(TROW)}, {v(WO0)}, 3, {v(TROW)}")


def role_ids(k):
    k("s_mov_b32 s100, 0")
    k("s_and_b32 s4, s2, 7")
    k("s_lshr_b32 s5, s2, 3")
    k(f"s_lshr_b32 s{SRI}, s5, 2")
    k(f"s_lshr_b32 s6, s{SRI}, 1")
    k("s_lshl_b32 s6, s6, 3")
    k("s_and_b32 s7, s4, 6")
    k("s_add_u32 s6, s6, s7")
    k(f"s_and_b32 s7, s{SRI}, 1")
    k(f"s_add_u32 s{SRB}, s6, s7")
    k("s_and_b32 s6, s4, 1")
    k("s_lshl_b32 s6, s6, 2")
    k("s_and_b32 s7, s5, 3")
    k(f"s_add_u32 s{SCB}, s6, s7")


def maxchain(k, dst, regs, first=True):
    regs = list(regs)
    if first:
        if len(regs) % 2:
            k(f"v_max3_u32 {v(dst)}, {v(regs[0])}, {v(regs[1])}, {v(regs[2])}" if len(regs) > 1 else f"v_mov_b32 {v(dst)}, {v(regs[0])}")
            regs = regs[3:]
        else:
            k(f"v_max_u32 {v(dst)}, {v(regs[0])}, {v(regs[1])}")
            regs = regs[2:]
    for i in range(0, len(regs), 2):
        k(f"v_max3_u32 {v(dst)}, {v(regs[i])}, {v(regs[i + 1])}, {v(dst)}")


def poll(k, name, loads, regs, tmp):
    k(f"{name}:")
    loads(k)
    k.drain(lgkm=False)
    maxchain(k, tmp, regs)
    k(f"v_cmp_eq_u32 vcc, -1, {v(tmp)}")
    k("s_add_u32 s100, s100, 1")
    k(f"s_cmp_ge_u32 s100, {SPIN}")
    k(f"s_cbranch_scc1 {name}_x")
    k(f"s_cbranch_vccnz {name}")
    k(f"{name}_x:")


def check(k, stubs, name, loads, regs, tmp, cmp=True):
    if cmp:
        k(f"v_cmp_eq_u32 vcc, -1, {v(tmp)}")
    k(f"s_cbranch_vccnz {name}_r")
    k(f"{name}_ok:")
    st = Stream()
    st(f"{name}_r:")
    st("s_nop 7")
    poll(st, name + "_p", loads, regs, tmp)
    st("s_nop 1")
    st(f"s_branch {name}_ok")
    stubs.append(st)


WA = 8


def w_setup(k):
    k(f"s_and_b32 s4, s{SCB}, 1")
    k(f"s_lshl_b32 s5, {s(WAVE)}, 1")
    k("s_add_u32 s5, s5, s4")
    k("s_cmp_eq_u32 s5, 7")
    k("s_cselect_b32 s5, 0, s5")
    k(f"s_mul_i32 s96, s{SCB}, 7")
    k("s_add_u32 s96, s96, s5")
    k("s_add_u32 s97, s96, 1")
    k(f"s_cmp_eq_u32 {s(WAVE)}, 3")
    k("s_cselect_b32 s97, 55, s97")
    k("s_cselect_b32 s5, 0, -1")
    k(f"v_and_b32 {v(WO1)}, s5, {v(L16)}")
    for sl in range(2):
        k(f"s_mul_i32 s4, s{96 + sl}, 20480")
        for i in range(3):
            k(f"s_add_u32 s5, s4, {WP + 4096 + 8192 * i}")
            k(f"s_add_u32 s{WA + 6 * sl + 2 * i}, s{WS}, s5")
            k(f"s_addc_u32 s{WA + 6 * sl + 2 * i + 1}, s{WS + 1}, 0")


def w_next_part(k):
    for i in range(6):
        k(f"s_add_u32 s{WA + 2 * i}, s{WA + 2 * i}, {56 * 20480}")
        k(f"s_addc_u32 s{WA + 2 * i + 1}, s{WA + 2 * i + 1}, 0")


def u_loads(tmp, ut):
    def f(k):
        for part, (z2, z1) in enumerate(((UZ2, UZ1), (ut, ut + 4))):
            for sl in range(2):
                k(f"s_lshl_b32 s4, s{96 + sl}, 7")
                k(f"s_add_u32 s4, s4, {U + part * US}")
                k(f"v_lshl_add_u32 {v(tmp)}, {v(N_)}, 2, s4")
                k(f"global_load_dword {v(z2 + 2 * sl)}, {v(tmp)}, {sp(WS)} sc1")
                k(f"global_load_dword {v(z2 + 2 * sl + 1)}, {v(tmp)}, {sp(WS)} offset:64 sc1")
                k(f"s_add_u32 s4, s4, {56 * 128}")
                k(f"v_lshl_add_u32 {v(tmp)}, {v(Q_)}, 4, s4")
                k(f"global_load_dwordx4 {v(z1 + 8 * sl, 4)}, {v(tmp)}, {sp(WS)} sc1")
                k(f"global_load_dwordx4 {v(z1 + 8 * sl + 4, 4)}, {v(tmp)}, {sp(WS)} offset:64 sc1")
    return f


def uregs(ut):
    return list(range(UZ2, UZ2 + 20)) + list(range(ut, ut + 20))


def u_sum(k, ut):
    for i in range(20):
        k(f"v_add_f32 {v(UZ2 + i)}, {v(UZ2 + i)}, {v(ut + i)}")


def wreg(part, ks, sl):
    return (96 if part == 0 else 0) + 8 * ks + 4 * sl


def w_loads(k, part, k0, k1):
    for ks in range(k0, k1):
        for sl in range(2):
            b = WA + 6 * sl + 2 * (ks // 8)
            k(f"global_load_dwordx4 {a(wreg(part, ks, sl), 4)}, {v(WO1 if sl else L16)}, s[{b}:{b + 1}] offset:{1024 * (ks % 8) - 4096} sc1")


def stream(fn, *args):
    st = Stream()
    fn(st, *args)
    return st


def gelu(k, regs, tmp, gc):
    n = len(regs)
    for i, r in enumerate(regs):
        pk(k, "mul", tmp + 2 * i, [("p", r), ("p", r)])
    for i, r in enumerate(regs):
        pk(k, "fma", tmp + 2 * i, [("p", tmp + 2 * i), ("sb", gc + 1), ("sb", gc)])
    for i, r in enumerate(regs):
        pk(k, "mul", tmp + 2 * i, [("p", tmp + 2 * i), ("p", r)])
    for i in range(2 * n):
        k(f"v_exp_f32 {v(tmp + i)}, {v(tmp + i)}")
    for i in range(n):
        pk(k, "add", tmp + 2 * i, [("p", tmp + 2 * i), ("c", "1.0")])
    for i in range(2 * n):
        k(f"v_rcp_f32 {v(tmp + i)}, {v(tmp + i)}")
    for i, r in enumerate(regs):
        pk(k, "mul", r, [("p", r), ("p", tmp + 2 * i)])


def gemm_phases(k, stubs, cfg):
    JB, ZB, WB, GC, MK, SW9, STGW = 44, 52, 68, 84, 86, 88, 89
    P_ = Alloc(VFREE, 254)
    t0, t1, l8 = P_(), P_(), P_()
    bs = P_(4, 4)
    xres = P_(10, 2)
    z1r = P_(14, 4)
    base = P_.mark()
    R = Alloc(base, 254)
    kk, k = k, Stream()
    k(f"s_mul_i32 s4, s{SRI}, 43")
    k(f"s_lshr_b32 s4, s4, 7")
    k(f"s_mul_i32 s4, s4, 3")
    k(f"s_sub_u32 s4, s{SRI}, s4")
    if cfg.get("p1"):
        k("s_mov_b32 s4, 0")
    k(f"s_lshl_b32 s5, {s(WAVE)}, 1")
    if cfg.get("rot", 0):
        k(f"s_add_u32 s5, s5, s{SRI}")
    for qi in range(4):
        if qi == 3:
            k("s_mov_b32 s4, 3")
        elif qi:
            k("s_add_u32 s4, s4, 1")
            k("s_cmp_eq_u32 s4, 3")
            k("s_cselect_b32 s4, 0, s4")
        for e in range(2):
            k(f"s_add_u32 s6, s5, {e}")
            k("s_and_b32 s6, s6, 7")
            k("s_lshl_b32 s7, s4, 3")
            k(f"s_add_u32 s{JB + 2 * qi + e}, s6, s7")
    k(f"s_mul_i32 s4, s{SCB}, {64 * 7168}")
    k(f"s_add_u32 s4, s4, {Z2}")
    k(f"s_lshl_b32 s5, s{SRB}, 18")
    for i in range(8):
        k(f"s_mul_i32 s6, s{JB + i}, 14336")
        k("s_add_u32 s6, s6, s4")
        k(f"s_add_u32 s{ZB + 2 * i}, s{WS}, s6")
        k(f"s_addc_u32 s{ZB + 2 * i + 1}, s{WS + 1}, 0")
        k(f"s_lshl_b32 s6, s{JB + i}, 7")
        k("s_add_u32 s6, s6, s5")
        k(f"s_add_u32 s{WB + 2 * i}, s{WSP}, s6")
        k(f"s_addc_u32 s{WB + 2 * i + 1}, s{WSP + 1}, 0")
    k(f"s_mov_b32 s{GC}, {hex(fbits(C0))}")
    k(f"s_mov_b32 s{GC + 1}, {hex(fbits(C1))}")
    k(f"s_cmp_eq_u32 {s(WAVE)}, 3")
    k(f"s_cselect_b64 s[{MK}:{MK + 1}], 0, -1")
    k(f"s_lshl_b32 s{SW9}, {s(WAVE)}, 9")
    k(f"s_lshl_b32 s{STGW}, {s(WAVE)}, 14")
    k(f"s_add_u32 s{STGW}, s{STGW}, {STG}")
    k(f"v_lshlrev_b32 {v(l8)}, 3, {v(LANE)}")
    st4 = R(4, 2)
    xo0, xo, aw0, aw, srow, mx = (R() for _ in range(6))
    k(f"v_and_b32 {v(t0)}, 7, {v(LANE)}")
    k(f"v_lshl_add_u32 {v(t0)}, {v(Q_)}, 3, {v(t0)}")
    k(f"v_bfe_u32 {v(t1)}, {v(LANE)}, 3, 1")
    k(f"v_lshlrev_b32 {v(xo0)}, 9, {v(t1)}")
    k(f"v_lshl_add_u32 {v(xo0)}, {v(t0)}, 4, {v(xo0)}")
    k(f"s_mul_i32 s4, {s(WAVE)}, 20480")
    k(f"s_mul_i32 s5, s{SRB}, 81920")
    k("s_add_u32 s4, s4, s5")
    k(f"s_add_u32 s4, s4, {X1}")
    k(f"v_add_u32 {v(xo0)}, s4, {v(xo0)}")
    k(f"v_lshl_add_u32 {v(srow)}, {v(t0)}, 1, {v(t1)}")
    k(f"v_lshrrev_b32 {v(t0)}, 5, {v(LANE)}")
    k(f"v_bfe_u32 {v(aw0)}, {v(LANE)}, 1, 1")
    k(f"v_lshl_add_u32 {v(t0)}, {v(t0)}, 1, {v(aw0)}")
    k(f"v_mul_u32_u24 {v(aw0)}, {AFR}, {v(t0)}")
    k(f"v_lshl_add_u32 {v(aw0)}, {v(t1)}, 3, {v(aw0)}")
    for bit, sh in ((2, 6), (4, 7), (0, 5)):
        k(f"v_bfe_u32 {v(t0)}, {v(LANE)}, {bit}, 1")
        k(f"v_lshl_add_u32 {v(aw0)}, {v(t0)}, {sh}, {v(aw0)}")
    k(f"s_mul_i32 s5, {s(WAVE)}, {20 * AFR}")
    k(f"v_add_u32 {v(aw0)}, s5, {v(aw0)}")
    pa = R()
    k(f"v_min_u32 {v(t0)}, 39, {v(LANE)}")
    k(f"v_lshl_add_u32 {v(pa)}, {v(t0)}, 9, s4")
    do = R(8)
    ra = R(8)
    k(f"v_lshrrev_b32 {v(t0)}, 3, {v(LANE)}")
    k(f"v_lshlrev_b32 {v(t0)}, 12, {v(t0)}")
    k(f"v_bfe_u32 {v(t1)}, {v(LANE)}, 4, 1")
    k(f"v_xor_b32 {v(t1)}, {v(t1)}, {v(LANE)}")
    k(f"v_and_b32 {v(t1)}, 7, {v(t1)}")
    for pi in range(4):
        k(f"v_xor_b32 {v(do + pi)}, {2 * pi}, {v(t1)}")
        k(f"v_lshl_add_u32 {v(do + pi)}, {v(do + pi)}, 4, {v(t0)}")
        if pi:
            k(f"v_add_u32 {v(do + pi)}, {pi * 8 * 4096}, {v(do + pi)}")
        k(f"v_add_u32 {v(do + 4 + pi)}, {32 * 4096}, {v(do + pi)}")
    k(f"v_lshrrev_b32 {v(t1)}, 1, {v(N_)}")
    k(f"v_xor_b32 {v(t1)}, {v(t1)}, {v(Q_)}")
    k(f"v_lshlrev_b32 {v(t1)}, 4, {v(t1)}")
    k(f"v_lshl_add_u32 {v(t1)}, {v(TROW)}, 7, {v(t1)}")
    for tau in range(4):
        k(f"s_xor_b32 s4, {s(WAVE)}, {tau}")
        k("s_lshr_b32 s5, s4, 1")
        k("s_lshl_b32 s5, s5, 12")
        k("s_and_b32 s4, s4, 1")
        k("s_lshl_b32 s4, s4, 9")
        k("s_add_u32 s4, s4, s5")
        k(f"s_add_u32 s4, s4, s{STGW}")
        k(f"v_add_u32 {v(ra + 2 * tau)}, s4, {v(t1)}")
        k(f"v_xor_b32 {v(ra + 2 * tau + 1)}, 64, {v(ra + 2 * tau)}")
    k(f"s_lshr_b32 s5, {s(WAVE)}, 1")
    k("s_lshl_b32 s5, s5, 5")
    k(f"s_and_b32 s4, {s(WAVE)}, 1")
    k("s_lshl_b32 s4, s4, 2")
    k("s_add_u32 s4, s4, s5")
    k(f"s_lshl_b32 s5, s{SRB}, 6")
    k("s_add_u32 s90, s4, s5")
    k(f"v_add_lshl_u32 {v(t0)}, {v(TROW)}, s90, 1")
    k(f"global_load_ushort {v(bs)}, {v(t0)}, {sp(BSP)}")
    xr = R(80, 4)
    pr = R(8, 2)
    kk.extend(sprinkle(k, stream(w_loads, 0, 0, cfg.get("wlate", 4)), 0.0, 0.5))
    k = kk
    w_next_part(k)
    sdr = pr

    def sd_loads(st):
        st(f"v_min_u32 {v(t1)}, {47 * 8}, {v(l8)}")
        st(f"v_add_u32 {v(t1)}, {SDF}, {v(t1)}")
        st(f"global_load_dwordx2 {v(sdr, 2)}, {v(t1)}, {sp(WS)} sc1")

    sd_loads(k)
    stamp(k, 14)
    k(f"s_cmp_lt_u32 s{SRI}, {cfg.get('xskip', 5)}")
    k("s_cbranch_scc1 Lx_first")
    k("Lx_redo:")
    pst = Stream()
    poll(pst, "Lxp", lambda st: st(f"global_load_dword {v(mx)}, {v(pa)}, {sp(WS)} offset:508 sc1"), [mx], t0)
    k.raw(pst)
    k("Lx_first:")
    stamp(k, 15)
    k(f"s_mov_b32 s7, {hex(ONES)}")
    k(f"v_add_u32 {v(xo)}, 4096, {v(xo0)}")
    AHEAD = cfg.get("xahead", 10)

    def xload(i):
        k(f"global_load_dwordx4 {v(xr + 4 * i, 4)}, {v(xo)}, {sp(WS)} offset:{1024 * (i % 8) - 4096} sc1")
        if i % 8 == 7:
            k(f"v_add_u32 {v(xo)}, 8192, {v(xo)}")

    for i in range(AHEAD):
        xload(i)
    for j in range(4):
        k(f"v_mov_b32 {v(st4 + j)}, 0")
    k(f"v_mov_b32 {v(mx)}, 0")
    for i in range(20):
        if i + AHEAD < 20:
            xload(i + AHEAD)
        if i % 4 == 0:
            k(f"v_add_u32 {v(aw)}, {(i // 4) * 4 * AFR}, {v(aw0)}")
        k(f"ds_write2_b64 {v(aw)}, {v(xr + 4 * i, 2)}, {v(xr + 4 * i + 2, 2)} offset0:{32 * (i % 4)} offset1:{32 * (i % 4) + 2}")
        if i & 1:
            maxchain(k, mx, [xr + 4 * i - 1, xr + 4 * i + 3], first=False)
        for j in range(2):
            for r in range(2):
                src = xr + 4 * i + 2 * r + j
                k(f"v_dot2_f32_bf16 {v(st4 + 2 * r)}, {v(src)}, s7, {v(st4 + 2 * r)}")
                k(f"v_dot2_f32_bf16 {v(st4 + 2 * r + 1)}, {v(src)}, {v(src)}, {v(st4 + 2 * r + 1)}")
    k(f"v_cmp_eq_u32 vcc, -1, {v(mx)}")
    k(f"s_cmp_ge_u32 s100, {SPIN}")
    k("s_cbranch_scc1 Lx_go")
    k("s_cbranch_vccnz Lx_redo")
    k("Lx_go:")
    maxchain(k, t0, [sdr, sdr + 1])
    check(k, stubs, "Lsd", sd_loads, [sdr, sdr + 1], t0)
    for j in range(2):
        k(f"v_add_f32_dpp {v(pr + j)}, {v(st4 + j)}, {v(st4 + j)} row_ror:8 row_mask:0xf bank_mask:0x3")
        k(f"v_add_f32_dpp {v(pr + j)}, {v(st4 + 2 + j)}, {v(st4 + 2 + j)} row_ror:8 row_mask:0xf bank_mask:0xc")
    k(f"s_add_u32 s4, s{SW9}, {SX}")
    k(f"v_lshl_add_u32 {v(t0)}, {v(srow)}, 3, s4")
    k(f"ds_write_b64 {v(t0)}, {v(pr, 2)}")
    k.barrier()
    stamp(k, 16)
    F = Alloc(xr, xr + 80)
    rs = F(32, 4)
    tmp = F(32, 2)
    rz1 = F(8, 2)
    tw, tq, tn, ar0, ar1, so = (F() for _ in range(6))
    acc2 = R(32, 4)
    acc1 = R(32, 4)
    afr = z1r
    NAF = 6
    assert afr + 4 * NAF <= pa + 1
    k(f"v_mov_b32 {v(ar0)}, {v(L16)}")
    k(f"v_add_u32 {v(ar1)}, {40 * AFR}, {v(L16)}")

    def read_rs(st):
        for tbl in range(2):
            for h in range(2):
                for o in range(2):
                    st(f"ds_read_b128 {v(rs + 16 * tbl + 8 * h + 4 * o, 4)}, {v(tq)} offset:{256 * tbl + 128 * h + 16 * o}")

    def aread(st, f):
        ks, mt = f >> 2, f & 3
        st(f"ds_read_b128 {v(afr + 4 * (f % NAF), 4)}, {v(ar0 + ks // 10)} offset:{AI + (4 * (ks % 10) + mt) * AFR}")

    def mainloop(acc, part):
        st = Stream()
        for f in range(NAF - 1):
            aread(st, f)
        for f in range(80):
            ks, mt = f >> 2, f & 3
            for sl in range(2):
                d = v(acc + 16 * sl + 4 * mt, 4)
                x, w = v(afr + 4 * (f % NAF), 4), a(wreg(part, ks, sl), 4)
                st(f"v_mfma_f32_16x16x32_bf16 {d}, {w if part else x}, {x if part else w}, {d if ks else 0}")
                if sl == 0 and f + NAF - 1 < 80:
                    aread(st, f + NAF - 1)
        return st

    sf = Stream()
    sf(f"v_add_u32 {v(t0)}, {SX}, {v(l8)}")
    for i in range(4):
        sf(f"ds_read_b64 {v(pr + 2 * i, 2)}, {v(t0)} offset:{512 * i}")
    sf(f"s_add_u32 s4, s{SW9}, {TB}")
    sf(f"v_lshl_add_u32 {v(tw)}, {v(LANE)}, 2, s4")
    sf(f"v_lshl_add_u32 {v(tq)}, {v(Q_)}, 5, s4")
    sf(f"v_lshl_add_u32 {v(tn)}, {v(TROW)}, 2, s4")
    vop(sf, "add", pr, [("p", pr), ("p", pr + 2)], False)
    vop(sf, "add", pr + 4, [("p", pr + 4), ("p", pr + 6)], False)
    vop(sf, "add", pr, [("p", pr), ("p", pr + 4)], False)
    row_stats(sf, pr, pr + 1, D, pr + 2)
    sf(f"ds_write2st64_b32 {v(tw)}, {v(pr)}, {v(pr + 1)} offset0:0 offset1:1")
    read_rs(sf)
    for mt in range(4):
        off = 128 * (mt >> 1) + 16 * (mt & 1)
        sf(f"ds_read_b32 {v(rz1 + 2 * mt)}, {v(tn)} offset:{off}")
        sf(f"ds_read_b32 {v(rz1 + 2 * mt + 1)}, {v(tn)} offset:{256 + off}")
    for sl in range(2):
        for i in range(16):
            sf(f"v_fma_f32 {v(tmp + 16 * sl + i)}, {v(rs + 16 + i)}, {v(UZ2 + 2 * sl)}, {v(UZ2 + 2 * sl + 1)}")
    sf(f"v_lshlrev_b32 {v(bs)}, 16, {v(bs)}")
    for j in range(1, 4):
        sf(f"v_mov_b32 {v(bs + j)}, {v(bs)}")
    nw1 = cfg.get("nw1", 14)
    k.extend(weave(mainloop(acc2, 0), [(sf, 4, 150), (stream(w_loads, 1, 0, nw1), 0, 159)]))
    stamp(k, 17)

    apos = lambda i: 32 * ((i + 5) % 8)
    tk, rd = {}, {}

    def dma(st, i):
        if i >= 2:
            st.wait(rd[i - 2])
        tk[i] = []
        for pi in range(8):
            st(f"s_add_u32 m0, s{STGW}, {(i & 1) * 8192 + 1024 * pi}")
            tk[i].append(st(f"global_load_lds_dwordx4 {v(do + pi)}, s[{WB + 2 * i}:{WB + 2 * i + 1}] {cfg.get('wspld', '')}"))

    def frag(st, i):
        st.wait(*tk[i])
        for ksl in range(2):
            for tau in range(4):
                rd[i] = st(f"ds_read_b128 {a(apos(i) + 16 * ksl + 4 * tau, 4)}, {v(ra + 2 * tau + ksl)} offset:{(i & 1) * 8192}")

    e2 = Stream()
    for i in range(16):
        pk(e2, "fma", acc2 + 2 * i, [("p", acc2 + 2 * i), ("p", rs + 2 * (i % 8)), ("p", tmp + 2 * i)])
    gelu(e2, [acc2 + 2 * i for i in range(16)], tmp, GC)
    for i in range(8):
        pk(e2, "add", tmp + 2 * i, [("p", acc2 + 2 * i), ("p", acc2 + 16 + 2 * i)])
        pk(e2, "mul", tmp + 16 + 2 * i, [("p", acc2 + 2 * i), ("p", acc2 + 2 * i)])
    for i in range(8):
        pk(e2, "fma", tmp + 16 + 2 * i, [("p", acc2 + 16 + 2 * i), ("p", acc2 + 16 + 2 * i), ("p", tmp + 16 + 2 * i)])
    for i in range(16):
        e2(f"v_add_f32_dpp {v(rs + i)}, {v(tmp + i)}, {v(tmp + i)} row_ror:8 row_mask:0xf bank_mask:0x3")
    for i in range(16):
        e2(f"v_add_f32_dpp {v(rs + i)}, {v(tmp + 16 + i)}, {v(tmp + 16 + i)} row_ror:8 row_mask:0xf bank_mask:0xc")
    for i in range(8):
        e2(f"v_add_f32_dpp {v(tmp + i)}, {v(rs + i)}, {v(rs + i)} row_half_mirror row_mask:0xf bank_mask:0x5")
    for i in range(8):
        e2(f"v_add_f32_dpp {v(tmp + i)}, {v(rs + 8 + i)}, {v(rs + 8 + i)} row_half_mirror row_mask:0xf bank_mask:0xa")
    for i in range(8):
        e2(f"v_add_f32_dpp {v(tmp + i)}, {v(tmp + i)}, {v(tmp + i)} quad_perm:[1,0,3,2] row_mask:0xf bank_mask:0xf")
    for i in range(8):
        e2(f"v_add_f32_dpp {v(tmp + i)}, {v(tmp + i)}, {v(tmp + i)} quad_perm:[2,3,0,1] row_mask:0xf bank_mask:0xf")
    e2(f"v_lshrrev_b32 {v(t0)}, 2, {v(N_)}")
    e2(f"v_lshlrev_b32 {v(t0)}, 7, {v(t0)}")
    e2(f"v_lshl_add_u32 {v(t0)}, {v(Q_)}, 5, {v(t0)}")
    e2(f"s_add_u32 s4, s{SW9}, {TB}")
    e2(f"v_add_u32 {v(t0)}, s4, {v(t0)}")
    e2(f"ds_write_b128 {v(t0)}, {v(tmp, 4)}")
    e2(f"ds_write_b128 {v(t0)}, {v(tmp + 4, 4)} offset:16")
    sd = Stream()
    w_loads(sd, 1, nw1, 20)
    dma(sd, 0)
    dma(sd, 1)
    k.extend(sprinkle(e2, sd, 0.0, cfg.get("e2end", 0.9)))
    k.barrier()
    k(f"v_lshlrev_b32 {v(t0)}, 2, {v(LANE)}")
    k(f"v_add_u32 {v(t0)}, {TB}, {v(t0)}")
    for i in range(4):
        k(f"ds_read2st64_b32 {v(pr + 2 * i, 2)}, {v(t0)} offset0:{2 * i} offset1:{2 * i + 1}")
    k(f"s_lshl_b32 s4, s{SRB}, 12")
    k(f"s_add_u32 s4, s4, {ST3}")
    k(f"v_add_u32 {v(so)}, s4, {v(l8)}")
    k(f"s_lshl_b32 s4, s{SCB}, 9")
    k(f"v_add_u32 {v(t0)}, s4, {v(so)}")
    k(f"s_add_u32 s4, s{SW9}, {SX}")
    k(f"v_lshl_add_u32 {v(tw)}, {v(LANE)}, 2, s4")
    k(f"v_lshl_add_u32 {v(tq)}, {v(Q_)}, 5, s4")
    pk(k, "add", pr, [("p", pr), ("p", pr + 2)])
    pk(k, "add", pr + 4, [("p", pr + 4), ("p", pr + 6)])
    pk(k, "add", pr, [("p", pr), ("p", pr + 4)])
    k(f"v_min_u32 {v(pr)}, -2, {v(pr)}")
    k(f"v_min_u32 {v(pr + 1)}, -2, {v(pr + 1)}")
    k(f"s_lshl_b32 s4, {s(WAVE)}, 4")
    k(f"s_lshl_b64 exec, 0xffff, s4")
    k(f"global_store_dwordx2 {v(t0)}, {v(pr, 2)}, {sp(WS)} sc1")
    k(f"s_mov_b64 exec, -1")
    stamp(k, 18)
    sides = []
    sched = cfg.get("wsp", [(0, 4), (10, 4), (40, 4), (62, 4), (84, 4), (106, 4), (134, 4)])
    for i in range(7):
        st = Stream()
        frag(st, i)
        if i + 2 < 8:
            dma(st, i + 2)
        nxt = sched[i + 1][0] - 1 if i < 6 else 150
        sides.append((st, sched[i][0], nxt))
    pl = tmp

    def st3_loads(st):
        for i in range(8):
            st(f"global_load_dwordx2 {v(pl + 2 * i, 2)}, {v(so)}, {sp(WS)} offset:{512 * i} sc1")

    s3 = Stream()
    st3_loads(s3)
    sides.append((s3, cfg.get("st3", 140), 150))
    rr = Stream()
    rr(f"s_mul_i32 s5, s{SCB}, 10")
    rr(f"s_mul_i32 s6, {s(WAVE)}, {AFR}")
    for j in range(3):
        if j < 2:
            rr(f"v_add_u32 {v(t0)}, s5, {v(Q_)}")
        else:
            rr(f"v_lshrrev_b32 {v(t0)}, 1, {v(Q_)}")
            rr(f"v_add_u32 {v(t0)}, s5, {v(t0)}")
        rr("s_add_u32 s5, s5, 4")
        rr(f"v_lshrrev_b32 {v(t1)}, 2, {v(t0)}")
        rr(f"v_mul_u32_u24 {v(t1)}, {4 * AFR}, {v(t1)}")
        rr(f"v_and_b32 {v(t0)}, 3, {v(t0)}")
        rr(f"v_lshl_add_u32 {v(t1)}, {v(t0)}, 8, {v(t1)}")
        rr(f"v_lshl_add_u32 {v(t1)}, {v(N_)}, 4, {v(t1)}")
        rr(f"v_add_u32 {v(t1)}, s6, {v(t1)}")
        if j < 2:
            rr(f"ds_read_b128 {v(xres + 4 * j, 4)}, {v(t1)} offset:{AI}")
        else:
            rr(f"v_and_b32 {v(t0)}, 1, {v(Q_)}")
            rr(f"v_lshl_add_u32 {v(t1)}, {v(t0)}, 3, {v(t1)}")
            rr(f"ds_read_b64 {v(xres + 8, 2)}, {v(t1)} offset:{AI}")
    sides.append((rr, 20, 130))
    k.extend(weave(mainloop(acc1, 1), sides))
    stamp(k, 19)
    maxchain(k, t0, range(pl, pl + 16))
    check(k, stubs, "Ls3", st3_loads, list(range(pl, pl + 16)), t0)
    stamp(k, 20)
    for stp in (2, 4, 8):
        for i in range(0, 16, 2 * stp):
            pk(k, "add", pl + i, [("p", pl + i), ("p", pl + i + stp)])
    row_stats(k, pl, pl + 1, FH, pl + 2)
    k(f"ds_write2st64_b32 {v(tw)}, {v(pl)}, {v(pl + 1)} offset0:0 offset1:1")
    read_rs(k)
    frag(k, 7)
    k(f"s_lshl_b32 s4, s{SCB}, 6")
    k(f"s_lshl_b32 s5, s{SRB}, 1")
    k("s_add_u32 s4, s4, s5")
    k("s_mul_i32 s4, s4, 7168")
    k(f"s_lshl_b32 s5, {s(WAVE)}, 11")
    k("s_add_u32 s4, s4, s5")
    k(f"s_add_u32 s4, s4, {Z2}")
    k(f"v_add_u32 {v(t0)}, s4, {v(L16)}")
    k(f"v_add_u32 {v(t1)}, 7168, {v(t0)}")
    for sl in range(2):
        for h in range(2):
            for i in range(4 * h, 4 * h + 4):
                r = acc2 + 16 * sl + 2 * i
                pk(k, "fma", r, [("p", r), ("p", rs + 2 * i), ("p", rs + 16 + 2 * i)])
            o = tmp + 8 * sl + 4 * h
            for i in range(4):
                r = acc2 + 16 * sl + 8 * h + 2 * i
                k(f"v_cvt_pk_bf16_f32 {v(o + i)}, {v(r)}, {v(r + 1)}")
            for i in range(4):
                k(f"v_min_u32 {v(o + i)}, -2, {v(o + i)}")
            if sl:
                k(f"s_mov_b64 exec, s[{MK}:{MK + 1}]")
            k(f"global_store_dwordx4 {v(t1 if h else t0)}, {v(o, 4)}, {sp(WS)} offset:{1024 * sl} sc1")
            if sl:
                k("s_mov_b64 exec, -1")
    stamp(k, 21)
    k.barrier()
    tmp1 = acc2
    e1 = Stream()
    for sl in range(2):
        for mt in range(4):
            for p in range(2):
                pk(e1, "fma", tmp1 + 4 * mt + 2 * p, [("p", UZ1 + 8 * sl + 2 * p), ("b", rz1 + 2 * mt + 1), ("p", UZ1 + 8 * sl + 4 + 2 * p)])
        for mt in range(4):
            for p in range(2):
                r = acc1 + 16 * sl + 4 * mt + 2 * p
                pk(e1, "fma", r, [("p", r), ("b", rz1 + 2 * mt), ("p", tmp1 + 4 * mt + 2 * p)])
    gelu(e1, [acc1 + 2 * i for i in range(16)], tmp1, GC)
    for i in range(16):
        e1(f"v_cvt_pk_bf16_f32 {v(tmp1 + i)}, {v(acc1 + 2 * i)}, {v(acc1 + 2 * i + 1)}")
    e1(f"s_lshl_b32 s4, {s(WAVE)}, 10")
    e1(f"s_add_u32 s4, s4, {RED}")
    e1(f"v_add_u32 {v(t0)}, s4, {v(l8)}")
    for sl in range(2):
        for mt in range(4):
            e1(f"ds_write_b64 {v(t0)}, {v(tmp1 + 8 * sl + 2 * mt, 2)} offset:{4096 * mt + 512 * sl}")
    wd = Stream()
    wd(f"s_mul_i32 s5, s{SCB}, {135 * 1024}")
    wd(f"s_add_u32 s5, s5, {WO}")
    wd(f"s_add_u32 s92, s{WS}, s5")
    wd(f"s_addc_u32 s93, s{WS + 1}, 0")
    wd(f"s_mul_i32 s95, {s(WAVE)}, {34 * 1024}")
    wd(f"s_min_u32 s95, s95, {101 * 1024}")
    wd("s_add_u32 s92, s92, s95")
    wd("s_addc_u32 s93, s93, 0")
    for r in range(34):
        if r % 4 == 0:
            wd(f"s_add_u32 m0, s95, {1024 * r}")
            if r:
                wd("s_add_u32 s92, s92, 4096")
                wd("s_addc_u32 s93, s93, 0")
        wd(f"global_load_lds_dwordx4 {v(L16)}, s[92:93] offset:{1024 * (r % 4)} sc1")
    vi = [i + 1 for i, x in enumerate(wd.ins) if x.cls == "vmem"]
    n1, n2 = cfg.get("wo1", 14), cfg.get("wo2", 18)
    wd1, wd2 = Stream(), Stream()
    wd1.ins, wd2.ins = wd.ins[:vi[n1 - 1]], wd.ins[vi[n1 - 1]:vi[n2 - 1]]
    cuts = [vi[n2 - 1 + ((34 - n2) * i) // 4] for i in range(5)]
    wd3 = [wd.ins[cuts[i]:cuts[i + 1]] for i in range(4)]
    k.extend(sprinkle(e1, wd1, 0.0, 1.0))
    k.barrier()
    k(f"s_lshl_b32 s4, {s(WAVE)}, 12")
    k(f"s_add_u32 s4, s4, {RED}")
    k(f"v_add_u32 {v(t0)}, s4, {v(l8)}")
    for sl in range(7):
        k(f"ds_read_b64 {v(z1r + 2 * sl, 2)}, {v(t0)} offset:{512 * sl}")
    k.extend(wd2)
    stamp(k, 22)

    R = Alloc(base, 254)
    stash = UZ2
    zv, wa3, rda, po, po6, mx = l8, stash + 12, stash + 15, stash + 16, stash + 17, t0
    acc = R(112, 2)
    G, NG = 4, 5
    ring = R(4 * G * NG, 2)
    k(f"v_add_u32 {v(zv)}, 3072, {v(L16)}")
    k(f"v_add_u32 {v(zv + 1)}, {3072 + 7168}, {v(L16)}")
    for tau in range(1, 4):
        k(f"s_xor_b32 s4, {s(WAVE)}, {tau}")
        k("s_mul_i32 s4, s4, 3072")
        k(f"s_add_u32 s4, s4, {RED + 1024 * (tau - 1)}")
        k(f"v_add_u32 {v(wa3 + tau - 1)}, s4, {v(L16)}")
    k(f"s_mul_i32 s4, {s(WAVE)}, 3072")
    k(f"s_add_u32 s4, s4, {RED}")
    k(f"v_add_u32 {v(rda)}, s4, {v(L16)}")
    k(f"s_lshl_b32 s4, s{SRB}, 2")
    k(f"s_add_u32 s4, s4, {s(WAVE)}")
    k(f"s_mul_i32 s4, s4, {28 * 1024}")
    k(f"s_add_u32 s91, s4, {P}")
    k(f"s_mul_i32 s5, s{SCB}, 7")
    k("s_add_u32 s5, s5, 1")
    k("s_lshr_b32 s5, s5, 1")
    k("s_lshl_b32 s5, s5, 10")
    k("s_add_u32 s4, s91, s5")
    k(f"v_add_u32 {v(po)}, s4, {v(L16)}")
    k("s_movk_i32 s5, 3072")
    k(f"s_bitcmp1_b32 s{SCB}, 0")
    k(f"s_cselect_b32 s5, {8 - 1024}, s5")
    k(f"v_add_u32 {v(po6)}, s5, {v(po)}")
    k(f"v_min_u32 {v(t1)}, 13, {v(LANE)}")
    k(f"v_lshlrev_b32 {v(t1)}, 10, {v(t1)}")

    NA = cfg.get("na", 4)
    order = [(st_, sl) for st_ in range(NA) for sl in range(7)] + [(st_, sl) for sl in range(7) for st_ in range(NA, 16)]
    ngrp = len(order) // G
    gA, gS = 7 * NA // G, (16 - NA) // G
    freg = lambda f: ring + 4 * (f % (G * NG))

    def gloads(g):
        def f(st):
            for fi in range(G * g, G * g + G):
                step, sl = order[fi]
                i, ksl = step >> 1, step & 1
                st(f"global_load_dwordx4 {v(freg(fi), 4)}, {v(zv + ksl)}, s[{ZB + 2 * i}:{ZB + 2 * i + 1}] offset:{1024 * sl - 3072} {cfg.get('zld', 'sc1')}")
        return f

    gregs = lambda g: [freg(fi) + 3 for fi in range(G * g, G * g + G)]

    def red_write(st, sl):
        for tau in range(1, 4):
            st(f"ds_write_b128 {v(wa3 + tau - 1)}, {v(acc + 16 * sl + 4 * tau, 4)} offset:{12288 * (sl & 1)}")
        st.barrier()

    def red_fin(st, sl, packed):
        A = acc + 16 * sl
        for tau in range(1, 4):
            st(f"ds_read_b128 {v(A + 4 * tau, 4)}, {v(rda)} offset:{12288 * (sl & 1) + 1024 * (tau - 1)}")
        un = stash + 4
        for p in range(2):
            unpack(st, un + 2 * p, un + 2 * p + 1, z1r + 2 * sl + p)
        for tau in range(1, 4):
            for p in range(2):
                vop(st, "add", A + 2 * p, [("p", A + 2 * p), ("p", A + 4 * tau + 2 * p)], packed)
        for p in range(2):
            vop(st, "mul", A + 2 * p, [("p", A + 2 * p), ("p", un + 2 * p)], packed)
        o = z1r + 2 * sl
        for p in range(2):
            st(f"v_cvt_pk_bf16_f32 {v(o + p)}, {v(A + 2 * p)}, {v(A + 2 * p + 1)}")
        for p in range(2):
            st(f"v_min_u32 {v(o + p)}, -2, {v(o + p)}")

    def pstore(st, j):
        if j == 3:
            st(f"global_store_dwordx2 {v(po6)}, {v(z1r + 12, 2)}, {sp(WS)} sc1")
        else:
            st(f"global_store_dwordx4 {v(po)}, {v(z1r + 4 * j, 4)}, {sp(WS)} offset:{1024 * j} sc1")

    kgrp = [[(7 * c + 1) // 2 + j for c in range(8) if (7 * c + 1) // 2 + j < 27] for j in range(3)] + [[3, 10, 17, 24]]
    pbase = [acc, acc + 32, acc + 64, acc + 96]

    def ploads(j):
        def f(st):
            for i, ks in enumerate(kgrp[j]):
                st(f"global_load_dwordx4 {v(pbase[j] + 4 * i, 4)}, {v(pvr[ks // 8])}, {sp(WS)} offset:{1024 * (ks % 8) - 4096} sc1")
        return f

    pvr = [WO0, WO1, UZ1 + 14, UZ1 + 15]
    k("s_add_u32 s4, s91, 4096")
    k(f"v_add_u32 {v(pvr[0])}, s4, {v(L16)}")
    for i in range(1, 4):
        k(f"v_add_u32 {v(pvr[i])}, {8192 * i}, {v(pvr[0])}")
    k.barrier()

    def zfirst(st):
        for i in range(NA // 2):
            st(f"global_load_dword {v(acc + i)}, {v(t1)}, s[{ZB + 2 * i}:{ZB + 2 * i + 1}] offset:1020 sc1")
        for g in range(cfg.get("zf", 2)):
            gloads(g)(st)

    poll(k, "Lzp", zfirst, [acc + i for i in range(NA // 2)] + gregs(0), t0)
    stamp(k, 23)
    for g in range(cfg.get("zf", 2), NG - 1):
        gloads(g)(k)
    for g in range(ngrp):
        m = Stream()
        for fi in range(G * g, G * g + G):
            step, sl = order[fi]
            i, ksl = step >> 1, step & 1
            for tau in range(4):
                d = v(acc + 16 * sl + 4 * tau, 4)
                cin = d if step else (v(bs, 4) if tau == 0 else "0")
                m(f"v_mfma_f32_16x16x32_bf16 {d}, {v(freg(fi), 4)}, {a(apos(i) + 16 * ksl + 4 * tau, 4)}, {cin}")
        sides = []
        if g + NG - 1 < ngrp:
            st = Stream()
            if not cfg.get("x_noload"):
                gloads(g + NG - 1)(st)
            sides.append((st, 0, 15))
        else:
            gi = g - (ngrp - NG + 1)
            st = Stream()
            if gi == cfg.get("pst", 0):
                pstore(st, 0)
                pstore(st, 1)
            st.ins += wd3[gi]
            sides.append((st, 0, 15))
        if g == cfg.get("q3t", 3):
            st = Stream()
            st(f"v_min_u32 {v(t1)}, 27, {v(LANE)}")
            st(f"s_mul_i32 s4, s{SRI}, 28")
            st(f"v_add_lshl_u32 {v(t1)}, {v(t1)}, s4, 7")
            st(f"global_load_dword {v(t1)}, {v(t1)}, s[{ZB + 12}:{ZB + 13}] sc1")
            sides.append((st, 0, 3))
        if g + 1 < ngrp and not cfg.get("x_noval"):
            st = Stream()
            maxchain(st, mx, gregs(g + 1))
            st(f"v_cmp_eq_u32 vcc, -1, {v(mx)}")
            sides.append((st, 11, 14))
        if g >= gA + gS and not cfg.get("x_nored"):
            sl, ph = divmod(g - gA - gS, gS)
            st = Stream()
            if ph == 0:
                red_write(st, sl)
                sides.append((st, 3, 14))
                fin = stream(red_fin, sl, False).ins
            else:
                per = -(-len(fin) // (gS - 1))
                st.ins = fin[(ph - 1) * per:ph * per]
                sides.append((st, 0, 15))
        wv = weave(m, sides)
        if cfg.get("x_nomfma"):
            keep = cfg["x_nomfma"]
            cnt = [0]
            def drop(x):
                if x.cls != "mfma":
                    return False
                cnt[0] += 1
                return cnt[0] % keep != 0
            wv.ins = [x for x in wv.ins if not drop(x)]
        k.extend(wv)
        if g + 1 < ngrp and not cfg.get("x_noval"):
            check(k, stubs, f"Lz{g + 1}", gloads(g + 1), gregs(g + 1), mx, cmp=False)
        if g == gA - 1:
            stamp(k, 24)
        if cfg.get("x_st") and g in (1, 3, 6, 9, 17, 21, 24):
            stamp(k, 31 + (1, 3, 6, 9, 17, 21, 24).index(g))
    stamp(k, 25)
    pstore(k, 2)
    red_write(k, 6)
    red_fin(k, 6, True)
    pstore(k, 3)
    stamp(k, 26)

    F = Alloc(ring, ring + 80)
    acc3 = F(20, 2)
    NWF = 6
    wf = F(4 * NWF, 2)
    gb = F(20, 2)
    gt = F(16, 2)
    ra3 = [zv, zv + 1, wa3]
    k(f"v_mov_b32 {v(ra3[0])}, {v(L16)}")
    k(f"v_add_u32 {v(ra3[1])}, {60 * 1024}, {v(L16)}")
    k(f"v_add_u32 {v(ra3[2])}, {120 * 1024}, {v(L16)}")
    gl = Stream()
    gl(f"s_mul_i32 s5, s{SCB}, 320")
    gl(f"s_add_u32 s5, s5, {MODP + 5 * D * 4}")
    gtm = [[gb + 4 * j for j in range(5)], [gt, gt + 4, gt + 8, gt + 12, stash + 4], [acc + 92 + 4 * j for j in range(5)]]
    for part in range(3):
        gl(f"v_lshl_add_u32 {v(t0)}, {v(Q_)}, 5, s5")
        gl(f"v_lshl_add_u32 {v(t1)}, {v(Q_)}, 4, s5")
        for j in range(4):
            gl(f"global_load_dwordx4 {v(gtm[part][j], 4)}, {v(t0)}, {sp(WS)} offset:{128 * (j >> 1) + 16 * (j & 1)} sc1")
        gl(f"global_load_dwordx4 {v(gtm[part][4], 4)}, {v(t1)}, {sp(WS)} offset:256 sc1")
        gl(f"s_add_u32 s5, s5, {MODS}")
    k.extend(gl)
    ploads(0)(k)
    ploads(1)(k)
    k.wait(*[x for part in wd3 for x in part if x.cls == "vmem"])
    k("s_barrier")
    seq = [(j, i, ks, dt) for j in range(4) for i, ks in enumerate(kgrp[j]) for dt in range(5)]

    def wread(st, f):
        fr = 5 * seq[f][2] + seq[f][3]
        st(f"ds_read_b128 {v(wf + 4 * (f % NWF), 4)}, {v(ra3[fr // 60])} offset:{1024 * (fr % 60)}")

    for f in range(NWF - 1):
        wread(k, f)
    gf = Stream()
    for j in range(5):
        for p in range(2):
            pk(k, "add", gb + 4 * j + 2 * p, [("p", gb + 4 * j + 2 * p), ("p", gtm[2][j] + 2 * p)])
    for j in range(5):
        fin_mod4(gf, gb + 4 * j, gtm[1][j])
    f = 0
    for j in range(4):
        pregs = list(range(pbase[j] + 3, pbase[j] + 4 * len(kgrp[j]), 4)) if j < 3 else list(range(pbase[j] + 1, pbase[j] + 16, 2))
        maxchain(k, mx, pregs)
        check(k, stubs, f"Lp{j}", ploads(j), pregs, mx)
        stamp(k, 27 + j)
        m = Stream()
        while f < len(seq) and seq[f][0] == j:
            _, i, ks, dt = seq[f]
            d = v(acc3 + 4 * dt, 4)
            m(f"v_mfma_f32_16x16x32_bf16 {d}, {v(wf + 4 * (f % NWF), 4)}, {v(pbase[j] + 4 * i, 4)}, {d if f >= 5 else 0}")
            if f + NWF - 1 < len(seq):
                wread(m, f + NWF - 1)
            f += 1
        sides = []
        if j + 2 < 4:
            st = Stream()
            ploads(j + 2)(st)
            sides.append((st, cfg.get("pl", 24), 39))
        k.extend(weave(m, sides))
        if j == 1:
            k.extend(gf)
    X = acc
    for j in range(10):
        unpack(k, X + 2 * j, X + 2 * j + 1, xres + j)
    k(f"v_add_u32 {v(t0)}, s90, {v(TROW)}")
    k(f"v_mul_u32_u24 {v(t0)}, 1280, {v(t0)}")
    k(f"s_mul_i32 s4, s{SCB}, 160")
    k(f"v_add_u32 {v(t0)}, s4, {v(t0)}")
    k(f"v_lshl_add_u32 {v(t1)}, {v(Q_)}, 4, {v(t0)}")
    k(f"v_lshl_add_u32 {v(t0)}, {v(Q_)}, 3, {v(t0)}")
    o = acc + 32
    ost = cfg.get("ost", "")
    for B in range(2):
        for j in range(8):
            k(f"v_fmac_f32 {v(X + 8 * B + j)}, {v(acc3 + 4 * (2 * B + (j & 1)) + (j >> 1))}, {v(gb + 8 * B + j)}")
        for j in range(4):
            k(f"v_cvt_pk_bf16_f32 {v(o + 4 * B + j)}, {v(X + 8 * B + 2 * j)}, {v(X + 8 * B + 2 * j + 1)}")
        k(f"global_store_dwordx4 {v(t1)}, {v(o + 4 * B, 4)}, {sp(OUT)} offset:{64 * B} {ost}")
    for j in range(4):
        k(f"v_fmac_f32 {v(X + 16 + j)}, {v(acc3 + 16 + j)}, {v(gb + 16 + j)}")
    for j in range(2):
        k(f"v_cvt_pk_bf16_f32 {v(o + 8 + j)}, {v(X + 16 + 2 * j)}, {v(X + 16 + 2 * j + 1)}")
    k(f"global_store_dwordx2 {v(t0)}, {v(o + 8, 2)}, {sp(OUT)} offset:128 {ost}")
```

```python
import sys, os, json
sys.path.insert(0, os.path.dirname(__file__))
from asmlib import *
from blocks import *
from fused import *
from front import *

NAME = "adaLN_cond__ssm_conv_h3__mixer_gmlp__prompt"
cfg = json.loads(os.environ.get("CFG", "{}"))
PROBE = os.environ.get("PROBE")
LIST = os.environ.get("LIST") or PROBE
name = NAME + "_kernel"


def main():
    h = Stream()
    h("s_cmp_ge_u32 s2, 256")
    h("s_cbranch_scc1 Lend")
    if STAMPS:
        h("v_mov_b32 v255, 0")
    stamp(h, 0)
    prologue(h)
    code_prefetch(h, name, "Lcode_end", 254, 32)
    common_regs(h)
    role_ids(h)
    h("s_mul_i32 s4, s4, 20")
    h(f"s_add_u32 s{SUN}, s4, s5")
    h.drain(vm=False)
    stamp(h, 1)
    h("s_cmp_ge_u32 s2, 160")
    h("s_cbranch_scc0 Lconv")
    txt = f".p2align 8\n.globl {name}\n.type {name},@function\n{name}:\n" + finalize(h)
    sp_ = spare_path(cfg)
    stubs = []
    k = Stream()
    k("Lconv:")
    conv_path(k, stubs, cfg)
    k("Ljoin:")
    g = Stream()
    stamp(g, 13)
    gemm_phases(g, stubs, cfg)
    stamp(g, 40)
    if STAMPS:
        g.drain()
    stamp(g, 41)
    if STAMPS:
        g("v_writelane_b32 v255, s100, 50")
    stamp_flush(g, 0)
    g("Lend:")
    g("s_endpgm")
    txt += "".join(finalize(x) for x in sp_) + finalize(k) + finalize(g)
    for st in stubs:
        txt += finalize(st)
    return txt + "Lcode_end:\n    s_endpgm\n"


def desc(n, vg=512, ao=256):
    return f""".p2align 6
.amdhsa_kernel {n}
  .amdhsa_next_free_vgpr {vg}
  .amdhsa_next_free_sgpr 102
  .amdhsa_accum_offset {ao}
  .amdhsa_group_segment_fixed_size 0
  .amdhsa_kernarg_size 128
  .amdhsa_user_sgpr_count 2
  .amdhsa_user_sgpr_kernarg_segment_ptr 1
  .amdhsa_system_sgpr_workgroup_id_x 1
  .amdhsa_float_denorm_mode_32 3
.end_amdhsa_kernel
"""


ref = open(os.path.join(os.path.dirname(__file__), "..", NAME + ".s.ref")).read().split("\n")
hdr = [l for l in ref if l.startswith(";") and "@launch" not in l and "Override launch" not in l and "grid=ceil" not in l]
out = "\n".join(hdr) + "\n"
out += f"; @launch {'kernel=' + name + ' ' if LIST else ''}grid=(256,1,1) block=(256,1,1) lds={MAIN_LDS}\n"
extra = ""
if PROBE:
    pi_, plo, phi = map(int, PROBE.split(","))
    out += "; @launch kernel=probe_kernel grid=(1,1,1) block=(1024,1,1) lds=0\n"
    extra = f""".p2align 8
.globl probe_kernel
.type probe_kernel,@function
probe_kernel:
    s_cmp_ge_u32 s2, 1
    s_cbranch_scc1 Lprobe_end
    s_load_dwordx2 s[4:5], s[0:1], 120
    v_max_u32 v1, {4 * plo}, v0
    v_min_u32 v1, {4 * phi - 1}, v1
    v_lshlrev_b32 v1, 8, v1
    v_add_u32 v1, {STAMP + 4 * pi_}, v1
    s_waitcnt lgkmcnt(0)
    global_load_dword v2, v1, s[4:5]
    s_mov_b32 s9, 0
    s_waitcnt vmcnt(0)
Lprobe_loop:
    s_memrealtime s[6:7]
    s_add_u32 s9, s9, 1
    s_waitcnt lgkmcnt(0)
    v_sub_u32 v3, s6, v2
    v_cmp_gt_u32 vcc, 10000, v3
    s_cmp_ge_u32 s9, 100000
    s_cbranch_scc1 Lprobe_end
    s_cbranch_vccnz Lprobe_loop
Lprobe_end:
    s_endpgm
"""
out += '.amdgcn_target "amdgcn-amd-amdhsa--gfx950"\n.text\n' + main() + extra
out += '.section .rodata,"a"\n' + desc(name) + (desc("probe_kernel", 64, 64) if PROBE else "")
open(sys.argv[1], "w").write(out)
```

```python
import re

TRANS = ("v_exp_f32", "v_log_f32", "v_rcp_f32", "v_rsq_f32", "v_sqrt_f32", "v_sin_f32", "v_cos_f32")
RMW = ("v_fmac_", "v_dot2c_", "v_pk_fmac", "v_writelane")


def v(i, n=1):
    return f"v{i}" if n == 1 else f"v[{i}:{i + n - 1}]"


def a(i, n=1):
    return f"a{i}" if n == 1 else f"a[{i}:{i + n - 1}]"


def s(i, n=1):
    return f"s{i}" if n == 1 else f"s[{i}:{i + n - 1}]"


_REG = re.compile(r"^(-|\|)?(?:abs\()?([vas])(?:(\d+)|\[(\d+):(\d+)\])\)?\|?$")


def regs_of(op):
    op = op.strip()
    if op == "vcc":
        return {("s", "vcc")}
    if op in ("vcc_lo", "vcc_hi"):
        return {("s", "vcc")}
    if op in ("exec", "exec_lo", "exec_hi"):
        return {("s", "exec")}
    if op == "m0":
        return {("s", "m0")}
    m = _REG.match(op)
    if not m:
        return set()
    k = m.group(2)
    if m.group(3) is not None:
        return {(k, int(m.group(3)))}
    return {(k, i) for i in range(int(m.group(4)), int(m.group(5)) + 1)}


def split_ops(text):
    out, depth, cur = [], 0, ""
    for ch in text:
        if ch in "[(":
            depth += 1
        if ch in "])":
            depth -= 1
        if ch == "," and depth == 0:
            out.append(cur.strip())
            cur = ""
        else:
            cur += ch
    if cur.strip():
        out.append(cur.strip())
    return out


class Ins:
    __slots__ = ("text", "mn", "cls", "defs", "uses", "srcc", "srcab", "dpp", "wide_store", "tok", "waitfor", "data", "keep", "pkcross", "nocount")

    def __init__(self, text):
        self.text = text
        self.tok = None
        self.waitfor = None
        self.keep = False
        self.pkcross = False
        self.nocount = False
        self.defs, self.uses = set(), set()
        self.srcc, self.srcab, self.data = set(), set(), set()
        self.dpp = False
        self.wide_store = False
        t = text.split(";")[0].strip()
        if not t or t.endswith(":") or t.startswith("."):
            self.mn, self.cls = "", ("label" if t.endswith(":") else "none")
            return
        parts = t.split(None, 1)
        mn = parts[0]
        self.mn = mn
        rest = parts[1] if len(parts) > 1 else ""
        ops = split_ops(rest)
        if ops:
            last = ops[-1].split()
            mods = " ".join(last[1:])
            ops[-1] = last[0] if last else ""
        else:
            mods = ""
        R = [regs_of(o) for o in ops]
        allsrc = lambda lst: set().union(*lst) if lst else set()
        if mn.startswith("v_mfma"):
            self.cls = "mfma"
            self.defs = R[0]
            self.srcab = R[1] | R[2]
            self.srcc = R[3]
            self.uses = self.srcab | self.srcc
        elif mn.startswith("v_"):
            self.cls = "valu"
            self.dpp = "_dpp" in mn
            if mn.startswith("v_permlane") and "swap" in mn:
                self.defs = R[0] | R[1]
                self.uses = R[0] | R[1]
            elif mn.startswith(("v_add_co", "v_sub_co", "v_addc_co", "v_subb_co")):
                self.defs = R[0] | R[1]
                self.uses = allsrc(R[2:])
            elif mn == "v_nop":
                pass
            else:
                self.defs = R[0]
                self.uses = allsrc(R[1:])
                if mn.startswith(RMW) or self.dpp or "_sdwa" in mn:
                    self.uses |= R[0]
                if mn.startswith("v_cndmask") and len(ops) == 3:
                    self.uses |= {("s", "vcc")}
                if mn.startswith("v_dot"):
                    self.srcab = R[1] | R[2]
                if mn.startswith("v_pk_") and mn.endswith("_f32"):
                    m = re.search(r"op_sel:\[([01,]+)\]", mods)
                    sel = [int(b) for b in m.group(1).split(",")] if m else []
                    self.pkcross = any(b and ops[1 + i] == ops[2] for i, b in enumerate(sel))
        elif mn.startswith("ds_"):
            self.cls = "ds"
            if mn.startswith(("ds_read", "ds_bpermute", "ds_permute", "ds_swizzle")):
                self.defs = R[0]
                self.uses = allsrc(R[1:])
            else:
                self.uses = allsrc(R)
        elif mn.startswith(("global_", "buffer_")):
            self.cls = "vmem"
            if mn.startswith(("buffer_wbl2", "buffer_inv")):
                pass
            elif mn.startswith("global_load_lds"):
                self.uses = allsrc(R) | {("s", "m0")}
            elif mn.startswith("global_load"):
                self.defs = R[0]
                self.uses = allsrc(R[1:])
            elif mn.startswith("global_store"):
                self.uses = allsrc(R)
                self.data = R[1]
                self.wide_store = mn.endswith(("x3", "x4"))
            elif mn.startswith("global_atomic"):
                if "sc0" in mods.split():
                    self.defs = R[0]
                    self.uses = allsrc(R[1:])
                else:
                    self.uses = allsrc(R)
            else:
                raise ValueError("unsupported vmem: " + text)
        elif mn.startswith(("s_load", "s_memtime", "s_memrealtime")):
            self.cls = "smem"
            self.defs = R[0]
            self.uses = allsrc(R[1:])
        elif mn in ("s_waitcnt", "s_nop", "s_barrier", "s_endpgm", "s_sleep", "s_setprio"):
            self.cls = mn
        elif mn.startswith(("s_cbranch", "s_branch")):
            self.cls = "branch"
            if "vcc" in mn:
                self.uses = {("s", "vcc")}
        elif mn.startswith("s_"):
            self.cls = "salu"
            if mn.startswith(("s_cmp", "s_bitcmp")):
                self.uses = allsrc(R)
            else:
                self.defs = R[0]
                self.uses = allsrc(R[1:])
                if "saveexec" in mn:
                    self.defs |= {("s", "exec")}
        else:
            raise ValueError("unknown instruction: " + text)


class Stream:
    def __init__(self):
        self.ins = []

    def __call__(self, text):
        last = None
        for line in text.split("\n"):
            line = line.strip()
            if not line:
                continue
            last = Ins(line)
            self.ins.append(last)
        return last

    def wait(self, *toks):
        i = Ins("; wait")
        i.cls = "tokwait"
        i.waitfor = [t for t in toks if t is not None]
        self.ins.append(i)

    def drain(self, vm=True, lgkm=True):
        parts = []
        if vm:
            parts.append("vmcnt(0)")
        if lgkm:
            parts.append("lgkmcnt(0)")
        self("s_waitcnt " + " ".join(parts))

    def barrier(self):
        self("s_waitcnt lgkmcnt(0)")
        self("s_barrier")

    def raw(self, other):
        i = Ins("; raw")
        i.cls = "none"
        i.text = finalize(other).strip()
        self.ins.append(i)

    def ghost(self, n):
        for _ in range(n):
            i = Ins("; ghost")
            i.cls = "ghost"
            self.ins.append(i)

    def forget(self):
        i = Ins("; forget")
        i.cls = "forget"
        self.ins.append(i)

    def extend(self, other):
        self.ins.extend(other.ins)
        return self

    def __len__(self):
        return len(self.ins)


def interleave(main, side, start=0.0, end=1.0, only_after=("mfma",)):
    out = Stream()
    anchors = [i for i, x in enumerate(main.ins) if x.cls in only_after]
    lo, hi = int(len(anchors) * start), max(int(len(anchors) * end), 1)
    use = anchors[lo:hi]
    n = len(side.ins)
    pos = {}
    for j in range(n):
        idx = use[min(len(use) - 1, (j * len(use)) // n)]
        pos.setdefault(idx, []).append(side.ins[j])
    for i, x in enumerate(main.ins):
        out.ins.append(x)
        out.ins.extend(pos.get(i, []))
    return out


SCC_USERS = ("s_addc", "s_subb", "s_cselect", "s_cbranch_scc", "s_cmov")
SHARED = {("s", "exec")}


def _cost(x):
    if x.cls in ("label",):
        return 0, 0
    if x.cls == "none":
        return (3, 1) if x.text.count("\n") else (0, 0)
    if x.cls == "valu":
        n = 2 if x.mn.startswith(TRANS) else 1
        return n, n
    if x.cls == "ds":
        if x.mn.startswith(("ds_write_b128", "ds_write2_b64")):
            return 3, 2
        return 1, 1
    if x.cls == "vmem":
        return 1, 1
    return 1, 0


def _groups(ins):
    out = []
    for x in ins:
        glue = x.keep or x.cls == "label" or x.mn.startswith(SCC_USERS)
        if out and (glue or out[-1][-1].cls in ("tokwait", "s_waitcnt")):
            out[-1].append(x)
        else:
            out.append([x])
    return out


def weave(main, sides, slots=3, vslots=2):
    anchors = [i for i, x in enumerate(main.ins) if x.cls == "mfma"]
    n = len(anchors)
    work = []
    for side, first, last in sides:
        if not side.ins:
            continue
        first = max(0, min(first, n - 1))
        last = max(first, min(last, n - 1))
        gr = _groups(side.ins)
        tot = sum(max(_cost(x)[0] for x in g) and sum(_cost(x)[0] for x in g) for g in gr) or 1
        d = set().union(*[x.defs for x in side.ins]) - SHARED
        u = set().union(*[x.uses for x in side.ins]) - SHARED
        work.append(dict(gr=gr, first=first, last=last, tot=tot, done=0, defs=d, uses=u))
    for i, a_ in enumerate(work):
        for b_ in work[i + 1:]:
            if a_["first"] <= b_["last"] and b_["first"] <= a_["last"]:
                clash = (a_["defs"] & (b_["defs"] | b_["uses"])) | (b_["defs"] & a_["uses"])
                assert not clash, f"concurrent side streams share registers {sorted(clash, key=str)}"
    out = Stream()
    out.ins.extend(main.ins[:anchors[0]])
    for g in range(n):
        end = anchors[g + 1] if g + 1 < n else len(main.ins)
        own = main.ins[anchors[g] + 1:end]
        fs = slots - sum(_cost(x)[0] for x in own)
        fv = vslots - sum(_cost(x)[1] for x in own)
        placed = []
        while True:
            best, lag = None, 0.0
            for w in work:
                if not w["gr"] or g < w["first"]:
                    continue
                want = w["tot"] * (g - w["first"] + 1) / (w["last"] - w["first"] + 1)
                l = (want - w["done"]) / w["tot"] if g < w["last"] else 2.0
                if l > lag:
                    cs = sum(_cost(x)[0] for x in w["gr"][0])
                    cv = sum(_cost(x)[1] for x in w["gr"][0])
                    fits = (cs <= fs and cv <= fv) or (not placed and not own) or (cs > slots and not placed)
                    left = sum(sum(_cost(x)[0] for x in q) for q in w["gr"])
                    urgent = g >= w["last"] or left > slots * (w["last"] - g)
                    if fits or urgent:
                        best, lag = w, l
            if best is None:
                break
            grp = best["gr"].pop(0)
            cs = sum(_cost(x)[0] for x in grp)
            best["done"] += cs
            fs -= cs
            fv -= sum(_cost(x)[1] for x in grp)
            placed.extend(grp)
        out.ins.append(main.ins[anchors[g]])
        tailw = [x for x in own if x.cls == "tokwait"]
        out.ins.extend([x for x in placed if x.cls == "salu" and False])
        out.ins.extend([x for x in own if x.cls != "tokwait"] + placed + tailw)
    assert all(not w["gr"] for w in work)
    return out


def estimate(ins):
    t, pipe, vfree, lastpk = 0.0, 0.0, 0.0, False
    for x in ins:
        if x.cls in ("label", "none", "tokwait", "ghost", "forget"):
            continue
        if x.cls == "mfma":
            t = max(t, pipe)
            pipe = t + 16
            vfree = t + 8
            t += 4
            continue
        heavy = x.mn.startswith(("v_pk_", "v_dot"))
        if x.cls in ("valu", "ds", "vmem"):
            t = max(t, vfree)
        if heavy:
            t = max(t, pipe + 8) if pipe > t - 8 else t
        if x.cls == "s_nop":
            t += 4 * (int(x.text.split()[1], 0) + 1)
        elif x.cls == "valu" and x.mn.startswith(TRANS):
            t += 8.5
        elif x.mn.startswith(("ds_write_b128", "ds_write2_b64")):
            t += 24
        else:
            t += 4.6
    return max(t, pipe)


def sprinkle(main, side, first=0.0, last=1.0):
    n = len(main.ins)
    lo, hi = int(n * first), max(int(n * last), int(n * first) + 1)
    cost = [0 if x.cls in ("salu", "tokwait", "label", "none", "s_waitcnt") else 1 for x in side.ins]
    total = max(sum(cost), 1)
    pos, acc, idx = {}, 0, lo
    for x, c in zip(side.ins, cost):
        if not x.keep:
            idx = min(n - 1, lo + (acc * (hi - lo)) // total)
            while main.ins[idx].keep:
                idx -= 1
        pos.setdefault(idx, []).append(x)
        acc += c
    assert not any(x.cls == "label" for x in side.ins + main.ins)
    out = Stream()
    for i, x in enumerate(main.ins):
        out.ins.extend(pos.get(i, []))
        out.ins.append(x)
    return out


_WAIT = re.compile(r"(vmcnt|lgkmcnt)\((\d+)\)")


def insert_waits(ins):
    out = []
    vm, lg = [], []

    def need(queue, regs, toks):
        idx = -1
        for i, e in enumerate(queue):
            if (regs and (e.defs & regs)) or (toks and any(e is t for t in toks)):
                idx = i
        return idx

    seen = set()
    for x in ins:
        seen.add(id(x))
        if x.waitfor:
            assert all(id(t) in seen for t in x.waitfor), "wait placed before its instruction"
        if x.cls == "ghost":
            vm.append(x)
            continue
        if x.cls == "forget":
            del vm[:]
            continue
        if x.cls == "s_waitcnt":
            for name, n in _WAIT.findall(x.text):
                n = int(n)
                q = vm if name == "vmcnt" else lg
                if name == "lgkmcnt" and n > 0 and any(e.cls == "smem" for e in lg):
                    continue
                del q[: max(0, len(q) - n)]
            out.append(x)
            continue
        regs = x.defs | x.uses
        toks = x.waitfor
        parts = []
        i = need(vm, regs, toks)
        if i >= 0:
            n = min(len(vm) - 1 - i, 63)
            parts.append(f"vmcnt({n})")
            del vm[: len(vm) - n]
        i = need(lg, regs, toks)
        if i >= 0:
            n = min(len(lg) - 1 - i, 15)
            if any(e.cls == "smem" for e in lg):
                n = 0
            parts.append(f"lgkmcnt({n})")
            del lg[: len(lg) - n]
        if parts:
            out.append(Ins("s_waitcnt " + " ".join(parts)))
        if x.cls == "tokwait":
            continue
        out.append(x)
        if x.cls == "vmem":
            if not x.nocount:
                vm.append(x)
        elif x.cls in ("ds", "smem"):
            lg.append(x)
    return out


def _states(x):
    if x.cls in ("label", "none"):
        return 0
    if x.cls == "s_nop":
        return int(x.text.split()[1], 0) + 1
    return 1


def _isv(r):
    return r[0] in ("v", "a")


def required_gap(p, c):
    need = 0
    if p.cls == "valu":
        vdef = {r for r in p.defs if _isv(r)}
        sdef = {r for r in p.defs if r[0] == "s"}
        if c.cls == "mfma" and vdef & c.uses:
            need = max(need, 2)
        if c.cls == "mfma" and p.pkcross:
            need = max(need, 1)
        if c.cls == "valu":
            if c.dpp and vdef & c.uses:
                need = max(need, 2)
            if c.mn.startswith("v_permlane") and vdef & c.uses:
                need = max(need, 2)
            if c.mn.startswith(("v_readlane", "v_readfirstlane")) and vdef & c.uses:
                need = max(need, 1)
            if p.mn.startswith(TRANS) and vdef & c.uses:
                need = max(need, 1)
            if ("_sdwa" in p.mn or p.mn.startswith("v_fma_mix")) and vdef & (c.uses | c.defs):
                need = max(need, 1)
            if sdef & c.uses:
                need = max(need, 4 if c.mn.startswith(("v_readlane", "v_writelane")) else 2)
            if p.mn.startswith("v_dot") and vdef & (c.uses | c.defs):
                chain = p.mn == c.mn and not (vdef & c.srcab) and (vdef & c.uses)
                need = max(need, 0 if chain else 3)
        if p.mn.startswith("v_dot") and c.cls in ("ds", "vmem", "mfma") and vdef & c.uses:
            need = max(need, 3)
        if c.cls == "vmem" and sdef & c.uses:
            need = max(need, 5)
        if c.cls in ("salu", "branch", "smem") and sdef & c.uses:
            need = max(need, 1)
    elif p.cls == "mfma":
        if c.cls == "mfma":
            if p.defs & c.srcab:
                need = max(need, 8)
            if p.defs & c.srcc and p.defs != c.srcc:
                need = max(need, 6)
            if p.defs & c.defs and not (p.defs & c.srcc):
                need = max(need, 6)
        elif c.cls in ("valu", "ds", "vmem"):
            if p.defs & (c.uses | c.defs):
                need = max(need, 8)
            if c.cls == "valu" and p.srcc & c.defs:
                need = max(need, 3)
    elif p.cls == "vmem":
        if p.wide_store and (p.data & c.defs):
            need = max(need, 2)
    elif p.cls == "salu":
        if ("s", "m0") in p.defs and c.cls == "vmem" and ("s", "m0") in c.uses:
            need = max(need, 1)
    return need


def insert_nops(ins):
    out = []
    for x in ins:
        if x.cls not in ("label", "none", "s_nop", "s_waitcnt", "s_barrier"):
            dist, pad = 0, 0
            for p in reversed(out):
                if dist >= 10:
                    break
                if p.cls not in ("label", "none"):
                    pad = max(pad, required_gap(p, x) - dist)
                dist += _states(p)
            if pad > 0:
                out.append(Ins(f"s_nop {pad - 1}"))
        out.append(x)
    return out


REPORT = []


def finalize(stream):
    ins = insert_nops(insert_waits(stream.ins))
    seg, name = [], "start"
    for x in ins:
        if x.cls == "none" and x.text.startswith("; mark"):
            REPORT.append((name, x.text[7:], len(seg), sum(y.cls == "mfma" for y in seg), int(estimate(seg))))
            seg, name = [], x.text[7:]
        else:
            seg.append(x)
    lines = []
    for x in ins:
        lines.append(x.text if x.cls == "label" else "    " + x.text)
    return "\n".join(lines) + "\n"


class Alloc:
    def __init__(self, lo, hi):
        self.lo, self.hi, self.p = lo, hi, lo

    def __call__(self, n=1, align=None):
        al = align or (1 if n == 1 else 2 if n < 4 else 4)
        p = (self.p + al - 1) // al * al
        assert p + n <= self.hi, f"out of registers: need {n} at {p}, limit {self.hi}"
        self.p = p + n
        return p

    def mark(self):
        return self.p

    def reset(self, m):
        self.p = m
```

```python
from asmlib import Stream, Alloc, v, a, s, interleave

S, D, FH = 2048, 640, 864
Q, K, V, SHK, SSM, SD, BX, WIN, WSP, BSP, WOUT, C, WMOD, OUT, DBG, WS = range(8, 40, 2)
WAVE = 3
LANE = 1
MODP = 0x0
MODS = 3840 * 4
NMOD = 2
INIT0 = 0x8000
ST1 = 0x8000
U = 0xC000
US = 2 * 56 * 128
FL0 = 0x20000
KF = FL0
XF = FL0 + 192 * 128
SDF = FL0 + 384 * 128
PF = FL0 + 512 * 128
NINIT = 50
XB = 0x100000
X1 = 0x400000
WP = 0x700000
WO = 0xA00000
ST3 = 0xBE0000
Z2 = 0xC00000
P = Z2 + 8 * 64 * 7168
KVT = 0x1400000
STAMP = 0x2000000

ONES = 0x3F803F80
LOG2E = 0x3FB8AA3B
SEL_LO = 0x05040100
SEL_HI = 0x07060302


def fbits(x):
    import struct
    return struct.unpack("<I", struct.pack("<f", x))[0]


def sp(i):
    return s(i, 2)


import os
STAMPS = int(os.environ.get("STAMPS", "0"))
VTOP = 255
ONLY = [int(x) for x in os.environ.get("ONLY", "").split(",") if x]
CLK = [15, 16, 17, 18, 19, 21, 22, 24, 25, 41]


def stamp(k, idx):
    k(f"; mark {idx}")
    if STAMPS and (not ONLY or idx in ONLY):
        k("s_memrealtime s[98:99]")
        k("s_waitcnt lgkmcnt(0)")
        k(f"v_writelane_b32 v255, s98, {idx}")
        if idx in CLK and os.environ.get("CYC"):
            k("s_memtime s[98:99]")
            k("s_waitcnt lgkmcnt(0)")
            k(f"v_writelane_b32 v255, s98, {52 + CLK.index(idx)}")


def stamp_flush(k, kidx):
    if STAMPS:
        k(f"s_lshl_b32 s98, s2, 10")
        k(f"s_add_u32 s98, s98, {STAMP + kidx * 262144}")
        k(f"v_lshl_add_u32 v254, v0, 2, s98")
        k(f"global_store_dword v254, v255, {sp(WS)}")


def code_prefetch(k, lab0, lab1, tmp, nparts=32):
    k(f"s_getpc_b64 s[4:5]")
    k(f"Lpf_{lab0}_{len(k)}:")
    here = f"Lpf_{lab0}_{len(k) - 1}"
    k(f"s_add_u32 s4, s4, {lab0}-{here}")
    k(f"s_addc_u32 s5, s5, -1")
    k(f"s_lshr_b32 s6, s2, 3")
    k(f"s_and_b32 s6, s6, {nparts - 1}")
    k(f"v_mul_u32_u24 {v(tmp)}, {nparts}, v0")
    k(f"v_add_lshl_u32 {v(tmp)}, {v(tmp)}, s6, 7")
    k(f"v_min_u32 {v(tmp)}, ({lab1}-{lab0}-4), {v(tmp)}")
    k(f"global_load_dword {v(tmp)}, {v(tmp)}, s[4:5]")


def prologue(k):
    k(f"s_load_dwordx16 s[8:23], s[0:1], 0")
    k(f"s_load_dwordx16 s[24:39], s[0:1], 64")
    k(f"v_lshrrev_b32 v2, 6, v0")
    k(f"v_and_b32 {v(LANE)}, 63, v0")
    k(f"v_readfirstlane_b32 {s(WAVE)}, v2")


def unpack(k, lo, hi, src):
    k(f"v_lshlrev_b32 {v(lo)}, 16, {v(src)}")
    k(f"v_and_b32 {v(hi)}, 0xffff0000, {v(src)}")


def bsel(r):
    return v(r & ~1, 2), r & 1


def pk(k, op, dst, srcs, neg=None):
    ops, lo, hi = [], [], []
    if srcs[1][0] == "b" and srcs[0][0] != "b" and not neg:
        srcs = [srcs[1], srcs[0]] + list(srcs[2:])
    for kind, r in srcs:
        if kind == "p":
            ops.append(v(r, 2)); lo.append(0); hi.append(1)
        elif kind == "sp":
            ops.append(s(r, 2)); lo.append(0); hi.append(1)
        elif kind == "b":
            t, b = bsel(r)
            ops.append(t); lo.append(b); hi.append(b)
        elif kind == "sb":
            ops.append(s(r & ~1, 2)); lo.append(r & 1); hi.append(r & 1)
        else:
            ops.append(r); lo.append(0); hi.append(0)
    m = f" op_sel:[{','.join(map(str, lo))}] op_sel_hi:[{','.join(map(str, hi))}]"
    if neg:
        m += f" neg_lo:[{','.join(map(str, neg))}] neg_hi:[{','.join(map(str, neg))}]"
    return k(f"v_pk_{op}_f32 {v(dst, 2)}, {', '.join(ops)}{m}")


def vop(k, op, dst, srcs, packed=True):
    if packed:
        return pk(k, op, dst, srcs)
    for h in range(2):
        ops = []
        for kind, r in srcs:
            ops.append({"p": lambda: v(r + h), "sp": lambda: s(r + h), "b": lambda: v(r), "sb": lambda: s(r), "c": lambda: r}[kind]())
        if op != "fma" and not ops[1].startswith("v"):
            ops = [ops[1], ops[0]]
        k(f"v_{op}_f32 {v(dst + h)}, {', '.join(ops)}")


def round_bf16(k, r):
    k(f"v_cvt_pk_bf16_f32 {v(r)}, {v(r)}, {v(r)}")
    k(f"v_lshlrev_b32 {v(r)}, 16, {v(r)}")


def mod_unit(k, su, st="sc1"):
    R = Alloc(2, 250)
    k(f"s_cmp_ge_u32 {s(su)}, 60")
    k(f"s_cselect_b32 s4, 1, 0")
    k(f"s_mul_i32 s5, s4, 60")
    k(f"s_sub_u32 s5, {s(su)}, s5")
    k(f"s_mul_i32 s6, s4, 320")
    k(f"s_mul_i32 s7, {s(WAVE)}, 80")
    k(f"s_add_u32 s6, s6, s7")
    row, off, coff = R(), R(), R()
    k(f"v_lshrrev_b32 {v(row)}, 3, {v(LANE)}")
    k(f"v_add_u32 {v(row)}, s6, {v(row)}")
    k(f"v_lshlrev_b32 {v(coff)}, 1, {v(row)}")
    k(f"v_mul_u32_u24 {v(off)}, 7680, {v(row)}")
    k(f"v_and_b32 {v(row)}, 7, {v(LANE)}")
    k(f"v_lshl_add_u32 {v(off)}, {v(row)}, 4, {v(off)}")
    k(f"s_lshl_b32 s7, s5, 7")
    k(f"v_add_u32 {v(off)}, s7, {v(off)}")
    cv = R(10, 2)
    w = R(40, 4)
    for i in range(10):
        k(f"global_load_ushort {v(cv + i)}, {v(coff)}, {sp(C)} offset:{16 * i}")
    for i in range(10):
        k(f"global_load_dwordx4 {v(w + 4 * i, 4)}, {v(off)}, {sp(WMOD)} nt")
        if i < 9:
            k(f"v_add_u32 {v(off)}, {8 * 7680}, {v(off)}")
    t = R(10, 2)
    for i in range(10):
        k(f"v_lshlrev_b32 {v(cv + i)}, 16, {v(cv + i)}")
        k(f"v_mul_f32 {v(t + i)}, {hex(LOG2E | 0x80000000)}, {v(cv + i)}")
    for i in range(10):
        k(f"v_exp_f32 {v(t + i)}, {v(t + i)}")
    for i in range(10):
        k(f"v_add_f32 {v(t + i)}, 1.0, {v(t + i)}")
    for i in range(10):
        k(f"v_rcp_f32 {v(t + i)}, {v(t + i)}")
    for i in range(10):
        k(f"v_mul_f32 {v(cv + i)}, {v(cv + i)}, {v(t + i)}")
    for i in range(10):
        round_bf16(k, cv + i)
    acc = R(8, 2)
    u = R(8, 2)
    for i in range(10):
        for j in range(4):
            unpack(k, u + 2 * j, u + 2 * j + 1, w + 4 * i + j)
        for j in range(4):
            if i == 0:
                pk(k, "mul", acc + 2 * j, [("p", u + 2 * j), ("b", cv + i)])
            else:
                pk(k, "fma", acc + 2 * j, [("p", u + 2 * j), ("b", cv + i), ("p", acc + 2 * j)])
    for j in range(4):
        k(f"v_permlane32_swap_b32 {v(acc + j)}, {v(acc + j + 4)}")
    for j in range(4):
        k(f"v_add_f32 {v(acc + j)}, {v(acc + j)}, {v(acc + j + 4)}")
    for j in range(2):
        k(f"v_permlane16_swap_b32 {v(acc + j)}, {v(acc + j + 2)}")
    for j in range(2):
        k(f"v_add_f32 {v(acc + j)}, {v(acc + j)}, {v(acc + j + 2)}")
    res = u
    k(f"v_add_f32_dpp {v(res)}, {v(acc)}, {v(acc)} row_ror:8 row_mask:0xf bank_mask:0x3")
    k(f"v_add_f32_dpp {v(res)}, {v(acc + 1)}, {v(acc + 1)} row_ror:8 row_mask:0xf bank_mask:0xc")
    ad = u + 1
    k(f"v_and_b32 {v(ad)}, 7, {v(LANE)}")
    k(f"v_lshrrev_b32 {v(u + 2)}, 3, {v(LANE)}")
    k(f"v_lshl_add_u32 {v(ad)}, {v(ad)}, 3, {v(u + 2)}")
    k(f"s_lshl_b32 s7, {s(WAVE)}, 6")
    k(f"v_add_lshl_u32 {v(ad)}, {v(ad)}, s7, 2")
    k(f"ds_write_b32 {v(ad)}, {v(res)}")
    k.barrier()
    k(f"v_lshlrev_b32 {v(ad)}, 2, {v(LANE)}")
    for i in range(4):
        k(f"ds_read_b32 {v(acc + i)}, {v(ad)} offset:{256 * i}")
    k(f"s_mul_i32 s6, s4, {3840 * 4}")
    k(f"s_lshl_b32 s7, s5, 8")
    k(f"s_add_u32 s6, s6, s7")
    k(f"s_add_u32 s6, s6, {MODP}")
    k(f"v_add_u32 {v(ad)}, s6, {v(ad)}")
    k(f"v_add_f32 {v(acc)}, {v(acc)}, {v(acc + 1)}")
    k(f"v_add_f32 {v(acc + 2)}, {v(acc + 2)}, {v(acc + 3)}")
    k(f"v_add_f32 {v(acc)}, {v(acc)}, {v(acc + 2)}")
    k(f"s_cmp_lg_u32 {s(WAVE)}, 0")
    lab = f"Lmod_skip_{id(k) & 0xffff}_{len(k)}"
    k(f"s_cbranch_scc1 {lab}")
    k(f"global_store_dword {v(ad)}, {v(acc)}, {sp(WS)} {st}")
    k(f"{lab}:")


def row_stats(k, sm, sq, n, tmp):
    inv = hex(fbits(1.0 / n))
    k(f"v_mul_f32 {v(sm)}, {inv}, {v(sm)}")
    k(f"v_mul_f32 {v(sq)}, {inv}, {v(sq)}")
    k(f"v_fma_f32 {v(sq)}, -{v(sm)}, {v(sm)}, {v(sq)}")
    k(f"v_max_f32 {v(sq)}, 0, {v(sq)}")
    k(f"v_add_f32 {v(sq)}, {hex(fbits(1e-5))}, {v(sq)}")
    k(f"v_rsq_f32 {v(tmp)}, {v(sq)}")
    k(f"v_mul_f32 {v(sq)}, -{v(sm)}, {v(tmp)}".replace("v_mul_f32", "v_mul_f32_e64"))
    k(f"v_mov_b32 {v(sm)}, {v(tmp)}")


def x_unit(k, su, st="sc1"):
    R = Alloc(2, 250)
    off, a0, a1 = R(), R(), R()
    k(f"s_lshl_b32 s4, {s(su)}, 2")
    k(f"s_add_u32 s4, s4, {s(WAVE)}")
    k(f"s_mul_i32 s4, s4, {8 * 1280}")
    k(f"s_add_u32 s4, s4, 4096")
    k(f"v_lshl_add_u32 {v(off)}, {v(LANE)}, 4, s4")
    d = R(40, 4)
    for i in range(10):
        if i == 8:
            k(f"v_add_u32 {v(off)}, 8192, {v(off)}")
        k(f"global_load_dwordx4 {v(d + 4 * i, 4)}, {v(off)}, {sp(Q)} offset:{1024 * (i % 8) - 4096} nt")
    k(f"s_mul_i32 s5, {s(WAVE)}, 10304")
    k(f"v_lshl_add_u32 {v(a0)}, {v(LANE)}, 4, s5")
    k(f"v_lshrrev_b32 {v(a1)}, 5, {v(LANE)}")
    k(f"v_lshl_add_u32 {v(a1)}, {v(a1)}, 4, {v(a0)}")
    for i in range(10):
        pad = (64 * i) // 160
        k(f"ds_write_b128 {v(a1 if i in (2, 7) else a0)}, {v(d + 4 * i, 4)} offset:{1024 * i + 16 * pad}")
    k.barrier()
    rho, gq = R(), R()
    k(f"v_and_b32 {v(rho)}, 15, {v(LANE)}")
    k(f"v_lshrrev_b32 {v(gq)}, 4, {v(LANE)}")
    k(f"v_mul_u32_u24 {v(a0)}, 2576, {v(rho)}")
    k(f"v_lshl_add_u32 {v(a0)}, {v(gq)}, 3, {v(a0)}")
    k(f"s_mul_i32 s5, {s(WAVE)}, 320")
    k(f"v_add_u32 {v(a0)}, s5, {v(a0)}")
    for i in range(10):
        k(f"ds_read2_b64 {v(d + 4 * i, 4)}, {v(a0)} offset0:{4 * i} offset1:{160 + 4 * i}")
    k(f"s_mul_i32 s5, {s(WAVE)}, {40 * 16384}")
    k(f"s_lshl_b32 s6, {s(su)}, 8")
    k(f"s_add_u32 s5, s5, s6")
    k(f"s_add_u32 s5, s5, {XB}")
    k(f"v_lshlrev_b32 {v(off)}, 14, {v(gq)}")
    k(f"v_lshl_add_u32 {v(off)}, {v(rho)}, 4, {v(off)}")
    k(f"v_add_u32 {v(off)}, s5, {v(off)}")
    st4 = R(4, 2)
    k(f"s_mov_b32 s7, {hex(ONES)}")
    for j in range(4):
        k(f"v_mov_b32 {v(st4 + j)}, 0")
    for i in range(10):
        k(f"global_store_dwordx4 {v(off)}, {v(d + 4 * i, 4)}, {sp(WS)} {st}")
        if i < 9:
            k(f"v_add_u32 {v(off)}, 65536, {v(off)}")
        for j in range(2):
            for r in range(2):
                src = d + 4 * i + 2 * r + j
                k(f"v_dot2_f32_bf16 {v(st4 + 2 * r)}, {v(src)}, s7, {v(st4 + 2 * r)}")
                k(f"v_dot2_f32_bf16 {v(st4 + 2 * r + 1)}, {v(src)}, {v(src)}, {v(st4 + 2 * r + 1)}")
    k(f"v_permlane32_swap_b32 {v(st4)}, {v(st4 + 2)}")
    k(f"v_permlane32_swap_b32 {v(st4 + 1)}, {v(st4 + 3)}")
    k(f"v_add_f32 {v(st4)}, {v(st4)}, {v(st4 + 2)}")
    k(f"v_add_f32 {v(st4 + 1)}, {v(st4 + 1)}, {v(st4 + 3)}")
    k(f"v_permlane16_swap_b32 {v(st4)}, {v(st4 + 1)}")
    k(f"v_add_f32 {v(st4)}, {v(st4)}, {v(st4 + 1)}")
    SB = 41472
    k(f"v_lshlrev_b32 {v(a0)}, 4, {v(rho)}")
    k(f"v_lshl_add_u32 {v(a0)}, {v(gq)}, 2, {v(a0)}")
    k(f"s_lshl_b32 s5, {s(WAVE)}, 8")
    k(f"v_add_u32 {v(a0)}, s5, {v(a0)}")
    k(f"ds_write_b32 {v(a0)}, {v(st4)} offset:{SB}")
    k.barrier()
    pr = R(8, 2)
    k(f"v_and_b32 {v(a0)}, 31, {v(LANE)}")
    k(f"v_lshlrev_b32 {v(a0)}, 3, {v(a0)}")
    for i in range(4):
        k(f"ds_read_b64 {v(pr + 2 * i, 2)}, {v(a0)} offset:{SB + 256 * i}")
    pk(k, "add", pr, [("p", pr), ("p", pr + 2)])
    pk(k, "add", pr + 4, [("p", pr + 4), ("p", pr + 6)])
    pk(k, "add", pr, [("p", pr), ("p", pr + 4)])
    row_stats(k, pr, pr + 1, D, pr + 2)
    k(f"s_lshl_b32 s5, {s(su)}, 8")
    k(f"s_add_u32 s5, s5, {ST1}")
    k(f"v_add_u32 {v(a0)}, s5, {v(a0)}")
    lab = f"Lx_skip_{id(k) & 0xffff}_{len(k)}"
    k(f"s_cmp_lg_u32 {s(WAVE)}, 0")
    k(f"s_cbranch_scc1 {lab}")
    k(f"global_store_dwordx2 {v(a0)}, {v(pr, 2)}, {sp(WS)} {st}")
    k(f"{lab}:")


def wout_issue(k, su, off, lds):
    k(f"s_mul_i32 s4, {s(su)}, 40960")
    k(f"s_mul_i32 s5, {s(WAVE)}, 10240")
    k(f"s_add_u32 s4, s4, s5")
    k(f"v_lshl_add_u32 {v(off)}, {v(LANE)}, 4, s4")
    for i in range(10):
        if i % 4 == 0:
            k(f"s_add_u32 m0, s5, {lds + 1024 * i}")
            if i:
                k(f"v_add_u32 {v(off)}, 4096, {v(off)}")
        k(f"global_load_lds_dwordx4 {v(off)}, {sp(WOUT)} offset:{1024 * (i % 4)} nt")


def wout_finish(k, su, R, lds, st="sc1"):
    off, ap, aq = R(), R(), R()
    m, q = R(), R()
    k(f"v_and_b32 {v(m)}, 15, {v(LANE)}")
    k(f"v_lshrrev_b32 {v(q)}, 4, {v(LANE)}")
    k(f"v_mul_u32_u24 {v(q)}, {8 * 1280}, {v(q)}")
    k(f"s_mul_i32 s5, {s(WAVE)}, 320")
    k(f"s_add_u32 s5, s5, {lds}")
    k(f"v_add_u32 {v(q)}, s5, {v(q)}")
    k(f"v_lshl_add_u32 {v(ap)}, {v(m)}, 2, {v(q)}")
    k(f"v_lshl_add_u32 {v(aq)}, {v(m)}, 1, {v(q)}")
    k(f"s_mul_i32 s5, {s(WAVE)}, {2 * 27 * 5120}")
    k(f"s_mul_i32 s6, {s(su)}, 5120")
    k(f"s_add_u32 s5, s5, s6")
    k(f"s_add_u32 s5, s5, {WO + 2048}")
    k(f"v_lshl_add_u32 {v(off)}, {v(LANE)}, 4, s5")
    k(f"s_mov_b32 s6, {hex(SEL_LO)}")
    k(f"s_mov_b32 s7, {hex(SEL_HI)}")
    order = [0, 2, 4, 6, 1, 3, 5, 7]
    for c in range(2):
        t = R(24, 4)
        o = R(20, 4)
        for b in range(2):
            for e in range(8):
                k(f"ds_read_b32 {v(t + 8 * b + e)}, {v(ap)} offset:{order[e] * 1280 + 160 * c + 64 * b}")
        for e in range(8):
            k(f"ds_read_u16 {v(t + 16 + e)}, {v(aq)} offset:{order[e] * 1280 + 160 * c + 128}")
        for b in range(2):
            for par in range(2):
                for j in range(4):
                    k(f"v_perm_b32 {v(o + 8 * b + 4 * par + j)}, {v(t + 8 * b + 2 * j + 1)}, {v(t + 8 * b + 2 * j)}, s{6 + par}")
        for j in range(4):
            k(f"v_perm_b32 {v(o + 16 + j)}, {v(t + 16 + 2 * j + 1)}, {v(t + 16 + 2 * j)}, s6")
        for dt in range(5):
            k(f"global_store_dwordx4 {v(off)}, {v(o + 4 * dt, 4)}, {sp(WS)} offset:{1024 * dt - 2048} {st}")
        if c == 0:
            k(f"v_add_u32 {v(off)}, {27 * 5120}, {v(off)}")


def load_mod4(k, dst, tmp, voff, row, ld=""):
    base = MODP + row * D * 4
    k(f"v_add_u32 {v(tmp + 4)}, {base}, {v(voff)}")
    k(f"global_load_dwordx4 {v(dst, 4)}, {v(tmp + 4)}, {sp(WS)} {ld}")
    k(f"v_add_u32 {v(tmp + 4)}, {base + 3840 * 4}, {v(voff)}")
    k(f"global_load_dwordx4 {v(tmp, 4)}, {v(tmp + 4)}, {sp(WS)} {ld}")


def fin_mod4(k, dst, tmp, plus1=False):
    for j in range(4):
        k(f"v_add_f32 {v(dst + j)}, {v(dst + j)}, {v(tmp + j)}")
    for j in range(4):
        round_bf16(k, dst + j)
    if plus1:
        for j in range(4):
            k(f"v_add_f32 {v(dst + j)}, 1.0, {v(dst + j)}")
        for j in range(4):
            round_bf16(k, dst + j)


def wp_unit(k, su, st="sc1"):
    R = Alloc(2, 250)
    n, q, off = R(), R(), R()
    k(f"v_and_b32 {v(n)}, 15, {v(LANE)}")
    k(f"v_lshrrev_b32 {v(q)}, 4, {v(LANE)}")
    k(f"s_mul_i32 s4, {s(WAVE)}, {160 * 3456}")
    k(f"s_lshl_b32 s5, {s(su)}, 6")
    k(f"s_add_u32 s4, s4, s5")
    k(f"s_add_u32 s4, s4, 3456")
    k(f"v_mul_u32_u24 {v(off)}, {8 * 3456}, {v(q)}")
    k(f"v_lshl_add_u32 {v(off)}, {v(n)}, 2, {v(off)}")
    k(f"v_add_u32 {v(off)}, s4, {v(off)}")
    w = R(40, 4)
    cur = 1
    for ks in range(5):
        for e in range(8):
            row = 32 * ks + e
            if row - cur > 1:
                k(f"v_add_u32 {v(off)}, {(row + 1 - cur) * 3456}, {v(off)}")
                cur = row + 1
            k(f"global_load_dword {v(w + 8 * ks + e)}, {v(off)}, {sp(WIN)} offset:{(row - cur) * 3456} nt")
    mo = R()
    cb4, t0 = R(4, 4), R(5, 4)
    sb4, t1 = R(4, 4), R(5, 4)
    k(f"v_min_u32 {v(mo)}, 39, {v(LANE)}")
    k(f"s_mul_i32 s5, {s(WAVE)}, 640")
    k(f"v_lshl_add_u32 {v(mo)}, {v(mo)}, 4, s5")
    load_mod4(k, cb4, t0, mo, 4)
    load_mod4(k, sb4, t1, mo, 3)
    fin_mod4(k, cb4, t0, plus1=True)
    fin_mod4(k, sb4, t1)
    k(f"ds_write_b128 {v(mo)}, {v(cb4, 4)}")
    k(f"ds_write_b128 {v(mo)}, {v(sb4, 4)} offset:2560")
    ta = R()
    k(f"v_lshl_add_u32 {v(ta)}, {v(q)}, 5, s5")
    k(f"s_cmp_ge_u32 {s(su)}, 27")
    k(f"s_cselect_b32 s6, -54, 56")
    k(f"s_lshl_b32 s7, {s(su)}, 1")
    k(f"s_add_u32 s6, s6, s7")
    k(f"s_mul_i32 s4, s6, 20480")
    k(f"s_mul_i32 s5, {s(WAVE)}, 5120")
    k(f"s_add_u32 s4, s4, s5")
    k(f"s_add_u32 s4, s4, {WP + 2048}")
    oe, oo = R(), R()
    k(f"v_lshl_add_u32 {v(oe)}, {v(LANE)}, 4, s4")
    k(f"v_add_u32 {v(oo)}, 20480, {v(oe)}")
    k(f"s_mov_b32 s7, {hex(ONES)}")
    uu = R(4, 2)
    for j in range(4):
        k(f"v_mov_b32 {v(uu + j)}, 0")
    cst = [R(16, 4) for _ in range(2)]
    un = R(16, 2)
    pr = R(16, 2)
    outs = [R(8, 4) for _ in range(2)]
    for ks in range(5):
        cc = cst[ks & 1]
        o = outs[ks & 1]
        for h in range(2):
            k(f"ds_read_b128 {v(cc + 4 * h, 4)}, {v(ta)} offset:{128 * ks + 16 * h}")
            k(f"ds_read_b128 {v(cc + 8 + 4 * h, 4)}, {v(ta)} offset:{2560 + 128 * ks + 16 * h}")
        for e in range(8):
            unpack(k, un + 2 * e, un + 2 * e + 1, w + 8 * ks + e)
        for e in range(8):
            pk(k, "mul", pr + 2 * e, [("p", un + 2 * e), ("b", cc + e)])
        for par in range(2):
            for j in range(4):
                k(f"v_cvt_pk_bf16_f32 {v(o + 4 * par + j)}, {v(pr + 4 * j + par)}, {v(pr + 4 * j + 2 + par)}")
        k(f"global_store_dwordx4 {v(oe)}, {v(o, 4)}, {sp(WS)} offset:{1024 * ks - 2048} {st}")
        k(f"global_store_dwordx4 {v(oo)}, {v(o + 4, 4)}, {sp(WS)} offset:{1024 * ks - 2048} {st}")
        for e in range(8):
            pk(k, "fma", uu + 2, [("p", un + 2 * e), ("b", cc + 8 + e), ("p", uu + 2)])
        for j in range(4):
            for par in range(2):
                k(f"v_dot2_f32_bf16 {v(uu + par)}, {v(o + 4 * par + j)}, s7, {v(uu + par)}")
    k(f"v_permlane32_swap_b32 {v(uu)}, {v(uu + 1)}")
    k(f"v_permlane32_swap_b32 {v(uu + 2)}, {v(uu + 3)}")
    k(f"v_add_f32 {v(uu)}, {v(uu)}, {v(uu + 1)}")
    k(f"v_add_f32 {v(uu + 2)}, {v(uu + 2)}, {v(uu + 3)}")
    k(f"v_permlane16_swap_b32 {v(uu)}, {v(uu + 2)}")
    k(f"v_add_f32 {v(uu)}, {v(uu)}, {v(uu + 2)}")
    k(f"v_lshlrev_b32 {v(ta)}, 2, v0")
    k(f"ds_write_b32 {v(ta)}, {v(uu)} offset:5120")
    k.drain()
    k("s_barrier")
    k(f"v_lshlrev_b32 {v(ta)}, 2, {v(LANE)}")
    for i in range(4):
        k(f"ds_read_b32 {v(un + i)}, {v(ta)} offset:{5120 + 256 * i}")
    k(f"s_lshl_b32 s6, s6, 7")
    k(f"s_add_u32 s6, s6, {U}")
    k(f"v_add_u32 {v(ta)}, s6, {v(ta)}")
    k(f"v_add_f32 {v(un)}, {v(un)}, {v(un + 1)}")
    k(f"v_add_f32 {v(un + 2)}, {v(un + 2)}, {v(un + 3)}")
    k(f"v_add_f32 {v(un)}, {v(un)}, {v(un + 2)}")
    k(f"v_min_u32 {v(un)}, -2, {v(un)}")
    lab = f"Lwp_skip_{id(k) & 0xffff}_{len(k)}"
    k(f"s_cmp_lg_u32 {s(WAVE)}, 0")
    k(f"s_cbranch_scc1 {lab}")
    k(f"global_store_dword {v(ta)}, {v(un)}, {sp(WS)} {st}")
    k(f"{lab}:")


def wp_zero_unit(k, su, st="sc1"):
    R = Alloc(2, 250)
    off = R()
    z = R(4, 4)
    for j in range(4):
        k(f"v_mov_b32 {v(z + j)}, 0")
    k(f"s_mul_i32 s4, {s(su)}, {56 * 20480}")
    k(f"s_add_u32 s4, s4, {WP + 54 * 20480}")
    k(f"v_lshl_add_u32 {v(off)}, v0, 4, s4")
    for i in range(10):
        k(f"global_store_dwordx4 {v(off)}, {v(z, 4)}, {sp(WS)} {st}")
        k(f"v_add_u32 {v(off)}, 4096, {v(off)}")
    k(f"s_mul_i32 s4, {s(su)}, {56 * 128}")
    k(f"s_add_u32 s4, s4, {U + 54 * 128}")
    k(f"v_lshl_add_u32 {v(off)}, {v(LANE)}, 2, s4")
    k(f"global_store_dword {v(off)}, {v(z)}, {sp(WS)} {st}")


def fill_unit(k, base, nbytes_per_wg, su, val=-1, st="sc1"):
    R = Alloc(2, 250)
    off = R()
    z = R(4, 4)
    for j in range(4):
        k(f"v_mov_b32 {v(z + j)}, {val}")
    k(f"s_mul_i32 s4, {s(su)}, {nbytes_per_wg}")
    k(f"s_add_u32 s4, s4, {base}")
    k(f"v_lshl_add_u32 {v(off)}, v0, 4, s4")
    for i in range(nbytes_per_wg // 4096):
        k(f"global_store_dwordx4 {v(off)}, {v(z, 4)}, {sp(WS)} {st}")
        k(f"v_add_u32 {v(off)}, 4096, {v(off)}")
```

```python
import math
from asmlib import Stream, Alloc, v, a, s, weave, sprinkle
from blocks import *

N_, Q_, L16, TROW, WO0, WO1 = 2, 3, 4, 5, 6, 7
UZ2, UZ1 = 8, 12
VFREE = 28
SRB, SCB, SUN, SRI = 40, 41, 42, 43
SPIN = 0x40000
JB, ZB, WB, GC, MK, SW9, STGW = 44, 52, 68, 84, 86, 88, 89

KT, KCP = 0, 4224
UT, UCP = 8 * KCP, 4640
UCH = 2 * UCP
YT, YCH = 0, 1056
AI, AFR = 0, 1040
STG = 80 * AFR
SX = STG + 65536
TB = SX + 2048
RED = 135 * 1024
MAIN_LDS = 163840

C0 = -2.0 * math.sqrt(2.0 / math.pi) * math.log2(math.e)
C1 = C0 * 0.044715


def common_regs(k):
    k(f"v_and_b32 {v(N_)}, 15, {v(LANE)}")
    k(f"v_lshrrev_b32 {v(Q_)}, 4, {v(LANE)}")
    k(f"v_lshlrev_b32 {v(L16)}, 4, {v(LANE)}")
    k(f"v_lshrrev_b32 {v(WO0)}, 2, {v(N_)}")
    k(f"v_and_b32 {v(TROW)}, 3, {v(N_)}")
    k(f"v_lshl_add_u32 {v(TROW)}, {v(WO0)}, 3, {v(TROW)}")


def role_ids(k):
    k("s_mov_b32 s100, 0")
    k("s_and_b32 s4, s2, 7")
    k("s_lshr_b32 s5, s2, 3")
    k(f"s_lshr_b32 s{SRI}, s5, 2")
    k(f"s_lshr_b32 s6, s{SRI}, 1")
    k("s_lshl_b32 s6, s6, 3")
    k("s_and_b32 s7, s4, 6")
    k("s_add_u32 s6, s6, s7")
    k(f"s_and_b32 s7, s{SRI}, 1")
    k(f"s_add_u32 s{SRB}, s6, s7")
    k("s_and_b32 s6, s4, 1")
    k("s_lshl_b32 s6, s6, 2")
    k("s_and_b32 s7, s5, 3")
    k(f"s_add_u32 s{SCB}, s6, s7")


def maxchain(k, dst, regs, first=True):
    regs = list(regs)
    if first:
        if len(regs) % 2:
            k(f"v_max3_u32 {v(dst)}, {v(regs[0])}, {v(regs[1])}, {v(regs[2])}" if len(regs) > 1 else f"v_mov_b32 {v(dst)}, {v(regs[0])}")
            regs = regs[3:]
        else:
            k(f"v_max_u32 {v(dst)}, {v(regs[0])}, {v(regs[1])}")
            regs = regs[2:]
    for i in range(0, len(regs), 2):
        k(f"v_max3_u32 {v(dst)}, {v(regs[i])}, {v(regs[i + 1])}, {v(dst)}")


def poll(k, name, loads, regs, tmp, sleep=0):
    if sleep:
        k(f"s_branch {name}_f")
    k(f"{name}:")
    if sleep:
        k(f"s_sleep {sleep}")
        k(f"{name}_f:")
    loads(k)
    k.drain(lgkm=False)
    maxchain(k, tmp, regs)
    k(f"v_cmp_eq_u32 vcc, -1, {v(tmp)}")
    k("s_add_u32 s100, s100, 1")
    k(f"s_cmp_ge_u32 s100, {SPIN}")
    k(f"s_cbranch_scc1 {name}_x")
    k(f"s_cbranch_vccnz {name}")
    k(f"{name}_x:")


def check(k, stubs, name, loads, regs, tmp, cmp=True):
    if cmp:
        k(f"v_cmp_eq_u32 vcc, -1, {v(tmp)}")
    k(f"s_cbranch_vccnz {name}_r")
    k(f"{name}_ok:")
    st = Stream()
    st(f"{name}_r:")
    st("s_nop 7")
    poll(st, name + "_p", loads, regs, tmp)
    st("s_nop 1")
    st(f"s_branch {name}_ok")
    stubs.append(st)


WA = 8


def w_setup(k):
    k(f"s_and_b32 s4, s{SCB}, 1")
    k(f"s_lshl_b32 s5, {s(WAVE)}, 1")
    k("s_add_u32 s5, s5, s4")
    k("s_cmp_eq_u32 s5, 7")
    k("s_cselect_b32 s5, 0, s5")
    k(f"s_mul_i32 s96, s{SCB}, 7")
    k("s_add_u32 s96, s96, s5")
    k("s_cmp_lt_u32 s96, 54")
    k("s_cselect_b32 s101, 2, 0")
    k("s_min_u32 s96, s96, 53")
    k(f"s_cmp_eq_u32 {s(WAVE)}, 3")
    k("s_cselect_b32 s101, 1, s101")
    k("s_lshr_b32 s97, s101, 1")
    k("s_cselect_b32 s5, -1, 0")
    k(f"v_and_b32 {v(WO1)}, s5, {v(L16)}")
    k("s_add_u32 s97, s97, s96")
    for sl in range(2):
        k(f"s_mul_i32 s4, s{96 + sl}, 20480")
        for i in range(3):
            k(f"s_add_u32 s5, s4, {WP + 4096 + 8192 * i}")
            k(f"s_add_u32 s{WA + 6 * sl + 2 * i}, s{WS}, s5")
            k(f"s_addc_u32 s{WA + 6 * sl + 2 * i + 1}, s{WS + 1}, 0")


WA2 = ZB


def w_next_part(k):
    for i in range(6):
        k(f"s_add_u32 s{WA2 + 2 * i}, s{WA + 2 * i}, {56 * 20480}")
        k(f"s_addc_u32 s{WA2 + 2 * i + 1}, s{WA + 2 * i + 1}, 0")


UTB = 156672


def u_addr(k, t, t1):
    k(f"v_bfe_u32 {v(t)}, {v(LANE)}, 3, 1")
    k("s_sub_u32 s4, s97, s96")
    k(f"v_mul_u32_u24 {v(t)}, s4, {v(t)}")
    k(f"v_add_lshl_u32 {v(t)}, {v(t)}, s96, 7")
    k(f"v_mul_u32_u24 {v(t1)}, {56 * 128}, {v(Q_)}")
    k(f"v_add_u32 {v(t)}, {v(t)}, {v(t1)}")
    k(f"v_and_b32 {v(t1)}, 112, {v(L16)}")
    k(f"v_add_u32 {v(t)}, {v(t)}, {v(t1)}")
    k(f"v_add_u32 {v(t)}, {U}, {v(t)}")


def u_load(t, d):
    return lambda k: k(f"global_load_dwordx4 {v(d, 4)}, {v(t)}, {sp(WS)} sc1")


def u_keep(k, t, d):
    for j in range(2):
        k(f"v_permlane32_swap_b32 {v(d + j)}, {v(d + 2 + j)}")
    k(f"s_lshl_b32 s4, {s(WAVE)}, 9")
    k(f"s_add_u32 s4, s4, {UTB}")
    k(f"v_and_b32 {v(t)}, 496, {v(L16)}")
    for j in range(2):
        k(f"v_add_f32 {v(d + j)}, {v(d + j)}, {v(d + 2 + j)}")
    k(f"v_bfe_u32 {v(d + 2)}, {v(LANE)}, 3, 1")
    k(f"v_cmp_gt_u32 vcc, s101, {v(d + 2)}")
    k(f"v_lshrrev_b32 {v(d + 2)}, 5, {v(LANE)}")
    k(f"v_lshl_add_u32 {v(t)}, {v(d + 2)}, 3, {v(t)}")
    for j in range(2):
        k(f"v_cndmask_b32 {v(d + j)}, 0, {v(d + j)}, vcc")
    k(f"v_add_u32 {v(t)}, s4, {v(t)}")
    k(f"ds_write_b64 {v(t)}, {v(d, 2)}")


def wreg(part, ks, sl):
    return (96 if part == 0 else 0) + 8 * ks + 4 * sl


def w_load(k, part, ks, sl):
    b = (WA2 if part else WA) + 6 * sl + 2 * (ks // 8)
    k(f"global_load_dwordx4 {a(wreg(part, ks, sl), 4)}, {v(WO1 if sl else L16)}, s[{b}:{b + 1}] offset:{1024 * (ks % 8) - 4096} sc1")


def w_loads(k, part, k0, k1, step=1):
    for ks in range(k0, k1)[::step]:
        for sl in range(2):
            w_load(k, part, ks, sl)


def own_fill(st, ad, z):
    for j in range(4):
        st(f"v_mov_b32 {v(z + j)}, -1")
    st(f"s_lshl_b32 s4, s{SCB}, 5")
    st(f"s_add_u32 s4, s4, s{SRB}")
    st("s_mul_i32 s4, s4, 14336")
    st(f"s_lshl_b32 s5, {s(WAVE)}, 12")
    st("s_min_u32 s5, s5, 10240")
    st("s_add_u32 s4, s4, s5")
    st(f"s_add_u32 s4, s4, {Z2}")
    st(f"v_add_u32 {v(ad)}, s4, {v(L16)}")
    for i in range(4):
        st(f"global_store_dwordx4 {v(ad)}, {v(z, 4)}, {sp(WS)} offset:{1024 * i} sc1")
    st(f"s_lshl_b32 s4, s{SRB}, 2")
    st(f"s_add_u32 s4, s4, {s(WAVE)}")
    st("s_mul_i32 s4, s4, 28")
    st(f"s_mul_i32 s5, s{SCB}, 7")
    st("s_lshr_b32 s5, s5, 1")
    st("s_add_u32 s4, s4, s5")
    st("s_lshl_b32 s4, s4, 10")
    st(f"s_add_u32 s4, s4, {P}")
    st(f"v_add_u32 {v(ad)}, s4, {v(L16)}")
    for i in range(4):
        st(f"global_store_dwordx4 {v(ad)}, {v(z, 4)}, {sp(WS)} offset:{1024 * i} sc1")


def flag_store(st, name, t, sreg):
    st(f"v_mov_b32 {v(t)}, s{sreg}")
    fl = Stream()
    fl(f"s_cmp_lg_u32 {s(WAVE)}, 0")
    fl(f"s_cbranch_scc1 {name}")
    fl(f"global_store_dword {v(t)}, {v(t)}, {sp(WS)} sc1")
    fl(f"{name}:")
    st.raw(fl)


def stream(fn, *args):
    st = Stream()
    fn(st, *args)
    return st


def gelu(k, regs, tmp, gc):
    n = len(regs)
    for i, r in enumerate(regs):
        pk(k, "mul", tmp + 2 * i, [("p", r), ("p", r)])
    for i, r in enumerate(regs):
        pk(k, "fma", tmp + 2 * i, [("p", tmp + 2 * i), ("sb", gc + 1), ("sb", gc)])
    for i, r in enumerate(regs):
        pk(k, "mul", tmp + 2 * i, [("p", tmp + 2 * i), ("p", r)])
    for i in range(2 * n):
        k(f"v_exp_f32 {v(tmp + i)}, {v(tmp + i)}")
    for i in range(n):
        pk(k, "add", tmp + 2 * i, [("p", tmp + 2 * i), ("c", "1.0")])
    for i in range(2 * n):
        k(f"v_rcp_f32 {v(tmp + i)}, {v(tmp + i)}")
    for i, r in enumerate(regs):
        pk(k, "mul", r, [("p", r), ("p", tmp + 2 * i)])


GBT = RED + 2 * 12288


def k_order(k):
    k(f"s_and_b32 s4, s{SCB}, 3")
    k("s_cmp_eq_u32 s4, 0")
    k("s_cselect_b32 s5, 8, 0")
    k("s_cmp_le_u32 s4, 1")
    k("s_cselect_b32 s6, 16, 8")
    k("s_cmp_eq_u32 s4, 3")
    k(f"s_cselect_b32 s{JB + 6}, 16, 24")
    k(f"s_lshl_b32 s{JB}, s4, 3")
    k(f"s_bitcmp1_b32 s{SRI}, 0")
    k(f"s_cselect_b32 s{JB + 2}, s6, s5")
    k(f"s_cselect_b32 s{JB + 4}, s5, s6")
    k(f"s_lshl_b32 s5, {s(WAVE)}, 1")
    for qi in range(4):
        k(f"s_add_u32 s{JB + 2 * qi}, s{JB + 2 * qi}, s5")
        k(f"s_add_u32 s{JB + 2 * qi + 1}, s{JB + 2 * qi}, 1")
    k(f"s_lshl_b32 s5, s{SRB}, 18")
    for i in range(8):
        k(f"s_lshl_b32 s6, s{JB + i}, 7")
        k("s_add_u32 s6, s6, s5")
        k(f"s_add_u32 s{WB + 2 * i}, s{WSP}, s6")
        k(f"s_addc_u32 s{WB + 2 * i + 1}, s{WSP + 1}, 0")
    k(f"s_lshl_b32 s{STGW}, {s(WAVE)}, 14")
    k(f"s_add_u32 s{STGW}, s{STGW}, {STG}")


def dma_offsets(k, do, t0, t1):
    k(f"v_lshrrev_b32 {v(t0)}, 3, {v(LANE)}")
    k(f"v_lshlrev_b32 {v(t0)}, 12, {v(t0)}")
    k(f"v_bfe_u32 {v(t1)}, {v(LANE)}, 4, 1")
    k(f"v_xor_b32 {v(t1)}, {v(t1)}, {v(LANE)}")
    k(f"v_and_b32 {v(t1)}, 7, {v(t1)}")
    for pi in range(4):
        k(f"v_xor_b32 {v(do + pi)}, {2 * pi}, {v(t1)}")
        k(f"v_lshl_add_u32 {v(do + pi)}, {v(do + pi)}, 4, {v(t0)}")
        if pi:
            k(f"v_add_u32 {v(do + pi)}, {pi * (8 * 4096 - 1024)}, {v(do + pi)}")
        k(f"v_add_u32 {v(do + 4 + pi)}, {32 * 4096}, {v(do + pi)}")


def wsp_dma(st, i, do):
    toks = []
    for pi in range(8):
        if pi % 4 == 0:
            st(f"s_add_u32 m0, s{STGW}, {(i & 1) * 8192 + 1024 * pi}")
        toks.append(st(f"global_load_lds_dwordx4 {v(do + pi)}, s[{WB + 2 * i}:{WB + 2 * i + 1}] offset:{1024 * (pi % 4)}"))
    return toks


def gemm_phases(k, stubs, cfg):
    t0, t1, l8, bs, xres, zp, z1r = 28, 29, 30, 32, 36, 46, 48
    afr, NAF = 48, 6
    st4, xo0, xo, aw0, aw, srow, mx, pa = 62, 66, 67, 68, 69, 70, 71, 72
    do, ra, pr, xr = 74, 82, 90, 98
    rs, tmp, rz1 = 98, 130, 162
    tw, tq, tn, ar1, so, t2 = 170, 171, 172, 173, 174, 175
    acc2, acc1, gq = 178, 210, 242
    kk, k = k, Stream()
    k(f"v_and_b32 {v(t0)}, 7, {v(LANE)}")
    k(f"v_lshl_add_u32 {v(t0)}, {v(Q_)}, 3, {v(t0)}")
    k(f"v_bfe_u32 {v(t1)}, {v(LANE)}, 3, 1")
    k(f"v_lshlrev_b32 {v(xo0)}, 9, {v(t1)}")
    k(f"v_lshl_add_u32 {v(xo0)}, {v(t0)}, 4, {v(xo0)}")
    k(f"s_mul_i32 s4, {s(WAVE)}, 20480")
    k(f"s_mul_i32 s5, s{SRB}, 81920")
    k("s_add_u32 s4, s4, s5")
    k(f"s_add_u32 s4, s4, {X1}")
    k(f"v_add_u32 {v(xo0)}, s4, {v(xo0)}")
    k(f"v_lshl_add_u32 {v(srow)}, {v(t0)}, 1, {v(t1)}")
    k(f"v_min_u32 {v(pa)}, 39, {v(LANE)}")
    k(f"v_lshl_add_u32 {v(pa)}, {v(pa)}, 9, s4")
    kk.extend(k)
    k = kk
    stamp(k, 14)
    k(f"s_cmp_lt_u32 s{SRI}, {cfg.get('xskip', 5)}")
    k("s_cbranch_scc1 Lx_first")
    k("Lx_redo:")
    pst = Stream()
    poll(pst, "Lxp", lambda st: st(f"global_load_dword {v(mx)}, {v(pa)}, {sp(WS)} offset:508 sc1"), [mx], mx, cfg.get("slx", 1))
    k.raw(pst)
    k("Lx_first:")
    stamp(k, 15)
    k(f"s_mov_b32 s7, {hex(ONES)}")
    k(f"v_add_u32 {v(xo)}, 4096, {v(xo0)}")
    AHEAD = cfg.get("xahead", 10)

    def xload(i):
        k(f"global_load_dwordx4 {v(xr + 4 * i, 4)}, {v(xo)}, {sp(WS)} offset:{1024 * (i % 8) - 4096} sc1")
        if i % 8 == 7:
            k(f"v_add_u32 {v(xo)}, 8192, {v(xo)}")

    for i in range(AHEAD):
        xload(i)
    k(f"v_lshrrev_b32 {v(t0)}, 5, {v(LANE)}")
    k(f"v_bfe_u32 {v(aw0)}, {v(LANE)}, 1, 1")
    k(f"v_lshl_add_u32 {v(t0)}, {v(t0)}, 1, {v(aw0)}")
    k(f"v_mul_u32_u24 {v(aw0)}, {AFR}, {v(t0)}")
    for bit, sh in ((3, 3), (2, 6), (4, 7), (0, 5)):
        k(f"v_bfe_u32 {v(t0)}, {v(LANE)}, {bit}, 1")
        k(f"v_lshl_add_u32 {v(aw0)}, {v(t0)}, {sh}, {v(aw0)}")
    k(f"s_mul_i32 s5, {s(WAVE)}, {20 * AFR}")
    k(f"v_add_u32 {v(aw0)}, s5, {v(aw0)}")
    k(f"v_lshlrev_b32 {v(l8)}, 3, {v(LANE)}")
    k(f"s_lshl_b32 s{SW9}, {s(WAVE)}, 9")
    dma_offsets(k, do, t0, t1)
    k(f"v_lshrrev_b32 {v(t1)}, 1, {v(N_)}")
    k(f"v_xor_b32 {v(t1)}, {v(t1)}, {v(Q_)}")
    k(f"v_lshlrev_b32 {v(t1)}, 4, {v(t1)}")
    k(f"v_lshl_add_u32 {v(t1)}, {v(TROW)}, 7, {v(t1)}")
    for tau in range(4):
        k(f"s_xor_b32 s4, {s(WAVE)}, {tau}")
        k("s_lshr_b32 s5, s4, 1")
        k("s_lshl_b32 s5, s5, 12")
        k("s_and_b32 s4, s4, 1")
        k("s_lshl_b32 s4, s4, 9")
        k("s_add_u32 s4, s4, s5")
        k(f"s_add_u32 s4, s4, s{STGW}")
        k(f"v_add_u32 {v(ra + 2 * tau)}, s4, {v(t1)}")
        k(f"v_xor_b32 {v(ra + 2 * tau + 1)}, 64, {v(ra + 2 * tau)}")
    w_next_part(k)
    k(f"s_mov_b32 s{GC}, {hex(fbits(C0))}")
    k(f"s_mov_b32 s{GC + 1}, {hex(fbits(C1))}")
    k(f"s_lshr_b32 s5, {s(WAVE)}, 1")
    k("s_lshl_b32 s5, s5, 5")
    k(f"s_and_b32 s6, {s(WAVE)}, 1")
    k("s_lshl_b32 s6, s6, 2")
    k("s_add_u32 s6, s6, s5")
    k(f"s_lshl_b32 s5, s{SRB}, 6")
    k("s_add_u32 s90, s6, s5")
    xa = 46
    k(f"s_mul_i32 s5, s{SCB}, 10")
    k(f"s_mul_i32 s6, {s(WAVE)}, {AFR}")
    for j in range(2):
        if j:
            k(f"v_lshrrev_b32 {v(t0)}, 1, {v(Q_)}")
        k(f"v_add_u32 {v(t0)}, s5, {v(t0 if j else Q_)}")
        k(f"v_lshrrev_b32 {v(t1)}, 2, {v(t0)}")
        k(f"v_mul_u32_u24 {v(t1)}, {4 * AFR - 1024}, {v(t1)}")
        k(f"v_lshl_add_u32 {v(t1)}, {v(t0)}, 8, {v(t1)}")
        k(f"v_lshl_add_u32 {v(t1)}, {v(N_)}, 4, {v(t1)}")
        k(f"v_add_u32 {v(xa + j)}, s6, {v(t1)}")
    k(f"v_and_b32 {v(t0)}, 1, {v(Q_)}")
    k(f"v_lshl_add_u32 {v(xa + 1)}, {v(t0)}, 3, {v(xa + 1)}")
    for j in range(4):
        k(f"v_mov_b32 {v(st4 + j)}, 0")
    k(f"v_mov_b32 {v(mx)}, 0")
    wl = [(ks, sl) for ks in range(cfg.get("wlate", 4)) for sl in range(2)]
    for i in range(20):
        if i + AHEAD < 20:
            xload(i + AHEAD)
        elif wl:
            w_load(k, 0, *wl.pop(0))
        if i % 4 == 0:
            k(f"v_add_u32 {v(aw)}, {(i // 4) * 4 * AFR}, {v(aw0)}")
        k(f"ds_write2_b64 {v(aw)}, {v(xr + 4 * i, 2)}, {v(xr + 4 * i + 2, 2)} offset0:{32 * (i % 4)} offset1:{32 * (i % 4) + 2}")
        if i & 1:
            maxchain(k, mx, [xr + 4 * i - 1, xr + 4 * i + 3], first=False)
        for j in range(2):
            for r in range(2):
                src = xr + 4 * i + 2 * r + j
                k(f"v_dot2_f32_bf16 {v(st4 + 2 * r)}, {v(src)}, s7, {v(st4 + 2 * r)}")
                k(f"v_dot2_f32_bf16 {v(st4 + 2 * r + 1)}, {v(src)}, {v(src)}, {v(st4 + 2 * r + 1)}")
    k(f"v_cmp_eq_u32 vcc, -1, {v(mx)}")
    k(f"s_cmp_ge_u32 s100, {SPIN}")
    k("s_cbranch_scc1 Lx_go")
    k("s_cbranch_vccnz Lx_redo")
    k("Lx_go:")
    for j in range(2):
        k(f"v_add_f32_dpp {v(pr + j)}, {v(st4 + j)}, {v(st4 + j)} row_ror:8 row_mask:0xf bank_mask:0x3")
        k(f"v_add_f32_dpp {v(pr + j)}, {v(st4 + 2 + j)}, {v(st4 + 2 + j)} row_ror:8 row_mask:0xf bank_mask:0xc")
    k(f"s_add_u32 s4, s{SW9}, {SX}")
    k(f"v_lshl_add_u32 {v(t0)}, {v(srow)}, 3, s4")
    k(f"ds_write_b64 {v(t0)}, {v(pr, 2)}")
    k.barrier()
    stamp(k, 16)
    k(f"v_add_u32 {v(ar1)}, {40 * AFR}, {v(L16)}")
    wlate = cfg.get("wlate", 4)
    kord = [list(range(wlate, 20))[::-1] + list(range(wlate)), list(range(20))]

    def read_rs(st):
        for tbl in range(2):
            for h in range(2):
                for o in range(2):
                    st(f"ds_read_b128 {v(rs + 16 * tbl + 8 * h + 4 * o, 4)}, {v(tq)} offset:{256 * tbl + 128 * h + 16 * o}")

    def mainloop(acc, part):
        st = Stream()

        def aread(f):
            ks, mt = kord[part][f >> 2], f & 3
            return st(f"ds_read_b128 {v(afr + 4 * (f % NAF), 4)}, {v(ar1 if ks >= 10 else L16)} offset:{AI + (4 * (ks % 10) + mt) * AFR}")

        tok = {f: aread(f) for f in range(NAF - 1)}
        for f in range(80):
            ks, mt = kord[part][f >> 2], f & 3
            if f % 2 == 0:
                st.wait(tok[f + 1])
            for sl in range(2):
                d = v(acc + 16 * sl + 4 * mt, 4)
                x, w = v(afr + 4 * (f % NAF), 4), a(wreg(part, ks, sl), 4)
                st(f"v_mfma_f32_16x16x32_bf16 {d}, {w if part else x}, {x if part else w}, {d if f >= 4 else 0}")
                if sl == 0 and f + NAF - 1 < 80:
                    tok[f + NAF - 1] = aread(f + NAF - 1)
        return st

    sf = Stream()
    sf(f"v_add_u32 {v(t0)}, {SX}, {v(l8)}")
    for i in range(4):
        sf(f"ds_read_b64 {v(pr + 2 * i, 2)}, {v(t0)} offset:{512 * i}")
    sf(f"s_add_u32 s4, s{SW9}, {TB}")
    sf(f"v_lshl_add_u32 {v(tw)}, {v(LANE)}, 2, s4")
    sf(f"v_lshl_add_u32 {v(tq)}, {v(Q_)}, 5, s4")
    sf(f"v_lshl_add_u32 {v(tn)}, {v(TROW)}, 2, s4")
    vop(sf, "add", pr, [("p", pr), ("p", pr + 2)], False)
    vop(sf, "add", pr + 4, [("p", pr + 4), ("p", pr + 6)], False)
    vop(sf, "add", pr, [("p", pr), ("p", pr + 4)], False)
    row_stats(sf, pr, pr + 1, D, pr + 2)
    sf(f"ds_write2st64_b32 {v(tw)}, {v(pr)}, {v(pr + 1)} offset0:0 offset1:1")
    read_rs(sf)
    for mt in range(4):
        off = 128 * (mt >> 1) + 16 * (mt & 1)
        sf(f"ds_read_b32 {v(rz1 + 2 * mt)}, {v(tn)} offset:{off}")
        sf(f"ds_read_b32 {v(rz1 + 2 * mt + 1)}, {v(tn)} offset:{256 + off}")
    sf(f"s_add_u32 s4, s{SW9}, {UTB}")
    sf(f"v_lshl_add_u32 {v(t0)}, {v(N_)}, 2, s4")
    for sl in range(2):
        sf(f"ds_read2_b32 {v(UZ2 + 2 * sl, 2)}, {v(t0)} offset0:{32 * sl} offset1:{32 * sl + 16}")
    sf(f"v_lshl_add_u32 {v(t0)}, {v(Q_)}, 4, s4")
    for j in range(4):
        sf(f"ds_read_b128 {v(UZ1 + 4 * j, 4)}, {v(t0)} offset:{256 + 64 * j}")
    for i in range(32):
        sf(f"v_fma_f32 {v(tmp + i)}, {v(rs + 16 + i % 16)}, {v(UZ2 + 2 * (i // 16))}, {v(UZ2 + 2 * (i // 16) + 1)}")
    apos = lambda i: (224, 192, 160, 0, 32, 64, 96, 128)[i]
    tk, rd = {0: [], 1: []}, {}

    def dma(st, i):
        st.wait(rd[i - 2])
        tk[i] = wsp_dma(st, i, do)

    def frag(st, i):
        st.wait(*tk[i])
        for ksl in range(2):
            for tau in range(4):
                rd[i] = st(f"ds_read_b128 {a(apos(i) + 16 * ksl + 4 * tau, 4)}, {v(ra + 2 * tau + ksl)} offset:{(i & 1) * 8192}")

    def turn(st, i):
        frag(st, i)
        if i + 2 < 8:
            dma(st, i + 2)

    nw1 = cfg.get("nw1", 6)
    nz2 = cfg.get("nz2", 0)
    allstaged = cfg.get("ne", 0)
    wz = Stream()
    for ks, sl in wl:
        w_load(wz, 0, ks, sl)
    for i in range(allstaged, 2):
        tk[i] = wsp_dma(wz, i, do)
    assert nw1 <= 12
    w_loads(wz, 1, 0, nw1)
    wz2 = Stream()
    for i in range(nz2):
        turn(wz2, i)
    wze = cfg.get("wze", 120)
    assert wze >= 32 * nz2
    k.extend(weave(mainloop(acc2, 0), [(sf, 4, 155), (wz, 0, wze if nz2 else 159), (wz2, wze + 1, 159)]))
    stamp(k, 17)
    zz = Stream()
    zz("s_nop 7")
    zz("s_cmp_eq_u32 s101, 2")
    zz("s_cbranch_scc1 Lz_keep")
    for i in range(16):
        zz(f"v_mov_b32 {v(acc2 + 16 + i)}, 0")
    zz("s_cmp_eq_u32 s101, 1")
    zz("s_cbranch_scc1 Lz_keep")
    for i in range(16):
        zz(f"v_mov_b32 {v(acc2 + i)}, 0")
    zz("Lz_keep:")
    k.raw(zz)

    e2 = Stream()
    for i in range(16):
        pk(e2, "fma", acc2 + 2 * i, [("p", acc2 + 2 * i), ("p", rs + 2 * (i % 8)), ("p", tmp + 2 * i)])
    gelu(e2, [acc2 + 2 * i for i in range(16)], tmp, GC)
    for i in range(8):
        pk(e2, "add", tmp + 2 * i, [("p", acc2 + 2 * i), ("p", acc2 + 16 + 2 * i)])
        pk(e2, "mul", tmp + 16 + 2 * i, [("p", acc2 + 2 * i), ("p", acc2 + 2 * i)])
    for i in range(8):
        pk(e2, "fma", tmp + 16 + 2 * i, [("p", acc2 + 16 + 2 * i), ("p", acc2 + 16 + 2 * i), ("p", tmp + 16 + 2 * i)])
    for i in range(16):
        e2(f"v_add_f32_dpp {v(rs + i)}, {v(tmp + i)}, {v(tmp + i)} row_ror:8 row_mask:0xf bank_mask:0x3")
    for i in range(16):
        e2(f"v_add_f32_dpp {v(rs + i)}, {v(tmp + 16 + i)}, {v(tmp + 16 + i)} row_ror:8 row_mask:0xf bank_mask:0xc")
    for i in range(8):
        e2(f"v_add_f32_dpp {v(tmp + i)}, {v(rs + i)}, {v(rs + i)} row_half_mirror row_mask:0xf bank_mask:0x5")
    for i in range(8):
        e2(f"v_add_f32_dpp {v(tmp + i)}, {v(rs + 8 + i)}, {v(rs + 8 + i)} row_half_mirror row_mask:0xf bank_mask:0xa")
    for i in range(8):
        e2(f"v_add_f32_dpp {v(tmp + i)}, {v(tmp + i)}, {v(tmp + i)} quad_perm:[1,0,3,2] row_mask:0xf bank_mask:0xf")
    for i in range(8):
        e2(f"v_add_f32_dpp {v(tmp + i)}, {v(tmp + i)}, {v(tmp + i)} quad_perm:[2,3,0,1] row_mask:0xf bank_mask:0xf")
    e2(f"v_lshrrev_b32 {v(t0)}, 2, {v(N_)}")
    e2(f"v_lshl_add_u32 {v(t0)}, {v(t0)}, 7, {v(tq)}")
    e2(f"ds_write_b128 {v(t0)}, {v(tmp, 4)}")
    e2(f"ds_write_b128 {v(t0)}, {v(tmp + 4, 4)} offset:16")
    sd = Stream()
    ftok = []
    if not cfg.get("nofill") and not cfg.get("of", 168):
        own_fill(sd, t2, gq)
        ftok = [x for x in sd.ins if x.cls == "vmem"]
    nw2 = cfg.get("nw2", 20)
    w_loads(sd, 1, nw1, nw2)
    ne2 = cfg.get("ne2", 1)
    for i in range(nz2, ne2):
        turn(sd, i)
    k.extend(sprinkle(e2, sd, 0.0, cfg.get("e2end", 0.9)))
    k.wait(*ftok)
    k.barrier()
    k(f"v_lshlrev_b32 {v(t0)}, 2, {v(LANE)}")
    k(f"v_add_u32 {v(t0)}, {TB}, {v(t0)}")
    for i in range(4):
        k(f"ds_read2st64_b32 {v(pr + 2 * i, 2)}, {v(t0)} offset0:{2 * i} offset1:{2 * i + 1}")
    k(f"s_lshl_b32 s4, s{SRB}, 12")
    k(f"s_add_u32 s4, s4, {ST3}")
    k(f"v_add_u32 {v(so)}, s4, {v(l8)}")
    k(f"s_lshl_b32 s4, s{SCB}, 9")
    k(f"v_add_u32 {v(t0)}, s4, {v(so)}")
    k(f"v_subrev_u32 {v(tw)}, {TB - SX}, {v(tw)}")
    k(f"v_subrev_u32 {v(tq)}, {TB - SX}, {v(tq)}")
    pk(k, "add", pr, [("p", pr), ("p", pr + 2)])
    pk(k, "add", pr + 4, [("p", pr + 4), ("p", pr + 6)])
    pk(k, "add", pr, [("p", pr), ("p", pr + 4)])
    k(f"v_min_u32 {v(pr)}, -2, {v(pr)}")
    k(f"v_min_u32 {v(pr + 1)}, -2, {v(pr + 1)}")
    k(f"s_lshl_b32 s4, {s(WAVE)}, 4")
    k(f"s_lshl_b64 exec, 0xffff, s4")
    k(f"global_store_dwordx2 {v(t0)}, {v(pr, 2)}, {sp(WS)} sc1")
    k(f"s_mov_b64 exec, -1")
    k(f"s_lshl_b32 s4, s{SRB}, 3")
    k(f"s_add_u32 s4, s4, s{SCB}")
    k("s_lshl_b32 s4, s4, 7")
    k(f"s_add_u32 s4, s4, {PF}")
    flag_store(k, "Lpf_skip", t2, 4)
    stamp(k, 18)
    sides = []
    first = max(nz2, ne2)
    w0 = (20 - nw2) * 8
    if w0:
        assert w0 + 24 <= 8 * nw2
        sides.append((stream(w_loads, 1, nw2, 20), 0, w0 - 1))
    pos = [w0 + ((130 - w0) * (i - first)) // (6 - first) for i in range(first, 7)] + [150]
    for n_, i in enumerate(range(first, 7)):
        lo_ = max(pos[n_], 32 * (i - 2) + 2)
        sides.append((stream(turn, i), lo_, max(lo_, max(pos[n_ + 1], 32 * (i - 1) + 2) - 1) if i < 6 else 150))
    pl = tmp

    def st3_loads(st):
        for i in range(8):
            st(f"global_load_dwordx2 {v(pl + 2 * i, 2)}, {v(so)}, {sp(WS)} offset:{512 * i} sc1")

    def misc_loads(st):
        st(f"v_min_u32 {v(t2)}, 26, {v(LANE)}")
        st(f"v_lshlrev_b32 {v(t2)}, 7, {v(t2)}")
        st(f"v_add_u32 {v(t2)}, {SDF}, {v(t2)}")
        st(f"global_load_dword {v(gq + 8)}, {v(t2)}, {sp(WS)} sc1")
        st(f"s_mul_i32 s7, s{SCB}, 320")
        st(f"s_add_u32 s7, s7, {MODP + 5 * D * 4}")
        st(f"v_min_u32 {v(t2)}, {19 * 16}, {v(L16)}")
        st(f"v_add_u32 {v(t2)}, s7, {v(t2)}")
        st(f"global_load_dwordx4 {v(gq, 4)}, {v(t2)}, {sp(WS)} sc1")
        st(f"v_add_u32 {v(t2)}, {MODS}, {v(t2)}")
        st(f"global_load_dwordx4 {v(gq + 4, 4)}, {v(t2)}, {sp(WS)} sc1")

    def pf_load(st):
        st(f"v_lshl_add_u32 {v(t2)}, {v(LANE)}, 3, s{SCB}")
        st(f"s_lshl_b32 s7, s{SRB}, 3")
        st(f"v_and_or_b32 {v(pr + 4)}, {v(LANE)}, 7, s7")
        st(f"v_mov_b32_dpp {v(t2)}, {v(pr + 4)} quad_perm:[0,1,2,3] row_mask:0xc bank_mask:0xf")
        st(f"v_lshlrev_b32 {v(t2)}, 7, {v(t2)}")
        st(f"v_add_u32 {v(t2)}, {PF}, {v(t2)}")
        st(f"global_load_dword {v(gq + 9)}, {v(t2)}, {sp(WS)} sc1")

    zs = cfg.get("zsplit", 120)
    s3 = stream(st3_loads)
    pf_load(s3)
    sides.append((s3, zs - cfg.get("st3", 30), zs - cfg.get("st3", 30) + 14))
    rr = Stream()
    misc_loads(rr)
    rr(f"v_add_lshl_u32 {v(t0)}, {v(TROW)}, s90, 1")
    rr(f"global_load_ushort {v(bs)}, {v(t0)}, {sp(BSP)}")
    for j in range(2):
        rr(f"ds_read_b128 {v(xres + 4 * j, 4)}, {v(xa)} offset:{AI + 4 * AFR * j}")
    rr(f"ds_read_b64 {v(xres + 8, 2)}, {v(xa + 1)} offset:{AI + 8 * AFR}")
    gr = list(range(gq, gq + 9))
    maxchain(rr, t0, gr)
    check(rr, stubs, "Lgb", misc_loads, gr, t0)
    fin_mod4(rr, gq, gq + 4)
    rr(f"v_min_u32 {v(t2)}, {19 * 16}, {v(L16)}")
    rr(f"v_add_u32 {v(t2)}, {GBT}, {v(t2)}")
    rr(f"ds_write_b128 {v(t2)}, {v(gq, 4)}")
    rr(f"v_lshlrev_b32 {v(bs)}, 16, {v(bs)}")
    for j in range(1, 4):
        rr(f"v_mov_b32 {v(bs + j)}, {v(bs)}")
    sides.append((rr, 2, zs - cfg.get("st3", 30) - 1))
    sc = Stream()
    sc(f"s_mul_i32 s91, s{SCB}, {64 * 7168}")
    sc(f"s_add_u32 s91, s91, {Z2}")
    for i in range(0, 8, 2):
        sc(f"s_mul_i32 s6, s{JB + i}, 14336")
        sc("s_add_u32 s6, s6, s91")
        sc(f"s_add_u32 s{ZB + 2 * i}, s{WS}, s6")
        sc(f"s_addc_u32 s{ZB + 2 * i + 1}, s{WS + 1}, 0")
        sc(f"s_add_u32 s{ZB + 2 * i + 2}, s{ZB + 2 * i}, 14336")
        sc(f"s_addc_u32 s{ZB + 2 * i + 3}, s{ZB + 2 * i + 1}, 0")
    sides.append((sc, max(zs + 1, w0 + 1), 158))
    zl = weave(mainloop(acc1, 1), sides)
    cutp = len(zl.ins)
    if zs < 160:
        cutp = [i for i, x in enumerate(zl.ins) if x.cls == "mfma"][zs]
    k.ins.extend(zl.ins[:cutp])
    stamp(k, 19)
    s3r = list(range(pl + 1, pl + 16, 2))
    maxchain(k, t0, s3r)
    check(k, stubs, "Ls3", st3_loads, s3r, t0)
    stamp(k, 20)
    for stp in (2, 4, 8):
        for i in range(0, 16, 2 * stp):
            pk(k, "add", pl + i, [("p", pl + i), ("p", pl + i + stp)])
    row_stats(k, pl, pl + 1, FH, pl + 2)
    k(f"ds_write2st64_b32 {v(tw)}, {v(pl)}, {v(pl + 1)} offset0:0 offset1:1")
    read_rs(k)
    k(f"s_lshl_b32 s4, s{SCB}, 6")
    k(f"s_lshl_b32 s5, s{SRB}, 1")
    k("s_add_u32 s4, s4, s5")
    k("s_mul_i32 s4, s4, 7168")
    k(f"s_lshl_b32 s5, {s(WAVE)}, 11")
    k("s_add_u32 s4, s4, s5")
    k(f"s_add_u32 s4, s4, {Z2}")
    k(f"v_add_u32 {v(t0)}, s4, {v(L16)}")
    k(f"v_add_u32 {v(t1)}, 7168, {v(t0)}")
    for sl in range(2):
        for h in range(2):
            for i in range(4 * h, 4 * h + 4):
                r = acc2 + 16 * sl + 2 * i
                pk(k, "fma", r, [("p", r), ("p", rs + 2 * i), ("p", rs + 16 + 2 * i)])
            o = tmp + 8 * sl + 4 * h
            for i in range(4):
                r = acc2 + 16 * sl + 8 * h + 2 * i
                k(f"v_cvt_pk_bf16_f32 {v(o + i)}, {v(r)}, {v(r + 1)}")
            k(f"v_min_u32 {v(o + 3)}, -2, {v(o + 3)}")
            zs_ = f"global_store_dwordx4 {v(t1 if h else t0)}, {v(o, 4)}, {sp(WS)} offset:{1024 * sl} sc1"
            if sl:
                sk = Stream()
                sk(f"s_cmp_eq_u32 {s(WAVE)}, 3")
                sk(f"s_cbranch_scc1 Lzs_{h}")
                sk(zs_)
                sk(f"Lzs_{h}:")
                k.raw(sk)
            else:
                k(zs_)
    stamp(k, 21)
    k.ins.extend(zl.ins[cutp:])
    frag(k, 7)
    check(k, stubs, "Lpf", pf_load, [gq + 9], gq + 9)
    k.barrier()

    stash = UZ2
    zv, mx = 30, t0
    ring, acc = 62, 142
    G, NG, NA = 4, 5, 4
    steps = [4, 5, 6, 7, 8, 9, 10, 11, 0, 1, 2, 3, 12, 13, 14, 15]
    order = [(st_, sl) for st_ in steps[:NA] for sl in range(7)] + [(st_, sl) for sl in range(7) for st_ in steps[NA:]]
    ngrp = len(order) // G
    gA, gS = 7 * NA // G, (16 - NA) // G
    freg = lambda f: ring + 4 * (f % (G * NG))

    def gloads(g):
        def f(st):
            for fi in range(G * g, G * g + G):
                step, sl = order[fi]
                i, ksl = step >> 1, step & 1
                st(f"global_load_dwordx4 {v(freg(fi), 4)}, {v(zv + ksl)}, s[{ZB + 2 * i}:{ZB + 2 * i + 1}] offset:{1024 * sl - 3072} sc1")
        return f

    gregs = lambda g: [freg(fi) + 3 for fi in range(G * g, G * g + G)]
    nzf = cfg.get("zf", 4)

    def zfirst(st):
        st(f"global_load_dword {v(zp)}, {v(t1)}, s[{ZB + 4}:{ZB + 5}] offset:1020 sc1")
        for g in range(nzf):
            gloads(g)(st)

    tmp1 = acc2
    e1 = Stream()
    e1(f"s_lshl_b32 s4, {s(WAVE)}, 10")
    e1(f"s_add_u32 s4, s4, {RED}")
    e1(f"v_add_u32 {v(tw)}, s4, {v(l8)}")
    e1(f"s_lshl_b32 s4, {s(WAVE)}, 12")
    e1(f"s_add_u32 s4, s4, {RED}")
    e1(f"v_add_u32 {v(tq)}, s4, {v(l8)}")
    e1(f"v_add_u32 {v(zv)}, 3072, {v(L16)}")
    e1(f"v_add_u32 {v(zv + 1)}, {3072 + 7168}, {v(L16)}")
    e1(f"v_min_u32 {v(t1)}, 27, {v(LANE)}")
    e1(f"v_lshlrev_b32 {v(t1)}, 10, {v(t1)}")
    for sl in range(2):
        for mt in range(4):
            for p in range(2):
                pk(e1, "fma", tmp1 + 4 * mt + 2 * p, [("p", UZ1 + 8 * sl + 2 * p), ("b", rz1 + 2 * mt + 1), ("p", UZ1 + 8 * sl + 4 + 2 * p)])
        for mt in range(4):
            for p in range(2):
                r = acc1 + 16 * sl + 4 * mt + 2 * p
                pk(e1, "fma", r, [("p", r), ("b", rz1 + 2 * mt), ("p", tmp1 + 4 * mt + 2 * p)])
    gelu(e1, [acc1 + 2 * i for i in range(16)], tmp1, GC)
    for i in range(16):
        e1(f"v_cvt_pk_bf16_f32 {v(tmp1 + i)}, {v(acc1 + 2 * i)}, {v(acc1 + 2 * i + 1)}")
    for sl in range(2):
        for mt in range(4):
            e1(f"ds_write_b64 {v(tw)}, {v(tmp1 + 8 * sl + 2 * mt, 2)} offset:{4096 * mt + 512 * sl}")
    wd = Stream()
    wd(f"s_mul_i32 s5, s{SCB}, {135 * 1024}")
    wd(f"s_add_u32 s5, s5, {WO}")
    wd(f"s_add_u32 s92, s{WS}, s5")
    wd(f"s_addc_u32 s93, s{WS + 1}, 0")
    wd(f"s_mul_i32 s95, {s(WAVE)}, {34 * 1024}")
    wd(f"s_min_u32 s95, s95, {101 * 1024}")
    wd("s_add_u32 s92, s92, s95")
    wd("s_addc_u32 s93, s93, 0")
    for r in range(34):
        if r % 4 == 0:
            wd(f"s_add_u32 m0, s95, {1024 * r}")
            if r:
                wd("s_add_u32 s92, s92, 4096")
                wd("s_addc_u32 s93, s93, 0")
        wd(f"global_load_lds_dwordx4 {v(L16)}, s[92:93] offset:{1024 * (r % 4)} sc1")
    vi = [i + 1 for i, x in enumerate(wd.ins) if x.cls == "vmem"]
    n1 = cfg.get("wo1", 10)
    nwg = cfg.get("wog", 4)
    wd1 = Stream()
    wd1.ins = wd.ins[:vi[n1 - 1]]
    cuts = [vi[n1 - 1 + ((34 - n1) * i) // nwg] for i in range(nwg + 1)]
    wd3 = [wd.ins[cuts[i]:cuts[i + 1]] for i in range(nwg)]
    zpos = cfg.get("zpos", 0.55)
    k.extend(sprinkle(sprinkle(e1, wd1, 0.0, zpos), stream(zfirst), zpos, 1.0))
    k.barrier()
    for sl in range(7):
        k(f"ds_read_b64 {v(z1r + 2 * sl, 2)}, {v(tq)} offset:{512 * sl}")
    stamp(k, 22)

    wa3, rda, po, po6 = stash + 12, stash + 15, stash + 16, stash + 17
    pvr = [WO0, WO1, UZ1 + 14, UZ1 + 15]
    su = Stream()
    for tau in range(1, 4):
        su(f"s_xor_b32 s4, {s(WAVE)}, {tau}")
        su("s_mul_i32 s4, s4, 3072")
        su(f"s_add_u32 s4, s4, {RED + 1024 * (tau - 1)}")
        su(f"v_add_u32 {v(wa3 + tau - 1)}, s4, {v(L16)}")
    su(f"s_mul_i32 s4, {s(WAVE)}, 3072")
    su(f"s_add_u32 s4, s4, {RED}")
    su(f"v_add_u32 {v(rda)}, s4, {v(L16)}")
    su(f"s_lshl_b32 s4, s{SRB}, 2")
    su(f"s_add_u32 s4, s4, {s(WAVE)}")
    su(f"s_mul_i32 s4, s4, {28 * 1024}")
    su(f"s_add_u32 s91, s4, {P}")
    su(f"s_mul_i32 s5, s{SCB}, 7")
    su("s_add_u32 s5, s5, 1")
    su("s_lshr_b32 s5, s5, 1")
    su("s_lshl_b32 s5, s5, 10")
    su("s_add_u32 s4, s91, s5")
    su(f"v_add_u32 {v(po)}, s4, {v(L16)}")
    su("s_movk_i32 s5, 3072")
    su(f"s_bitcmp1_b32 s{SCB}, 0")
    su(f"s_cselect_b32 s5, {8 - 1024}, s5")
    su(f"v_add_u32 {v(po6)}, s5, {v(po)}")
    su("s_add_u32 s4, s91, 4096")
    su(f"v_add_u32 {v(pvr[0])}, s4, {v(L16)}")
    for i in range(1, 4):
        su(f"v_add_u32 {v(pvr[i])}, {8192 * i}, {v(pvr[0])}")
    su.barrier()

    def red_write(st, sl):
        for tau in range(1, 4):
            st(f"ds_write_b128 {v(wa3 + tau - 1)}, {v(acc + 16 * sl + 4 * tau, 4)} offset:{12288 * (sl & 1)}")
        st.barrier()

    def red_fin(st, sl, packed):
        A = acc + 16 * sl
        for tau in range(1, 4):
            st(f"ds_read_b128 {v(A + 4 * tau, 4)}, {v(rda)} offset:{12288 * (sl & 1) + 1024 * (tau - 1)}")
        un = stash + 4
        for p in range(2):
            unpack(st, un + 2 * p, un + 2 * p + 1, z1r + 2 * sl + p)
        for tau in range(1, 4):
            for p in range(2):
                vop(st, "add", A + 2 * p, [("p", A + 2 * p), ("p", A + 4 * tau + 2 * p)], packed)
        for p in range(2):
            vop(st, "mul", A + 2 * p, [("p", A + 2 * p), ("p", un + 2 * p)], packed)
        o = z1r + 2 * sl
        for p in range(2):
            st(f"v_cvt_pk_bf16_f32 {v(o + p)}, {v(A + 2 * p)}, {v(A + 2 * p + 1)}")
        if sl & 1 or sl == 6:
            st(f"v_min_u32 {v(o + 1)}, -2, {v(o + 1)}")

    def pstore(st, j):
        if j == 3:
            st(f"global_store_dwordx2 {v(po6)}, {v(z1r + 12, 2)}, {sp(WS)} sc1")
        else:
            st(f"global_store_dwordx4 {v(po)}, {v(z1r + 4 * j, 4)}, {sp(WS)} offset:{1024 * j} sc1")

    kgrp = [[(7 * c + 1) // 2 + j for c in range(8) if (7 * c + 1) // 2 + j < 27] for j in range(3)] + [[3, 10, 17, 24]]
    pbase = [acc, acc + 32, acc + 64, acc + 96]

    def ploads(j):
        def f(st):
            for i, ks in enumerate(kgrp[j]):
                st(f"global_load_dwordx4 {v(pbase[j] + 4 * i, 4)}, {v(pvr[ks // 8])}, {sp(WS)} offset:{1024 * (ks % 8) - 4096} sc1")
        return f

    zr = [zp] + gregs(0)
    maxchain(k, mx, zr)
    check(k, stubs, "Lz0", zfirst, zr, mx)
    stamp(k, 23)
    for g in range(nzf, NG - 1):
        gloads(g)(k)
    for g in range(ngrp):
        m = Stream()
        for fi in range(G * g, G * g + G):
            step, sl = order[fi]
            i, ksl = step >> 1, step & 1
            for tau in range(4):
                d = v(acc + 16 * sl + 4 * tau, 4)
                cin = d if step != steps[0] else (v(bs, 4) if tau == 0 else "0")
                m(f"v_mfma_f32_16x16x32_bf16 {d}, {v(freg(fi), 4)}, {a(apos(i) + 16 * ksl + 4 * tau, 4)}, {cin}")
        sides = []
        st = Stream()
        if g + NG - 1 < ngrp:
            gloads(g + NG - 1)(st)
        if g == cfg.get("pst", ngrp - NG + 1):
            pstore(st, 0)
            pstore(st, 1)
        gi = g - (ngrp - nwg)
        if gi >= 0:
            st.ins += wd3[gi]
        sides.append((st, 0, 15))
        if g == 1:
            sides.append((su, 0, 15))
        if g in cfg.get("q3t", [0, 3]):
            i = 0 if g == cfg.get("q3t", [0, 3])[0] else 6
            st = Stream()
            st(f"v_min_u32 {v(zp + 1)}, 27, {v(LANE)}")
            st(f"s_mul_i32 s6, s{SRI}, 28")
            st(f"v_add_lshl_u32 {v(zp + 1)}, {v(zp + 1)}, s6, 7")
            st(f"global_load_dword {v(stash + i // 6)}, {v(zp + 1)}, s[{ZB + 2 * i}:{ZB + 2 * i + 1}] sc1")
            sides.append((st, 0, 4))
        if g + 1 < ngrp:
            st = Stream()
            maxchain(st, mx, gregs(g + 1))
            st(f"v_cmp_eq_u32 vcc, -1, {v(mx)}")
            sides.append((st, 11, 14))
        if g >= gA + gS:
            sl, ph = divmod(g - gA - gS, gS)
            st = Stream()
            if ph == 0:
                red_write(st, sl)
                sides.append((st, 3, 14))
                fin = stream(red_fin, sl, False).ins
            else:
                per = -(-len(fin) // (gS - 1))
                st.ins = fin[(ph - 1) * per:ph * per]
                sides.append((st, 0, 15))
        k.extend(weave(m, sides))
        if g + 1 < ngrp:
            check(k, stubs, f"Lz{g + 1}", gloads(g + 1), gregs(g + 1), mx, cmp=False)
        if g == gA - 1:
            stamp(k, 24)
    stamp(k, 25)
    early = cfg.get("pearly", 2)
    tl = Stream()
    red_write(tl, 6)
    red_fin(tl, 6, True)
    pe = Stream()
    for j in range(early):
        ploads(j)(pe)
    k.extend(sprinkle(tl, pe, 0.0, 0.9))
    pstore(k, 2)
    pstore(k, 3)
    stamp(k, 26)

    acc3, NWF = ring, 6
    wf, gb, X = ring + 20, ring + 44, ring + 64
    ra3 = [L16, zv, zv + 1]
    k(f"v_add_u32 {v(ra3[1])}, {60 * 1024}, {v(L16)}")
    k(f"v_add_u32 {v(ra3[2])}, {120 * 1024}, {v(L16)}")
    for j in range(early, 2):
        ploads(j)(k)
    k.wait(*[x for part in wd3 for x in part if x.cls == "vmem"])
    k("s_barrier")
    seq = [(j, i, ks, dt) for j in range(4) for i, ks in enumerate(kgrp[j]) for dt in range(5)]

    def wread(st, f):
        fr = 5 * seq[f][2] + seq[f][3]
        st(f"ds_read_b128 {v(wf + 4 * (f % NWF), 4)}, {v(ra3[fr // 60])} offset:{1024 * (fr % 60)}")

    for f in range(NWF - 1):
        wread(k, f)
    Xr = [X + j for j in range(16)] + [stash + 4 + j for j in range(4)]
    ep = Stream()
    ep(f"v_lshlrev_b32 {v(t1)}, 5, {v(Q_)}")
    ep(f"v_add_u32 {v(t1)}, {GBT}, {v(t1)}")
    for j in range(4):
        ep(f"ds_read_b128 {v(gb + 4 * j, 4)}, {v(t1)} offset:{128 * (j >> 1) + 16 * (j & 1)}")
    ep(f"v_lshlrev_b32 {v(t1)}, 4, {v(Q_)}")
    ep(f"v_add_u32 {v(t1)}, {GBT}, {v(t1)}")
    ep(f"ds_read_b128 {v(gb + 16, 4)}, {v(t1)} offset:256")
    for j in range(10):
        unpack(ep, Xr[2 * j], Xr[2 * j + 1], xres + j)
    ep(f"v_add_u32 {v(zp)}, s90, {v(TROW)}")
    ep(f"v_mul_u32_u24 {v(zp)}, 1280, {v(zp)}")
    ep(f"s_mul_i32 s4, s{SCB}, 160")
    ep(f"v_add_u32 {v(zp)}, s4, {v(zp)}")
    ep(f"v_lshl_add_u32 {v(zp + 1)}, {v(Q_)}, 4, {v(zp)}")
    ep(f"v_lshl_add_u32 {v(zp)}, {v(Q_)}, 3, {v(zp)}")
    f = 0
    for j in range(4):
        pregs = list(range(pbase[j] + 3, pbase[j] + 4 * len(kgrp[j]), 4)) if j < 3 else list(range(pbase[j] + 1, pbase[j] + 16, 2))
        maxchain(k, mx, pregs)
        check(k, stubs, f"Lp{j}", ploads(j), pregs, mx)
        stamp(k, 27 + j)
        m = Stream()
        while f < len(seq) and seq[f][0] == j:
            _, i, ks, dt = seq[f]
            d = v(acc3 + 4 * dt, 4)
            m(f"v_mfma_f32_16x16x32_bf16 {d}, {v(wf + 4 * (f % NWF), 4)}, {v(pbase[j] + 4 * i, 4)}, {d if f >= 5 else 0}")
            if f + NWF - 1 < len(seq):
                wread(m, f + NWF - 1)
            f += 1
        sides = []
        if j == 1:
            st = Stream()
            ploads(2)(st)
            ploads(3)(st)
            sides.append((st, cfg.get("pl", 10), 39))
        k.extend(weave(m, sides))
        if j == 1:
            k.extend(ep)
    o = acc
    ost = cfg.get("ost", "")
    for B in range(2):
        for j in range(8):
            k(f"v_fmac_f32 {v(Xr[8 * B + j])}, {v(acc3 + 4 * (2 * B + (j & 1)) + (j >> 1))}, {v(gb + 8 * B + j)}")
        for j in range(4):
            k(f"v_cvt_pk_bf16_f32 {v(o + 4 * B + j)}, {v(Xr[8 * B + 2 * j])}, {v(Xr[8 * B + 2 * j + 1])}")
        k(f"global_store_dwordx4 {v(zp + 1)}, {v(o + 4 * B, 4)}, {sp(OUT)} offset:{64 * B} {ost}")
    for j in range(4):
        k(f"v_fmac_f32 {v(Xr[16 + j])}, {v(acc3 + 16 + j)}, {v(gb + 16 + j)}")
    for j in range(2):
        k(f"v_cvt_pk_bf16_f32 {v(o + 8 + j)}, {v(Xr[16 + 2 * j])}, {v(Xr[17 + 2 * j])}")
    k(f"global_store_dwordx2 {v(zp)}, {v(o + 8, 2)}, {sp(OUT)} offset:128 {ost}")
```

```python
from asmlib import Stream, Alloc, v, a, s, interleave

S, D, FH = 2048, 640, 864
Q, K, V, SHK, SSM, SD, BX, WIN, WSP, BSP, WOUT, C, WMOD, OUT, DBG, WS = range(8, 40, 2)
WAVE = 3
LANE = 1
MODP = 0x0
MODS = 3840 * 4
NMOD = 2
INIT0 = 0x8000
ST1 = 0x8000
U = 0xC000
US = 2 * 56 * 128
FL0 = 0x20000
KF = FL0
XF = FL0 + 192 * 128
SDF = FL0 + 384 * 128
PF = FL0 + 512 * 128
NINIT = 50
X1 = 0x100000
XRB = 28 * 4096
P = X1
WP = 0x700000
WO = 0xA00000
ST3 = 0xBE0000
Z2 = 0xC00000
KVT = Z2
STAMP = 0x2000000

ONES = 0x3F803F80
LOG2E = 0x3FB8AA3B
SEL_LO = 0x05040100
SEL_HI = 0x07060302


def fbits(x):
    import struct
    return struct.unpack("<I", struct.pack("<f", x))[0]


def sp(i):
    return s(i, 2)


import os
STAMPS = int(os.environ.get("STAMPS", "0"))
VTOP = 255
ONLY = [int(x) for x in os.environ.get("ONLY", "").split(",") if x]
CLK = [15, 16, 17, 18, 19, 21, 22, 24, 25, 41]


def stamp(k, idx):
    k(f"; mark {idx}")
    if STAMPS and (not ONLY or idx in ONLY):
        k("s_memrealtime s[98:99]")
        k("s_waitcnt lgkmcnt(0)")
        k(f"v_writelane_b32 v255, s98, {idx}")
        if idx in CLK and os.environ.get("CYC"):
            k("s_memtime s[98:99]")
            k("s_waitcnt lgkmcnt(0)")
            k(f"v_writelane_b32 v255, s98, {52 + CLK.index(idx)}")


def stamp_flush(k, kidx):
    if STAMPS:
        k(f"s_lshl_b32 s98, s2, 10")
        k(f"s_add_u32 s98, s98, {STAMP + kidx * 262144}")
        k(f"v_lshl_add_u32 v254, v0, 2, s98")
        k(f"global_store_dword v254, v255, {sp(WS)}")


def code_prefetch(k, lab0, lab1, tmp, nparts=32):
    k(f"s_getpc_b64 s[4:5]")
    k(f"Lpf_{lab0}_{len(k)}:")
    here = f"Lpf_{lab0}_{len(k) - 1}"
    k(f"s_add_u32 s4, s4, {lab0}-{here}")
    k(f"s_addc_u32 s5, s5, -1")
    k(f"s_lshr_b32 s6, s2, 3")
    k(f"s_and_b32 s6, s6, {nparts - 1}")
    k(f"v_mul_u32_u24 {v(tmp)}, {nparts}, v0")
    k(f"v_add_lshl_u32 {v(tmp)}, {v(tmp)}, s6, 7")
    k(f"v_min_u32 {v(tmp)}, ({lab1}-{lab0}-4), {v(tmp)}")
    k(f"global_load_dword {v(tmp)}, {v(tmp)}, s[4:5]")


def prologue(k):
    k(f"s_load_dwordx16 s[8:23], s[0:1], 0")
    k(f"s_load_dwordx16 s[24:39], s[0:1], 64")
    k(f"v_lshrrev_b32 v2, 6, v0")
    k(f"v_and_b32 {v(LANE)}, 63, v0")
    k(f"v_readfirstlane_b32 {s(WAVE)}, v2")


def unpack(k, lo, hi, src):
    k(f"v_lshlrev_b32 {v(lo)}, 16, {v(src)}")
    k(f"v_and_b32 {v(hi)}, 0xffff0000, {v(src)}")


def bsel(r):
    return v(r & ~1, 2), r & 1


def pk(k, op, dst, srcs, neg=None):
    ops, lo, hi = [], [], []
    if srcs[1][0] == "b" and srcs[0][0] != "b" and not neg:
        srcs = [srcs[1], srcs[0]] + list(srcs[2:])
    for kind, r in srcs:
        if kind == "p":
            ops.append(v(r, 2)); lo.append(0); hi.append(1)
        elif kind == "sp":
            ops.append(s(r, 2)); lo.append(0); hi.append(1)
        elif kind == "b":
            t, b = bsel(r)
            ops.append(t); lo.append(b); hi.append(b)
        elif kind == "sb":
            ops.append(s(r & ~1, 2)); lo.append(r & 1); hi.append(r & 1)
        else:
            ops.append(r); lo.append(0); hi.append(0)
    m = f" op_sel:[{','.join(map(str, lo))}] op_sel_hi:[{','.join(map(str, hi))}]"
    if neg:
        m += f" neg_lo:[{','.join(map(str, neg))}] neg_hi:[{','.join(map(str, neg))}]"
    return k(f"v_pk_{op}_f32 {v(dst, 2)}, {', '.join(ops)}{m}")


def vop(k, op, dst, srcs, packed=True):
    if packed:
        return pk(k, op, dst, srcs)
    for h in range(2):
        ops = []
        for kind, r in srcs:
            ops.append({"p": lambda: v(r + h), "sp": lambda: s(r + h), "b": lambda: v(r), "sb": lambda: s(r), "c": lambda: r}[kind]())
        if op != "fma" and not ops[1].startswith("v"):
            ops = [ops[1], ops[0]]
        k(f"v_{op}_f32 {v(dst + h)}, {', '.join(ops)}")


def round_bf16(k, r):
    k(f"v_cvt_pk_bf16_f32 {v(r)}, {v(r)}, {v(r)}")
    k(f"v_lshlrev_b32 {v(r)}, 16, {v(r)}")


def mod_unit(k, su, st="sc1"):
    R = Alloc(2, 250)
    k(f"s_cmp_ge_u32 {s(su)}, 60")
    k(f"s_cselect_b32 s4, 1, 0")
    k(f"s_mul_i32 s5, s4, 60")
    k(f"s_sub_u32 s5, {s(su)}, s5")
    k(f"s_mul_i32 s6, s4, 320")
    k(f"s_mul_i32 s7, {s(WAVE)}, 80")
    k(f"s_add_u32 s6, s6, s7")
    row, off, coff = R(), R(), R()
    k(f"v_lshrrev_b32 {v(row)}, 3, {v(LANE)}")
    k(f"v_add_u32 {v(row)}, s6, {v(row)}")
    k(f"v_lshlrev_b32 {v(coff)}, 1, {v(row)}")
    k(f"v_mul_u32_u24 {v(off)}, 7680, {v(row)}")
    k(f"v_and_b32 {v(row)}, 7, {v(LANE)}")
    k(f"v_lshl_add_u32 {v(off)}, {v(row)}, 4, {v(off)}")
    k(f"s_lshl_b32 s7, s5, 7")
    k(f"v_add_u32 {v(off)}, s7, {v(off)}")
    cv = R(10, 2)
    w = R(40, 4)
    for i in range(10):
        k(f"global_load_ushort {v(cv + i)}, {v(coff)}, {sp(C)} offset:{16 * i}")
    for i in range(10):
        k(f"global_load_dwordx4 {v(w + 4 * i, 4)}, {v(off)}, {sp(WMOD)} nt")
        if i < 9:
            k(f"v_add_u32 {v(off)}, {8 * 7680}, {v(off)}")
    t = R(10, 2)
    for i in range(10):
        k(f"v_lshlrev_b32 {v(cv + i)}, 16, {v(cv + i)}")
        k(f"v_mul_f32 {v(t + i)}, {hex(LOG2E | 0x80000000)}, {v(cv + i)}")
    for i in range(10):
        k(f"v_exp_f32 {v(t + i)}, {v(t + i)}")
    for i in range(10):
        k(f"v_add_f32 {v(t + i)}, 1.0, {v(t + i)}")
    for i in range(10):
        k(f"v_rcp_f32 {v(t + i)}, {v(t + i)}")
    for i in range(10):
        k(f"v_mul_f32 {v(cv + i)}, {v(cv + i)}, {v(t + i)}")
    for i in range(10):
        round_bf16(k, cv + i)
    acc = R(8, 2)
    u = R(8, 2)
    for i in range(10):
        for j in range(4):
            unpack(k, u + 2 * j, u + 2 * j + 1, w + 4 * i + j)
        for j in range(4):
            if i == 0:
                pk(k, "mul", acc + 2 * j, [("p", u + 2 * j), ("b", cv + i)])
            else:
                pk(k, "fma", acc + 2 * j, [("p", u + 2 * j), ("b", cv + i), ("p", acc + 2 * j)])
    for j in range(4):
        k(f"v_permlane32_swap_b32 {v(acc + j)}, {v(acc + j + 4)}")
    for j in range(4):
        k(f"v_add_f32 {v(acc + j)}, {v(acc + j)}, {v(acc + j + 4)}")
    for j in range(2):
        k(f"v_permlane16_swap_b32 {v(acc + j)}, {v(acc + j + 2)}")
    for j in range(2):
        k(f"v_add_f32 {v(acc + j)}, {v(acc + j)}, {v(acc + j + 2)}")
    res = u
    k(f"v_add_f32_dpp {v(res)}, {v(acc)}, {v(acc)} row_ror:8 row_mask:0xf bank_mask:0x3")
    k(f"v_add_f32_dpp {v(res)}, {v(acc + 1)}, {v(acc + 1)} row_ror:8 row_mask:0xf bank_mask:0xc")
    ad = u + 1
    k(f"v_and_b32 {v(ad)}, 7, {v(LANE)}")
    k(f"v_lshrrev_b32 {v(u + 2)}, 3, {v(LANE)}")
    k(f"v_lshl_add_u32 {v(ad)}, {v(ad)}, 3, {v(u + 2)}")
    k(f"s_lshl_b32 s7, {s(WAVE)}, 6")
    k(f"v_add_lshl_u32 {v(ad)}, {v(ad)}, s7, 2")
    k(f"ds_write_b32 {v(ad)}, {v(res)}")
    k.barrier()
    k(f"v_lshlrev_b32 {v(ad)}, 2, {v(LANE)}")
    for i in range(4):
        k(f"ds_read_b32 {v(acc + i)}, {v(ad)} offset:{256 * i}")
    k(f"s_mul_i32 s6, s4, {3840 * 4}")
    k(f"s_lshl_b32 s7, s5, 8")
    k(f"s_add_u32 s6, s6, s7")
    k(f"s_add_u32 s6, s6, {MODP}")
    k(f"v_add_u32 {v(ad)}, s6, {v(ad)}")
    k(f"v_add_f32 {v(acc)}, {v(acc)}, {v(acc + 1)}")
    k(f"v_add_f32 {v(acc + 2)}, {v(acc + 2)}, {v(acc + 3)}")
    k(f"v_add_f32 {v(acc)}, {v(acc)}, {v(acc + 2)}")
    k(f"s_cmp_lg_u32 {s(WAVE)}, 0")
    lab = f"Lmod_skip_{id(k) & 0xffff}_{len(k)}"
    k(f"s_cbranch_scc1 {lab}")
    k(f"global_store_dword {v(ad)}, {v(acc)}, {sp(WS)} {st}")
    k(f"{lab}:")


def row_stats(k, sm, sq, n, tmp):
    inv = hex(fbits(1.0 / n))
    k(f"v_mul_f32 {v(sm)}, {inv}, {v(sm)}")
    k(f"v_mul_f32 {v(sq)}, {inv}, {v(sq)}")
    k(f"v_fma_f32 {v(sq)}, -{v(sm)}, {v(sm)}, {v(sq)}")
    k(f"v_max_f32 {v(sq)}, 0, {v(sq)}")
    k(f"v_add_f32 {v(sq)}, {hex(fbits(1e-5))}, {v(sq)}")
    k(f"v_rsq_f32 {v(tmp)}, {v(sq)}")
    k(f"v_mul_f32 {v(sq)}, -{v(sm)}, {v(tmp)}".replace("v_mul_f32", "v_mul_f32_e64"))
    k(f"v_mov_b32 {v(sm)}, {v(tmp)}")


def x_unit(k, su, st="sc1"):
    R = Alloc(2, 250)
    off, a0, a1 = R(), R(), R()
    k(f"s_lshl_b32 s4, {s(su)}, 2")
    k(f"s_add_u32 s4, s4, {s(WAVE)}")
    k(f"s_mul_i32 s4, s4, {8 * 1280}")
    k(f"s_add_u32 s4, s4, 4096")
    k(f"v_lshl_add_u32 {v(off)}, {v(LANE)}, 4, s4")
    d = R(40, 4)
    for i in range(10):
        if i == 8:
            k(f"v_add_u32 {v(off)}, 8192, {v(off)}")
        k(f"global_load_dwordx4 {v(d + 4 * i, 4)}, {v(off)}, {sp(Q)} offset:{1024 * (i % 8) - 4096} nt")
    k(f"s_mul_i32 s5, {s(WAVE)}, 10304")
    k(f"v_lshl_add_u32 {v(a0)}, {v(LANE)}, 4, s5")
    k(f"v_lshrrev_b32 {v(a1)}, 5, {v(LANE)}")
    k(f"v_lshl_add_u32 {v(a1)}, {v(a1)}, 4, {v(a0)}")
    for i in range(10):
        pad = (64 * i) // 160
        k(f"ds_write_b128 {v(a1 if i in (2, 7) else a0)}, {v(d + 4 * i, 4)} offset:{1024 * i + 16 * pad}")
    k.barrier()
    rho, gq = R(), R()
    k(f"v_and_b32 {v(rho)}, 15, {v(LANE)}")
    k(f"v_lshrrev_b32 {v(gq)}, 4, {v(LANE)}")
    k(f"v_mul_u32_u24 {v(a0)}, 2576, {v(rho)}")
    k(f"v_lshl_add_u32 {v(a0)}, {v(gq)}, 3, {v(a0)}")
    k(f"s_mul_i32 s5, {s(WAVE)}, 320")
    k(f"v_add_u32 {v(a0)}, s5, {v(a0)}")
    for i in range(10):
        k(f"ds_read2_b64 {v(d + 4 * i, 4)}, {v(a0)} offset0:{4 * i} offset1:{160 + 4 * i}")
    k(f"s_mul_i32 s5, {s(WAVE)}, {40 * 16384}")
    k(f"s_lshl_b32 s6, {s(su)}, 8")
    k(f"s_add_u32 s5, s5, s6")
    k(f"s_add_u32 s5, s5, {XB}")
    k(f"v_lshlrev_b32 {v(off)}, 14, {v(gq)}")
    k(f"v_lshl_add_u32 {v(off)}, {v(rho)}, 4, {v(off)}")
    k(f"v_add_u32 {v(off)}, s5, {v(off)}")
    st4 = R(4, 2)
    k(f"s_mov_b32 s7, {hex(ONES)}")
    for j in range(4):
        k(f"v_mov_b32 {v(st4 + j)}, 0")
    for i in range(10):
        k(f"global_store_dwordx4 {v(off)}, {v(d + 4 * i, 4)}, {sp(WS)} {st}")
        if i < 9:
            k(f"v_add_u32 {v(off)}, 65536, {v(off)}")
        for j in range(2):
            for r in range(2):
                src = d + 4 * i + 2 * r + j
                k(f"v_dot2_f32_bf16 {v(st4 + 2 * r)}, {v(src)}, s7, {v(st4 + 2 * r)}")
                k(f"v_dot2_f32_bf16 {v(st4 + 2 * r + 1)}, {v(src)}, {v(src)}, {v(st4 + 2 * r + 1)}")
    k(f"v_permlane32_swap_b32 {v(st4)}, {v(st4 + 2)}")
    k(f"v_permlane32_swap_b32 {v(st4 + 1)}, {v(st4 + 3)}")
    k(f"v_add_f32 {v(st4)}, {v(st4)}, {v(st4 + 2)}")
    k(f"v_add_f32 {v(st4 + 1)}, {v(st4 + 1)}, {v(st4 + 3)}")
    k(f"v_permlane16_swap_b32 {v(st4)}, {v(st4 + 1)}")
    k(f"v_add_f32 {v(st4)}, {v(st4)}, {v(st4 + 1)}")
    SB = 41472
    k(f"v_lshlrev_b32 {v(a0)}, 4, {v(rho)}")
    k(f"v_lshl_add_u32 {v(a0)}, {v(gq)}, 2, {v(a0)}")
    k(f"s_lshl_b32 s5, {s(WAVE)}, 8")
    k(f"v_add_u32 {v(a0)}, s5, {v(a0)}")
    k(f"ds_write_b32 {v(a0)}, {v(st4)} offset:{SB}")
    k.barrier()
    pr = R(8, 2)
    k(f"v_and_b32 {v(a0)}, 31, {v(LANE)}")
    k(f"v_lshlrev_b32 {v(a0)}, 3, {v(a0)}")
    for i in range(4):
        k(f"ds_read_b64 {v(pr + 2 * i, 2)}, {v(a0)} offset:{SB + 256 * i}")
    pk(k, "add", pr, [("p", pr), ("p", pr + 2)])
    pk(k, "add", pr + 4, [("p", pr + 4), ("p", pr + 6)])
    pk(k, "add", pr, [("p", pr), ("p", pr + 4)])
    row_stats(k, pr, pr + 1, D, pr + 2)
    k(f"s_lshl_b32 s5, {s(su)}, 8")
    k(f"s_add_u32 s5, s5, {ST1}")
    k(f"v_add_u32 {v(a0)}, s5, {v(a0)}")
    lab = f"Lx_skip_{id(k) & 0xffff}_{len(k)}"
    k(f"s_cmp_lg_u32 {s(WAVE)}, 0")
    k(f"s_cbranch_scc1 {lab}")
    k(f"global_store_dwordx2 {v(a0)}, {v(pr, 2)}, {sp(WS)} {st}")
    k(f"{lab}:")


def wout_issue(k, su, off, lds):
    k(f"s_mul_i32 s4, {s(su)}, 40960")
    k(f"s_mul_i32 s5, {s(WAVE)}, 10240")
    k(f"s_add_u32 s4, s4, s5")
    k(f"v_lshl_add_u32 {v(off)}, {v(LANE)}, 4, s4")
    for i in range(10):
        if i % 4 == 0:
            k(f"s_add_u32 m0, s5, {lds + 1024 * i}")
            if i:
                k(f"v_add_u32 {v(off)}, 4096, {v(off)}")
        k(f"global_load_lds_dwordx4 {v(off)}, {sp(WOUT)} offset:{1024 * (i % 4)} nt")


def wout_finish(k, su, R, lds, st="sc1"):
    off, ap, aq = R(), R(), R()
    m, q = R(), R()
    k(f"v_and_b32 {v(m)}, 15, {v(LANE)}")
    k(f"v_lshrrev_b32 {v(q)}, 4, {v(LANE)}")
    k(f"v_mul_u32_u24 {v(q)}, {8 * 1280}, {v(q)}")
    k(f"s_mul_i32 s5, {s(WAVE)}, 320")
    k(f"s_add_u32 s5, s5, {lds}")
    k(f"v_add_u32 {v(q)}, s5, {v(q)}")
    k(f"v_lshl_add_u32 {v(ap)}, {v(m)}, 2, {v(q)}")
    k(f"v_lshl_add_u32 {v(aq)}, {v(m)}, 1, {v(q)}")
    k(f"s_mul_i32 s5, {s(WAVE)}, {2 * 27 * 5120}")
    k(f"s_mul_i32 s6, {s(su)}, 5120")
    k(f"s_add_u32 s5, s5, s6")
    k(f"s_add_u32 s5, s5, {WO + 2048}")
    k(f"v_lshl_add_u32 {v(off)}, {v(LANE)}, 4, s5")
    k(f"s_mov_b32 s6, {hex(SEL_LO)}")
    k(f"s_mov_b32 s7, {hex(SEL_HI)}")
    order = [0, 2, 4, 6, 1, 3, 5, 7]
    for c in range(2):
        t = R(24, 4)
        o = R(20, 4)
        for b in range(2):
            for e in range(8):
                k(f"ds_read_b32 {v(t + 8 * b + e)}, {v(ap)} offset:{order[e] * 1280 + 160 * c + 64 * b}")
        for e in range(8):
            k(f"ds_read_u16 {v(t + 16 + e)}, {v(aq)} offset:{order[e] * 1280 + 160 * c + 128}")
        for b in range(2):
            for par in range(2):
                for j in range(4):
                    k(f"v_perm_b32 {v(o + 8 * b + 4 * par + j)}, {v(t + 8 * b + 2 * j + 1)}, {v(t + 8 * b + 2 * j)}, s{6 + par}")
        for j in range(4):
            k(f"v_perm_b32 {v(o + 16 + j)}, {v(t + 16 + 2 * j + 1)}, {v(t + 16 + 2 * j)}, s6")
        for dt in range(5):
            k(f"global_store_dwordx4 {v(off)}, {v(o + 4 * dt, 4)}, {sp(WS)} offset:{1024 * dt - 2048} {st}")
        if c == 0:
            k(f"v_add_u32 {v(off)}, {27 * 5120}, {v(off)}")


def load_mod4(k, dst, tmp, voff, row, ld=""):
    base = MODP + row * D * 4
    k(f"v_add_u32 {v(tmp + 4)}, {base}, {v(voff)}")
    k(f"global_load_dwordx4 {v(dst, 4)}, {v(tmp + 4)}, {sp(WS)} {ld}")
    k(f"v_add_u32 {v(tmp + 4)}, {base + 3840 * 4}, {v(voff)}")
    k(f"global_load_dwordx4 {v(tmp, 4)}, {v(tmp + 4)}, {sp(WS)} {ld}")


def fin_mod4(k, dst, tmp, plus1=False):
    for j in range(4):
        k(f"v_add_f32 {v(dst + j)}, {v(dst + j)}, {v(tmp + j)}")
    for j in range(4):
        round_bf16(k, dst + j)
    if plus1:
        for j in range(4):
            k(f"v_add_f32 {v(dst + j)}, 1.0, {v(dst + j)}")
        for j in range(4):
            round_bf16(k, dst + j)


def wp_unit(k, su, st="sc1"):
    R = Alloc(2, 250)
    n, q, off = R(), R(), R()
    k(f"v_and_b32 {v(n)}, 15, {v(LANE)}")
    k(f"v_lshrrev_b32 {v(q)}, 4, {v(LANE)}")
    k(f"s_mul_i32 s4, {s(WAVE)}, {160 * 3456}")
    k(f"s_lshl_b32 s5, {s(su)}, 6")
    k(f"s_add_u32 s4, s4, s5")
    k(f"s_add_u32 s4, s4, 3456")
    k(f"v_mul_u32_u24 {v(off)}, {8 * 3456}, {v(q)}")
    k(f"v_lshl_add_u32 {v(off)}, {v(n)}, 2, {v(off)}")
    k(f"v_add_u32 {v(off)}, s4, {v(off)}")
    w = R(40, 4)
    cur = 1
    for ks in range(5):
        for e in range(8):
            row = 32 * ks + e
            if row - cur > 1:
                k(f"v_add_u32 {v(off)}, {(row + 1 - cur) * 3456}, {v(off)}")
                cur = row + 1
            k(f"global_load_dword {v(w + 8 * ks + e)}, {v(off)}, {sp(WIN)} offset:{(row - cur) * 3456} nt")
    mo = R()
    cb4, t0 = R(4, 4), R(5, 4)
    sb4, t1 = R(4, 4), R(5, 4)
    k(f"v_min_u32 {v(mo)}, 39, {v(LANE)}")
    k(f"s_mul_i32 s5, {s(WAVE)}, 640")
    k(f"v_lshl_add_u32 {v(mo)}, {v(mo)}, 4, s5")
    load_mod4(k, cb4, t0, mo, 4)
    load_mod4(k, sb4, t1, mo, 3)
    fin_mod4(k, cb4, t0, plus1=True)
    fin_mod4(k, sb4, t1)
    k(f"ds_write_b128 {v(mo)}, {v(cb4, 4)}")
    k(f"ds_write_b128 {v(mo)}, {v(sb4, 4)} offset:2560")
    ta = R()
    k(f"v_lshl_add_u32 {v(ta)}, {v(q)}, 5, s5")
    k(f"s_cmp_ge_u32 {s(su)}, 27")
    k(f"s_cselect_b32 s6, -54, 56")
    k(f"s_lshl_b32 s7, {s(su)}, 1")
    k(f"s_add_u32 s6, s6, s7")
    k(f"s_mul_i32 s4, s6, 20480")
    k(f"s_mul_i32 s5, {s(WAVE)}, 5120")
    k(f"s_add_u32 s4, s4, s5")
    k(f"s_add_u32 s4, s4, {WP + 2048}")
    oe, oo = R(), R()
    k(f"v_lshl_add_u32 {v(oe)}, {v(LANE)}, 4, s4")
    k(f"v_add_u32 {v(oo)}, 20480, {v(oe)}")
    k(f"s_mov_b32 s7, {hex(ONES)}")
    uu = R(4, 2)
    for j in range(4):
        k(f"v_mov_b32 {v(uu + j)}, 0")
    cst = [R(16, 4) for _ in range(2)]
    un = R(16, 2)
    pr = R(16, 2)
    outs = [R(8, 4) for _ in range(2)]
    for ks in range(5):
        cc = cst[ks & 1]
        o = outs[ks & 1]
        for h in range(2):
            k(f"ds_read_b128 {v(cc + 4 * h, 4)}, {v(ta)} offset:{128 * ks + 16 * h}")
            k(f"ds_read_b128 {v(cc + 8 + 4 * h, 4)}, {v(ta)} offset:{2560 + 128 * ks + 16 * h}")
        for e in range(8):
            unpack(k, un + 2 * e, un + 2 * e + 1, w + 8 * ks + e)
        for e in range(8):
            pk(k, "mul", pr + 2 * e, [("p", un + 2 * e), ("b", cc + e)])
        for par in range(2):
            for j in range(4):
                k(f"v_cvt_pk_bf16_f32 {v(o + 4 * par + j)}, {v(pr + 4 * j + par)}, {v(pr + 4 * j + 2 + par)}")
        k(f"global_store_dwordx4 {v(oe)}, {v(o, 4)}, {sp(WS)} offset:{1024 * ks - 2048} {st}")
        k(f"global_store_dwordx4 {v(oo)}, {v(o + 4, 4)}, {sp(WS)} offset:{1024 * ks - 2048} {st}")
        for e in range(8):
            pk(k, "fma", uu + 2, [("p", un + 2 * e), ("b", cc + 8 + e), ("p", uu + 2)])
        for j in range(4):
            for par in range(2):
                k(f"v_dot2_f32_bf16 {v(uu + par)}, {v(o + 4 * par + j)}, s7, {v(uu + par)}")
    k(f"v_permlane32_swap_b32 {v(uu)}, {v(uu + 1)}")
    k(f"v_permlane32_swap_b32 {v(uu + 2)}, {v(uu + 3)}")
    k(f"v_add_f32 {v(uu)}, {v(uu)}, {v(uu + 1)}")
    k(f"v_add_f32 {v(uu + 2)}, {v(uu + 2)}, {v(uu + 3)}")
    k(f"v_permlane16_swap_b32 {v(uu)}, {v(uu + 2)}")
    k(f"v_add_f32 {v(uu)}, {v(uu)}, {v(uu + 2)}")
    k(f"v_lshlrev_b32 {v(ta)}, 2, v0")
    k(f"ds_write_b32 {v(ta)}, {v(uu)} offset:5120")
    k.drain()
    k("s_barrier")
    k(f"v_lshlrev_b32 {v(ta)}, 2, {v(LANE)}")
    for i in range(4):
        k(f"ds_read_b32 {v(un + i)}, {v(ta)} offset:{5120 + 256 * i}")
    k(f"s_lshl_b32 s6, s6, 7")
    k(f"s_add_u32 s6, s6, {U}")
    k(f"v_add_u32 {v(ta)}, s6, {v(ta)}")
    k(f"v_add_f32 {v(un)}, {v(un)}, {v(un + 1)}")
    k(f"v_add_f32 {v(un + 2)}, {v(un + 2)}, {v(un + 3)}")
    k(f"v_add_f32 {v(un)}, {v(un)}, {v(un + 2)}")
    k(f"v_min_u32 {v(un)}, -2, {v(un)}")
    lab = f"Lwp_skip_{id(k) & 0xffff}_{len(k)}"
    k(f"s_cmp_lg_u32 {s(WAVE)}, 0")
    k(f"s_cbranch_scc1 {lab}")
    k(f"global_store_dword {v(ta)}, {v(un)}, {sp(WS)} {st}")
    k(f"{lab}:")


def wp_zero_unit(k, su, st="sc1"):
    R = Alloc(2, 250)
    off = R()
    z = R(4, 4)
    for j in range(4):
        k(f"v_mov_b32 {v(z + j)}, 0")
    k(f"s_mul_i32 s4, {s(su)}, {56 * 20480}")
    k(f"s_add_u32 s4, s4, {WP + 54 * 20480}")
    k(f"v_lshl_add_u32 {v(off)}, v0, 4, s4")
    for i in range(10):
        k(f"global_store_dwordx4 {v(off)}, {v(z, 4)}, {sp(WS)} {st}")
        k(f"v_add_u32 {v(off)}, 4096, {v(off)}")
    k(f"s_mul_i32 s4, {s(su)}, {56 * 128}")
    k(f"s_add_u32 s4, s4, {U + 54 * 128}")
    k(f"v_lshl_add_u32 {v(off)}, {v(LANE)}, 2, s4")
    k(f"global_store_dword {v(off)}, {v(z)}, {sp(WS)} {st}")


def fill_unit(k, base, nbytes_per_wg, su, val=-1, st="sc1"):
    R = Alloc(2, 250)
    off = R()
    z = R(4, 4)
    for j in range(4):
        k(f"v_mov_b32 {v(z + j)}, {val}")
    k(f"s_mul_i32 s4, {s(su)}, {nbytes_per_wg}")
    k(f"s_add_u32 s4, s4, {base}")
    k(f"v_lshl_add_u32 {v(off)}, v0, 4, s4")
    for i in range(nbytes_per_wg // 4096):
        k(f"global_store_dwordx4 {v(off)}, {v(z, 4)}, {sp(WS)} {st}")
        k(f"v_add_u32 {v(off)}, 4096, {v(off)}")
```

```python
from asmlib import Stream, Alloc, v, a, s, weave, sprinkle
from blocks import *
from fused import *

TRB = 104448
XSB = 122880


def dbg_addr(k, t, full):
    if full:
        k(f"v_min_u32 {v(t)}, 49, {v(LANE)}")
        k(f"v_add_u32 {v(t)}, 56, {v(t)}")
        k(f"v_lshlrev_b32 {v(t)}, 1, {v(t)}")
    else:
        k(f"v_min_u32 {v(t)}, 7, {v(LANE)}")
        k(f"v_add_u32 {v(t)}, 56, {v(t)}")
        k(f"v_lshlrev_b32 {v(t)}, 1, {v(t)}")


def dbg_load(k, t):
    return k(f"global_load_ushort {v(t + 1)}, {v(t)}, {sp(DBG)} sc1")


def init_check(k, name, t):
    k(f"s_branch {name}_f")
    k(f"{name}:")
    k("s_sleep 4")
    k(f"{name}_f:")
    dbg_load(k, t)
    k.drain(lgkm=False)
    k(f"v_cmp_eq_u32 vcc, 0, {v(t + 1)}")
    k("s_add_u32 s100, s100, 1")
    k(f"s_cmp_ge_u32 s100, {SPIN}")
    k(f"s_cbranch_scc1 {name}_x")
    k(f"s_cbranch_vccnz {name}")
    k(f"{name}_x:")


def init_check_wg(k, name, t):
    st = Stream()
    st(f"s_cmp_lg_u32 {s(WAVE)}, 0")
    st(f"s_cbranch_scc1 {name}_x")
    dbg_addr(st, t, True)
    init_check(st, name, t)
    k.raw(st)


def init_fill(k, su):
    for j in range(4):
        k(f"v_mov_b32 {v(8 + j)}, -1")
    k(f"s_lshl_b32 s4, s{su}, 14")
    k(f"s_add_u32 s4, s4, {FL0}")
    k("v_and_b32 v7, 127, v0")
    k("v_lshl_add_u32 v7, v7, 7, s4")
    k(f"s_mul_i32 s4, s{su}, 6144")
    k(f"s_add_u32 s4, s4, {INIT0}")
    k("v_lshl_add_u32 v6, v0, 4, s4")
    k(f"global_store_dwordx4 v6, v[8:11], {sp(WS)} sc1")
    k(f"s_cmp_ge_u32 {s(WAVE)}, 2")
    k("s_cbranch_scc1 Linit_b")
    k(f"global_store_dword v7, v8, {sp(WS)} sc1")
    k("s_branch Linit_c")
    k("Linit_b:")
    k(f"global_store_dwordx4 v6, v[8:11], {sp(WS)} offset:2048 sc1")
    k("Linit_c:")
    k(f"s_lshl_b32 s4, s{su}, 1")
    k("s_add_u32 s4, s4, 112")
    k("v_mov_b32 v6, s4")
    k.drain(lgkm=False)
    k("s_barrier")
    k(f"s_cmp_lg_u32 {s(WAVE)}, 0")
    k("s_cbranch_scc1 Linit_skip")
    k(f"global_store_short v6, v8, {sp(DBG)} sc1")
    k("Linit_skip:")


class Mod:
    def __init__(self, R, sA):
        self.off, self.coff = R(), R()
        self.cv = R(10, 2)
        self.w = R(40, 4)
        self.t = R(8, 2)
        self.acc = R(8, 2)
        self.sA = sA

    @staticmethod
    def decode(k, smu, sA):
        k(f"s_lshr_b32 s4, s{smu}, 1")
        k(f"s_and_b32 s5, s{smu}, 1")
        k("s_cmp_lt_u32 s4, 50")
        k("s_cselect_b32 s6, -20, 0")
        k("s_cmp_lt_u32 s4, 20")
        k("s_cselect_b32 s6, 30, s6")
        k("s_add_u32 s4, s4, s6")
        k(f"s_mul_i32 s6, s5, {MODS}")
        k("s_lshl_b32 s7, s4, 8")
        k(f"s_add_u32 s{sA}, s6, s7")

    def issue(self, k, smu):
        sA, off, coff = self.sA, self.off, self.coff
        self.decode(k, smu, sA)
        k("s_lshl_b32 s5, s5, 2")
        k(f"s_add_u32 s5, s5, {s(WAVE)}")
        k("s_mul_i32 s5, s5, 80")
        k("s_lshl_b32 s4, s4, 7")
        k("s_mul_i32 s6, s5, 7680")
        k("s_add_u32 s4, s4, s6")
        k(f"v_min_u32 {v(off)}, 39, {v(LANE)}")
        k("s_lshl_b32 s5, s5, 1")
        k(f"v_lshl_add_u32 {v(off)}, {v(off)}, 2, s5")
        self.first = k(f"global_load_dword {v(self.t)}, {v(off)}, {sp(C)}")
        k(f"v_lshrrev_b32 {v(coff)}, 3, {v(LANE)}")
        k(f"v_mul_u32_u24 {v(off)}, {2 * 7680 - 128}, {v(coff)}")
        k(f"v_add3_u32 {v(off)}, {v(off)}, {v(L16)}, s4")
        for i in range(10):
            k(f"global_load_dwordx4 {v(self.w + 4 * i, 4)}, {v(off)}, {sp(WMOD)} nt")
            if i < 9:
                k(f"v_add_u32 {v(off)}, {7680 if i % 2 == 0 else 15 * 7680}, {v(off)}")

    def finish(self, k, lds, before_store, uid, mid=None):
        cv, t, acc, w, sA = self.cv, self.t, self.acc, self.w, self.sA
        unpack(k, t + 2, t + 3, t)
        k(f"v_lshlrev_b32 {v(self.coff)}, 2, {v(self.coff)}")
        for op in ("mul", "exp", "add", "rcp", "fin"):
            for h in range(2):
                x, y = t + 2 + h, t + 4 + h
                k({"mul": f"v_mul_f32 {v(y)}, {hex(LOG2E | 0x80000000)}, {v(x)}", "exp": f"v_exp_f32 {v(y)}, {v(y)}",
                   "add": f"v_add_f32 {v(y)}, 1.0, {v(y)}", "rcp": f"v_rcp_f32 {v(y)}, {v(y)}",
                   "fin": f"v_mul_f32 {v(x)}, {v(x)}, {v(y)}"}[op])
        k(f"v_cvt_pk_bf16_f32 {v(t)}, {v(t + 2)}, {v(t + 3)}")
        for i in range(5):
            k(f"ds_bpermute_b32 {v(acc + i)}, {v(self.coff)}, {v(t)} offset:{32 * i}")
        for i in range(5):
            unpack(k, cv + 2 * i, cv + 2 * i + 1, acc + i)
        u = t
        for i in range(10):
            if i == 5 and mid:
                mid(k)
            for j in range(4):
                unpack(k, u + 2 * j, u + 2 * j + 1, w + 4 * i + j)
            for j in range(4):
                if i == 0:
                    pk(k, "mul", acc + 2 * j, [("p", u + 2 * j), ("b", cv + i)])
                else:
                    pk(k, "fma", acc + 2 * j, [("p", u + 2 * j), ("b", cv + i), ("p", acc + 2 * j)])
        for j in range(4):
            k(f"v_permlane32_swap_b32 {v(acc + j)}, {v(acc + j + 4)}")
        for j in range(4):
            k(f"v_add_f32 {v(acc + j)}, {v(acc + j)}, {v(acc + j + 4)}")
        for j in range(2):
            k(f"v_permlane16_swap_b32 {v(acc + j)}, {v(acc + j + 2)}")
        for j in range(2):
            k(f"v_add_f32 {v(acc + j)}, {v(acc + j)}, {v(acc + j + 2)}")
        ad = u + 1
        k(f"v_and_b32 {v(ad)}, 7, {v(LANE)}")
        k(f"v_lshrrev_b32 {v(u + 2)}, 3, {v(LANE)}")
        k(f"v_add_f32_dpp {v(u)}, {v(acc)}, {v(acc)} row_ror:8 row_mask:0xf bank_mask:0x3")
        k(f"v_add_f32_dpp {v(u)}, {v(acc + 1)}, {v(acc + 1)} row_ror:8 row_mask:0xf bank_mask:0xc")
        k(f"v_lshl_add_u32 {v(ad)}, {v(ad)}, 3, {v(u + 2)}")
        k(f"s_lshl_b32 s7, {s(WAVE)}, 8")
        k(f"s_add_u32 s7, s7, {lds}")
        k(f"v_lshl_add_u32 {v(ad)}, {v(ad)}, 2, s7")
        k(f"ds_write_b32 {v(ad)}, {v(u)}")
        k.barrier()
        k(f"v_lshlrev_b32 {v(ad)}, 2, {v(LANE)}")
        k(f"v_add_u32 {v(u + 2)}, {lds}, {v(ad)}")
        for i in range(4):
            k(f"ds_read_b32 {v(acc + i)}, {v(u + 2)} offset:{256 * i}")
        k(f"v_add_u32 {v(ad)}, s{sA}, {v(ad)}")
        k(f"v_add_f32 {v(acc)}, {v(acc)}, {v(acc + 1)}")
        k(f"v_add_f32 {v(acc + 2)}, {v(acc + 2)}, {v(acc + 3)}")
        k(f"v_add_f32 {v(acc)}, {v(acc)}, {v(acc + 2)}")
        k(f"v_min_u32 {v(acc)}, -2, {v(acc)}")
        if before_store:
            before_store(k)
        st = Stream()
        st(f"s_cmp_lg_u32 {s(WAVE)}, 0")
        st(f"s_cbranch_scc1 Lmod_skip_{uid}")
        st(f"global_store_dword {v(ad)}, {v(acc)}, {sp(WS)} offset:{MODP} sc1")
        st(f"Lmod_skip_{uid}:")
        k.raw(st)


class X16:
    def __init__(self, R):
        self.d = R(20, 4)
        self.off, self.a0, self.a1, self.rho, self.gq = (R() for _ in range(5))
        self.st4 = R(4, 4)
        self.pr = R(8, 2)

    def issue(self, k, su):
        k(f"s_lshl_b32 s4, s{su}, 2")
        k(f"s_add_u32 s4, s4, {s(WAVE)}")
        k("s_mul_i32 s4, s4, 5120")
        k(f"s_cmp_lt_u32 s{su}, 128")
        k("s_cselect_b32 s5, -1, 0")
        k(f"v_add_u32 {v(self.a0)}, s4, {v(L16)}")
        k(f"v_and_b32 {v(self.a0)}, s5, {v(self.a0)}")
        k(f"v_add_u32 {v(self.a0)}, 2048, {v(self.a0)}")
        for i in range(5):
            k(f"global_load_dwordx4 {v(self.d + 4 * i, 4)}, {v(self.a0)}, {sp(Q)} offset:{1024 * i - 2048} nt")

    def stage(self, k):
        a0, a1, d = self.a0, self.a1, self.d
        k(f"s_mul_i32 s5, {s(WAVE)}, 5152")
        k(f"s_add_u32 s5, s5, {XSB}")
        k(f"v_add_u32 {v(a0)}, s5, {v(L16)}")
        k(f"v_lshrrev_b32 {v(a1)}, 5, {v(LANE)}")
        k(f"v_lshl_add_u32 {v(a1)}, {v(a1)}, 4, {v(a0)}")
        for i in range(5):
            k(f"ds_write_b128 {v(a1 if i == 2 else a0)}, {v(d + 4 * i, 4)} offset:{1024 * i + 16 * ((64 * i) // 160)}")

    def emit(self, k, su):
        a0, d, off, rho, gq, st4 = self.a0, self.d, self.off, self.rho, self.gq, self.st4
        k(f"v_mul_u32_u24 {v(a0)}, 2576, {v(rho)}")
        k(f"v_lshl_add_u32 {v(a0)}, {v(gq)}, 3, {v(a0)}")
        k(f"s_mul_i32 s5, {s(WAVE)}, 320")
        k(f"s_add_u32 s5, s5, {XSB}")
        k(f"v_add_u32 {v(a0)}, s5, {v(a0)}")
        for i in range(5):
            k(f"ds_read2_b64 {v(d + 4 * i, 4)}, {v(a0)} offset0:{8 * i} offset1:{160 + 8 * i}")
        k(f"s_lshr_b32 s4, s{su}, 2")
        k(f"s_mul_i32 s4, s4, {XRB}")
        k(f"s_and_b32 s5, s{su}, 3")
        k("s_lshl_b32 s5, s5, 7")
        k("s_add_u32 s4, s4, s5")
        k(f"s_mul_i32 s5, {s(WAVE)}, 20480")
        k("s_add_u32 s4, s4, s5")
        k(f"s_add_u32 s4, s4, {X1 + 4096}")
        k(f"v_lshl_add_u32 {v(off)}, {v(gq)}, 9, s4")
        k(f"v_lshl_add_u32 {v(off)}, {v(rho)}, 4, {v(off)}")
        k(f"s_mov_b32 s7, {hex(ONES)}")
        for j in range(4):
            k(f"v_mov_b32 {v(st4 + j)}, 0")
        for i in range(5):
            set_tag(k, d + 4 * i + 3, 0)
            k(f"global_store_dwordx4 {v(off)}, {v(d + 4 * i, 4)}, {sp(WS)} offset:{4096 * (i & 1) - 4096} sc1")
            if i & 1:
                k(f"v_add_u32 {v(off)}, 8192, {v(off)}")
        for i in range(5):
            for j in range(2):
                for r in range(2):
                    src = d + 4 * i + 2 * r + j
                    k(f"v_dot2_f32_bf16 {v(st4 + 2 * r)}, {v(src)}, s7, {v(st4 + 2 * r)}")
                    k(f"v_dot2_f32_bf16 {v(st4 + 2 * r + 1)}, {v(src)}, {v(src)}, {v(st4 + 2 * r + 1)}")
        k(f"v_permlane32_swap_b32 {v(st4)}, {v(st4 + 2)}")
        k(f"v_permlane32_swap_b32 {v(st4 + 1)}, {v(st4 + 3)}")
        k(f"v_add_f32 {v(st4)}, {v(st4)}, {v(st4 + 2)}")
        k(f"v_add_f32 {v(st4 + 1)}, {v(st4 + 1)}, {v(st4 + 3)}")
        k(f"v_permlane16_swap_b32 {v(st4)}, {v(st4 + 1)}")
        k(f"v_add_f32 {v(st4)}, {v(st4)}, {v(st4 + 1)}")
        k(f"v_lshlrev_b32 {v(a0)}, 4, {v(rho)}")
        k(f"v_lshl_add_u32 {v(a0)}, {v(Q_)}, 2, {v(a0)}")
        k(f"v_add_f32_dpp {v(st4)}, {v(st4)}, {v(st4)} row_ror:8 row_mask:0xf bank_mask:0xf")
        k(f"s_lshl_b32 s5, {s(WAVE)}, 7")
        k(f"s_add_u32 s5, s5, {XSB + 20736}")
        k(f"v_add_u32 {v(a0)}, s5, {v(a0)}")
        k(f"ds_write_b32 {v(a0)}, {v(st4)}")

    def publish(self, k, su):
        a0, pr = self.a0, self.pr
        k(f"v_lshlrev_b32 {v(a0)}, 3, {v(N_)}")
        k(f"v_add_u32 {v(self.a1)}, {XSB + 20736}, {v(a0)}")
        for i in range(4):
            k(f"ds_read_b64 {v(pr + 2 * i, 2)}, {v(self.a1)} offset:{128 * i}")
        pk(k, "add", pr, [("p", pr), ("p", pr + 2)])
        pk(k, "add", pr + 4, [("p", pr + 4), ("p", pr + 6)])
        pk(k, "add", pr, [("p", pr), ("p", pr + 4)])
        row_stats(k, pr, pr + 1, D, pr + 2)
        k(f"v_min_u32 {v(pr)}, -2, {v(pr)}")
        k(f"v_min_u32 {v(pr + 1)}, -2, {v(pr + 1)}")
        k(f"s_lshl_b32 s5, s{su}, 7")
        k(f"s_add_u32 s5, s5, {ST1}")
        k(f"v_add_u32 {v(a0)}, s5, {v(a0)}")
        k(f"global_store_dwordx2 {v(a0)}, {v(pr, 2)}, {sp(WS)} sc1")


class KVTile:
    def __init__(self, R):
        self.o0, self.o1, self.t = R(), R(), R()
        self.kr = R(22, 2)
        self.vr = R(16, 2)
        self.tr = R(8, 4)
        self.tp = R(16, 2)
        self.un = R(44, 2)
        self.kv = R(32, 4)

    def issue(self, k, sg):
        o0, o1, t = self.o0, self.o1, self.t
        k(f"s_and_b32 s4, s{sg}, 15")
        k(f"s_lshl_b32 s4, s4, 2")
        k(f"s_add_u32 s4, s4, {s(WAVE)}")
        k(f"s_mul_i32 s4, s4, {32 * 1280}")
        k(f"s_lshr_b32 s5, s{sg}, 4")
        k("s_lshl_b32 s6, s5, 7")
        k("s_add_u32 s4, s4, s6")
        k(f"v_mul_u32_u24 {v(o0)}, {8 * 1280}, {v(Q_)}")
        k(f"v_lshl_add_u32 {v(o0)}, {v(N_)}, 3, {v(o0)}")
        k(f"v_add_u32 {v(o0)}, s4, {v(o0)}")
        k(f"v_add_u32 {v(o1)}, {4 * 1280}, {v(o0)}")
        for r in range(8):
            k(f"global_load_dwordx2 {v(self.kr + 6 + 2 * r, 2)}, {v(o1 if r >= 4 else o0)}, {sp(K)} offset:{1280 * (r % 4)}")
        k(f"v_max_u32 {v(t)}, {3 * 1280}, {v(o0)}")
        for r in range(3):
            k(f"global_load_dwordx2 {v(self.kr + 2 * r, 2)}, {v(t)}, {sp(K)} offset:{1280 * (r - 3)}")
        k("s_lshl_b32 s5, s5, 9")
        k(f"v_lshl_add_u32 {v(t)}, {v(N_)}, 5, s5")
        for h in range(2):
            k(f"global_load_dwordx4 {v(self.tr + 4 * h, 4)}, {v(t)}, {sp(SHK)} offset:{16 * h}")
        for r in range(8):
            k(f"global_load_dwordx2 {v(self.vr + 2 * r, 2)}, {v(o1 if r >= 4 else o0)}, {sp(V)} offset:{1280 * (r % 4)} nt")

    def compute(self, k, hook):
        kr, vr, tr, tp, un, kv, t = self.kr, self.vr, self.tr, self.tp, self.un, self.kv, self.t
        for i in list(range(3, 11)):
            for p in range(2):
                unpack(k, un + 4 * i + 2 * p, un + 4 * i + 2 * p + 1, kr + 2 * i + p)
        stamp(k, 42)
        hook(k)
        k(f"v_cmp_le_u32 vcc, 1280, {v(self.o0)}")
        for j in range(6):
            k(f"v_cndmask_b32 {v(kr + j)}, 0, {v(kr + j)}, vcc")
        for i in range(3):
            for p in range(2):
                unpack(k, un + 4 * i + 2 * p, un + 4 * i + 2 * p + 1, kr + 2 * i + p)
        for ch in range(4):
            for h in range(2):
                unpack(k, tp + 8 * h + ch, tp + 8 * h + 4 + ch, tr + 2 * ch + h)
        for j in range(4):
            for r in range(8):
                for p in range(2):
                    src = un + 4 * (3 + r - j) + 2 * p
                    d = kv + 4 * r + 2 * p
                    if j == 0:
                        pk(k, "mul", d, [("p", src), ("p", tp + 2 * p)])
                    else:
                        pk(k, "fma", d, [("p", src), ("p", tp + 4 * j + 2 * p), ("p", d)])
        stamp(k, 43)
        k(f"s_lshl_b32 s4, {s(WAVE)}, 6")
        k(f"s_sub_u32 s4, {TRB + 240}, s4")
        k(f"v_mul_u32_u24 {v(t)}, 272, {v(N_)}")
        k(f"v_add_u32 {v(t)}, s4, {v(t)}")
        k(f"v_lshlrev_b32 {v(self.o1)}, 4, {v(Q_)}")
        k(f"v_sub_u32 {v(t)}, {v(t)}, {v(self.o1)}")
        for r in range(8):
            for p in range(2):
                unpack(k, un + 4 * r + 2 * p, un + 4 * r + 2 * p + 1, vr + 2 * r + p)
            for p in range(2):
                pk(k, "mul", kv + 4 * r + 2 * p, [("p", kv + 4 * r + 2 * p), ("p", un + 4 * r + 2 * p)])
        o = tp
        for ch in range(4):
            for j in range(4):
                k(f"v_cvt_pk_bf16_f32 {v(o + 4 * ch + j)}, {v(kv + 4 * (7 - 2 * j) + ch)}, {v(kv + 4 * (6 - 2 * j) + ch)}")
            set_tag(k, o + 4 * ch + 3, 0)
            k(f"ds_write_b128 {v(t)}, {v(o + 4 * ch, 4)} offset:{16 * 272 * ch}")

    def store(self, k, sg):
        t, o0, kv = self.t, self.o0, self.kv
        k(f"s_mul_i32 s4, {s(WAVE)}, {16 * 272}")
        k(f"s_add_u32 s4, s4, {TRB}")
        k(f"v_mul_u32_u24 {v(t)}, 272, {v(Q_)}")
        k(f"v_lshl_add_u32 {v(t)}, {v(N_)}, 4, {v(t)}")
        k(f"v_add_u32 {v(t)}, s4, {v(t)}")
        for i in range(4):
            k(f"ds_read_b128 {v(kv + 4 * i, 4)}, {v(t)} offset:{4 * 272 * i}")
        k(f"s_lshr_b32 s4, s{sg}, 4")
        k("s_lshl_b32 s4, s4, 6")
        k(f"s_add_u32 s4, s4, {s(WAVE)}")
        k("s_lshl_b32 s4, s4, 12")
        k(f"s_and_b32 s5, s{sg}, 15")
        k("s_lshl_b32 s5, s5, 8")
        k("s_sub_u32 s4, s4, s5")
        k(f"s_add_u32 s4, s4, {KVT + 15 * 256}")
        k(f"v_lshl_add_u32 {v(o0)}, {v(Q_)}, 14, s4")
        k(f"v_lshl_add_u32 {v(o0)}, {v(N_)}, 4, {v(o0)}")
        toks = []
        for i in range(4):
            toks.append(k(f"global_store_dwordx4 {v(o0)}, {v(kv + 4 * i, 4)}, {sp(WS)} sc1"))
            if i < 3:
                k(f"v_add_u32 {v(o0)}, 65536, {v(o0)}")
        return toks


def wp_unit2(k, su, cfg):
    R = Alloc(VFREE, 250)
    off = R()
    k(f"s_and_b32 s4, s{su}, 1")
    k("s_lshl_b32 s4, s4, 1")
    k(f"s_and_b32 s5, {s(WAVE)}, 1")
    k("s_add_u32 s44, s4, s5")
    k(f"s_and_b32 s4, s{su}, -2")
    k(f"s_lshr_b32 s5, {s(WAVE)}, 1")
    k("s_add_u32 s45, s4, s5")
    k(f"s_and_b32 s4, s{su}, 1")
    k("s_lshl_b32 s4, s4, 2")
    k(f"s_add_u32 s4, s4, {s(WAVE)}")
    k(f"s_mul_i32 s4, s4, {80 * 3456}")
    k(f"s_lshr_b32 s5, s{su}, 1")
    k("s_lshl_b32 s5, s5, 7")
    k("s_add_u32 s4, s4, s5")
    k(f"v_lshrrev_b32 {v(off)}, 3, {v(LANE)}")
    k(f"v_mul_u32_u24 {v(off)}, {3456 - 128}, {v(off)}")
    k(f"v_add3_u32 {v(off)}, {v(off)}, {v(L16)}, s4")
    k(f"s_mul_i32 s5, {s(WAVE)}, 10240")
    toks = []
    for i in range(10):
        k(f"s_add_u32 m0, s5, {1024 * i}")
        toks.append(k(f"global_load_lds_dwordx4 {v(off)}, {sp(WIN)} nt"))
        k(f"v_add_u32 {v(off)}, {8 * 3456}, {v(off)}")
    w = R(40, 4)
    mo, m2, ta, oe, oo, tm = (R() for _ in range(6))
    mk = R.mark()
    mx_ = Mod(R, 47)
    R.reset(mk)
    mp = R(16, 4)
    pr = R(16, 2)
    outs = R(40, 4)
    st = Stream()
    st(f"s_cmp_lt_u32 s{su}, 38")
    st("s_cbranch_scc1 Lwp_n0")
    st(f"s_add_u32 s48, s{su}, 46")
    mx_.issue(st, 48)
    st("s_waitcnt vmcnt(11)")
    st("s_branch Lwp_n2")
    st("Lwp_n0:")
    st(f"s_cmp_lt_u32 s{su}, 11")
    st("s_cbranch_scc1 Lwp_n1")
    st(f"s_sub_u32 s48, s{su}, 11")
    wout_issue(st, 48, mp, 40960)
    st("s_waitcnt vmcnt(10)")
    st("s_branch Lwp_n2")
    st("Lwp_n1:")
    st("s_waitcnt vmcnt(0)")
    st("Lwp_n2:")
    k(f"v_min_u32 {v(mo)}, {39 * 16}, {v(L16)}")
    k("s_mul_i32 s5, s44, 640")
    k(f"s_add_u32 s5, s5, {MODP + 3 * 2560}")
    k(f"v_add_u32 {v(m2)}, s5, {v(mo)}")
    k(f"s_mul_i32 s5, {s(WAVE)}, 1280")
    k(f"s_add_u32 s5, s5, {XSB + 2048}")
    k(f"v_add_u32 {v(mo)}, s5, {v(mo)}")
    k(f"v_lshl_add_u32 {v(ta)}, {v(Q_)}, 5, s5")
    k("s_cmp_ge_u32 s45, 27")
    k("s_cselect_b32 s6, -54, 56")
    k("s_lshl_b32 s7, s45, 1")
    k("s_add_u32 s46, s6, s7")
    k("s_mul_i32 s4, s46, 20480")
    k("s_mul_i32 s5, s44, 5120")
    k("s_add_u32 s4, s4, s5")
    k(f"s_add_u32 s4, s4, {WP + 2048}")
    k(f"v_add_u32 {v(oe)}, s4, {v(L16)}")
    k(f"v_add_u32 {v(oo)}, 20480, {v(oe)}")
    un = R(80, 2)
    k(f"s_and_b32 s4, {s(WAVE)}, 1")
    k("s_mul_i32 s4, s4, 20480")
    k(f"s_lshr_b32 s5, {s(WAVE)}, 1")
    k("s_lshl_b32 s5, s5, 6")
    k("s_add_u32 s4, s4, s5")
    k(f"v_lshl_add_u32 {v(off)}, {v(Q_)}, 10, s4")
    k(f"v_lshl_add_u32 {v(off)}, {v(N_)}, 2, {v(off)}")
    k.raw(st)
    k.forget()
    stamp(k, 3)
    k("s_barrier")
    for i in range(40):
        k(f"ds_read_b32 {v(w + i)}, {v(off)} offset:{4096 * (i // 8) + 128 * (i % 8)}")
    for i in range(40):
        unpack(k, un + 2 * i, un + 2 * i + 1, w + i)
    stamp(k, 4)

    def mloads(st):
        for part in range(NMOD):
            st(f"v_add_u32 {v(tm)}, {part * MODS}, {v(m2)}")
            st(f"global_load_dwordx4 {v(mp + 8 * part, 4)}, {v(tm)}, {sp(WS)} sc1")
            st(f"global_load_dwordx4 {v(mp + 8 * part + 4, 4)}, {v(tm)}, {sp(WS)} offset:2560 sc1")

    init_check_wg(k, "Lwic", w)
    k.drain(lgkm=False)
    k("s_barrier")
    st = Stream()
    st(f"s_cmp_lt_u32 s{su}, 38")
    st("s_cbranch_scc1 Lwp_n3")
    mx_.finish(st, XSB, None, "w")
    st("Lwp_n3:")
    k.raw(st)
    stamp(k, 42)
    poll(k, "Lwm", mloads, list(range(mp, mp + 8 * NMOD)), tm, cfg.get("slm", 2))
    stamp(k, 5)
    for part in range(1, NMOD):
        for j in range(4):
            pk(k, "add", mp + 2 * j, [("p", mp + 2 * j), ("p", mp + 8 * part + 2 * j)])
    for j in range(8):
        round_bf16(k, mp + j)
    for j in range(4, 8):
        k(f"v_add_f32 {v(mp + j)}, 1.0, {v(mp + j)}")
    for j in range(4, 8):
        round_bf16(k, mp + j)
    k(f"ds_write_b128 {v(mo)}, {v(mp + 4, 4)}")
    k(f"ds_write_b128 {v(mo)}, {v(mp, 4)} offset:640")
    cc = w
    for ks in range(5):
        for h in range(2):
            k(f"ds_read_b128 {v(cc + 8 * ks + 4 * h, 4)}, {v(ta)} offset:{128 * ks + 16 * h}")
    for ks in range(5):
        o = outs + 8 * ks
        for e in range(8):
            pk(k, "mul", pr + 2 * e, [("p", un + 16 * ks + 2 * e), ("b", cc + 8 * ks + e)])
        for par in range(2):
            for j in range(4):
                k(f"v_cvt_pk_bf16_f32 {v(o + 4 * par + j)}, {v(pr + 4 * j + par)}, {v(pr + 4 * j + 2 + par)}")
        k(f"global_store_dwordx4 {v(oe)}, {v(o, 4)}, {sp(WS)} offset:{1024 * ks - 2048} sc1")
        k(f"global_store_dwordx4 {v(oo)}, {v(o + 4, 4)}, {sp(WS)} offset:{1024 * ks - 2048} sc1")
    for ks in range(5):
        for h in range(2):
            k(f"ds_read_b128 {v(cc + 8 * ks + 4 * h, 4)}, {v(ta)} offset:{640 + 128 * ks + 16 * h}")
    uu = mp + 8
    k(f"s_mov_b32 s7, {hex(ONES)}")
    for j in range(8):
        k(f"v_mov_b32 {v(uu + j)}, 0")
    for i in range(20):
        for par in range(2):
            k(f"v_dot2_f32_bf16 {v(uu + par)}, {v(outs + 8 * (i // 4) + 4 * par + i % 4)}, s7, {v(uu + par)}")
    for i in range(40):
        d = uu + 2 + 2 * (i % 3)
        pk(k, "fma", d, [("p", un + 2 * i), ("b", cc + i), ("p", d)])
    pk(k, "add", uu + 2, [("p", uu + 2), ("p", uu + 4)])
    pk(k, "add", uu + 2, [("p", uu + 2), ("p", uu + 6)])
    k(f"v_permlane32_swap_b32 {v(uu)}, {v(uu + 1)}")
    k(f"v_permlane32_swap_b32 {v(uu + 2)}, {v(uu + 3)}")
    k(f"v_add_f32 {v(uu)}, {v(uu)}, {v(uu + 1)}")
    k(f"v_add_f32 {v(uu + 2)}, {v(uu + 2)}, {v(uu + 3)}")
    k(f"v_permlane16_swap_b32 {v(uu)}, {v(uu + 2)}")
    k(f"v_add_f32 {v(uu)}, {v(uu)}, {v(uu + 2)}")
    k(f"v_lshlrev_b32 {v(ta)}, 2, v0")
    k(f"v_add_u32 {v(ta)}, {XSB + 8192}, {v(ta)}")
    k(f"ds_write_b32 {v(ta)}, {v(uu)}")
    k(f"v_xor_b32 {v(ta)}, 256, {v(ta)}")
    k.drain()
    k("s_barrier")
    k(f"ds_read_b32 {v(uu + 1)}, {v(ta)}")
    k("s_lshl_b32 s6, s46, 7")
    k("s_lshr_b32 s5, s44, 1")
    k(f"s_mul_i32 s5, s5, {US}")
    k("s_add_u32 s6, s6, s5")
    k(f"s_add_u32 s6, s6, {U}")
    k(f"v_lshl_add_u32 {v(ta)}, {v(LANE)}, 2, s6")
    k(f"v_add_f32 {v(uu)}, {v(uu)}, {v(uu + 1)}")
    k(f"v_min_u32 {v(uu)}, -2, {v(uu)}")
    st = Stream()
    st(f"s_bitcmp1_b32 {s(WAVE)}, 0")
    st("s_cbranch_scc1 Lwp_skip")
    st(f"global_store_dword {v(ta)}, {v(uu)}, {sp(WS)} sc1")
    st("Lwp_skip:")
    k.raw(st)


def conv_path(k, stubs, cfg):
    sg = SUN
    R = Alloc(VFREE, 254)
    t0, t1 = R(), R()
    ka, kc, ua, uw, yw, yr, xo, x1o = (R() for _ in range(8))
    base = R.mark()
    if cfg.get("x_front") == "spare":
        k("s_branch Lflush")
    kt = KVTile(R)
    m0_ = R.mark()
    x16 = X16(R)
    kt.issue(k, sg)
    SDv, DP, AS = 92, 52, 60
    k(f"s_lshl_b32 s7, {s(sg)}, 3")
    k(f"s_load_dwordx2 s[{SDv}:{SDv + 1}], {sp(SD)}, s7")
    stamp(k, 2)
    yv = kt.kv
    for j in range(4):
        k(f"v_mov_b32 {v(yv + j)}, 0")
    k(f"s_mul_i32 s5, {s(WAVE)}, {2 * KCP}")
    k(f"v_and_b32 {v(t0)}, 48, {v(L16)}")
    k(f"v_add_u32 {v(t0)}, s5, {v(t0)}")
    for cp in range(2):
        k(f"ds_write_b128 {v(t0)}, {v(yv, 4)} offset:{KT + cp * KCP}")
    k(f"v_min_u32 {v(t0)}, {28 * 16}, {v(L16)}")
    k(f"s_mul_i32 s4, {s(WAVE)}, {UCH}")
    k(f"v_add_u32 {v(t0)}, s4, {v(t0)}")
    for cp in range(2):
        k(f"ds_write_b128 {v(t0)}, {v(yv, 4)} offset:{UT + cp * UCP + 4096}")
    k(f"v_add_u32 {v(kc)}, s5, {v(L16)}")
    k(f"v_and_b32 {v(t0)}, 1, {v(N_)}")
    k(f"v_lshrrev_b32 {v(t1)}, 1, {v(N_)}")
    k(f"v_mul_u32_u24 {v(ka)}, {KCP}, {v(t0)}")
    k(f"v_lshl_add_u32 {v(ka)}, {v(t1)}, 3, {v(ka)}")
    k(f"v_lshl_add_u32 {v(ka)}, {v(Q_)}, 4, {v(ka)}")
    k(f"v_add_u32 {v(ka)}, s5, {v(ka)}")
    k(f"v_mul_u32_u24 {v(ua)}, {UCP}, {v(t0)}")
    k(f"v_lshlrev_b32 {v(t1)}, 6, {v(t1)}")
    k(f"v_sub_u32 {v(ua)}, {v(ua)}, {v(t1)}")
    k(f"v_lshl_add_u32 {v(ua)}, {v(Q_)}, 4, {v(ua)}")
    k(f"s_add_u32 s4, s4, {UT + 16 + 448}")
    k(f"v_add_u32 {v(ua)}, s4, {v(ua)}")
    k(f"v_lshl_add_u32 {v(yw)}, {v(t0)}, 2, {v(t1)}")
    k(f"v_lshl_add_u32 {v(yw)}, {v(Q_)}, 4, {v(yw)}")
    k(f"s_mul_i32 s4, {s(WAVE)}, {YCH}")
    k(f"s_add_u32 s4, s4, {YT}")
    k(f"v_add_u32 {v(yw)}, s4, {v(yw)}")
    k(f"v_lshlrev_b32 {v(t0)}, 2, v0")
    k(f"v_sub_u32 {v(uw)}, {UT + 16 + 2 * (2044 - 1536)}, {v(t0)}")
    k(f"v_add_u32 {v(yr)}, {YT}, {v(t0)}")
    k(f"v_lshrrev_b32 {v(t0)}, 5, v0")
    k(f"v_mul_u32_u24 {v(x1o)}, {XRB}, {v(t0)}")
    k(f"v_and_b32 {v(t0)}, 31, v0")
    k(f"v_lshl_add_u32 {v(x1o)}, {v(t0)}, 4, {v(x1o)}")
    k(f"s_lshl_b32 s4, {s(sg)}, 9")
    k(f"s_add_u32 s4, s4, {X1}")
    k(f"v_add_u32 {v(x1o)}, s4, {v(x1o)}")
    for ch in range(4):
        if ch & 1:
            k(f"s_and_b32 s{DP + ch}, s{SDv + (ch >> 1)}, 0xffff0000")
        else:
            k(f"s_lshl_b32 s{DP + ch}, s{SDv + (ch >> 1)}, 16")
        k(f"s_lshr_b32 s{DP + 4 + ch}, s{DP + ch}, 16")
    k(f"v_and_b32 {v(x16.rho)}, 7, {v(LANE)}")
    k(f"v_lshrrev_b32 {v(x16.gq)}, 3, {v(LANE)}")
    ktok = []

    def ssm_dma(st):
        st(f"s_lshl_b32 s4, {s(sg)}, 2")
        st(f"s_add_u32 s4, s4, {s(WAVE)}")
        st(f"s_lshl_b32 s94, s4, 12")
        st(f"v_add_u32 {v(t0)}, s94, {v(L16)}")
        st(f"s_mul_i32 s5, {s(WAVE)}, {2 * KCP}")
        st(f"s_add_u32 m0, s5, {KT + KCP + 64}")
        ktok.extend(st(f"global_load_lds_dwordx4 {v(t0)}, {sp(SSM)} offset:{1024 * i} nt") for i in range(4))

    if cfg.get("xfirst", 0):
        x16.issue(k, sg)
        stamp(k, 3)
        kt.compute(k, ssm_dma)
    else:
        ssm_dma(k)
        bias_load(k)
        stamp(k, 3)
        kt.compute(k, lambda st_: x16.issue(st_, sg))
    k.barrier()
    stamp(k, 4)
    kt.store(k, sg)
    ic = x16.pr
    dbg_addr(k, ic, False)
    k(f"v_mov_b32 {v(ic + 1)}, 1")

    def dbg_w0(name, t):
        st = Stream()
        st(f"s_cmp_lg_u32 {s(WAVE)}, 0")
        st(f"s_cbranch_scc1 {name}")
        dbg_load(st, t)
        st(f"{name}:")
        k.raw(st)

    dbg_w0("Ldb1", ic)
    R.reset(base)
    acc = R(32, 4)
    af = R(64, 4)
    kfa, kfd = R(), R()
    assert R.mark() <= kt.kv
    k.wait(*ktok)
    for i in range(4):
        k(f"ds_read_b128 {v(af + 8 * i + 2, 4)}, {v(kc)} offset:{KT + KCP + 64 + 1024 * i}")
        k(f"ds_read_b32 {v(af + 8 * i + 1)}, {v(kc)} offset:{KT + KCP + 60 + 1024 * i}")
    for i in range(4):
        for j in range(4):
            k(f"v_alignbit_b32 {v(af + 32 + 4 * i + j)}, {v(af + 8 * i + 2 + j)}, {v(af + 8 * i + 1 + j)}, 16")
        k(f"ds_write_b128 {v(kc)}, {v(af + 32 + 4 * i, 4)} offset:{KT + 64 + 1024 * i}")

    def kfrags(st, j0, j1):
        for j in range(j0, j1):
            for h in range(2):
                st(f"ds_read_b64 {a(4 * j + 2 * h, 2)}, {v(ka)} offset:{KT + 8 + 64 * j + 8 * h}")

    nk, nk2 = cfg.get("kf1", 24), cfg.get("kf2", 44)
    kfrags(k, 0, nk)
    x16.stage(k)
    k(f"s_lshl_b32 s95, {s(sg)}, 7")
    k(f"s_add_u32 s95, s95, {KF}")
    stamp(k, 44)
    k.drain(lgkm=False)
    k(f"v_cmp_eq_u32 vcc, 0, {v(ic + 1)}")
    k("s_cbranch_vccnz Lic_r")
    k("Lic_ok:")
    st = Stream()
    st("Lic_r:")
    init_check(st, "Lic_p", ic)
    st("s_branch Lic_ok")
    stubs.append(st)
    k.barrier()
    flag_store(k, "Lkf_skip", t1, 95)
    stamp(k, 5)
    a_ = Stream()
    a_(f"s_cmp_ge_u32 s{sg}, 128")
    a_("s_cbranch_scc1 Lc_j3")
    x16.emit(a_, sg)
    a_("Lc_j3:")
    k.raw(a_)
    stamp(k, 6)
    k(f"s_and_b32 s4, s{sg}, -16")
    k("s_lshl_b32 s4, s4, 7")
    k(f"s_add_u32 s4, s4, {KF}")
    k(f"v_lshl_add_u32 {v(kfa)}, {v(N_)}, 7, s4")
    kfl = lambda st_: st_(f"global_load_dword {v(kfd)}, {v(kfa)}, {sp(WS)} sc1")
    kfrags(k, nk, nk2)
    kfl(k)
    dbg_addr(k, acc + 1, True)
    k(f"v_mov_b32 {v(acc + 2)}, 1")
    dbg_w0("Ldb2", acc + 1)
    kfrags(k, nk2, 64)
    k(f"s_add_u32 s4, s94, {KVT}")
    k(f"v_add_u32 {v(t0)}, s4, {v(L16)}")
    k.drain()
    k(f"v_cmp_eq_u32 vcc, 0, {v(acc + 2)}")
    k("s_cbranch_vccnz Lic2_r")
    k("Lic2_ok:")
    st = Stream()
    st("Lic2_r:")
    init_check(st, "Lic2_p", acc + 1)
    st("s_branch Lic2_ok")
    stubs.append(st)
    k("s_barrier")
    stamp(k, 7)
    pub = Stream()
    pub(f"s_cmp_ge_u32 s{sg}, 128")
    pub("s_cbranch_scc1 Lc_j5")
    pub(f"s_cmp_lg_u32 {s(WAVE)}, 0")
    pub("s_cbranch_scc1 Lc_j5")
    x16.publish(pub, sg)
    pub("Lc_j5:")
    k.raw(pub)
    check(k, stubs, "Lkf", kfl, [kfd], kfd)
    stamp(k, 8)
    k(f"s_mul_i32 s5, {s(WAVE)}, {UCH}")
    utok = {}
    for c in range(4):
        utok[c] = []
        for cp in range(2):
            k(f"s_add_u32 m0, s5, {UT + cp * (UCP + 4) + 12}")
            utok[c].append(k(f"global_load_lds_dwordx4 {v(t0)}, {sp(WS)} offset:{1024 * (3 - c)} sc1"))
    w_setup(k)
    k_order(k)
    yv = R(4, 2)
    kv = R(8, 2)
    hp = R(8, 2)
    un = R(20, 2)
    Bc = R(4, 2)
    md = R(3, 2)
    xr = [R(4, 2) for _ in range(4)]
    sr = [R(4, 2) for _ in range(4)]
    ut = R(5, 2)
    uad = R()
    mxr = R()


    def areads(st, c, wl):
        w = 2 * c + wl
        if wl == 0:
            st.wait(*utok[c])
        for r in range(8):
            st(f"ds_read_b128 {v(af + 32 * wl + 4 * r, 4)}, {v(ua)} offset:{2 * (1792 - 256 * w + 32 * r)}")

    started = set()

    def M(c):
        st = Stream()

        def mm(wl, r, t):
            i = 2 * c + wl + t
            cin = v(acc + 4 * i, 4) if i in started else "0"
            started.add(i)
            st(f"v_mfma_f32_16x16x32_bf16 {v(acc + 4 * i, 4)}, {a(4 * (r + 8 * t), 4)}, {v(af + 32 * wl + 4 * r, 4)}, {cin}")

        for r in range(8):
            mm(0, r, 0)
            mm(0, r, 1)
        for r in range(8):
            mm(1, r, 0)
        for r in range(8):
            for t in range(2, 8 - 2 * c):
                mm(0, r, t)
        for r in range(8):
            for t in range(1, 7 - 2 * c):
                mm(1, r, t)
        return st

    def ywrite(st, c, sync=True):
        if c == 0:
            st.wait(auxtok[0])
        for wl in range(2):
            i = 2 * c + wl
            st(f"v_cvt_pk_bf16_f32 {v(yv + 2 * wl)}, {v(acc + 4 * i)}, {v(acc + 4 * i + 1)}")
            st(f"v_cvt_pk_bf16_f32 {v(yv + 2 * wl + 1)}, {v(acc + 4 * i + 2)}, {v(acc + 4 * i + 3)}")
            st(f"ds_write2_b32 {v(yw)}, {v(yv + 2 * wl)}, {v(yv + 2 * wl + 1)} offset0:{128 * wl} offset1:{128 * wl + 2}")
        if c < 3:
            st(f"v_add_u32 {v(yw)}, {4 * YCH}, {v(yw)}")
        if sync:
            st.barrier()

    def EP(st, c, packed, store=True):
        yd, pkd = hp, hp + 4
        for ch in range(4):
            st(f"ds_read_b32 {v(yd + ch)}, {v(yr)} offset:{4 * YCH * c + YCH * ch}")
        for ch in range(4):
            st(f"ds_read_b32 {v(pkd + ch)}, {v(uw)} offset:{ch * UCH + 1024 * (3 - c)}")
        X, Hh, Y = un, un + 8, kv
        for i in range(4):
            unpack(st, X + 2 * i, X + 2 * i + 1, xr[c] + i)
        for i in range(4):
            r = i >> 1
            vop(st, "fma", Hh + 2 * i, [("p", X + 2 * i), ("b", sr[c] + 2 * r), ("b", sr[c] + 2 * r + 1)], packed)
        for i in range(4):
            p = i & 1
            vop(st, "fma", Hh + 2 * i, [("p", Hh + 2 * i), ("sp", AS + 2 * p), ("p", Bc + 2 * p)], packed)
        for ch in range(4):
            unpack(st, Y + ch, Y + 4 + ch, yd + ch)
        if packed:
            for ch in range(4):
                st(f"v_dot2_f32_bf16 {v(Y + ch)}, {v(pkd + ch)}, s{DP + ch}, {v(Y + ch)}")
            for ch in range(4):
                st(f"v_dot2_f32_bf16 {v(Y + 4 + ch)}, {v(pkd + ch)}, s{DP + 4 + ch}, {v(Y + 4 + ch)}")
        else:
            T = un + 16
            for r in range(2):
                for ch in range(4):
                    st(f"v_and_b32 {v(T + ch)}, 0xffff0000, {v(pkd + ch)}" if r == 0 else f"v_lshlrev_b32 {v(T + ch)}, 16, {v(pkd + ch)}")
                for ch in range(4):
                    st(f"v_fmac_f32 {v(Y + 4 * r + ch)}, s{DP + ch}, {v(T + ch)}")
        for i in range(4):
            vop(st, "fma", X + 2 * i, [("p", Hh + 2 * i), ("p", Y + 2 * i), ("p", X + 2 * i)], packed)
        for i in range(4):
            st(f"v_cvt_pk_bf16_f32 {v(xr[c] + i)}, {v(X + 2 * i)}, {v(X + 2 * i + 1)}")
        set_tag(st, xr[c] + 3, 1)
        if store:
            x1store(st, c)

    def x1store(st, c):
        st(f"v_add_u32 {v(kfa)}, {c * 8 * XRB}, {v(x1o)}")
        st(f"global_store_dwordx4 {v(kfa)}, {v(xr[c], 4)}, {sp(WS)} sc1")

    def aux(st):
        st(f"v_lshlrev_b32 {v(t0)}, 4, v0")
        st(f"v_add_u32 {v(t0)}, {ST1 + 4096}, {v(t0)}")
        for c in range(4):
            if c == 2:
                st(f"v_add_u32 {v(t0)}, 8192, {v(t0)}")
            st(f"global_load_dwordx4 {v(sr[c], 4)}, {v(t0)}, {sp(WS)} offset:{4096 * (c & 1) - 4096} sc1")
        st(f"v_min_u32 {v(t0)}, 11, {v(LANE)}")
        st(f"v_lshrrev_b32 {v(t1)}, 2, {v(t0)}")
        st(f"v_mul_u32_u24 {v(t1)}, {2560 - 16}, {v(t1)}")
        st(f"v_lshl_add_u32 {v(t0)}, {v(t0)}, 2, {v(t1)}")
        st(f"s_lshl_b32 s4, {s(sg)}, 4")
        st(f"s_add_u32 s4, s4, {MODP}")
        st(f"v_add_u32 {v(t0)}, s4, {v(t0)}")
        for part in range(NMOD):
            st(f"global_load_dword {v(md + part)}, {v(t0)}, {sp(WS)} sc1")
            if part < NMOD - 1:
                st(f"v_add_u32 {v(t0)}, {MODS}, {v(t0)}")

    auxregs = [sr[c] + j for c in range(4) for j in (1, 3)] + [md, md + 1]

    def aux2(st):
        maxchain(st, mxr, auxregs)
        check(st, stubs, "Lax", aux, auxregs, mxr)
        for c in range(4):
            st(f"v_add_u32 {v(xo)}, {c * 8 * XRB}, {v(x1o)}")
            st(f"global_load_dwordx4 {v(xr[c], 4)}, {v(xo)}, {sp(WS)} sc1")
        st(f"v_add_f32 {v(md)}, {v(md)}, {v(md + 1)}")
        round_bf16(st, md)
        st(f"v_mov_b32 {v(t1)}, 1.0")
        st(f"v_add_f32_dpp {v(md)}, {v(md)}, {v(t1)} quad_perm:[0,1,2,3] row_mask:0xf bank_mask:0x2")
        round_bf16(st, md)
        st(f"v_mul_f32_dpp {v(md + 1)}, {v(md)}, {v(md)} row_shl:8 row_mask:0xf bank_mask:0x1")
        st(f"v_mul_f32_dpp {v(md + 1)}, {v(md)}, {v(md)} row_shl:4 row_mask:0xf bank_mask:0x2")
        for ch in range(8):
            st(f"v_readlane_b32 s{AS + (ch + 4) % 8}, {v(md + 1)}, {ch}")
        for ch in range(4):
            st(f"v_mov_b32 {v(Bc + ch)}, s{AS + 4 + ch}")

    def uchk(st):
        maxchain(st, mxr, range(ut, ut + 4))
        check(st, stubs, "Lcu", u_load(uad, ut), list(range(ut, ut + 4)), mxr)

    def fills(st):
        for j in range(4):
            st(f"v_mov_b32 {v(un + 4 + j)}, 0")
        st(f"s_min_u32 s5, s{sg}, 127")
        st("s_lshl_b32 s4, s5, 13")
        st(f"s_add_u32 s4, s4, {Z2 + S * D * 2 + 4096}")
        st(f"v_lshl_add_u32 {v(mxr)}, v0, 4, s4")
        for i in range(2):
            st(f"global_store_dwordx4 {v(mxr)}, {v(un + 4, 4)}, {sp(WS)} offset:{4096 * i - 4096} sc1")
        for j in range(4):
            st(f"v_mov_b32 {v(un + j)}, -1")
        st("s_lshr_b32 s4, s5, 2")
        st(f"s_mul_i32 s4, s4, {XRB}")
        st("s_and_b32 s5, s5, 3")
        st("s_lshl_b32 s5, s5, 13")
        st("s_add_u32 s4, s4, s5")
        st(f"s_add_u32 s4, s4, {P + 64 * D * 2 + 4096}")
        st(f"v_lshl_add_u32 {v(mxr)}, v0, 4, s4")
        for i in range(2):
            st(f"global_store_dwordx4 {v(mxr)}, {v(un, 4)}, {sp(WS)} offset:{4096 * i - 4096} sc1")
        st(f"s_min_u32 s4, s{sg}, 127")
        st("s_lshl_b32 s4, s4, 10")
        st(f"s_add_u32 s4, s4, {ST3}")
        st(f"v_lshl_add_u32 {v(mxr)}, v0, 2, s4")
        st(f"global_store_dword {v(mxr)}, {v(un)}, {sp(WS)} sc1")

    def early_stage(st):
        for i in range(cfg.get("ne", 0)):
            wsp_dma(st, i, UZ2)

    stamp(k, 9)
    if cfg.get("x_front"):
        k("s_branch Lflush")
    auxs = stream(aux)
    auxtok = [x for x in auxs.ins if x.cls == "vmem"]
    u_addr(k, uad, un + 12)
    if cfg.get("ne", 0):
        dma_offsets(k, UZ2, un + 12, un + 13)
        k("s_barrier")
    areads(k, 0, 0)
    f0, f1, a0 = cfg.get("f0", 20), cfg.get("f1", 60), cfg.get("aux0", 104)
    a1, u0, u1 = cfg.get("aux1", 160), cfg.get("u0", 118), cfg.get("u1", 152)
    wl = [(ks, sl) for ks in range(cfg.get("wlate", 4), 20)[::-1] for sl in range(2)]

    def wpart(n):
        st = Stream()
        for _ in range(min(n, len(wl))):
            w_load(st, 0, *wl.pop(0))
        return st

    assert cfg.get("nwa", 8) <= 16
    wa_, wb_, wt, wr = wpart(cfg.get("nwa", 8)), wpart(cfg.get("nwb", 8)), wpart(cfg.get("nwt", 10)), wpart(99)
    y01 = stream(ywrite, 0, False)
    ywrite(y01, 1)
    mm_ = M(0).extend(M(1)).extend(M(2))
    e0, es = cfg.get("e0", 212), cfg.get("es", 0)
    ys = max(142, a1 - 4)
    batch = cfg.get("batch", 0)
    assert e0 > ys + 16 and f1 < a0 and a1 > u1 + 4
    k.extend(weave(mm_, [(stream(areads, 0, 1), 0, 7), (stream(fills), f0, f1), (auxs, a0, a0 + 12),
                         (stream(early_stage), es, cfg.get("ee", es + 60)), (stream(areads, 1, 0), 108, 115),
                         (stream(stamp, 10), 119, 119),
                         (stream(areads, 1, 1), 120, 127), (stream(u_load(uad, ut)), u0, u0),
                         (stream(uchk), u1, u1 + 3), (stream(aux2), a1, a1 + 24), (y01, ys, ys + 16),
                         (wa_, max(u1 + 4, cfg.get("wa0", 0)), 207), (stream(areads, 2, 0), 196, 203),
                         (stream(stamp, 11), 207, 207),
                         (stream(areads, 2, 1), 208, 215), (stream(EP, 0, False, not batch), e0, e0 + 40), (stream(ywrite, 2), 254, 261),
                         (wb_, 208, 263), (stream(areads, 3, 0), 252, 259)]))
    stamp(k, 12)
    tl = Stream()
    areads(tl, 3, 1)
    EP(tl, 1, True, not batch)
    EP(tl, 2, True)
    if batch:
        x1store(tl, 0)
        x1store(tl, 1)
    tl.extend(M(3))
    ywrite(tl, 3)
    EP(tl, 3, True)
    k.extend(sprinkle(tl, wt, 0.0, cfg.get("wte", 0.9)))
    stamp(k, 45)
    k.barrier()
    k.extend(wr)
    u_keep(k, uad, ut)


def spare_path(cfg, stubs):
    out = []
    k = Stream()
    k("Lspare:")
    k(f"s_sub_u32 s{SUN}, s2, 160")
    k(f"s_cmp_lt_u32 s{SUN}, 54")
    k("s_cbranch_scc0 Lsp_b")
    k(f"s_and_b32 s5, s{SUN}, 0x34")
    k("s_cbranch_scc1 Lsp_a2")
    k(f"s_lshr_b32 s5, s{SUN}, 3")
    k("s_lshl_b32 s5, s5, 2")
    k(f"s_and_b32 s48, s{SUN}, 3")
    k("s_add_u32 s48, s48, s5")
    init_fill(k, 48)
    k("s_branch Lsp_a2")
    out.append(k)
    k = Stream()
    k("Lsp_b:")
    if cfg.get("x_front") == "conv":
        k("s_branch Lflush")
    k(f"s_sub_u32 s48, s{SUN}, 54")
    k("s_add_u32 s49, s48, 42")
    k("s_add_u32 s50, s48, 84")
    k("s_cmp_ge_u32 s50, 120")
    k("s_cselect_b32 s50, s49, s50")
    R = Alloc(VFREE, 250)
    m1, m2 = Mod(R, 44), Mod(R, 45)
    ic = R(2)
    k(f"s_cmp_eq_u32 {s(WAVE)}, 1")
    k("s_cselect_b32 s51, s49, s48")
    k(f"s_cmp_eq_u32 {s(WAVE)}, 2")
    k("s_cselect_b32 s51, s50, s51")
    Mod.decode(k, 51, 51)
    k(f"v_lshl_add_u32 {v(ic)}, {v(LANE)}, 2, s51")
    k(f"v_mov_b32 {v(ic + 1)}, -1")
    k(f"global_store_dword {v(ic)}, {v(ic + 1)}, {sp(WS)} offset:{MODP} sc1")
    m1.issue(k, 48)
    k("s_lshl_b32 s4, s48, 1")
    k("s_add_u32 s4, s4, 128")
    k(f"v_mov_b32 {v(ic)}, s4")
    k.wait(m1.first)
    k("s_barrier")
    st = Stream()
    st(f"s_cmp_lg_u32 {s(WAVE)}, 0")
    st("s_cbranch_scc1 Lsb_skip")
    st(f"global_store_short {v(ic)}, {v(ic + 1)}, {sp(DBG)} sc1")
    st("Lsb_skip:")
    k.raw(st)
    stamp(k, 42)
    i2 = stream(lambda st_: m2.issue(st_, 49))
    cut = [i for i, x in enumerate(i2.ins) if x.cls == "vmem"][cfg.get("b2", 7)]
    k.ins.extend(i2.ins[:cut])
    m1.finish(k, XSB, None, "s1")
    k.ins.extend(i2.ins[cut:])
    stamp(k, 2)
    st = Stream()
    st("s_cmp_lt_u32 s50, 100")
    st("s_cbranch_scc1 Lsb_n3")
    m1.issue(st, 50)
    st("s_waitcnt vmcnt(11)")
    st("s_branch Lsb_n4")
    st("Lsb_n3:")
    st("s_waitcnt vmcnt(0)")
    st("Lsb_n4:")
    k.raw(st)
    k.forget()
    m2.finish(k, XSB + 1024, None, "s2")
    stamp(k, 4)
    init_check_wg(k, "Lbic", ic)
    k.drain(lgkm=False)
    k("s_cmp_lt_u32 s50, 100")
    k("s_cbranch_scc1 Lsp_c")
    out.append(k)
    k = Stream()
    m1.finish(k, XSB + 2048, None, "s3")
    k("s_branch Lsp_c")
    out.append(k)
    k = Stream()
    k("Lsp_a2:")
    if cfg.get("x_front") == "conv":
        k("s_branch Lflush")
    wp_unit2(k, SUN, cfg)
    stamp(k, 2)
    k(f"s_sub_u32 s48, s{SUN}, 11")
    k("s_cmp_ge_u32 s48, 27")
    k("s_cbranch_scc1 Lsp_c")
    out.append(k)
    k = Stream()
    wout_finish(k, 48, Alloc(VFREE + 2, 250), 40960)
    k("s_lshl_b32 s4, s48, 7")
    k(f"s_add_u32 s4, s4, {SDF}")
    k(f"v_mov_b32 {v(VFREE)}, s4")
    k.drain()
    k("s_barrier")
    k(f"s_cmp_lg_u32 {s(WAVE)}, 0")
    k("s_cbranch_scc1 Lsp_c")
    k(f"global_store_dword {v(VFREE)}, {v(VFREE)}, {sp(WS)} sc1")
    out.append(k)
    k = Stream()
    k("Lsp_c:")
    stamp(k, 6)
    if cfg.get("x_front"):
        k("s_branch Lflush")
    t, d, ut = VFREE, VFREE + 2, VFREE + 12
    k.barrier()
    bias_load(k)
    k_order(k)
    dma_offsets(k, ut + 24, t, t + 1)
    nes, nes0 = cfg.get("ne", 0), cfg.get("nes0", 0)
    for i in range(nes0):
        wsp_dma(k, i, ut + 24)
    stamp(k, 7)
    w_setup(k)
    u_addr(k, t, t + 1)
    k(f"s_lshl_b32 s4, s{SRB}, 9")
    k(f"s_add_u32 s4, s4, {ST1 + 4}")
    k(f"v_lshl_add_u32 {v(d)}, {v(LANE)}, 3, s4")

    def us_loads(st):
        u_load(t, ut)(st)
        st(f"global_load_dword {v(ut + 4)}, {v(d)}, {sp(WS)} sc1")

    poll(k, "Lsu", us_loads, list(range(ut, ut + 5)), t + 1, cfg.get("slu", 4))
    u_keep(k, t, ut)
    k("s_barrier")
    stamp(k, 8)
    k(f"s_sub_u32 s5, s{SRI}, 5")
    k(f"v_mad_u32_u24 {v(t)}, {v(LANE)}, 3, s5")
    k(f"v_min_u32 {v(t)}, 159, {v(t)}")
    k(f"v_lshlrev_b32 {v(t)}, 7, {v(t)}")
    w_loads(k, 0, cfg.get("wlate", 4), 20, -1)
    for sl in range(2):
        k(f"s_mul_i32 s4, s{96 + sl}, 20480")
        k(f"s_add_u32 s4, s4, {WP + 56 * 20480}")
        k(f"v_add_u32 {v(t + 1)}, s4, {v(t)}")
        k(f"global_load_dword {v(d + 2 + sl)}, {v(t + 1)}, {sp(WS)} sc1")
    for i in range(nes0, nes):
        wsp_dma(k, i, ut + 24)
    stamp(k, 9)
    k("s_barrier")
    stamp(k, 10)
    k("s_branch Ljoin")
    out.append(k)
    return out
```

```python
import math
from asmlib import Stream, Alloc, v, a, s, weave, sprinkle
from blocks import *

N_, Q_, L16, TROW, WO0, WO1 = 2, 3, 4, 5, 6, 7
UZ2, UZ1 = 8, 12
VFREE = 28
SRB, SCB, SUN, SRI = 40, 41, 42, 43
SPIN = 0x40000
JB, ZB, WB, GC, MK, SW9, STGW = 44, 52, 68, 84, 86, 88, 89

KT, KCP = 0, 4224
UT, UCP = 8 * KCP, 4640
UCH = 2 * UCP
YT, YCH = 0, 1056
AI, AFR = 0, 1040
STG = 80 * AFR
SX = STG + 65536
TB = SX + 2048
RED = 135 * 1024
MAIN_LDS = 163840

C0 = -2.0 * math.sqrt(2.0 / math.pi) * math.log2(math.e)
C1 = C0 * 0.044715


def common_regs(k):
    k(f"v_and_b32 {v(N_)}, 15, {v(LANE)}")
    k(f"v_lshrrev_b32 {v(Q_)}, 4, {v(LANE)}")
    k(f"v_lshlrev_b32 {v(L16)}, 4, {v(LANE)}")
    k(f"v_lshrrev_b32 {v(WO0)}, 2, {v(N_)}")
    k(f"v_and_b32 {v(TROW)}, 3, {v(N_)}")
    k(f"v_lshl_add_u32 {v(TROW)}, {v(WO0)}, 3, {v(TROW)}")


def role_ids(k):
    k("s_mov_b32 s100, 0")
    k("s_and_b32 s4, s2, 7")
    k("s_lshr_b32 s5, s2, 3")
    k(f"s_lshr_b32 s{SRI}, s5, 2")
    k(f"s_lshr_b32 s6, s{SRI}, 1")
    k("s_lshl_b32 s6, s6, 3")
    k("s_and_b32 s7, s4, 6")
    k("s_add_u32 s6, s6, s7")
    k(f"s_and_b32 s7, s{SRI}, 1")
    k(f"s_add_u32 s{SRB}, s6, s7")
    k("s_and_b32 s6, s4, 1")
    k("s_lshl_b32 s6, s6, 2")
    k("s_and_b32 s7, s5, 3")
    k(f"s_add_u32 s{SCB}, s6, s7")


def maxchain(k, dst, regs, first=True, tag=None):
    op2 = {None: "v_max_u32", 1: "v_and_b32", 0: "v_or_b32"}[tag]
    op3 = {None: "v_max3_u32 {}", 1: "v_bitop3_b32 {} bitop3:0x80", 0: "v_or3_b32 {}"}[tag]
    regs = list(regs)
    if first:
        if len(regs) == 1:
            if dst != regs[0]:
                k(f"v_mov_b32 {v(dst)}, {v(regs[0])}")
            regs = []
        elif len(regs) % 2:
            k(op3.format(f"{v(dst)}, {v(regs[0])}, {v(regs[1])}, {v(regs[2])}"))
            regs = regs[3:]
        else:
            k(f"{op2} {v(dst)}, {v(regs[0])}, {v(regs[1])}")
            regs = regs[2:]
    for i in range(0, len(regs), 2):
        k(op3.format(f"{v(dst)}, {v(regs[i])}, {v(regs[i + 1])}, {v(dst)}"))


def badcmp(k, tmp, tag=None):
    if tag is None:
        k(f"v_cmp_eq_u32 vcc, -1, {v(tmp)}")
    else:
        k(f"v_and_b32 {v(tmp)}, 1, {v(tmp)}")
        k(f"v_cmp_ne_u32 vcc, {tag}, {v(tmp)}")


def set_tag(k, r, tag):
    k(f"v_or_b32 {v(r)}, 1, {v(r)}" if tag else f"v_and_b32 {v(r)}, -2, {v(r)}")


def poll(k, name, loads, regs, tmp, sleep=0, tag=None):
    if sleep:
        k(f"s_branch {name}_f")
    k(f"{name}:")
    if sleep:
        k(f"s_sleep {sleep}")
        k(f"{name}_f:")
    loads(k)
    k.drain(lgkm=False)
    maxchain(k, tmp, regs, tag=tag)
    badcmp(k, tmp, tag)
    k("s_add_u32 s100, s100, 1")
    k(f"s_cmp_ge_u32 s100, {SPIN}")
    k(f"s_cbranch_scc1 {name}_x")
    k(f"s_cbranch_vccnz {name}")
    k(f"{name}_x:")


def check(k, stubs, name, loads, regs, tmp, cmp=True, tag=None):
    if cmp:
        badcmp(k, tmp, tag)
    k(f"s_cbranch_vccnz {name}_r")
    k(f"{name}_ok:")
    st = Stream()
    st(f"{name}_r:")
    st("s_nop 7")
    poll(st, name + "_p", loads, regs, tmp, tag=tag)
    st("s_nop 1")
    st(f"s_branch {name}_ok")
    stubs.append(st)


WA = 8


def w_setup(k):
    k(f"s_and_b32 s4, s{SCB}, 1")
    k(f"s_lshl_b32 s5, {s(WAVE)}, 1")
    k("s_add_u32 s5, s5, s4")
    k("s_cmp_eq_u32 s5, 7")
    k("s_cselect_b32 s5, 0, s5")
    k(f"s_mul_i32 s96, s{SCB}, 7")
    k("s_add_u32 s96, s96, s5")
    k("s_cmp_lt_u32 s96, 54")
    k("s_cselect_b32 s101, 2, 0")
    k("s_min_u32 s96, s96, 53")
    k(f"s_cmp_eq_u32 {s(WAVE)}, 3")
    k("s_cselect_b32 s101, 1, s101")
    k("s_lshr_b32 s97, s101, 1")
    k("s_cselect_b32 s5, -1, 0")
    k(f"v_and_b32 {v(WO1)}, s5, {v(L16)}")
    k("s_add_u32 s97, s97, s96")
    for sl in range(2):
        k(f"s_mul_i32 s4, s{96 + sl}, 20480")
        for i in range(3):
            k(f"s_add_u32 s5, s4, {WP + 4096 + 8192 * i}")
            k(f"s_add_u32 s{WA + 6 * sl + 2 * i}, s{WS}, s5")
            k(f"s_addc_u32 s{WA + 6 * sl + 2 * i + 1}, s{WS + 1}, 0")


WA2 = ZB


def w_next_part(k):
    for i in range(6):
        k(f"s_add_u32 s{WA2 + 2 * i}, s{WA + 2 * i}, {56 * 20480}")
        k(f"s_addc_u32 s{WA2 + 2 * i + 1}, s{WA + 2 * i + 1}, 0")


UTB = 156672


def u_addr(k, t, t1):
    k(f"v_bfe_u32 {v(t)}, {v(LANE)}, 3, 1")
    k("s_sub_u32 s4, s97, s96")
    k(f"v_mul_u32_u24 {v(t)}, s4, {v(t)}")
    k(f"v_add_lshl_u32 {v(t)}, {v(t)}, s96, 7")
    k(f"v_mul_u32_u24 {v(t1)}, {56 * 128}, {v(Q_)}")
    k(f"v_add_u32 {v(t)}, {v(t)}, {v(t1)}")
    k(f"v_and_b32 {v(t1)}, 112, {v(L16)}")
    k(f"v_add_u32 {v(t)}, {v(t)}, {v(t1)}")
    k(f"v_add_u32 {v(t)}, {U}, {v(t)}")


def u_load(t, d):
    return lambda k: k(f"global_load_dwordx4 {v(d, 4)}, {v(t)}, {sp(WS)} sc1")


def u_keep(k, t, d):
    for j in range(2):
        k(f"v_permlane32_swap_b32 {v(d + j)}, {v(d + 2 + j)}")
    k(f"s_lshl_b32 s4, {s(WAVE)}, 9")
    k(f"s_add_u32 s4, s4, {UTB}")
    k(f"v_and_b32 {v(t)}, 496, {v(L16)}")
    for j in range(2):
        k(f"v_add_f32 {v(d + j)}, {v(d + j)}, {v(d + 2 + j)}")
    k(f"v_bfe_u32 {v(d + 2)}, {v(LANE)}, 3, 1")
    k(f"v_cmp_gt_u32 vcc, s101, {v(d + 2)}")
    k(f"v_lshrrev_b32 {v(d + 2)}, 5, {v(LANE)}")
    k(f"v_lshl_add_u32 {v(t)}, {v(d + 2)}, 3, {v(t)}")
    for j in range(2):
        k(f"v_cndmask_b32 {v(d + j)}, 0, {v(d + j)}, vcc")
    k(f"v_add_u32 {v(t)}, s4, {v(t)}")
    k(f"ds_write_b64 {v(t)}, {v(d, 2)}")


def wreg(part, ks, sl):
    return (96 if part == 0 else 0) + 8 * ks + 4 * sl


def w_load(k, part, ks, sl):
    b = (WA2 if part else WA) + 6 * sl + 2 * (ks // 8)
    k(f"global_load_dwordx4 {a(wreg(part, ks, sl), 4)}, {v(WO1 if sl else L16)}, s[{b}:{b + 1}] offset:{1024 * (ks % 8) - 4096} sc1")


def w_loads(k, part, k0, k1, step=1):
    for ks in range(k0, k1)[::step]:
        for sl in range(2):
            w_load(k, part, ks, sl)


def flag_store(st, name, t, sreg):
    st(f"v_mov_b32 {v(t)}, s{sreg}")
    fl = Stream()
    fl(f"s_cmp_lg_u32 {s(WAVE)}, 0")
    fl(f"s_cbranch_scc1 {name}")
    fl(f"global_store_dword {v(t)}, {v(t)}, {sp(WS)} sc1")
    fl(f"{name}:")
    st.raw(fl)


def stream(fn, *args):
    st = Stream()
    fn(st, *args)
    return st


def gelu(k, regs, tmp, gc):
    n = len(regs)
    for i, r in enumerate(regs):
        pk(k, "mul", tmp + 2 * i, [("p", r), ("p", r)])
    for i, r in enumerate(regs):
        pk(k, "fma", tmp + 2 * i, [("p", tmp + 2 * i), ("sb", gc + 1), ("sb", gc)])
    for i, r in enumerate(regs):
        pk(k, "mul", tmp + 2 * i, [("p", tmp + 2 * i), ("p", r)])
    for i in range(2 * n):
        k(f"v_exp_f32 {v(tmp + i)}, {v(tmp + i)}")
    for i in range(n):
        pk(k, "add", tmp + 2 * i, [("p", tmp + 2 * i), ("c", "1.0")])
    for i in range(2 * n):
        k(f"v_rcp_f32 {v(tmp + i)}, {v(tmp + i)}")
    for i, r in enumerate(regs):
        pk(k, "mul", r, [("p", r), ("p", tmp + 2 * i)])


GBT = RED + 2 * 12288


def k_order(k):
    k(f"s_and_b32 s4, s{SCB}, 3")
    k("s_cmp_eq_u32 s4, 0")
    k("s_cselect_b32 s5, 8, 0")
    k("s_cmp_le_u32 s4, 1")
    k("s_cselect_b32 s6, 16, 8")
    k("s_cmp_eq_u32 s4, 3")
    k(f"s_cselect_b32 s{JB + 6}, 16, 24")
    k(f"s_lshl_b32 s{JB}, s4, 3")
    k(f"s_bitcmp1_b32 s{SRI}, 0")
    k(f"s_cselect_b32 s{JB + 2}, s6, s5")
    k(f"s_cselect_b32 s{JB + 4}, s5, s6")
    k(f"s_lshl_b32 s5, {s(WAVE)}, 1")
    for qi in range(4):
        k(f"s_add_u32 s{JB + 2 * qi}, s{JB + 2 * qi}, s5")
        k(f"s_add_u32 s{JB + 2 * qi + 1}, s{JB + 2 * qi}, 1")
    k(f"s_lshl_b32 s5, s{SRB}, 18")
    for i in range(8):
        k(f"s_lshl_b32 s6, s{JB + i}, 7")
        k("s_add_u32 s6, s6, s5")
        k(f"s_add_u32 s{WB + 2 * i}, s{WSP}, s6")
        k(f"s_addc_u32 s{WB + 2 * i + 1}, s{WSP + 1}, 0")
    k(f"s_lshl_b32 s{STGW}, {s(WAVE)}, 14")
    k(f"s_add_u32 s{STGW}, s{STGW}, {STG}")


BSR = 27


def bias_load(k):
    k(f"s_lshr_b32 s5, {s(WAVE)}, 1")
    k("s_lshl_b32 s5, s5, 5")
    k(f"s_and_b32 s6, {s(WAVE)}, 1")
    k("s_lshl_b32 s6, s6, 2")
    k("s_add_u32 s6, s6, s5")
    k(f"s_lshl_b32 s5, s{SRB}, 6")
    k("s_add_u32 s90, s6, s5")
    k(f"v_add_lshl_u32 {v(BSR)}, {v(TROW)}, s90, 1")
    k(f"global_load_ushort {v(BSR)}, {v(BSR)}, {sp(BSP)}")


def dma_offsets(k, do, t0, t1):
    k(f"v_lshrrev_b32 {v(t0)}, 3, {v(LANE)}")
    k(f"v_lshlrev_b32 {v(t0)}, 12, {v(t0)}")
    k(f"v_bfe_u32 {v(t1)}, {v(LANE)}, 4, 1")
    k(f"v_xor_b32 {v(t1)}, {v(t1)}, {v(LANE)}")
    k(f"v_and_b32 {v(t1)}, 7, {v(t1)}")
    for pi in range(4):
        k(f"v_xor_b32 {v(do + pi)}, {2 * pi}, {v(t1)}")
        k(f"v_lshl_add_u32 {v(do + pi)}, {v(do + pi)}, 4, {v(t0)}")
        if pi:
            k(f"v_add_u32 {v(do + pi)}, {pi * (8 * 4096 - 1024)}, {v(do + pi)}")
        k(f"v_add_u32 {v(do + 4 + pi)}, {32 * 4096}, {v(do + pi)}")


def wsp_dma(st, i, do):
    toks = []
    for pi in range(8):
        if pi % 4 == 0:
            st(f"s_add_u32 m0, s{STGW}, {(i & 1) * 8192 + 1024 * pi}")
        toks.append(st(f"global_load_lds_dwordx4 {v(do + pi)}, s[{WB + 2 * i}:{WB + 2 * i + 1}] offset:{1024 * (pi % 4)}"))
    return toks


def gemm_phases(k, stubs, cfg):
    t0, t1, l8, bs, xres, zp, z1r = 28, 29, 30, 32, 36, 46, 48
    afr, NAF = 48, 6
    st4, xo0, xo, aw0, aw, srow, mx, pa = 62, 66, 67, 68, 69, 70, 71, 72
    do, ra, pr, xr = 74, 82, 90, 98
    rs, tmp, rz1 = 98, 130, 162
    tw, tq, tn, ar1, so, t2 = 170, 171, 172, 173, 174, 175
    acc2, acc1, gq = 178, 210, 242
    kk, k = k, Stream()
    k(f"v_and_b32 {v(t0)}, 7, {v(LANE)}")
    k(f"v_lshl_add_u32 {v(t0)}, {v(Q_)}, 3, {v(t0)}")
    k(f"v_bfe_u32 {v(t1)}, {v(LANE)}, 3, 1")
    k(f"v_lshlrev_b32 {v(xo0)}, 9, {v(t1)}")
    k(f"v_lshl_add_u32 {v(xo0)}, {v(t0)}, 4, {v(xo0)}")
    k(f"s_mul_i32 s4, {s(WAVE)}, 20480")
    k(f"s_mul_i32 s5, s{SRB}, {XRB}")
    k("s_add_u32 s4, s4, s5")
    k(f"s_add_u32 s4, s4, {X1}")
    k(f"v_add_u32 {v(xo0)}, s4, {v(xo0)}")
    k(f"v_lshl_add_u32 {v(srow)}, {v(t0)}, 1, {v(t1)}")
    k(f"v_min_u32 {v(pa)}, 39, {v(LANE)}")
    k(f"v_lshl_add_u32 {v(pa)}, {v(pa)}, 9, s4")
    kk.extend(k)
    k = kk
    stamp(k, 14)
    k(f"s_cmp_lt_u32 s{SRI}, {cfg.get('xskip', 5)}")
    k("s_cbranch_scc1 Lx_first")
    k("Lx_redo:")
    pst = Stream()
    poll(pst, "Lxp", lambda st: st(f"global_load_dword {v(mx)}, {v(pa)}, {sp(WS)} offset:508 sc1"), [mx], mx, cfg.get("slx", 1), tag=1)
    k.raw(pst)
    k("Lx_first:")
    stamp(k, 15)
    k(f"s_mov_b32 s7, {hex(ONES)}")
    k(f"v_add_u32 {v(xo)}, 4096, {v(xo0)}")
    AHEAD = cfg.get("xahead", 10)

    def xload(i):
        k(f"global_load_dwordx4 {v(xr + 4 * i, 4)}, {v(xo)}, {sp(WS)} offset:{1024 * (i % 8) - 4096} sc1")
        if i % 8 == 7:
            k(f"v_add_u32 {v(xo)}, 8192, {v(xo)}")

    for i in range(AHEAD):
        xload(i)
    k(f"v_lshrrev_b32 {v(t0)}, 5, {v(LANE)}")
    k(f"v_bfe_u32 {v(aw0)}, {v(LANE)}, 1, 1")
    k(f"v_lshl_add_u32 {v(t0)}, {v(t0)}, 1, {v(aw0)}")
    k(f"v_mul_u32_u24 {v(aw0)}, {AFR}, {v(t0)}")
    for bit, sh in ((3, 3), (2, 6), (4, 7), (0, 5)):
        k(f"v_bfe_u32 {v(t0)}, {v(LANE)}, {bit}, 1")
        k(f"v_lshl_add_u32 {v(aw0)}, {v(t0)}, {sh}, {v(aw0)}")
    k(f"s_mul_i32 s5, {s(WAVE)}, {20 * AFR}")
    k(f"v_add_u32 {v(aw0)}, s5, {v(aw0)}")
    k(f"v_lshlrev_b32 {v(l8)}, 3, {v(LANE)}")
    k(f"s_lshl_b32 s{SW9}, {s(WAVE)}, 9")
    dma_offsets(k, do, t0, t1)
    k(f"v_lshrrev_b32 {v(t1)}, 1, {v(N_)}")
    k(f"v_xor_b32 {v(t1)}, {v(t1)}, {v(Q_)}")
    k(f"v_lshlrev_b32 {v(t1)}, 4, {v(t1)}")
    k(f"v_lshl_add_u32 {v(t1)}, {v(TROW)}, 7, {v(t1)}")
    for tau in range(4):
        k(f"s_xor_b32 s4, {s(WAVE)}, {tau}")
        k("s_lshr_b32 s5, s4, 1")
        k("s_lshl_b32 s5, s5, 12")
        k("s_and_b32 s4, s4, 1")
        k("s_lshl_b32 s4, s4, 9")
        k("s_add_u32 s4, s4, s5")
        k(f"s_add_u32 s4, s4, s{STGW}")
        k(f"v_add_u32 {v(ra + 2 * tau)}, s4, {v(t1)}")
        k(f"v_xor_b32 {v(ra + 2 * tau + 1)}, 64, {v(ra + 2 * tau)}")
    w_next_part(k)
    k(f"s_mov_b32 s{GC}, {hex(fbits(C0))}")
    k(f"s_mov_b32 s{GC + 1}, {hex(fbits(C1))}")
    for j in range(4):
        k(f"v_lshlrev_b32 {v(bs + j)}, 16, {v(BSR)}")
    xa = 46
    k(f"s_mul_i32 s5, s{SCB}, 10")
    k(f"s_mul_i32 s6, {s(WAVE)}, {AFR}")
    for j in range(2):
        if j:
            k(f"v_lshrrev_b32 {v(t0)}, 1, {v(Q_)}")
        k(f"v_add_u32 {v(t0)}, s5, {v(t0 if j else Q_)}")
        k(f"v_lshrrev_b32 {v(t1)}, 2, {v(t0)}")
        k(f"v_mul_u32_u24 {v(t1)}, {4 * AFR - 1024}, {v(t1)}")
        k(f"v_lshl_add_u32 {v(t1)}, {v(t0)}, 8, {v(t1)}")
        k(f"v_lshl_add_u32 {v(t1)}, {v(N_)}, 4, {v(t1)}")
        k(f"v_add_u32 {v(xa + j)}, s6, {v(t1)}")
    k(f"v_and_b32 {v(t0)}, 1, {v(Q_)}")
    k(f"v_lshl_add_u32 {v(xa + 1)}, {v(t0)}, 3, {v(xa + 1)}")
    for j in range(4):
        k(f"v_mov_b32 {v(st4 + j)}, 0")
    k(f"v_mov_b32 {v(mx)}, -1")
    wl = [(ks, sl) for ks in range(cfg.get("wlate", 4)) for sl in range(2)]
    for i in range(20):
        if i + AHEAD < 20:
            xload(i + AHEAD)
        elif wl:
            w_load(k, 0, *wl.pop(0))
        if i % 4 == 0:
            k(f"v_add_u32 {v(aw)}, {(i // 4) * 4 * AFR}, {v(aw0)}")
        k(f"ds_write2_b64 {v(aw)}, {v(xr + 4 * i, 2)}, {v(xr + 4 * i + 2, 2)} offset0:{32 * (i % 4)} offset1:{32 * (i % 4) + 2}")
        if i & 1:
            maxchain(k, mx, [xr + 4 * i - 1, xr + 4 * i + 3], first=False, tag=1)
        for j in range(2):
            for r in range(2):
                src = xr + 4 * i + 2 * r + j
                k(f"v_dot2_f32_bf16 {v(st4 + 2 * r)}, {v(src)}, s7, {v(st4 + 2 * r)}")
                k(f"v_dot2_f32_bf16 {v(st4 + 2 * r + 1)}, {v(src)}, {v(src)}, {v(st4 + 2 * r + 1)}")
    badcmp(k, mx, 1)
    k(f"s_cmp_ge_u32 s100, {SPIN}")
    k("s_cbranch_scc1 Lx_go")
    k("s_cbranch_vccnz Lx_redo")
    k("Lx_go:")
    for j in range(2):
        k(f"v_add_f32_dpp {v(pr + j)}, {v(st4 + j)}, {v(st4 + j)} row_ror:8 row_mask:0xf bank_mask:0x3")
        k(f"v_add_f32_dpp {v(pr + j)}, {v(st4 + 2 + j)}, {v(st4 + 2 + j)} row_ror:8 row_mask:0xf bank_mask:0xc")
    k(f"s_add_u32 s4, s{SW9}, {SX}")
    k(f"v_lshl_add_u32 {v(t0)}, {v(srow)}, 3, s4")
    k(f"ds_write_b64 {v(t0)}, {v(pr, 2)}")
    k.barrier()
    stamp(k, 16)
    k(f"v_add_u32 {v(ar1)}, {40 * AFR}, {v(L16)}")
    wlate = cfg.get("wlate", 4)
    kord = [list(range(wlate, 20))[::-1] + list(range(wlate)), list(range(20))]

    def read_rs(st):
        for tbl in range(2):
            for h in range(2):
                for o in range(2):
                    st(f"ds_read_b128 {v(rs + 16 * tbl + 8 * h + 4 * o, 4)}, {v(tq)} offset:{256 * tbl + 128 * h + 16 * o}")

    def mainloop(acc, part):
        st = Stream()

        def aread(f):
            ks, mt = kord[part][f >> 2], f & 3
            return st(f"ds_read_b128 {v(afr + 4 * (f % NAF), 4)}, {v(ar1 if ks >= 10 else L16)} offset:{AI + (4 * (ks % 10) + mt) * AFR}")

        tok = {f: aread(f) for f in range(NAF - 1)}
        for f in range(80):
            ks, mt = kord[part][f >> 2], f & 3
            if f % 2 == 0:
                st.wait(tok[f + 1])
            for sl in range(2):
                d = v(acc + 16 * sl + 4 * mt, 4)
                x, w = v(afr + 4 * (f % NAF), 4), a(wreg(part, ks, sl), 4)
                st(f"v_mfma_f32_16x16x32_bf16 {d}, {w if part else x}, {x if part else w}, {d if f >= 4 else 0}")
                if sl == 0 and f + NAF - 1 < 80:
                    tok[f + NAF - 1] = aread(f + NAF - 1)
        return st

    sf = Stream()
    sf(f"v_add_u32 {v(t0)}, {SX}, {v(l8)}")
    for i in range(4):
        sf(f"ds_read_b64 {v(pr + 2 * i, 2)}, {v(t0)} offset:{512 * i}")
    sf(f"s_add_u32 s4, s{SW9}, {TB}")
    sf(f"v_lshl_add_u32 {v(tw)}, {v(LANE)}, 2, s4")
    sf(f"v_lshl_add_u32 {v(tq)}, {v(Q_)}, 5, s4")
    sf(f"v_lshl_add_u32 {v(tn)}, {v(TROW)}, 2, s4")
    vop(sf, "add", pr, [("p", pr), ("p", pr + 2)], False)
    vop(sf, "add", pr + 4, [("p", pr + 4), ("p", pr + 6)], False)
    vop(sf, "add", pr, [("p", pr), ("p", pr + 4)], False)
    row_stats(sf, pr, pr + 1, D, pr + 2)
    sf(f"ds_write2st64_b32 {v(tw)}, {v(pr)}, {v(pr + 1)} offset0:0 offset1:1")
    read_rs(sf)
    for mt in range(4):
        off = 128 * (mt >> 1) + 16 * (mt & 1)
        sf(f"ds_read_b32 {v(rz1 + 2 * mt)}, {v(tn)} offset:{off}")
        sf(f"ds_read_b32 {v(rz1 + 2 * mt + 1)}, {v(tn)} offset:{256 + off}")
    sf(f"s_add_u32 s4, s{SW9}, {UTB}")
    sf(f"v_lshl_add_u32 {v(t0)}, {v(N_)}, 2, s4")
    for sl in range(2):
        sf(f"ds_read2_b32 {v(UZ2 + 2 * sl, 2)}, {v(t0)} offset0:{32 * sl} offset1:{32 * sl + 16}")
    sf(f"v_lshl_add_u32 {v(t0)}, {v(Q_)}, 4, s4")
    for j in range(4):
        sf(f"ds_read_b128 {v(UZ1 + 4 * j, 4)}, {v(t0)} offset:{256 + 64 * j}")
    for i in range(32):
        sf(f"v_fma_f32 {v(tmp + i)}, {v(rs + 16 + i % 16)}, {v(UZ2 + 2 * (i // 16))}, {v(UZ2 + 2 * (i // 16) + 1)}")
    apos = lambda i: (224, 192, 160, 0, 32, 64, 96, 128)[i]
    tk, rd = {0: [], 1: []}, {}

    def dma(st, i):
        st.wait(rd[i - 2])
        tk[i] = wsp_dma(st, i, do)

    def frag(st, i):
        st.wait(*tk[i])
        for ksl in range(2):
            for tau in range(4):
                rd[i] = st(f"ds_read_b128 {a(apos(i) + 16 * ksl + 4 * tau, 4)}, {v(ra + 2 * tau + ksl)} offset:{(i & 1) * 8192}")

    def turn(st, i):
        frag(st, i)
        if i + 2 < 8:
            dma(st, i + 2)

    nw1 = cfg.get("nw1", 6)
    nz2 = cfg.get("nz2", 0)
    allstaged = cfg.get("ne", 0)
    wz = Stream()
    for ks, sl in wl:
        w_load(wz, 0, ks, sl)
    for i in range(allstaged, 2):
        tk[i] = wsp_dma(wz, i, do)
    assert nw1 <= 12
    w_loads(wz, 1, 0, nw1)
    wz2 = Stream()
    for i in range(nz2):
        turn(wz2, i)
    wze = cfg.get("wze", 120)
    assert wze >= 32 * nz2
    k.extend(weave(mainloop(acc2, 0), [(sf, 4, 155), (wz, 0, wze if nz2 else 159), (wz2, wze + 1, 159)]))
    stamp(k, 17)
    zz = Stream()
    zz("s_nop 7")
    zz("s_cmp_eq_u32 s101, 2")
    zz("s_cbranch_scc1 Lz_keep")
    for i in range(16):
        zz(f"v_mov_b32 {v(acc2 + 16 + i)}, 0")
    zz("s_cmp_eq_u32 s101, 1")
    zz("s_cbranch_scc1 Lz_keep")
    for i in range(16):
        zz(f"v_mov_b32 {v(acc2 + i)}, 0")
    zz("Lz_keep:")
    k.raw(zz)

    e2 = Stream()
    for i in range(16):
        pk(e2, "fma", acc2 + 2 * i, [("p", acc2 + 2 * i), ("p", rs + 2 * (i % 8)), ("p", tmp + 2 * i)])
    gelu(e2, [acc2 + 2 * i for i in range(16)], tmp, GC)
    for i in range(8):
        pk(e2, "add", tmp + 2 * i, [("p", acc2 + 2 * i), ("p", acc2 + 16 + 2 * i)])
        pk(e2, "mul", tmp + 16 + 2 * i, [("p", acc2 + 2 * i), ("p", acc2 + 2 * i)])
    for i in range(8):
        pk(e2, "fma", tmp + 16 + 2 * i, [("p", acc2 + 16 + 2 * i), ("p", acc2 + 16 + 2 * i), ("p", tmp + 16 + 2 * i)])
    for i in range(16):
        e2(f"v_add_f32_dpp {v(rs + i)}, {v(tmp + i)}, {v(tmp + i)} row_ror:8 row_mask:0xf bank_mask:0x3")
    for i in range(16):
        e2(f"v_add_f32_dpp {v(rs + i)}, {v(tmp + 16 + i)}, {v(tmp + 16 + i)} row_ror:8 row_mask:0xf bank_mask:0xc")
    for i in range(8):
        e2(f"v_add_f32_dpp {v(tmp + i)}, {v(rs + i)}, {v(rs + i)} row_half_mirror row_mask:0xf bank_mask:0x5")
    for i in range(8):
        e2(f"v_add_f32_dpp {v(tmp + i)}, {v(rs + 8 + i)}, {v(rs + 8 + i)} row_half_mirror row_mask:0xf bank_mask:0xa")
    for i in range(8):
        e2(f"v_add_f32_dpp {v(tmp + i)}, {v(tmp + i)}, {v(tmp + i)} quad_perm:[1,0,3,2] row_mask:0xf bank_mask:0xf")
    for i in range(8):
        e2(f"v_add_f32_dpp {v(tmp + i)}, {v(tmp + i)}, {v(tmp + i)} quad_perm:[2,3,0,1] row_mask:0xf bank_mask:0xf")
    e2(f"v_lshrrev_b32 {v(t0)}, 2, {v(N_)}")
    e2(f"v_lshl_add_u32 {v(t0)}, {v(t0)}, 7, {v(tq)}")
    e2(f"ds_write_b128 {v(t0)}, {v(tmp, 4)}")
    e2(f"ds_write_b128 {v(t0)}, {v(tmp + 4, 4)} offset:16")
    sd = Stream()
    nw2 = cfg.get("nw2", 20)
    w_loads(sd, 1, nw1, nw2)
    ne2 = cfg.get("ne2", 1)
    for i in range(nz2, ne2):
        turn(sd, i)
    k.extend(sprinkle(e2, sd, 0.0, cfg.get("e2end", 0.9)))
    k.barrier()
    k(f"v_lshlrev_b32 {v(t0)}, 2, {v(LANE)}")
    k(f"v_add_u32 {v(t0)}, {TB}, {v(t0)}")
    for i in range(4):
        k(f"ds_read2st64_b32 {v(pr + 2 * i, 2)}, {v(t0)} offset0:{2 * i} offset1:{2 * i + 1}")
    k(f"s_lshl_b32 s4, s{SRB}, 12")
    k(f"s_add_u32 s4, s4, {ST3}")
    k(f"v_add_u32 {v(so)}, s4, {v(l8)}")
    k(f"s_lshl_b32 s4, s{SCB}, 9")
    k(f"v_add_u32 {v(t0)}, s4, {v(so)}")
    k(f"v_subrev_u32 {v(tw)}, {TB - SX}, {v(tw)}")
    k(f"v_subrev_u32 {v(tq)}, {TB - SX}, {v(tq)}")
    pk(k, "add", pr, [("p", pr), ("p", pr + 2)])
    pk(k, "add", pr + 4, [("p", pr + 4), ("p", pr + 6)])
    pk(k, "add", pr, [("p", pr), ("p", pr + 4)])
    k(f"v_min_u32 {v(pr)}, -2, {v(pr)}")
    k(f"v_min_u32 {v(pr + 1)}, -2, {v(pr + 1)}")
    k(f"s_lshl_b32 s4, {s(WAVE)}, 4")
    k(f"s_lshl_b64 exec, 0xffff, s4")
    k(f"global_store_dwordx2 {v(t0)}, {v(pr, 2)}, {sp(WS)} sc1")
    k(f"s_mov_b64 exec, -1")
    stamp(k, 18)
    sides = []
    first = max(nz2, ne2)
    w0 = (20 - nw2) * 8
    if w0:
        assert w0 + 24 <= 8 * nw2
        sides.append((stream(w_loads, 1, nw2, 20), 0, w0 - 1))
    pos = [w0 + ((130 - w0) * (i - first)) // (6 - first) for i in range(first, 7)] + [150]
    for n_, i in enumerate(range(first, 7)):
        lo_ = max(pos[n_], 32 * (i - 2) + 2)
        sides.append((stream(turn, i), lo_, max(lo_, max(pos[n_ + 1], 32 * (i - 1) + 2) - 1) if i < 6 else 150))
    pl = tmp

    def st3_loads(st):
        for i in range(8):
            st(f"global_load_dwordx2 {v(pl + 2 * i, 2)}, {v(so)}, {sp(WS)} offset:{512 * i} sc1")

    def misc_loads(st):
        st(f"v_min_u32 {v(t2)}, 26, {v(LANE)}")
        st(f"v_lshlrev_b32 {v(t2)}, 7, {v(t2)}")
        st(f"v_add_u32 {v(t2)}, {SDF}, {v(t2)}")
        st(f"global_load_dword {v(gq + 8)}, {v(t2)}, {sp(WS)} sc1")
        st(f"s_mul_i32 s7, s{SCB}, 320")
        st(f"s_add_u32 s7, s7, {MODP + 5 * D * 4}")
        st(f"v_min_u32 {v(t2)}, {19 * 16}, {v(L16)}")
        st(f"v_add_u32 {v(t2)}, s7, {v(t2)}")
        st(f"global_load_dwordx4 {v(gq, 4)}, {v(t2)}, {sp(WS)} sc1")
        st(f"v_add_u32 {v(t2)}, {MODS}, {v(t2)}")
        st(f"global_load_dwordx4 {v(gq + 4, 4)}, {v(t2)}, {sp(WS)} sc1")

    zs = cfg.get("zsplit", 120)
    s3 = stream(st3_loads)
    sides.append((s3, zs - cfg.get("st3", 30), zs - cfg.get("st3", 30) + 8))
    rr = Stream()
    misc_loads(rr)
    for j in range(2):
        rr(f"ds_read_b128 {v(xres + 4 * j, 4)}, {v(xa)} offset:{AI + 4 * AFR * j}")
    rr(f"ds_read_b64 {v(xres + 8, 2)}, {v(xa + 1)} offset:{AI + 8 * AFR}")
    gr = list(range(gq, gq + 9))
    maxchain(rr, t0, gr)
    check(rr, stubs, "Lgb", misc_loads, gr, t0)
    fin_mod4(rr, gq, gq + 4)
    if cfg.get("x_scale"):
        for j in range(4):
            rr(f"v_mul_f32 {v(gq + j)}, {hex(fbits(cfg['x_scale']))}, {v(gq + j)}")
    rr(f"v_min_u32 {v(t2)}, {19 * 16}, {v(L16)}")
    rr(f"v_add_u32 {v(t2)}, {GBT}, {v(t2)}")
    rr(f"ds_write_b128 {v(t2)}, {v(gq, 4)}")
    sides.append((rr, 2, zs - cfg.get("st3", 30) - 1))
    sc = Stream()
    sc(f"s_mul_i32 s91, s{SCB}, {64 * 7168}")
    sc(f"s_add_u32 s91, s91, {Z2}")
    for i in range(0, 8, 2):
        sc(f"s_mul_i32 s6, s{JB + i}, 14336")
        sc("s_add_u32 s6, s6, s91")
        sc(f"s_add_u32 s{ZB + 2 * i}, s{WS}, s6")
        sc(f"s_addc_u32 s{ZB + 2 * i + 1}, s{WS + 1}, 0")
        sc(f"s_add_u32 s{ZB + 2 * i + 2}, s{ZB + 2 * i}, 14336")
        sc(f"s_addc_u32 s{ZB + 2 * i + 3}, s{ZB + 2 * i + 1}, 0")
    sides.append((sc, max(zs + 1, w0 + 1), 158))
    zl = weave(mainloop(acc1, 1), sides)
    cutp = len(zl.ins)
    if zs < 160:
        cutp = [i for i, x in enumerate(zl.ins) if x.cls == "mfma"][zs]
    k.ins.extend(zl.ins[:cutp])
    stamp(k, 19)
    s3r = list(range(pl + 1, pl + 16, 2))
    maxchain(k, t0, s3r)
    check(k, stubs, "Ls3", st3_loads, s3r, t0)
    stamp(k, 20)
    for stp in (2, 4, 8):
        for i in range(0, 16, 2 * stp):
            pk(k, "add", pl + i, [("p", pl + i), ("p", pl + i + stp)])
    row_stats(k, pl, pl + 1, FH, pl + 2)
    k(f"ds_write2st64_b32 {v(tw)}, {v(pl)}, {v(pl + 1)} offset0:0 offset1:1")
    read_rs(k)
    k(f"s_lshl_b32 s4, s{SCB}, 6")
    k(f"s_lshl_b32 s5, s{SRB}, 1")
    k("s_add_u32 s4, s4, s5")
    k("s_mul_i32 s4, s4, 7168")
    k(f"s_lshl_b32 s5, {s(WAVE)}, 11")
    k("s_add_u32 s4, s4, s5")
    k(f"s_add_u32 s4, s4, {Z2}")
    k(f"v_add_u32 {v(t0)}, s4, {v(L16)}")
    k(f"v_add_u32 {v(t1)}, 7168, {v(t0)}")
    for sl in range(2):
        for h in range(2):
            for i in range(4 * h, 4 * h + 4):
                r = acc2 + 16 * sl + 2 * i
                pk(k, "fma", r, [("p", r), ("p", rs + 2 * i), ("p", rs + 16 + 2 * i)])
            o = tmp + 8 * sl + 4 * h
            for i in range(4):
                r = acc2 + 16 * sl + 8 * h + 2 * i
                k(f"v_cvt_pk_bf16_f32 {v(o + i)}, {v(r)}, {v(r + 1)}")
            set_tag(k, o + 3, 1)
            zs_ = f"global_store_dwordx4 {v(t1 if h else t0)}, {v(o, 4)}, {sp(WS)} offset:{1024 * sl} sc1"
            if sl:
                sk = Stream()
                sk(f"s_cmp_eq_u32 {s(WAVE)}, 3")
                sk(f"s_cbranch_scc1 Lzs_{h}")
                sk(zs_)
                sk(f"Lzs_{h}:")
                k.raw(sk)
            else:
                k(zs_)
    stamp(k, 21)
    k.ins.extend(zl.ins[cutp:])
    frag(k, 7)
    k.barrier()

    stash = UZ2
    zv, mx = 30, t0
    ring, acc = 62, 142
    G, NG, NA = 4, 5, 4
    steps = [4, 5, 6, 7, 8, 9, 10, 11, 0, 1, 2, 3, 12, 13, 14, 15]
    order = [(st_, sl) for st_ in steps[:NA] for sl in range(7)] + [(st_, sl) for sl in range(7) for st_ in steps[NA:]]
    ngrp = len(order) // G
    gA, gS = 7 * NA // G, (16 - NA) // G
    freg = lambda f: ring + 4 * (f % (G * NG))

    def gloads(g):
        def f(st):
            for fi in range(G * g, G * g + G):
                step, sl = order[fi]
                i, ksl = step >> 1, step & 1
                st(f"global_load_dwordx4 {v(freg(fi), 4)}, {v(zv + ksl)}, s[{ZB + 2 * i}:{ZB + 2 * i + 1}] offset:{1024 * sl - 3072} sc1")
        return f

    gregs = lambda g: [freg(fi) + 3 for fi in range(G * g, G * g + G)]
    nzf = cfg.get("zf", 4)

    def zfirst(st):
        st(f"global_load_dword {v(zp)}, {v(t1)}, s[{ZB + 4}:{ZB + 5}] offset:1020 sc1")
        for g in range(nzf):
            gloads(g)(st)

    tmp1 = acc2
    e1 = Stream()
    e1(f"s_lshl_b32 s4, {s(WAVE)}, 10")
    e1(f"s_add_u32 s4, s4, {RED}")
    e1(f"v_add_u32 {v(tw)}, s4, {v(l8)}")
    e1(f"s_lshl_b32 s4, {s(WAVE)}, 12")
    e1(f"s_add_u32 s4, s4, {RED}")
    e1(f"v_add_u32 {v(tq)}, s4, {v(l8)}")
    e1(f"v_add_u32 {v(zv)}, 3072, {v(L16)}")
    e1(f"v_add_u32 {v(zv + 1)}, {3072 + 7168}, {v(L16)}")
    e1(f"v_min_u32 {v(t1)}, 27, {v(LANE)}")
    e1(f"v_lshlrev_b32 {v(t1)}, 10, {v(t1)}")
    for sl in range(2):
        for mt in range(4):
            for p in range(2):
                pk(e1, "fma", tmp1 + 4 * mt + 2 * p, [("p", UZ1 + 8 * sl + 2 * p), ("b", rz1 + 2 * mt + 1), ("p", UZ1 + 8 * sl + 4 + 2 * p)])
        for mt in range(4):
            for p in range(2):
                r = acc1 + 16 * sl + 4 * mt + 2 * p
                pk(e1, "fma", r, [("p", r), ("b", rz1 + 2 * mt), ("p", tmp1 + 4 * mt + 2 * p)])
    gelu(e1, [acc1 + 2 * i for i in range(16)], tmp1, GC)
    for i in range(16):
        e1(f"v_cvt_pk_bf16_f32 {v(tmp1 + i)}, {v(acc1 + 2 * i)}, {v(acc1 + 2 * i + 1)}")
    for sl in range(2):
        for mt in range(4):
            e1(f"ds_write_b64 {v(tw)}, {v(tmp1 + 8 * sl + 2 * mt, 2)} offset:{4096 * mt + 512 * sl}")
    wd = Stream()
    wd(f"s_mul_i32 s5, s{SCB}, {135 * 1024}")
    wd(f"s_add_u32 s5, s5, {WO}")
    wd(f"s_add_u32 s92, s{WS}, s5")
    wd(f"s_addc_u32 s93, s{WS + 1}, 0")
    wd(f"s_mul_i32 s95, {s(WAVE)}, {34 * 1024}")
    wd(f"s_min_u32 s95, s95, {101 * 1024}")
    wd("s_add_u32 s92, s92, s95")
    wd("s_addc_u32 s93, s93, 0")
    for r in range(34):
        if r % 4 == 0:
            wd(f"s_add_u32 m0, s95, {1024 * r}")
            if r:
                wd("s_add_u32 s92, s92, 4096")
                wd("s_addc_u32 s93, s93, 0")
        wd(f"global_load_lds_dwordx4 {v(L16)}, s[92:93] offset:{1024 * (r % 4)} sc1")
    vi = [i + 1 for i, x in enumerate(wd.ins) if x.cls == "vmem"]
    n1 = cfg.get("wo1", 10)
    nwg = cfg.get("wog", 4)
    wd1 = Stream()
    wd1.ins = wd.ins[:vi[n1 - 1]]
    cuts = [vi[n1 - 1 + ((34 - n1) * i) // nwg] for i in range(nwg + 1)]
    wd3 = [wd.ins[cuts[i]:cuts[i + 1]] for i in range(nwg)]
    zpos = cfg.get("zpos", 0.55)
    k.extend(sprinkle(sprinkle(e1, wd1, 0.0, zpos), stream(zfirst), zpos, 1.0))
    k.barrier()
    for sl in range(7):
        k(f"ds_read_b64 {v(z1r + 2 * sl, 2)}, {v(tq)} offset:{512 * sl}")
    stamp(k, 22)

    wa3, rda = stash + 12, stash + 15
    pvr = [WO0, WO1, UZ1 + 14, UZ1 + 15]
    su = Stream()
    for tau in range(1, 4):
        su(f"s_xor_b32 s4, {s(WAVE)}, {tau}")
        su("s_mul_i32 s4, s4, 3072")
        su(f"s_add_u32 s4, s4, {RED + 1024 * (tau - 1)}")
        su(f"v_add_u32 {v(wa3 + tau - 1)}, s4, {v(L16)}")
    su(f"s_mul_i32 s4, {s(WAVE)}, 3072")
    su(f"s_add_u32 s4, s4, {RED}")
    su(f"v_add_u32 {v(rda)}, s4, {v(L16)}")
    su(f"s_mul_i32 s4, s{SRB}, {XRB}")
    su(f"s_add_u32 s4, s4, {P + 4096}")
    su(f"s_lshl_b32 s5, {s(WAVE)}, 13")
    su("s_add_u32 s5, s5, s4")
    su(f"v_add_u32 {v(pvr[0])}, s5, {v(L16)}")
    for i in range(1, 3):
        su(f"v_add_u32 {v(pvr[i])}, {32768 * i}, {v(pvr[0])}")
    su(f"s_lshl_b32 s5, {s(WAVE)}, 12")
    su("s_add_u32 s5, s5, s4")
    su(f"s_add_u32 s5, s5, {3 * 32768}")
    su(f"v_add_u32 {v(pvr[3])}, s5, {v(L16)}")
    su(f"s_lshl_b32 s4, s{SCB}, 10")
    su(f"s_add_u32 s{WA}, s{WS}, s4")
    su(f"s_addc_u32 s{WA + 1}, s{WS + 1}, 0")
    su(f"s_lshr_b32 s4, s{SCB}, 1")
    su("s_lshl_b32 s4, s4, 10")
    su(f"s_and_b32 s5, s{SCB}, 1")
    su("s_lshl_b32 s5, s5, 3")
    su("s_add_u32 s4, s4, s5")
    su(f"s_add_u32 s{WA + 2}, s{WS}, s4")
    su(f"s_addc_u32 s{WA + 3}, s{WS + 1}, 0")
    su.barrier()

    def red_write(st, sl):
        for tau in range(1, 4):
            st(f"ds_write_b128 {v(wa3 + tau - 1)}, {v(acc + 16 * sl + 4 * tau, 4)} offset:{12288 * (sl & 1)}")
        st.barrier()

    def red_fin(st, sl, packed):
        A = acc + 16 * sl
        for tau in range(1, 4):
            st(f"ds_read_b128 {v(A + 4 * tau, 4)}, {v(rda)} offset:{12288 * (sl & 1) + 1024 * (tau - 1)}")
        un = stash + 4
        for p in range(2):
            unpack(st, un + 2 * p, un + 2 * p + 1, z1r + 2 * sl + p)
        for tau in range(1, 4):
            for p in range(2):
                vop(st, "add", A + 2 * p, [("p", A + 2 * p), ("p", A + 4 * tau + 2 * p)], packed)
        for p in range(2):
            vop(st, "mul", A + 2 * p, [("p", A + 2 * p), ("p", un + 2 * p)], packed)
        o = z1r + 2 * sl
        for p in range(2):
            st(f"v_cvt_pk_bf16_f32 {v(o + p)}, {v(A + 2 * p)}, {v(A + 2 * p + 1)}")
        if sl & 1 or sl == 6:
            set_tag(st, o + 1, 0)

    def pstore(st, j):
        if j == 3:
            st(f"global_store_dwordx2 {v(pvr[3])}, {v(z1r + 12, 2)}, {sp(WA + 2)} offset:-4096 sc1")
        else:
            st(f"global_store_dwordx4 {v(pvr[j])}, {v(z1r + 4 * j, 4)}, {sp(WA)} offset:-4096 sc1")

    kgrp = [[(7 * c + 1) // 2 + j for c in range(8) if (7 * c + 1) // 2 + j < 27] for j in range(3)] + [[3, 10, 17, 24]]
    pbase = [acc, acc + 32, acc + 64, acc + 96]

    def ploads(j):
        def f(st):
            for i, ks in enumerate(kgrp[j]):
                st(f"global_load_dwordx4 {v(pbase[j] + 4 * i, 4)}, {v(pvr[j])}, {sp(WS)} offset:{1024 * i - 4096} sc1")
        return f

    zr = [zp] + gregs(0)
    maxchain(k, mx, zr, tag=1)
    check(k, stubs, "Lz0", zfirst, zr, mx, tag=1)
    stamp(k, 23)
    for g in range(nzf, NG - 1):
        gloads(g)(k)
    for g in range(ngrp):
        m = Stream()
        for fi in range(G * g, G * g + G):
            step, sl = order[fi]
            i, ksl = step >> 1, step & 1
            for tau in range(4):
                d = v(acc + 16 * sl + 4 * tau, 4)
                cin = d if step != steps[0] else (v(bs, 4) if tau == 0 else "0")
                m(f"v_mfma_f32_16x16x32_bf16 {d}, {v(freg(fi), 4)}, {a(apos(i) + 16 * ksl + 4 * tau, 4)}, {cin}")
        sides = []
        st = Stream()
        if g + NG - 1 < ngrp:
            gloads(g + NG - 1)(st)
        if g == cfg.get("pst", ngrp - NG + 1):
            pstore(st, 0)
            pstore(st, 1)
        gi = g - (ngrp - nwg)
        if gi >= 0:
            st.ins += wd3[gi]
        sides.append((st, 0, 15))
        if g == 1:
            sides.append((su, 0, 15))
        if g in cfg.get("q3t", [0, 3]):
            i = 0 if g == cfg.get("q3t", [0, 3])[0] else 6
            st = Stream()
            st(f"v_min_u32 {v(zp + 1)}, 27, {v(LANE)}")
            st(f"s_mul_i32 s6, s{SRI}, 28")
            st(f"v_add_lshl_u32 {v(zp + 1)}, {v(zp + 1)}, s6, 7")
            st(f"global_load_dword {v(stash + i // 6)}, {v(zp + 1)}, s[{ZB + 2 * i}:{ZB + 2 * i + 1}] sc1")
            sides.append((st, 0, 4))
        if g + 1 < ngrp:
            st = Stream()
            maxchain(st, mx, gregs(g + 1), tag=1)
            badcmp(st, mx, 1)
            sides.append((st, 10, 14))
        if g >= gA + gS:
            sl, ph = divmod(g - gA - gS, gS)
            st = Stream()
            if ph == 0:
                red_write(st, sl)
                sides.append((st, 3, 14))
                fin = stream(red_fin, sl, False).ins
            else:
                per = -(-len(fin) // (gS - 1))
                st.ins = fin[(ph - 1) * per:ph * per]
                sides.append((st, 0, 15))
        k.extend(weave(m, sides))
        if g + 1 < ngrp:
            check(k, stubs, f"Lz{g + 1}", gloads(g + 1), gregs(g + 1), mx, cmp=False, tag=1)
        if g == gA - 1:
            stamp(k, 24)
    stamp(k, 25)
    early = cfg.get("pearly", 2)
    tl = Stream()
    red_write(tl, 6)
    red_fin(tl, 6, True)
    pe = Stream()
    for j in range(early):
        ploads(j)(pe)
    k.extend(sprinkle(tl, pe, 0.0, 0.9))
    pstore(k, 2)
    pstore(k, 3)
    stamp(k, 26)

    acc3, NWF = ring, 6
    wf, gb, X = ring + 20, ring + 44, ring + 64
    ra3 = [L16, zv, zv + 1]
    k(f"v_add_u32 {v(ra3[1])}, {60 * 1024}, {v(L16)}")
    k(f"v_add_u32 {v(ra3[2])}, {120 * 1024}, {v(L16)}")
    for j in range(early, 2):
        ploads(j)(k)
    k.wait(*[x for part in wd3 for x in part if x.cls == "vmem"])
    k("s_barrier")
    seq = [(j, i, ks, dt) for j in range(4) for i, ks in enumerate(kgrp[j]) for dt in range(5)]

    def wread(st, f):
        fr = 5 * seq[f][2] + seq[f][3]
        st(f"ds_read_b128 {v(wf + 4 * (f % NWF), 4)}, {v(ra3[fr // 60])} offset:{1024 * (fr % 60)}")

    for f in range(NWF - 1):
        wread(k, f)
    Xr = [X + j for j in range(16)] + [stash + 4 + j for j in range(4)]
    ep = Stream()
    ep(f"v_lshlrev_b32 {v(t1)}, 5, {v(Q_)}")
    ep(f"v_add_u32 {v(t1)}, {GBT}, {v(t1)}")
    for j in range(4):
        ep(f"ds_read_b128 {v(gb + 4 * j, 4)}, {v(t1)} offset:{128 * (j >> 1) + 16 * (j & 1)}")
    ep(f"v_lshlrev_b32 {v(t1)}, 4, {v(Q_)}")
    ep(f"v_add_u32 {v(t1)}, {GBT}, {v(t1)}")
    ep(f"ds_read_b128 {v(gb + 16, 4)}, {v(t1)} offset:256")
    for j in range(10):
        unpack(ep, Xr[2 * j], Xr[2 * j + 1], xres + j)
    ep(f"v_add_u32 {v(zp)}, s90, {v(TROW)}")
    ep(f"v_mul_u32_u24 {v(zp)}, 1280, {v(zp)}")
    ep(f"s_mul_i32 s4, s{SCB}, 160")
    ep(f"v_add_u32 {v(zp)}, s4, {v(zp)}")
    ep(f"v_lshl_add_u32 {v(zp + 1)}, {v(Q_)}, 4, {v(zp)}")
    ep(f"v_lshl_add_u32 {v(zp)}, {v(Q_)}, 3, {v(zp)}")
    f = 0
    for j in range(4):
        pregs = list(range(pbase[j] + 3, pbase[j] + 4 * len(kgrp[j]), 4)) if j < 3 else list(range(pbase[j] + 1, pbase[j] + 16, 2))
        maxchain(k, mx, pregs, tag=0)
        check(k, stubs, f"Lp{j}", ploads(j), pregs, mx, tag=0)
        stamp(k, 27 + j)
        m = Stream()
        while f < len(seq) and seq[f][0] == j:
            _, i, ks, dt = seq[f]
            d = v(acc3 + 4 * dt, 4)
            m(f"v_mfma_f32_16x16x32_bf16 {d}, {v(wf + 4 * (f % NWF), 4)}, {v(pbase[j] + 4 * i, 4)}, {d if f >= 5 else 0}")
            if f + NWF - 1 < len(seq):
                wread(m, f + NWF - 1)
            f += 1
        sides = []
        if j == 1:
            st = Stream()
            ploads(2)(st)
            ploads(3)(st)
            sides.append((st, cfg.get("pl", 10), 39))
        k.extend(weave(m, sides))
        if j == 1:
            k.extend(ep)
    o = acc
    ost = cfg.get("ost", "")
    for B in range(2):
        for j in range(8):
            k(f"v_fmac_f32 {v(Xr[8 * B + j])}, {v(acc3 + 4 * (2 * B + (j & 1)) + (j >> 1))}, {v(gb + 8 * B + j)}")
        for j in range(4):
            k(f"v_cvt_pk_bf16_f32 {v(o + 4 * B + j)}, {v(Xr[8 * B + 2 * j])}, {v(Xr[8 * B + 2 * j + 1])}")
        k(f"global_store_dwordx4 {v(zp + 1)}, {v(o + 4 * B, 4)}, {sp(OUT)} offset:{64 * B} {ost}")
    for j in range(4):
        k(f"v_fmac_f32 {v(Xr[16 + j])}, {v(acc3 + 16 + j)}, {v(gb + 16 + j)}")
    for j in range(2):
        k(f"v_cvt_pk_bf16_f32 {v(o + 8 + j)}, {v(Xr[16 + 2 * j])}, {v(Xr[17 + 2 * j])}")
    k(f"global_store_dwordx2 {v(zp)}, {v(o + 8, 2)}, {sp(OUT)} offset:128 {ost}")
```

```python
import sys, os, json
sys.path.insert(0, os.path.dirname(__file__))
from asmlib import *
from blocks import *
from fused import *
from front import *

NAME = "adaLN_cond__ssm_conv_h3__mixer_gmlp__prompt"
cfg = json.loads(os.environ.get("CFG", "{}"))
PROBE = os.environ.get("PROBE")
LIST = os.environ.get("LIST") or PROBE
name = NAME + "_kernel"


def main():
    h = Stream()
    h("s_cmp_ge_u32 s2, 256")
    h("s_cbranch_scc1 Lend")
    if STAMPS:
        h("v_mov_b32 v255, 0")
    stamp(h, 0)
    prologue(h)
    code_prefetch(h, name, "Lcode_end", 254, 32)
    common_regs(h)
    role_ids(h)
    h("s_mul_i32 s4, s4, 20")
    h(f"s_add_u32 s{SUN}, s4, s5")
    h.drain(vm=False)
    stamp(h, 1)
    h("s_cmp_ge_u32 s2, 160")
    h("s_cbranch_scc0 Lconv")
    txt = f".p2align 8\n.globl {name}\n.type {name},@function\n{name}:\n" + finalize(h)
    stubs = []
    sp_ = spare_path(cfg, stubs)
    k = Stream()
    k("Lconv:")
    conv_path(k, stubs, cfg)
    k("Ljoin:")
    g = Stream()
    stamp(g, 13)
    gemm_phases(g, stubs, cfg)
    if cfg.get("x_nomem"):
        kinds = cfg["x_nomem"]
        def drop(x):
            if x.cls != "vmem":
                return False
            return ("d" in kinds and "load_lds" in x.mn) or ("w" in kinds and x.mn == "global_load_dwordx4" and " a[" in x.text)
        gone = {id(x) for x in g.ins if drop(x)}
        g.ins = [x for x in g.ins if id(x) not in gone]
        for x in g.ins:
            if x.waitfor:
                x.waitfor = [t for t in x.waitfor if id(t) not in gone]
    g("Lflush:")
    stamp(g, 40)
    if STAMPS:
        g.drain()
    stamp(g, 41)
    if STAMPS:
        g("v_writelane_b32 v255, s100, 50")
    stamp_flush(g, 0)
    g("Lend:")
    g("s_endpgm")
    txt += "".join(finalize(x) for x in sp_) + finalize(k) + finalize(g)
    for st in stubs:
        txt += finalize(st)
    return txt + "Lcode_end:\n    s_endpgm\n"


def desc(n, vg=512, ao=256):
    return f""".p2align 6
.amdhsa_kernel {n}
  .amdhsa_next_free_vgpr {vg}
  .amdhsa_next_free_sgpr 102
  .amdhsa_accum_offset {ao}
  .amdhsa_group_segment_fixed_size 0
  .amdhsa_kernarg_size 128
  .amdhsa_user_sgpr_count 2
  .amdhsa_user_sgpr_kernarg_segment_ptr 1
  .amdhsa_system_sgpr_workgroup_id_x 1
  .amdhsa_float_denorm_mode_32 3
.end_amdhsa_kernel
"""


ref = open(os.path.join(os.path.dirname(__file__), "..", NAME + ".s.ref")).read().split("\n")
hdr = [l for l in ref if l.startswith(";") and "@launch" not in l and "Override launch" not in l and "grid=ceil" not in l]
out = "\n".join(hdr) + "\n"
out += f"; @launch {'kernel=' + name + ' ' if LIST else ''}grid=(256,1,1) block=(256,1,1) lds={MAIN_LDS}\n"
extra = ""
if PROBE:
    pi_, plo, phi = map(int, PROBE.split(","))
    out += "; @launch kernel=probe_kernel grid=(1,1,1) block=(1024,1,1) lds=0\n"
    extra = f""".p2align 8
.globl probe_kernel
.type probe_kernel,@function
probe_kernel:
    s_cmp_ge_u32 s2, 1
    s_cbranch_scc1 Lprobe_end
    s_load_dwordx2 s[4:5], s[0:1], 120
    v_max_u32 v1, {4 * plo}, v0
    v_min_u32 v1, {4 * phi - 1}, v1
    v_lshlrev_b32 v1, 8, v1
    v_add_u32 v1, {STAMP + 4 * pi_}, v1
    s_waitcnt lgkmcnt(0)
    global_load_dword v2, v1, s[4:5]
    s_mov_b32 s9, 0
    s_waitcnt vmcnt(0)
Lprobe_loop:
    s_memrealtime s[6:7]
    s_add_u32 s9, s9, 1
    s_waitcnt lgkmcnt(0)
    v_sub_u32 v3, s6, v2
    v_cmp_gt_u32 vcc, 10000, v3
    s_cmp_ge_u32 s9, 100000
    s_cbranch_scc1 Lprobe_end
    s_cbranch_vccnz Lprobe_loop
Lprobe_end:
    s_endpgm
"""
out += '.amdgcn_target "amdgcn-amd-amdhsa--gfx950"\n.text\n' + main() + extra
out += '.section .rodata,"a"\n' + desc(name) + (desc("probe_kernel", 64, 64) if PROBE else "")
open(sys.argv[1], "w").write(out)
if os.environ.get("REPORT"):
    import asmlib
    for r in asmlib.REPORT:
        print("%6s -> %-4s instrs %5d mfma %4d est %6d" % r)
```

```python
from asmlib import Stream, Alloc, v, a, s, interleave

S, D, FH = 2048, 640, 864
Q, K, V, SHK, SSM, SD, BX, WIN, WSP, BSP, WOUT, C, WMOD, OUT, DBG, WS = range(8, 40, 2)
WAVE = 3
LANE = 1
MODP = 0x0
MODS = 3840 * 4
NMOD = 2
INIT0 = 0x8000
ST1 = 0x8000
U = 0xC000
US = 2 * 56 * 128
KF = 0x13000
SDF = 0x18000
NINIT = 50
X1 = 0x100000
XRB = 28 * 4096
P = X1
WP = 0x700000
WO = 0xA00000
ST3 = 0xBE0000
Z2 = 0xC00000
KVT = Z2
STAMP = 0x2000000

ONES = 0x3F803F80
LOG2E = 0x3FB8AA3B
SEL_LO = 0x05040100
SEL_HI = 0x07060302


def fbits(x):
    import struct
    return struct.unpack("<I", struct.pack("<f", x))[0]


def sp(i):
    return s(i, 2)


import os
STAMPS = int(os.environ.get("STAMPS", "0"))
VTOP = 255
ONLY = [int(x) for x in os.environ.get("ONLY", "").split(",") if x]
CLK = [15, 16, 17, 18, 19, 21, 22, 24, 25, 41]


def stamp(k, idx):
    k(f"; mark {idx}")
    if STAMPS and (not ONLY or idx in ONLY):
        k("s_memrealtime s[98:99]")
        k("s_waitcnt lgkmcnt(0)")
        k(f"v_writelane_b32 v255, s98, {idx}")
        if idx in CLK and os.environ.get("CYC"):
            k("s_memtime s[98:99]")
            k("s_waitcnt lgkmcnt(0)")
            k(f"v_writelane_b32 v255, s98, {52 + CLK.index(idx)}")


def stamp_flush(k, kidx):
    if STAMPS:
        k(f"s_lshl_b32 s98, s2, 10")
        k(f"s_add_u32 s98, s98, {STAMP + kidx * 262144}")
        k(f"v_lshl_add_u32 v254, v0, 2, s98")
        k(f"global_store_dword v254, v255, {sp(WS)}")


def code_prefetch(k, lab0, lab1, tmp, nparts=32):
    k(f"s_getpc_b64 s[4:5]")
    k(f"Lpf_{lab0}_{len(k)}:")
    here = f"Lpf_{lab0}_{len(k) - 1}"
    k(f"s_add_u32 s4, s4, {lab0}-{here}")
    k(f"s_addc_u32 s5, s5, -1")
    k(f"s_lshr_b32 s6, s2, 3")
    k(f"s_and_b32 s6, s6, {nparts - 1}")
    k(f"v_mul_u32_u24 {v(tmp)}, {nparts}, v0")
    k(f"v_add_lshl_u32 {v(tmp)}, {v(tmp)}, s6, 7")
    k(f"v_min_u32 {v(tmp)}, ({lab1}-{lab0}-4), {v(tmp)}")
    k(f"global_load_dword {v(tmp)}, {v(tmp)}, s[4:5]")


def code_touch(k, lab0, lab1, tmp, nparts=8):
    k(f"s_bfe_u32 s6, s2, {hex(((nparts.bit_length() - 1) << 16) | 3)}")
    k(f"v_mul_u32_u24 {v(tmp)}, {nparts}, v0")
    k(f"v_add_lshl_u32 {v(tmp)}, {v(tmp)}, s6, 7")
    k(f"v_min_u32 {v(tmp)}, ({lab1}-{lab0}-4), {v(tmp)}")
    k(f"v_add_u32 {v(tmp)}, ({lab0}-{KNAME}), {v(tmp)}")
    k(f"global_load_dword {v(tmp)}, {v(tmp)}, s[0:1]")


KNAME = "adaLN_cond__ssm_conv_h3__mixer_gmlp__prompt_kernel"


def prologue(k):
    k(f"s_load_dwordx16 s[8:23], s[0:1], 0")
    k(f"s_load_dwordx16 s[24:39], s[0:1], 64")
    k(f"v_lshrrev_b32 v2, 6, v0")
    k(f"v_and_b32 {v(LANE)}, 63, v0")
    k(f"v_readfirstlane_b32 {s(WAVE)}, v2")


def unpack(k, lo, hi, src):
    k(f"v_lshlrev_b32 {v(lo)}, 16, {v(src)}")
    k(f"v_and_b32 {v(hi)}, 0xffff0000, {v(src)}")


def bsel(r):
    return v(r & ~1, 2), r & 1


def pk(k, op, dst, srcs, neg=None):
    ops, lo, hi = [], [], []
    if srcs[1][0] == "b" and srcs[0][0] != "b" and not neg:
        srcs = [srcs[1], srcs[0]] + list(srcs[2:])
    for kind, r in srcs:
        if kind == "p":
            ops.append(v(r, 2)); lo.append(0); hi.append(1)
        elif kind == "sp":
            ops.append(s(r, 2)); lo.append(0); hi.append(1)
        elif kind == "b":
            t, b = bsel(r)
            ops.append(t); lo.append(b); hi.append(b)
        elif kind == "sb":
            ops.append(s(r & ~1, 2)); lo.append(r & 1); hi.append(r & 1)
        else:
            ops.append(r); lo.append(0); hi.append(0)
    m = f" op_sel:[{','.join(map(str, lo))}] op_sel_hi:[{','.join(map(str, hi))}]"
    if neg:
        m += f" neg_lo:[{','.join(map(str, neg))}] neg_hi:[{','.join(map(str, neg))}]"
    return k(f"v_pk_{op}_f32 {v(dst, 2)}, {', '.join(ops)}{m}")


def vop(k, op, dst, srcs, packed=True):
    if packed:
        return pk(k, op, dst, srcs)
    for h in range(2):
        ops = []
        for kind, r in srcs:
            ops.append({"p": lambda: v(r + h), "sp": lambda: s(r + h), "b": lambda: v(r), "sb": lambda: s(r), "c": lambda: r}[kind]())
        if op != "fma" and not ops[1].startswith("v"):
            ops = [ops[1], ops[0]]
        k(f"v_{op}_f32 {v(dst + h)}, {', '.join(ops)}")


def round_bf16(k, r):
    k(f"v_cvt_pk_bf16_f32 {v(r)}, {v(r)}, {v(r)}")
    k(f"v_lshlrev_b32 {v(r)}, 16, {v(r)}")


def mod_unit(k, su, st="sc1"):
    R = Alloc(2, 250)
    k(f"s_cmp_ge_u32 {s(su)}, 60")
    k(f"s_cselect_b32 s4, 1, 0")
    k(f"s_mul_i32 s5, s4, 60")
    k(f"s_sub_u32 s5, {s(su)}, s5")
    k(f"s_mul_i32 s6, s4, 320")
    k(f"s_mul_i32 s7, {s(WAVE)}, 80")
    k(f"s_add_u32 s6, s6, s7")
    row, off, coff = R(), R(), R()
    k(f"v_lshrrev_b32 {v(row)}, 3, {v(LANE)}")
    k(f"v_add_u32 {v(row)}, s6, {v(row)}")
    k(f"v_lshlrev_b32 {v(coff)}, 1, {v(row)}")
    k(f"v_mul_u32_u24 {v(off)}, 7680, {v(row)}")
    k(f"v_and_b32 {v(row)}, 7, {v(LANE)}")
    k(f"v_lshl_add_u32 {v(off)}, {v(row)}, 4, {v(off)}")
    k(f"s_lshl_b32 s7, s5, 7")
    k(f"v_add_u32 {v(off)}, s7, {v(off)}")
    cv = R(10, 2)
    w = R(40, 4)
    for i in range(10):
        k(f"global_load_ushort {v(cv + i)}, {v(coff)}, {sp(C)} offset:{16 * i}")
    for i in range(10):
        k(f"global_load_dwordx4 {v(w + 4 * i, 4)}, {v(off)}, {sp(WMOD)} nt")
        if i < 9:
            k(f"v_add_u32 {v(off)}, {8 * 7680}, {v(off)}")
    t = R(10, 2)
    for i in range(10):
        k(f"v_lshlrev_b32 {v(cv + i)}, 16, {v(cv + i)}")
        k(f"v_mul_f32 {v(t + i)}, {hex(LOG2E | 0x80000000)}, {v(cv + i)}")
    for i in range(10):
        k(f"v_exp_f32 {v(t + i)}, {v(t + i)}")
    for i in range(10):
        k(f"v_add_f32 {v(t + i)}, 1.0, {v(t + i)}")
    for i in range(10):
        k(f"v_rcp_f32 {v(t + i)}, {v(t + i)}")
    for i in range(10):
        k(f"v_mul_f32 {v(cv + i)}, {v(cv + i)}, {v(t + i)}")
    for i in range(10):
        round_bf16(k, cv + i)
    acc = R(8, 2)
    u = R(8, 2)
    for i in range(10):
        for j in range(4):
            unpack(k, u + 2 * j, u + 2 * j + 1, w + 4 * i + j)
        for j in range(4):
            if i == 0:
                pk(k, "mul", acc + 2 * j, [("p", u + 2 * j), ("b", cv + i)])
            else:
                pk(k, "fma", acc + 2 * j, [("p", u + 2 * j), ("b", cv + i), ("p", acc + 2 * j)])
    for j in range(4):
        k(f"v_permlane32_swap_b32 {v(acc + j)}, {v(acc + j + 4)}")
    for j in range(4):
        k(f"v_add_f32 {v(acc + j)}, {v(acc + j)}, {v(acc + j + 4)}")
    for j in range(2):
        k(f"v_permlane16_swap_b32 {v(acc + j)}, {v(acc + j + 2)}")
    for j in range(2):
        k(f"v_add_f32 {v(acc + j)}, {v(acc + j)}, {v(acc + j + 2)}")
    res = u
    k(f"v_add_f32_dpp {v(res)}, {v(acc)}, {v(acc)} row_ror:8 row_mask:0xf bank_mask:0x3")
    k(f"v_add_f32_dpp {v(res)}, {v(acc + 1)}, {v(acc + 1)} row_ror:8 row_mask:0xf bank_mask:0xc")
    ad = u + 1
    k(f"v_and_b32 {v(ad)}, 7, {v(LANE)}")
    k(f"v_lshrrev_b32 {v(u + 2)}, 3, {v(LANE)}")
    k(f"v_lshl_add_u32 {v(ad)}, {v(ad)}, 3, {v(u + 2)}")
    k(f"s_lshl_b32 s7, {s(WAVE)}, 6")
    k(f"v_add_lshl_u32 {v(ad)}, {v(ad)}, s7, 2")
    k(f"ds_write_b32 {v(ad)}, {v(res)}")
    k.barrier()
    k(f"v_lshlrev_b32 {v(ad)}, 2, {v(LANE)}")
    for i in range(4):
        k(f"ds_read_b32 {v(acc + i)}, {v(ad)} offset:{256 * i}")
    k(f"s_mul_i32 s6, s4, {3840 * 4}")
    k(f"s_lshl_b32 s7, s5, 8")
    k(f"s_add_u32 s6, s6, s7")
    k(f"s_add_u32 s6, s6, {MODP}")
    k(f"v_add_u32 {v(ad)}, s6, {v(ad)}")
    k(f"v_add_f32 {v(acc)}, {v(acc)}, {v(acc + 1)}")
    k(f"v_add_f32 {v(acc + 2)}, {v(acc + 2)}, {v(acc + 3)}")
    k(f"v_add_f32 {v(acc)}, {v(acc)}, {v(acc + 2)}")
    k(f"s_cmp_lg_u32 {s(WAVE)}, 0")
    lab = f"Lmod_skip_{id(k) & 0xffff}_{len(k)}"
    k(f"s_cbranch_scc1 {lab}")
    k(f"global_store_dword {v(ad)}, {v(acc)}, {sp(WS)} {st}")
    k(f"{lab}:")


def row_stats(k, sm, sq, n, tmp):
    inv = hex(fbits(1.0 / n))
    k(f"v_mul_f32 {v(sm)}, {inv}, {v(sm)}")
    k(f"v_mul_f32 {v(sq)}, {inv}, {v(sq)}")
    k(f"v_fma_f32 {v(sq)}, -{v(sm)}, {v(sm)}, {v(sq)}")
    k(f"v_max_f32 {v(sq)}, 0, {v(sq)}")
    k(f"v_add_f32 {v(sq)}, {hex(fbits(1e-5))}, {v(sq)}")
    k(f"v_rsq_f32 {v(tmp)}, {v(sq)}")
    k(f"v_mul_f32 {v(sq)}, -{v(sm)}, {v(tmp)}".replace("v_mul_f32", "v_mul_f32_e64"))
    k(f"v_mov_b32 {v(sm)}, {v(tmp)}")


def x_unit(k, su, st="sc1"):
    R = Alloc(2, 250)
    off, a0, a1 = R(), R(), R()
    k(f"s_lshl_b32 s4, {s(su)}, 2")
    k(f"s_add_u32 s4, s4, {s(WAVE)}")
    k(f"s_mul_i32 s4, s4, {8 * 1280}")
    k(f"s_add_u32 s4, s4, 4096")
    k(f"v_lshl_add_u32 {v(off)}, {v(LANE)}, 4, s4")
    d = R(40, 4)
    for i in range(10):
        if i == 8:
            k(f"v_add_u32 {v(off)}, 8192, {v(off)}")
        k(f"global_load_dwordx4 {v(d + 4 * i, 4)}, {v(off)}, {sp(Q)} offset:{1024 * (i % 8) - 4096} nt")
    k(f"s_mul_i32 s5, {s(WAVE)}, 10304")
    k(f"v_lshl_add_u32 {v(a0)}, {v(LANE)}, 4, s5")
    k(f"v_lshrrev_b32 {v(a1)}, 5, {v(LANE)}")
    k(f"v_lshl_add_u32 {v(a1)}, {v(a1)}, 4, {v(a0)}")
    for i in range(10):
        pad = (64 * i) // 160
        k(f"ds_write_b128 {v(a1 if i in (2, 7) else a0)}, {v(d + 4 * i, 4)} offset:{1024 * i + 16 * pad}")
    k.barrier()
    rho, gq = R(), R()
    k(f"v_and_b32 {v(rho)}, 15, {v(LANE)}")
    k(f"v_lshrrev_b32 {v(gq)}, 4, {v(LANE)}")
    k(f"v_mul_u32_u24 {v(a0)}, 2576, {v(rho)}")
    k(f"v_lshl_add_u32 {v(a0)}, {v(gq)}, 3, {v(a0)}")
    k(f"s_mul_i32 s5, {s(WAVE)}, 320")
    k(f"v_add_u32 {v(a0)}, s5, {v(a0)}")
    for i in range(10):
        k(f"ds_read2_b64 {v(d + 4 * i, 4)}, {v(a0)} offset0:{4 * i} offset1:{160 + 4 * i}")
    k(f"s_mul_i32 s5, {s(WAVE)}, {40 * 16384}")
    k(f"s_lshl_b32 s6, {s(su)}, 8")
    k(f"s_add_u32 s5, s5, s6")
    k(f"s_add_u32 s5, s5, {XB}")
    k(f"v_lshlrev_b32 {v(off)}, 14, {v(gq)}")
    k(f"v_lshl_add_u32 {v(off)}, {v(rho)}, 4, {v(off)}")
    k(f"v_add_u32 {v(off)}, s5, {v(off)}")
    st4 = R(4, 2)
    k(f"s_mov_b32 s7, {hex(ONES)}")
    for j in range(4):
        k(f"v_mov_b32 {v(st4 + j)}, 0")
    for i in range(10):
        k(f"global_store_dwordx4 {v(off)}, {v(d + 4 * i, 4)}, {sp(WS)} {st}")
        if i < 9:
            k(f"v_add_u32 {v(off)}, 65536, {v(off)}")
        for j in range(2):
            for r in range(2):
                src = d + 4 * i + 2 * r + j
                k(f"v_dot2_f32_bf16 {v(st4 + 2 * r)}, {v(src)}, s7, {v(st4 + 2 * r)}")
                k(f"v_dot2_f32_bf16 {v(st4 + 2 * r + 1)}, {v(src)}, {v(src)}, {v(st4 + 2 * r + 1)}")
    k(f"v_permlane32_swap_b32 {v(st4)}, {v(st4 + 2)}")
    k(f"v_permlane32_swap_b32 {v(st4 + 1)}, {v(st4 + 3)}")
    k(f"v_add_f32 {v(st4)}, {v(st4)}, {v(st4 + 2)}")
    k(f"v_add_f32 {v(st4 + 1)}, {v(st4 + 1)}, {v(st4 + 3)}")
    k(f"v_permlane16_swap_b32 {v(st4)}, {v(st4 + 1)}")
    k(f"v_add_f32 {v(st4)}, {v(st4)}, {v(st4 + 1)}")
    SB = 41472
    k(f"v_lshlrev_b32 {v(a0)}, 4, {v(rho)}")
    k(f"v_lshl_add_u32 {v(a0)}, {v(gq)}, 2, {v(a0)}")
    k(f"s_lshl_b32 s5, {s(WAVE)}, 8")
    k(f"v_add_u32 {v(a0)}, s5, {v(a0)}")
    k(f"ds_write_b32 {v(a0)}, {v(st4)} offset:{SB}")
    k.barrier()
    pr = R(8, 2)
    k(f"v_and_b32 {v(a0)}, 31, {v(LANE)}")
    k(f"v_lshlrev_b32 {v(a0)}, 3, {v(a0)}")
    for i in range(4):
        k(f"ds_read_b64 {v(pr + 2 * i, 2)}, {v(a0)} offset:{SB + 256 * i}")
    pk(k, "add", pr, [("p", pr), ("p", pr + 2)])
    pk(k, "add", pr + 4, [("p", pr + 4), ("p", pr + 6)])
    pk(k, "add", pr, [("p", pr), ("p", pr + 4)])
    row_stats(k, pr, pr + 1, D, pr + 2)
    k(f"s_lshl_b32 s5, {s(su)}, 8")
    k(f"s_add_u32 s5, s5, {ST1}")
    k(f"v_add_u32 {v(a0)}, s5, {v(a0)}")
    lab = f"Lx_skip_{id(k) & 0xffff}_{len(k)}"
    k(f"s_cmp_lg_u32 {s(WAVE)}, 0")
    k(f"s_cbranch_scc1 {lab}")
    k(f"global_store_dwordx2 {v(a0)}, {v(pr, 2)}, {sp(WS)} {st}")
    k(f"{lab}:")


def wout_issue(k, su, off, lds):
    k(f"s_mul_i32 s4, {s(su)}, 40960")
    k(f"s_mul_i32 s5, {s(WAVE)}, 10240")
    k(f"s_add_u32 s4, s4, s5")
    k(f"v_lshl_add_u32 {v(off)}, {v(LANE)}, 4, s4")
    for i in range(10):
        if i % 4 == 0:
            k(f"s_add_u32 m0, s5, {lds + 1024 * i}")
            if i:
                k(f"v_add_u32 {v(off)}, 4096, {v(off)}")
        k(f"global_load_lds_dwordx4 {v(off)}, {sp(WOUT)} offset:{1024 * (i % 4)} nt")


def wout_finish(k, su, R, lds, st="sc1"):
    off, ap, aq = R(), R(), R()
    m, q = R(), R()
    k(f"v_and_b32 {v(m)}, 15, {v(LANE)}")
    k(f"v_lshrrev_b32 {v(q)}, 4, {v(LANE)}")
    k(f"v_mul_u32_u24 {v(q)}, {8 * 1280}, {v(q)}")
    k(f"s_mul_i32 s5, {s(WAVE)}, 320")
    k(f"s_add_u32 s5, s5, {lds}")
    k(f"v_add_u32 {v(q)}, s5, {v(q)}")
    k(f"v_lshl_add_u32 {v(ap)}, {v(m)}, 2, {v(q)}")
    k(f"v_lshl_add_u32 {v(aq)}, {v(m)}, 1, {v(q)}")
    k(f"s_mul_i32 s5, {s(WAVE)}, {2 * 27 * 5120}")
    k(f"s_mul_i32 s6, {s(su)}, 5120")
    k(f"s_add_u32 s5, s5, s6")
    k(f"s_add_u32 s5, s5, {WO + 2048}")
    k(f"v_lshl_add_u32 {v(off)}, {v(LANE)}, 4, s5")
    k(f"s_mov_b32 s6, {hex(SEL_LO)}")
    k(f"s_mov_b32 s7, {hex(SEL_HI)}")
    order = [0, 2, 4, 6, 1, 3, 5, 7]
    for c in range(2):
        t = R(24, 4)
        o = R(20, 4)
        for b in range(2):
            for e in range(8):
                k(f"ds_read_b32 {v(t + 8 * b + e)}, {v(ap)} offset:{order[e] * 1280 + 160 * c + 64 * b}")
        for e in range(8):
            k(f"ds_read_u16 {v(t + 16 + e)}, {v(aq)} offset:{order[e] * 1280 + 160 * c + 128}")
        for b in range(2):
            for par in range(2):
                for j in range(4):
                    k(f"v_perm_b32 {v(o + 8 * b + 4 * par + j)}, {v(t + 8 * b + 2 * j + 1)}, {v(t + 8 * b + 2 * j)}, s{6 + par}")
        for j in range(4):
            k(f"v_perm_b32 {v(o + 16 + j)}, {v(t + 16 + 2 * j + 1)}, {v(t + 16 + 2 * j)}, s6")
        for dt in range(5):
            k(f"global_store_dwordx4 {v(off)}, {v(o + 4 * dt, 4)}, {sp(WS)} offset:{1024 * dt - 2048} {st}")
        if c == 0:
            k(f"v_add_u32 {v(off)}, {27 * 5120}, {v(off)}")


def load_mod4(k, dst, tmp, voff, row, ld=""):
    base = MODP + row * D * 4
    k(f"v_add_u32 {v(tmp + 4)}, {base}, {v(voff)}")
    k(f"global_load_dwordx4 {v(dst, 4)}, {v(tmp + 4)}, {sp(WS)} {ld}")
    k(f"v_add_u32 {v(tmp + 4)}, {base + 3840 * 4}, {v(voff)}")
    k(f"global_load_dwordx4 {v(tmp, 4)}, {v(tmp + 4)}, {sp(WS)} {ld}")


def fin_mod4(k, dst, tmp, plus1=False):
    for j in range(4):
        k(f"v_add_f32 {v(dst + j)}, {v(dst + j)}, {v(tmp + j)}")
    for j in range(4):
        round_bf16(k, dst + j)
    if plus1:
        for j in range(4):
            k(f"v_add_f32 {v(dst + j)}, 1.0, {v(dst + j)}")
        for j in range(4):
            round_bf16(k, dst + j)


def wp_unit(k, su, st="sc1"):
    R = Alloc(2, 250)
    n, q, off = R(), R(), R()
    k(f"v_and_b32 {v(n)}, 15, {v(LANE)}")
    k(f"v_lshrrev_b32 {v(q)}, 4, {v(LANE)}")
    k(f"s_mul_i32 s4, {s(WAVE)}, {160 * 3456}")
    k(f"s_lshl_b32 s5, {s(su)}, 6")
    k(f"s_add_u32 s4, s4, s5")
    k(f"s_add_u32 s4, s4, 3456")
    k(f"v_mul_u32_u24 {v(off)}, {8 * 3456}, {v(q)}")
    k(f"v_lshl_add_u32 {v(off)}, {v(n)}, 2, {v(off)}")
    k(f"v_add_u32 {v(off)}, s4, {v(off)}")
    w = R(40, 4)
    cur = 1
    for ks in range(5):
        for e in range(8):
            row = 32 * ks + e
            if row - cur > 1:
                k(f"v_add_u32 {v(off)}, {(row + 1 - cur) * 3456}, {v(off)}")
                cur = row + 1
            k(f"global_load_dword {v(w + 8 * ks + e)}, {v(off)}, {sp(WIN)} offset:{(row - cur) * 3456} nt")
    mo = R()
    cb4, t0 = R(4, 4), R(5, 4)
    sb4, t1 = R(4, 4), R(5, 4)
    k(f"v_min_u32 {v(mo)}, 39, {v(LANE)}")
    k(f"s_mul_i32 s5, {s(WAVE)}, 640")
    k(f"v_lshl_add_u32 {v(mo)}, {v(mo)}, 4, s5")
    load_mod4(k, cb4, t0, mo, 4)
    load_mod4(k, sb4, t1, mo, 3)
    fin_mod4(k, cb4, t0, plus1=True)
    fin_mod4(k, sb4, t1)
    k(f"ds_write_b128 {v(mo)}, {v(cb4, 4)}")
    k(f"ds_write_b128 {v(mo)}, {v(sb4, 4)} offset:2560")
    ta = R()
    k(f"v_lshl_add_u32 {v(ta)}, {v(q)}, 5, s5")
    k(f"s_cmp_ge_u32 {s(su)}, 27")
    k(f"s_cselect_b32 s6, -54, 56")
    k(f"s_lshl_b32 s7, {s(su)}, 1")
    k(f"s_add_u32 s6, s6, s7")
    k(f"s_mul_i32 s4, s6, 20480")
    k(f"s_mul_i32 s5, {s(WAVE)}, 5120")
    k(f"s_add_u32 s4, s4, s5")
    k(f"s_add_u32 s4, s4, {WP + 2048}")
    oe, oo = R(), R()
    k(f"v_lshl_add_u32 {v(oe)}, {v(LANE)}, 4, s4")
    k(f"v_add_u32 {v(oo)}, 20480, {v(oe)}")
    k(f"s_mov_b32 s7, {hex(ONES)}")
    uu = R(4, 2)
    for j in range(4):
        k(f"v_mov_b32 {v(uu + j)}, 0")
    cst = [R(16, 4) for _ in range(2)]
    un = R(16, 2)
    pr = R(16, 2)
    outs = [R(8, 4) for _ in range(2)]
    for ks in range(5):
        cc = cst[ks & 1]
        o = outs[ks & 1]
        for h in range(2):
            k(f"ds_read_b128 {v(cc + 4 * h, 4)}, {v(ta)} offset:{128 * ks + 16 * h}")
            k(f"ds_read_b128 {v(cc + 8 + 4 * h, 4)}, {v(ta)} offset:{2560 + 128 * ks + 16 * h}")
        for e in range(8):
            unpack(k, un + 2 * e, un + 2 * e + 1, w + 8 * ks + e)
        for e in range(8):
            pk(k, "mul", pr + 2 * e, [("p", un + 2 * e), ("b", cc + e)])
        for par in range(2):
            for j in range(4):
                k(f"v_cvt_pk_bf16_f32 {v(o + 4 * par + j)}, {v(pr + 4 * j + par)}, {v(pr + 4 * j + 2 + par)}")
        k(f"global_store_dwordx4 {v(oe)}, {v(o, 4)}, {sp(WS)} offset:{1024 * ks - 2048} {st}")
        k(f"global_store_dwordx4 {v(oo)}, {v(o + 4, 4)}, {sp(WS)} offset:{1024 * ks - 2048} {st}")
        for e in range(8):
            pk(k, "fma", uu + 2, [("p", un + 2 * e), ("b", cc + 8 + e), ("p", uu + 2)])
        for j in range(4):
            for par in range(2):
                k(f"v_dot2_f32_bf16 {v(uu + par)}, {v(o + 4 * par + j)}, s7, {v(uu + par)}")
    k(f"v_permlane32_swap_b32 {v(uu)}, {v(uu + 1)}")
    k(f"v_permlane32_swap_b32 {v(uu + 2)}, {v(uu + 3)}")
    k(f"v_add_f32 {v(uu)}, {v(uu)}, {v(uu + 1)}")
    k(f"v_add_f32 {v(uu + 2)}, {v(uu + 2)}, {v(uu + 3)}")
    k(f"v_permlane16_swap_b32 {v(uu)}, {v(uu + 2)}")
    k(f"v_add_f32 {v(uu)}, {v(uu)}, {v(uu + 2)}")
    k(f"v_lshlrev_b32 {v(ta)}, 2, v0")
    k(f"ds_write_b32 {v(ta)}, {v(uu)} offset:5120")
    k.drain()
    k("s_barrier")
    k(f"v_lshlrev_b32 {v(ta)}, 2, {v(LANE)}")
    for i in range(4):
        k(f"ds_read_b32 {v(un + i)}, {v(ta)} offset:{5120 + 256 * i}")
    k(f"s_lshl_b32 s6, s6, 7")
    k(f"s_add_u32 s6, s6, {U}")
    k(f"v_add_u32 {v(ta)}, s6, {v(ta)}")
    k(f"v_add_f32 {v(un)}, {v(un)}, {v(un + 1)}")
    k(f"v_add_f32 {v(un + 2)}, {v(un + 2)}, {v(un + 3)}")
    k(f"v_add_f32 {v(un)}, {v(un)}, {v(un + 2)}")
    k(f"v_min_u32 {v(un)}, -2, {v(un)}")
    lab = f"Lwp_skip_{id(k) & 0xffff}_{len(k)}"
    k(f"s_cmp_lg_u32 {s(WAVE)}, 0")
    k(f"s_cbranch_scc1 {lab}")
    k(f"global_store_dword {v(ta)}, {v(un)}, {sp(WS)} {st}")
    k(f"{lab}:")


def wp_zero_unit(k, su, st="sc1"):
    R = Alloc(2, 250)
    off = R()
    z = R(4, 4)
    for j in range(4):
        k(f"v_mov_b32 {v(z + j)}, 0")
    k(f"s_mul_i32 s4, {s(su)}, {56 * 20480}")
    k(f"s_add_u32 s4, s4, {WP + 54 * 20480}")
    k(f"v_lshl_add_u32 {v(off)}, v0, 4, s4")
    for i in range(10):
        k(f"global_store_dwordx4 {v(off)}, {v(z, 4)}, {sp(WS)} {st}")
        k(f"v_add_u32 {v(off)}, 4096, {v(off)}")
    k(f"s_mul_i32 s4, {s(su)}, {56 * 128}")
    k(f"s_add_u32 s4, s4, {U + 54 * 128}")
    k(f"v_lshl_add_u32 {v(off)}, {v(LANE)}, 2, s4")
    k(f"global_store_dword {v(off)}, {v(z)}, {sp(WS)} {st}")


def fill_unit(k, base, nbytes_per_wg, su, val=-1, st="sc1"):
    R = Alloc(2, 250)
    off = R()
    z = R(4, 4)
    for j in range(4):
        k(f"v_mov_b32 {v(z + j)}, {val}")
    k(f"s_mul_i32 s4, {s(su)}, {nbytes_per_wg}")
    k(f"s_add_u32 s4, s4, {base}")
    k(f"v_lshl_add_u32 {v(off)}, v0, 4, s4")
    for i in range(nbytes_per_wg // 4096):
        k(f"global_store_dwordx4 {v(off)}, {v(z, 4)}, {sp(WS)} {st}")
        k(f"v_add_u32 {v(off)}, 4096, {v(off)}")
```

```python
import math
from asmlib import Stream, Alloc, v, a, s, weave, sprinkle
from blocks import *

N_, Q_, L16, TROW, WO0, WO1 = 2, 3, 4, 5, 6, 7
UZ2, UZ1 = 8, 12
VFREE = 28
SRB, SCB, SUN, SRI = 40, 41, 42, 43
SPIN = 0x40000
JB, ZB, WB, GC, MK, SW9, STGW = 44, 52, 68, 84, 86, 88, 89

KT, KCP = 0, 4224
UT, UCP = 8 * KCP, 4640
UCH = 2 * UCP
YT, YCH = 0, 1056
AI, AFR = 0, 1040
STG = 80 * AFR
SX = STG + 65536
TB = SX + 2048
RED = 135 * 1024
MAIN_LDS = 163840

C0 = -2.0 * math.sqrt(2.0 / math.pi) * math.log2(math.e)
C1 = C0 * 0.044715


def common_regs(k):
    k(f"v_and_b32 {v(N_)}, 15, {v(LANE)}")
    k(f"v_lshrrev_b32 {v(Q_)}, 4, {v(LANE)}")
    k(f"v_lshlrev_b32 {v(L16)}, 4, {v(LANE)}")
    k(f"v_lshrrev_b32 {v(WO0)}, 2, {v(N_)}")
    k(f"v_and_b32 {v(TROW)}, 3, {v(N_)}")
    k(f"v_lshl_add_u32 {v(TROW)}, {v(WO0)}, 3, {v(TROW)}")


def role_ids(k):
    k("s_mov_b32 s100, 0")
    k("s_and_b32 s4, s2, 7")
    k("s_lshr_b32 s5, s2, 3")
    k(f"s_lshr_b32 s{SRI}, s5, 2")
    k(f"s_lshr_b32 s6, s{SRI}, 1")
    k("s_lshl_b32 s6, s6, 3")
    k("s_and_b32 s7, s4, 6")
    k("s_add_u32 s6, s6, s7")
    k(f"s_and_b32 s7, s{SRI}, 1")
    k(f"s_add_u32 s{SRB}, s6, s7")
    k("s_and_b32 s6, s4, 1")
    k("s_lshl_b32 s6, s6, 2")
    k("s_and_b32 s7, s5, 3")
    k(f"s_add_u32 s{SCB}, s6, s7")


def maxchain(k, dst, regs, first=True, tag=None):
    op2 = {None: "v_max_u32", 1: "v_and_b32", 0: "v_or_b32"}[tag]
    op3 = {None: "v_max3_u32 {}", 1: "v_bitop3_b32 {} bitop3:0x80", 0: "v_or3_b32 {}"}[tag]
    regs = list(regs)
    if first:
        if len(regs) == 1:
            if dst != regs[0]:
                k(f"v_mov_b32 {v(dst)}, {v(regs[0])}")
            regs = []
        elif len(regs) % 2:
            k(op3.format(f"{v(dst)}, {v(regs[0])}, {v(regs[1])}, {v(regs[2])}"))
            regs = regs[3:]
        else:
            k(f"{op2} {v(dst)}, {v(regs[0])}, {v(regs[1])}")
            regs = regs[2:]
    for i in range(0, len(regs), 2):
        k(op3.format(f"{v(dst)}, {v(regs[i])}, {v(regs[i + 1])}, {v(dst)}"))


def badcmp(k, tmp, tag=None):
    if tag is None:
        k(f"v_cmp_eq_u32 vcc, -1, {v(tmp)}")
    else:
        k(f"v_and_b32 {v(tmp)}, 1, {v(tmp)}")
        k(f"v_cmp_ne_u32 vcc, {tag}, {v(tmp)}")


def set_tag(k, r, tag):
    k(f"v_or_b32 {v(r)}, 1, {v(r)}" if tag else f"v_and_b32 {v(r)}, -2, {v(r)}")


def poll(k, name, loads, regs, tmp, sleep=0, tag=None):
    if sleep:
        k(f"s_branch {name}_f")
    k(f"{name}:")
    if sleep:
        k(f"s_sleep {sleep}")
        k(f"{name}_f:")
    loads(k)
    k.drain(lgkm=False)
    maxchain(k, tmp, regs, tag=tag)
    badcmp(k, tmp, tag)
    k("s_add_u32 s100, s100, 1")
    k(f"s_cmp_ge_u32 s100, {SPIN}")
    k(f"s_cbranch_scc1 {name}_x")
    k(f"s_cbranch_vccnz {name}")
    k(f"{name}_x:")


def check(k, stubs, name, loads, regs, tmp, cmp=True, tag=None, sleep=0):
    if cmp:
        badcmp(k, tmp, tag)
    k(f"s_cbranch_vccnz {name}_r")
    k(f"{name}_ok:")
    st = Stream()
    st(f"{name}_r:")
    st("s_nop 7")
    poll(st, name + "_p", loads, regs, tmp, sleep, tag=tag)
    st("s_nop 1")
    st(f"s_branch {name}_ok")
    stubs.append(st)


WA = 8


def w_setup(k):
    k(f"s_and_b32 s4, s{SCB}, 1")
    k(f"s_lshl_b32 s5, {s(WAVE)}, 1")
    k("s_add_u32 s5, s5, s4")
    k("s_cmp_eq_u32 s5, 7")
    k("s_cselect_b32 s5, 0, s5")
    k(f"s_mul_i32 s96, s{SCB}, 7")
    k("s_add_u32 s96, s96, s5")
    k("s_cmp_lt_u32 s96, 54")
    k("s_cselect_b32 s101, 2, 0")
    k("s_min_u32 s96, s96, 53")
    k(f"s_cmp_eq_u32 {s(WAVE)}, 3")
    k("s_cselect_b32 s101, 1, s101")
    k("s_lshr_b32 s97, s101, 1")
    k("s_cselect_b32 s5, -1, 0")
    k(f"v_and_b32 {v(WO1)}, s5, {v(L16)}")
    k("s_add_u32 s97, s97, s96")
    for sl in range(2):
        k(f"s_mul_i32 s4, s{96 + sl}, 20480")
        for i in range(3):
            k(f"s_add_u32 s5, s4, {WP + 4096 + 8192 * i}")
            k(f"s_add_u32 s{WA + 6 * sl + 2 * i}, s{WS}, s5")
            k(f"s_addc_u32 s{WA + 6 * sl + 2 * i + 1}, s{WS + 1}, 0")


WA2 = ZB


def w_next_part(k):
    for i in range(6):
        k(f"s_add_u32 s{WA2 + 2 * i}, s{WA + 2 * i}, {56 * 20480}")
        k(f"s_addc_u32 s{WA2 + 2 * i + 1}, s{WA + 2 * i + 1}, 0")


UTB = 156672


def u_addr(k, t, t1):
    k(f"v_bfe_u32 {v(t)}, {v(LANE)}, 3, 1")
    k("s_sub_u32 s4, s97, s96")
    k(f"v_mul_u32_u24 {v(t)}, s4, {v(t)}")
    k(f"v_add_lshl_u32 {v(t)}, {v(t)}, s96, 7")
    k(f"v_mul_u32_u24 {v(t1)}, {56 * 128}, {v(Q_)}")
    k(f"v_add_u32 {v(t)}, {v(t)}, {v(t1)}")
    k(f"v_and_b32 {v(t1)}, 112, {v(L16)}")
    k(f"v_add_u32 {v(t)}, {v(t)}, {v(t1)}")
    k(f"v_add_u32 {v(t)}, {U}, {v(t)}")


def u_load(t, d):
    return lambda k: k(f"global_load_dwordx4 {v(d, 4)}, {v(t)}, {sp(WS)} sc1")


def u_keep(k, t, d):
    for j in range(2):
        k(f"v_permlane32_swap_b32 {v(d + j)}, {v(d + 2 + j)}")
    k(f"s_lshl_b32 s4, {s(WAVE)}, 9")
    k(f"s_add_u32 s4, s4, {UTB}")
    k(f"v_and_b32 {v(t)}, 496, {v(L16)}")
    for j in range(2):
        k(f"v_add_f32 {v(d + j)}, {v(d + j)}, {v(d + 2 + j)}")
    k(f"v_bfe_u32 {v(d + 2)}, {v(LANE)}, 3, 1")
    k(f"v_cmp_gt_u32 vcc, s101, {v(d + 2)}")
    k(f"v_lshrrev_b32 {v(d + 2)}, 5, {v(LANE)}")
    k(f"v_lshl_add_u32 {v(t)}, {v(d + 2)}, 3, {v(t)}")
    for j in range(2):
        k(f"v_cndmask_b32 {v(d + j)}, 0, {v(d + j)}, vcc")
    k(f"v_add_u32 {v(t)}, s4, {v(t)}")
    k(f"ds_write_b64 {v(t)}, {v(d, 2)}")


def wreg(part, ks, sl):
    return (96 if part == 0 else 0) + 8 * ks + 4 * sl


def w_load(k, part, ks, sl):
    b = (WA2 if part else WA) + 6 * sl + 2 * (ks // 8)
    k(f"global_load_dwordx4 {a(wreg(part, ks, sl), 4)}, {v(WO1 if sl else L16)}, s[{b}:{b + 1}] offset:{1024 * (ks % 8) - 4096} sc1")


def w_loads(k, part, k0, k1, step=1):
    for ks in range(k0, k1)[::step]:
        for sl in range(2):
            w_load(k, part, ks, sl)


def flag_store(st, name, t, sreg):
    st(f"v_mov_b32 {v(t)}, s{sreg}")
    fl = Stream()
    fl(f"s_cmp_lg_u32 {s(WAVE)}, 0")
    fl(f"s_cbranch_scc1 {name}")
    fl(f"global_store_dword {v(t)}, {v(t)}, {sp(WS)} sc1")
    fl(f"{name}:")
    st.raw(fl)


def stream(fn, *args):
    st = Stream()
    fn(st, *args)
    return st


def gelu(k, regs, tmp, gc):
    n = len(regs)
    for i, r in enumerate(regs):
        pk(k, "mul", tmp + 2 * i, [("p", r), ("p", r)])
    for i, r in enumerate(regs):
        pk(k, "fma", tmp + 2 * i, [("p", tmp + 2 * i), ("sb", gc + 1), ("sb", gc)])
    for i, r in enumerate(regs):
        pk(k, "mul", tmp + 2 * i, [("p", tmp + 2 * i), ("p", r)])
    for i in range(2 * n):
        k(f"v_exp_f32 {v(tmp + i)}, {v(tmp + i)}")
    for i in range(n):
        pk(k, "add", tmp + 2 * i, [("p", tmp + 2 * i), ("c", "1.0")])
    for i in range(2 * n):
        k(f"v_rcp_f32 {v(tmp + i)}, {v(tmp + i)}")
    for i, r in enumerate(regs):
        pk(k, "mul", r, [("p", r), ("p", tmp + 2 * i)])


GBT = RED + 2 * 12288


def k_order(k):
    k(f"s_and_b32 s4, s{SCB}, 3")
    k("s_cmp_eq_u32 s4, 0")
    k("s_cselect_b32 s5, 8, 0")
    k("s_cmp_le_u32 s4, 1")
    k("s_cselect_b32 s6, 16, 8")
    k("s_cmp_eq_u32 s4, 3")
    k(f"s_cselect_b32 s{JB + 6}, 16, 24")
    k(f"s_lshl_b32 s{JB}, s4, 3")
    k(f"s_bitcmp1_b32 s{SRI}, 0")
    k(f"s_cselect_b32 s{JB + 2}, s6, s5")
    k(f"s_cselect_b32 s{JB + 4}, s5, s6")
    k(f"s_lshl_b32 s5, {s(WAVE)}, 1")
    for qi in range(4):
        k(f"s_add_u32 s{JB + 2 * qi}, s{JB + 2 * qi}, s5")
        k(f"s_add_u32 s{JB + 2 * qi + 1}, s{JB + 2 * qi}, 1")
    k(f"s_lshl_b32 s5, s{SRB}, 18")
    for i in range(8):
        k(f"s_lshl_b32 s6, s{JB + i}, 7")
        k("s_add_u32 s6, s6, s5")
        k(f"s_add_u32 s{WB + 2 * i}, s{WSP}, s6")
        k(f"s_addc_u32 s{WB + 2 * i + 1}, s{WSP + 1}, 0")
    k(f"s_lshl_b32 s{STGW}, {s(WAVE)}, 14")
    k(f"s_add_u32 s{STGW}, s{STGW}, {STG}")


BSR = 27


def bias_load(k):
    k(f"s_lshr_b32 s5, {s(WAVE)}, 1")
    k("s_lshl_b32 s5, s5, 5")
    k(f"s_and_b32 s6, {s(WAVE)}, 1")
    k("s_lshl_b32 s6, s6, 2")
    k("s_add_u32 s6, s6, s5")
    k(f"s_lshl_b32 s5, s{SRB}, 6")
    k("s_add_u32 s90, s6, s5")
    k(f"v_add_lshl_u32 {v(BSR)}, {v(TROW)}, s90, 1")
    k(f"global_load_ushort {v(BSR)}, {v(BSR)}, {sp(BSP)}")


def dma_offsets(k, do, t0, t1):
    k(f"v_lshrrev_b32 {v(t0)}, 3, {v(LANE)}")
    k(f"v_lshlrev_b32 {v(t0)}, 12, {v(t0)}")
    k(f"v_bfe_u32 {v(t1)}, {v(LANE)}, 4, 1")
    k(f"v_xor_b32 {v(t1)}, {v(t1)}, {v(LANE)}")
    k(f"v_and_b32 {v(t1)}, 7, {v(t1)}")
    for pi in range(4):
        k(f"v_xor_b32 {v(do + pi)}, {2 * pi}, {v(t1)}")
        k(f"v_lshl_add_u32 {v(do + pi)}, {v(do + pi)}, 4, {v(t0)}")
        if pi:
            k(f"v_add_u32 {v(do + pi)}, {pi * (8 * 4096 - 1024)}, {v(do + pi)}")
        k(f"v_add_u32 {v(do + 4 + pi)}, {32 * 4096}, {v(do + pi)}")


def wsp_dma(st, i, do):
    toks = []
    for pi in range(8):
        if pi % 4 == 0:
            st(f"s_add_u32 m0, s{STGW}, {(i & 1) * 8192 + 1024 * pi}")
        toks.append(st(f"global_load_lds_dwordx4 {v(do + pi)}, s[{WB + 2 * i}:{WB + 2 * i + 1}] offset:{1024 * (pi % 4)}"))
    return toks


def gemm_phases(k, stubs, cfg):
    if cfg.get("tch"):
        cfg["tch"] = {int(a_): b_ for a_, b_ in cfg["tch"].items()}
    t0, t1, l8, bs, xres, zp, z1r = 28, 29, 30, 32, 36, 46, 48
    afr, NAF = 48, 6
    st4, xo0, xo, aw0, aw, srow, mx, pa = 62, 66, 67, 68, 69, 70, 71, 72
    do, ra, pr, xr = 74, 82, 90, 98
    rs, tmp, rz1 = 98, 130, 162
    tw, tq, tn, ar1, so, t2 = 170, 171, 172, 173, 174, 175
    acc2, acc1, gq = 178, 210, 242
    kk, k = k, Stream()
    k(f"v_and_b32 {v(t0)}, 7, {v(LANE)}")
    k(f"v_lshl_add_u32 {v(t0)}, {v(Q_)}, 3, {v(t0)}")
    k(f"v_bfe_u32 {v(t1)}, {v(LANE)}, 3, 1")
    k(f"v_lshlrev_b32 {v(xo0)}, 9, {v(t1)}")
    k(f"v_lshl_add_u32 {v(xo0)}, {v(t0)}, 4, {v(xo0)}")
    k(f"s_mul_i32 s4, {s(WAVE)}, 20480")
    k(f"s_mul_i32 s5, s{SRB}, {XRB}")
    k("s_add_u32 s4, s4, s5")
    k(f"s_add_u32 s4, s4, {X1}")
    k(f"v_add_u32 {v(xo0)}, s4, {v(xo0)}")
    k(f"v_lshl_add_u32 {v(srow)}, {v(t0)}, 1, {v(t1)}")
    psh = cfg.get("psh", 0)
    k(f"v_min_u32 {v(pa)}, {(40 >> psh) - 1}, {v(LANE)}")
    k(f"v_lshl_add_u32 {v(pa)}, {v(pa)}, {9 + psh}, s4")
    kk.extend(k)
    k = kk
    if cfg.get("ct1", 1):
        code_touch(k, "Lx_go", "Lmid", 254)
    stamp(k, 14)
    k(f"s_cmp_lt_u32 s{SRI}, {cfg.get('xskip', 5)}")
    k("s_cbranch_scc1 Lx_first")
    k("Lx_redo:")
    pst = Stream()
    poll(pst, "Lxp", lambda st: st(f"global_load_dword {v(mx)}, {v(pa)}, {sp(WS)} offset:508 sc1"), [mx], mx, cfg.get("slx", 1), tag=1)
    k.raw(pst)
    k("Lx_first:")
    stamp(k, 15)
    k(f"s_mov_b32 s7, {hex(ONES)}")
    k(f"v_add_u32 {v(xo)}, 4096, {v(xo0)}")
    AHEAD = cfg.get("xahead", 10)

    def xload(i):
        k(f"global_load_dwordx4 {v(xr + 4 * i, 4)}, {v(xo)}, {sp(WS)} offset:{1024 * (i % 8) - 4096} sc1")
        if i % 8 == 7:
            k(f"v_add_u32 {v(xo)}, 8192, {v(xo)}")

    for i in range(AHEAD):
        xload(i)
    k(f"v_lshrrev_b32 {v(t0)}, 5, {v(LANE)}")
    k(f"v_bfe_u32 {v(aw0)}, {v(LANE)}, 1, 1")
    k(f"v_lshl_add_u32 {v(t0)}, {v(t0)}, 1, {v(aw0)}")
    k(f"v_mul_u32_u24 {v(aw0)}, {AFR}, {v(t0)}")
    for bit, sh in ((3, 3), (2, 6), (4, 7), (0, 5)):
        k(f"v_bfe_u32 {v(t0)}, {v(LANE)}, {bit}, 1")
        k(f"v_lshl_add_u32 {v(aw0)}, {v(t0)}, {sh}, {v(aw0)}")
    k(f"s_mul_i32 s5, {s(WAVE)}, {20 * AFR}")
    k(f"v_add_u32 {v(aw0)}, s5, {v(aw0)}")
    k(f"v_lshlrev_b32 {v(l8)}, 3, {v(LANE)}")
    k(f"s_lshl_b32 s{SW9}, {s(WAVE)}, 9")
    dma_offsets(k, do, t0, t1)
    k(f"v_lshrrev_b32 {v(t1)}, 1, {v(N_)}")
    k(f"v_xor_b32 {v(t1)}, {v(t1)}, {v(Q_)}")
    k(f"v_lshlrev_b32 {v(t1)}, 4, {v(t1)}")
    k(f"v_lshl_add_u32 {v(t1)}, {v(TROW)}, 7, {v(t1)}")
    for tau in range(4):
        k(f"s_xor_b32 s4, {s(WAVE)}, {tau}")
        k("s_lshr_b32 s5, s4, 1")
        k("s_lshl_b32 s5, s5, 12")
        k("s_and_b32 s4, s4, 1")
        k("s_lshl_b32 s4, s4, 9")
        k("s_add_u32 s4, s4, s5")
        k(f"s_add_u32 s4, s4, s{STGW}")
        k(f"v_add_u32 {v(ra + 2 * tau)}, s4, {v(t1)}")
        k(f"v_xor_b32 {v(ra + 2 * tau + 1)}, 64, {v(ra + 2 * tau)}")
    w_next_part(k)
    k(f"s_mov_b32 s{GC}, {hex(fbits(C0))}")
    k(f"s_mov_b32 s{GC + 1}, {hex(fbits(C1))}")
    for j in range(4):
        k(f"v_lshlrev_b32 {v(bs + j)}, 16, {v(BSR)}")
    xa = 46
    k(f"s_mul_i32 s5, s{SCB}, 10")
    k(f"s_mul_i32 s6, {s(WAVE)}, {AFR}")
    for j in range(2):
        if j:
            k(f"v_lshrrev_b32 {v(t0)}, 1, {v(Q_)}")
        k(f"v_add_u32 {v(t0)}, s5, {v(t0 if j else Q_)}")
        k(f"v_lshrrev_b32 {v(t1)}, 2, {v(t0)}")
        k(f"v_mul_u32_u24 {v(t1)}, {4 * AFR - 1024}, {v(t1)}")
        k(f"v_lshl_add_u32 {v(t1)}, {v(t0)}, 8, {v(t1)}")
        k(f"v_lshl_add_u32 {v(t1)}, {v(N_)}, 4, {v(t1)}")
        k(f"v_add_u32 {v(xa + j)}, s6, {v(t1)}")
    k(f"v_and_b32 {v(t0)}, 1, {v(Q_)}")
    k(f"v_lshl_add_u32 {v(xa + 1)}, {v(t0)}, 3, {v(xa + 1)}")
    for j in range(4):
        k(f"v_mov_b32 {v(st4 + j)}, 0")
    k(f"v_mov_b32 {v(mx)}, -1")
    wl = [(ks, sl) for ks in range(cfg.get("wlate", 4)) for sl in range(2)]
    for i in range(20):
        if i + AHEAD < 20:
            xload(i + AHEAD)
        elif wl:
            w_load(k, 0, *wl.pop(0))
        if i % 4 == 0:
            k(f"v_add_u32 {v(aw)}, {(i // 4) * 4 * AFR}, {v(aw0)}")
        k(f"ds_write2_b64 {v(aw)}, {v(xr + 4 * i, 2)}, {v(xr + 4 * i + 2, 2)} offset0:{32 * (i % 4)} offset1:{32 * (i % 4) + 2}")
        if i & 1:
            maxchain(k, mx, [xr + 4 * i - 1, xr + 4 * i + 3], first=False, tag=1)
        for j in range(2):
            for r in range(2):
                src = xr + 4 * i + 2 * r + j
                k(f"v_dot2_f32_bf16 {v(st4 + 2 * r)}, {v(src)}, s7, {v(st4 + 2 * r)}")
                k(f"v_dot2_f32_bf16 {v(st4 + 2 * r + 1)}, {v(src)}, {v(src)}, {v(st4 + 2 * r + 1)}")
    badcmp(k, mx, 1)
    k(f"s_cmp_ge_u32 s100, {SPIN}")
    k("s_cbranch_scc1 Lx_go")
    k("s_cbranch_vccnz Lx_redo")
    k("Lx_go:")
    for j in range(2):
        k(f"v_add_f32_dpp {v(pr + j)}, {v(st4 + j)}, {v(st4 + j)} row_ror:8 row_mask:0xf bank_mask:0x3")
        k(f"v_add_f32_dpp {v(pr + j)}, {v(st4 + 2 + j)}, {v(st4 + 2 + j)} row_ror:8 row_mask:0xf bank_mask:0xc")
    k(f"s_add_u32 s4, s{SW9}, {SX}")
    k(f"v_lshl_add_u32 {v(t0)}, {v(srow)}, 3, s4")
    k(f"ds_write_b64 {v(t0)}, {v(pr, 2)}")
    k.barrier()
    stamp(k, 16)
    k(f"v_add_u32 {v(ar1)}, {40 * AFR}, {v(L16)}")
    wlate = cfg.get("wlate", 4)
    kord = [list(range(wlate, 20))[::-1] + list(range(wlate)), list(range(20))]

    def read_rs(st):
        for tbl in range(2):
            for h in range(2):
                for o in range(2):
                    st(f"ds_read_b128 {v(rs + 16 * tbl + 8 * h + 4 * o, 4)}, {v(tq)} offset:{256 * tbl + 128 * h + 16 * o}")

    def mainloop(acc, part):
        st = Stream()

        def aread(f):
            ks, mt = kord[part][f >> 2], f & 3
            return st(f"ds_read_b128 {v(afr + 4 * (f % NAF), 4)}, {v(ar1 if ks >= 10 else L16)} offset:{AI + (4 * (ks % 10) + mt) * AFR}")

        tok = {f: aread(f) for f in range(NAF - 1)}
        for f in range(80):
            ks, mt = kord[part][f >> 2], f & 3
            if f % 2 == 0:
                st.wait(tok[f + 1])
            for sl in range(2):
                d = v(acc + 16 * sl + 4 * mt, 4)
                x, w = v(afr + 4 * (f % NAF), 4), a(wreg(part, ks, sl), 4)
                st(f"v_mfma_f32_16x16x32_bf16 {d}, {w if part else x}, {x if part else w}, {d if f >= 4 else 0}")
                if sl == 0 and f + NAF - 1 < 80:
                    tok[f + NAF - 1] = aread(f + NAF - 1)
        return st

    sf = Stream()
    sf(f"v_add_u32 {v(t0)}, {SX}, {v(l8)}")
    for i in range(4):
        sf(f"ds_read_b64 {v(pr + 2 * i, 2)}, {v(t0)} offset:{512 * i}")
    sf(f"s_add_u32 s4, s{SW9}, {TB}")
    sf(f"v_lshl_add_u32 {v(tw)}, {v(LANE)}, 2, s4")
    sf(f"v_lshl_add_u32 {v(tq)}, {v(Q_)}, 5, s4")
    sf(f"v_lshl_add_u32 {v(tn)}, {v(TROW)}, 2, s4")
    vop(sf, "add", pr, [("p", pr), ("p", pr + 2)], False)
    vop(sf, "add", pr + 4, [("p", pr + 4), ("p", pr + 6)], False)
    vop(sf, "add", pr, [("p", pr), ("p", pr + 4)], False)
    row_stats(sf, pr, pr + 1, D, pr + 2)
    sf(f"ds_write2st64_b32 {v(tw)}, {v(pr)}, {v(pr + 1)} offset0:0 offset1:1")
    read_rs(sf)
    for mt in range(4):
        off = 128 * (mt >> 1) + 16 * (mt & 1)
        sf(f"ds_read_b32 {v(rz1 + 2 * mt)}, {v(tn)} offset:{off}")
        sf(f"ds_read_b32 {v(rz1 + 2 * mt + 1)}, {v(tn)} offset:{256 + off}")
    sf(f"s_add_u32 s4, s{SW9}, {UTB}")
    sf(f"v_lshl_add_u32 {v(t0)}, {v(N_)}, 2, s4")
    for sl in range(2):
        sf(f"ds_read2_b32 {v(UZ2 + 2 * sl, 2)}, {v(t0)} offset0:{32 * sl} offset1:{32 * sl + 16}")
    sf(f"v_lshl_add_u32 {v(t0)}, {v(Q_)}, 4, s4")
    for j in range(4):
        sf(f"ds_read_b128 {v(UZ1 + 4 * j, 4)}, {v(t0)} offset:{256 + 64 * j}")
    for i in range(32):
        sf(f"v_fma_f32 {v(tmp + i)}, {v(rs + 16 + i % 16)}, {v(UZ2 + 2 * (i // 16))}, {v(UZ2 + 2 * (i // 16) + 1)}")
    apos = lambda i: (224, 192, 160, 0, 32, 64, 96, 128)[i]
    tk, rd = {0: [], 1: []}, {}

    def dma(st, i):
        st.wait(rd[i - 2])
        tk[i] = wsp_dma(st, i, do)

    def frag(st, i):
        st.wait(*tk[i])
        for ksl in range(2):
            for tau in range(4):
                rd[i] = st(f"ds_read_b128 {a(apos(i) + 16 * ksl + 4 * tau, 4)}, {v(ra + 2 * tau + ksl)} offset:{(i & 1) * 8192}")

    def turn(st, i):
        frag(st, i)
        if i + 2 < 8:
            dma(st, i + 2)

    nw1 = cfg.get("nw1", 6)
    nz2 = cfg.get("nz2", 0)
    allstaged = cfg.get("ne", 0)
    wz = Stream()
    for ks, sl in wl:
        w_load(wz, 0, ks, sl)
    for i in range(allstaged, 2):
        tk[i] = wsp_dma(wz, i, do)
    assert nw1 <= 12
    w_loads(wz, 1, 0, nw1)
    wz2 = Stream()
    for i in range(nz2):
        turn(wz2, i)
    wze = cfg.get("wze", 120)
    assert wze >= 32 * nz2
    k.extend(weave(mainloop(acc2, 0), [(sf, 4, 155), (wz, 0, wze if nz2 else 159), (wz2, wze + 1, 159)]))
    stamp(k, 17)
    zz = Stream()
    zz("s_nop 7")
    zz("s_cmp_eq_u32 s101, 2")
    zz("s_cbranch_scc1 Lz_keep")
    for i in range(16):
        zz(f"v_mov_b32 {v(acc2 + 16 + i)}, 0")
    zz("s_cmp_eq_u32 s101, 1")
    zz("s_cbranch_scc1 Lz_keep")
    for i in range(16):
        zz(f"v_mov_b32 {v(acc2 + i)}, 0")
    zz("Lz_keep:")
    k.raw(zz)

    e2 = Stream()
    for i in range(16):
        pk(e2, "fma", acc2 + 2 * i, [("p", acc2 + 2 * i), ("p", rs + 2 * (i % 8)), ("p", tmp + 2 * i)])
    gelu(e2, [acc2 + 2 * i for i in range(16)], tmp, GC)
    for i in range(8):
        pk(e2, "add", tmp + 2 * i, [("p", acc2 + 2 * i), ("p", acc2 + 16 + 2 * i)])
        pk(e2, "mul", tmp + 16 + 2 * i, [("p", acc2 + 2 * i), ("p", acc2 + 2 * i)])
    for i in range(8):
        pk(e2, "fma", tmp + 16 + 2 * i, [("p", acc2 + 16 + 2 * i), ("p", acc2 + 16 + 2 * i), ("p", tmp + 16 + 2 * i)])
    for i in range(16):
        e2(f"v_add_f32_dpp {v(rs + i)}, {v(tmp + i)}, {v(tmp + i)} row_ror:8 row_mask:0xf bank_mask:0x3")
    for i in range(16):
        e2(f"v_add_f32_dpp {v(rs + i)}, {v(tmp + 16 + i)}, {v(tmp + 16 + i)} row_ror:8 row_mask:0xf bank_mask:0xc")
    for i in range(8):
        e2(f"v_add_f32_dpp {v(tmp + i)}, {v(rs + i)}, {v(rs + i)} row_half_mirror row_mask:0xf bank_mask:0x5")
    for i in range(8):
        e2(f"v_add_f32_dpp {v(tmp + i)}, {v(rs + 8 + i)}, {v(rs + 8 + i)} row_half_mirror row_mask:0xf bank_mask:0xa")
    for i in range(8):
        e2(f"v_add_f32_dpp {v(tmp + i)}, {v(tmp + i)}, {v(tmp + i)} quad_perm:[1,0,3,2] row_mask:0xf bank_mask:0xf")
    for i in range(8):
        e2(f"v_add_f32_dpp {v(tmp + i)}, {v(tmp + i)}, {v(tmp + i)} quad_perm:[2,3,0,1] row_mask:0xf bank_mask:0xf")
    e2(f"v_lshrrev_b32 {v(t0)}, 2, {v(N_)}")
    e2(f"v_lshl_add_u32 {v(t0)}, {v(t0)}, 7, {v(tq)}")
    e2(f"ds_write_b128 {v(t0)}, {v(tmp, 4)}")
    e2(f"ds_write_b128 {v(t0)}, {v(tmp + 4, 4)} offset:16")
    sd = Stream()
    nw2 = cfg.get("nw2", 20)
    w_loads(sd, 1, nw1, nw2)
    ne2 = cfg.get("ne2", 1)
    for i in range(nz2, ne2):
        turn(sd, i)
    k.extend(sprinkle(e2, sd, 0.0, cfg.get("e2end", 0.9)))
    k.barrier()
    k(f"v_lshlrev_b32 {v(t0)}, 2, {v(LANE)}")
    k(f"v_add_u32 {v(t0)}, {TB}, {v(t0)}")
    for i in range(4):
        k(f"ds_read2st64_b32 {v(pr + 2 * i, 2)}, {v(t0)} offset0:{2 * i} offset1:{2 * i + 1}")
    k(f"s_lshl_b32 s4, s{SRB}, 12")
    k(f"s_add_u32 s4, s4, {ST3}")
    k(f"v_add_u32 {v(so)}, s4, {v(l8)}")
    k(f"s_lshl_b32 s4, s{SCB}, 9")
    k(f"v_add_u32 {v(t0)}, s4, {v(so)}")
    k(f"v_subrev_u32 {v(tw)}, {TB - SX}, {v(tw)}")
    k(f"v_subrev_u32 {v(tq)}, {TB - SX}, {v(tq)}")
    pk(k, "add", pr, [("p", pr), ("p", pr + 2)])
    pk(k, "add", pr + 4, [("p", pr + 4), ("p", pr + 6)])
    pk(k, "add", pr, [("p", pr), ("p", pr + 4)])
    k(f"v_min_u32 {v(pr)}, -2, {v(pr)}")
    k(f"v_min_u32 {v(pr + 1)}, -2, {v(pr + 1)}")
    k(f"s_lshl_b32 s4, {s(WAVE)}, 4")
    k(f"s_lshl_b64 exec, 0xffff, s4")
    k(f"global_store_dwordx2 {v(t0)}, {v(pr, 2)}, {sp(WS)} sc1")
    k(f"s_mov_b64 exec, -1")
    stamp(k, 18)
    sides = []
    first = max(nz2, ne2)
    w0 = (20 - nw2) * 8
    if w0:
        assert w0 + 24 <= 8 * nw2
        sides.append((stream(w_loads, 1, nw2, 20), 0, w0 - 1))
    pos = [w0 + ((130 - w0) * (i - first)) // (6 - first) for i in range(first, 7)] + [150]
    for n_, i in enumerate(range(first, 7)):
        lo_ = max(pos[n_], 32 * (i - 2) + 2)
        sides.append((stream(turn, i), lo_, max(lo_, max(pos[n_ + 1], 32 * (i - 1) + 2) - 1) if i < 6 else 150))
    pl = tmp

    def st3_loads(st):
        for i in range(8):
            st(f"global_load_dwordx2 {v(pl + 2 * i, 2)}, {v(so)}, {sp(WS)} offset:{512 * i} sc1")

    def misc_loads(st):
        st(f"v_min_u32 {v(t2)}, 26, {v(LANE)}")
        st(f"v_lshlrev_b32 {v(t2)}, 7, {v(t2)}")
        st(f"v_add_u32 {v(t2)}, {SDF}, {v(t2)}")
        st(f"global_load_dword {v(gq + 8)}, {v(t2)}, {sp(WS)} sc1")
        st(f"s_mul_i32 s7, s{SCB}, 320")
        st(f"s_add_u32 s7, s7, {MODP + 5 * D * 4}")
        st(f"v_min_u32 {v(t2)}, {19 * 16}, {v(L16)}")
        st(f"v_add_u32 {v(t2)}, s7, {v(t2)}")
        st(f"global_load_dwordx4 {v(gq, 4)}, {v(t2)}, {sp(WS)} sc1")
        st(f"v_add_u32 {v(t2)}, {MODS}, {v(t2)}")
        st(f"global_load_dwordx4 {v(gq + 4, 4)}, {v(t2)}, {sp(WS)} sc1")

    zs = cfg.get("zsplit", 120)
    s3 = stream(st3_loads)
    if cfg.get("ct2", 1):
        code_touch(s3, "Lmid", "Lend", 254)
    sides.append((s3, zs - cfg.get("st3", 30), zs - cfg.get("st3", 30) + 12))
    rr = Stream()
    misc_loads(rr)
    for j in range(2):
        rr(f"ds_read_b128 {v(xres + 4 * j, 4)}, {v(xa)} offset:{AI + 4 * AFR * j}")
    rr(f"ds_read_b64 {v(xres + 8, 2)}, {v(xa + 1)} offset:{AI + 8 * AFR}")
    gr = list(range(gq, gq + 9))
    maxchain(rr, t0, gr)
    check(rr, stubs, "Lgb", misc_loads, gr, t0)
    fin_mod4(rr, gq, gq + 4)
    if cfg.get("x_scale"):
        for j in range(4):
            rr(f"v_mul_f32 {v(gq + j)}, {hex(fbits(cfg['x_scale']))}, {v(gq + j)}")
    rr(f"v_min_u32 {v(t2)}, {19 * 16}, {v(L16)}")
    rr(f"v_add_u32 {v(t2)}, {GBT}, {v(t2)}")
    rr(f"ds_write_b128 {v(t2)}, {v(gq, 4)}")
    sides.append((rr, 2, zs - cfg.get("st3", 30) - 1))
    sc = Stream()
    sc(f"s_mul_i32 s91, s{SCB}, {64 * 7168}")
    sc(f"s_add_u32 s91, s91, {Z2}")
    for i in range(0, 8, 2):
        sc(f"s_mul_i32 s6, s{JB + i}, 14336")
        sc("s_add_u32 s6, s6, s91")
        sc(f"s_add_u32 s{ZB + 2 * i}, s{WS}, s6")
        sc(f"s_addc_u32 s{ZB + 2 * i + 1}, s{WS + 1}, 0")
        sc(f"s_add_u32 s{ZB + 2 * i + 2}, s{ZB + 2 * i}, 14336")
        sc(f"s_addc_u32 s{ZB + 2 * i + 3}, s{ZB + 2 * i + 1}, 0")
    sides.append((sc, max(zs + 1, w0 + 1), 158))
    zl = weave(mainloop(acc1, 1), sides)
    cutp = len(zl.ins)
    if zs < 160:
        cutp = [i for i, x in enumerate(zl.ins) if x.cls == "mfma"][zs]
    k.ins.extend(zl.ins[:cutp])
    stamp(k, 19)
    s3r = list(range(pl + 1, pl + 16, 2))
    maxchain(k, t0, s3r)
    check(k, stubs, "Ls3", st3_loads, s3r, t0)
    stamp(k, 20)
    for stp in (2, 4, 8):
        for i in range(0, 16, 2 * stp):
            pk(k, "add", pl + i, [("p", pl + i), ("p", pl + i + stp)])
    row_stats(k, pl, pl + 1, FH, pl + 2)
    k(f"ds_write2st64_b32 {v(tw)}, {v(pl)}, {v(pl + 1)} offset0:0 offset1:1")
    read_rs(k)
    k(f"s_lshl_b32 s4, s{SCB}, 6")
    k(f"s_lshl_b32 s5, s{SRB}, 1")
    k("s_add_u32 s4, s4, s5")
    k("s_mul_i32 s4, s4, 7168")
    k(f"s_lshl_b32 s5, {s(WAVE)}, 11")
    k("s_add_u32 s4, s4, s5")
    k(f"s_add_u32 s4, s4, {Z2}")
    k(f"v_add_u32 {v(t0)}, s4, {v(L16)}")
    k(f"v_add_u32 {v(t1)}, 7168, {v(t0)}")
    for sl in range(2):
        for h in range(2):
            for i in range(4 * h, 4 * h + 4):
                r = acc2 + 16 * sl + 2 * i
                pk(k, "fma", r, [("p", r), ("p", rs + 2 * i), ("p", rs + 16 + 2 * i)])
            o = tmp + 8 * sl + 4 * h
            for i in range(4):
                r = acc2 + 16 * sl + 8 * h + 2 * i
                k(f"v_cvt_pk_bf16_f32 {v(o + i)}, {v(r)}, {v(r + 1)}")
            set_tag(k, o + 3, 1)
            zs_ = f"global_store_dwordx4 {v(t1 if h else t0)}, {v(o, 4)}, {sp(WS)} offset:{1024 * sl} sc1"
            if sl:
                sk = Stream()
                sk(f"s_cmp_eq_u32 {s(WAVE)}, 3")
                sk(f"s_cbranch_scc1 Lzs_{h}")
                sk(zs_)
                sk(f"Lzs_{h}:")
                k.raw(sk)
            else:
                k(zs_)
    stamp(k, 21)
    k.ins.extend(zl.ins[cutp:])
    frag(k, 7)
    k.barrier()

    stash = UZ2
    zv, mx = 30, t0
    ring, acc = 62, 142
    G, NG, NA = 4, 5, 4
    steps = [4, 5, 6, 7, 8, 9, 10, 11, 0, 1, 2, 3, 12, 13, 14, 15]
    order = [(st_, sl) for st_ in steps[:NA] for sl in range(7)] + [(st_, sl) for sl in range(7) for st_ in steps[NA:]]
    ngrp = len(order) // G
    gA, gS = 7 * NA // G, (16 - NA) // G
    freg = lambda f: ring + 4 * (f % (G * NG))

    def gloads(g):
        def f(st):
            for fi in range(G * g, G * g + G):
                step, sl = order[fi]
                i, ksl = step >> 1, step & 1
                st(f"global_load_dwordx4 {v(freg(fi), 4)}, {v(zv + ksl)}, s[{ZB + 2 * i}:{ZB + 2 * i + 1}] offset:{1024 * sl - 3072} sc1")
        return f

    gregs = lambda g: [freg(fi) + 3 for fi in range(G * g, G * g + G)]
    nzf = cfg.get("zf", 4)

    def zfirst(st):
        if cfg.get("zprobe", 1):
            st(f"global_load_dword {v(zp)}, {v(t1)}, s[{ZB + 4}:{ZB + 5}] offset:1020 sc1")
        for g in range(nzf):
            gloads(g)(st)

    tmp1 = acc2
    e1 = Stream()
    e1(f"s_lshl_b32 s4, {s(WAVE)}, 10")
    e1(f"s_add_u32 s4, s4, {RED}")
    e1(f"v_add_u32 {v(tw)}, s4, {v(l8)}")
    e1(f"s_lshl_b32 s4, {s(WAVE)}, 12")
    e1(f"s_add_u32 s4, s4, {RED}")
    e1(f"v_add_u32 {v(tq)}, s4, {v(l8)}")
    e1(f"v_add_u32 {v(zv)}, 3072, {v(L16)}")
    e1(f"v_add_u32 {v(zv + 1)}, {3072 + 7168}, {v(L16)}")
    e1(f"v_min_u32 {v(t1)}, 27, {v(LANE)}")
    e1(f"v_lshlrev_b32 {v(t1)}, 10, {v(t1)}")
    for sl in range(2):
        for mt in range(4):
            for p in range(2):
                pk(e1, "fma", tmp1 + 4 * mt + 2 * p, [("p", UZ1 + 8 * sl + 2 * p), ("b", rz1 + 2 * mt + 1), ("p", UZ1 + 8 * sl + 4 + 2 * p)])
        for mt in range(4):
            for p in range(2):
                r = acc1 + 16 * sl + 4 * mt + 2 * p
                pk(e1, "fma", r, [("p", r), ("b", rz1 + 2 * mt), ("p", tmp1 + 4 * mt + 2 * p)])
    gelu(e1, [acc1 + 2 * i for i in range(16)], tmp1, GC)
    for i in range(16):
        e1(f"v_cvt_pk_bf16_f32 {v(tmp1 + i)}, {v(acc1 + 2 * i)}, {v(acc1 + 2 * i + 1)}")
    for sl in range(2):
        for mt in range(4):
            e1(f"ds_write_b64 {v(tw)}, {v(tmp1 + 8 * sl + 2 * mt, 2)} offset:{4096 * mt + 512 * sl}")
    wd = Stream()
    wd(f"s_mul_i32 s5, s{SCB}, {135 * 1024}")
    wd(f"s_add_u32 s5, s5, {WO}")
    wd(f"s_add_u32 s92, s{WS}, s5")
    wd(f"s_addc_u32 s93, s{WS + 1}, 0")
    wd(f"s_mul_i32 s95, {s(WAVE)}, {34 * 1024}")
    wd(f"s_min_u32 s95, s95, {101 * 1024}")
    wd("s_add_u32 s92, s92, s95")
    wd("s_addc_u32 s93, s93, 0")
    for r in range(34):
        if r % 4 == 0:
            wd(f"s_add_u32 m0, s95, {1024 * r}")
            if r:
                wd("s_add_u32 s92, s92, 4096")
                wd("s_addc_u32 s93, s93, 0")
        wd(f"global_load_lds_dwordx4 {v(L16)}, s[92:93] offset:{1024 * (r % 4)} sc1")
    vi = [i + 1 for i, x in enumerate(wd.ins) if x.cls == "vmem"]
    n1 = cfg.get("wo1", 10)
    nwg = cfg.get("wog", 4)
    wd1 = Stream()
    wd1.ins = wd.ins[:vi[n1 - 1]]
    cuts = [vi[n1 - 1 + ((34 - n1) * i) // nwg] for i in range(nwg + 1)]
    wd3 = [wd.ins[cuts[i]:cuts[i + 1]] for i in range(nwg)]
    zpos = cfg.get("zpos", 0.55)
    k.extend(sprinkle(sprinkle(e1, wd1, 0.0, zpos), stream(zfirst), zpos, 1.0))
    k.barrier()
    for sl in range(7):
        k(f"ds_read_b64 {v(z1r + 2 * sl, 2)}, {v(tq)} offset:{512 * sl}")
    stamp(k, 22)
    k("Lmid:")

    wa3, rda = stash + 12, stash + 15
    pvr = [WO0, WO1, UZ1 + 14, UZ1 + 15]
    su = Stream()
    for tau in range(1, 4):
        su(f"s_xor_b32 s4, {s(WAVE)}, {tau}")
        su("s_mul_i32 s4, s4, 3072")
        su(f"s_add_u32 s4, s4, {RED + 1024 * (tau - 1)}")
        su(f"v_add_u32 {v(wa3 + tau - 1)}, s4, {v(L16)}")
    su(f"s_mul_i32 s4, {s(WAVE)}, 3072")
    su(f"s_add_u32 s4, s4, {RED}")
    su(f"v_add_u32 {v(rda)}, s4, {v(L16)}")
    su(f"s_mul_i32 s4, s{SRB}, {XRB}")
    su(f"s_add_u32 s4, s4, {P + 4096}")
    su(f"s_lshl_b32 s5, {s(WAVE)}, 13")
    su("s_add_u32 s5, s5, s4")
    su(f"v_add_u32 {v(pvr[0])}, s5, {v(L16)}")
    for i in range(1, 3):
        su(f"v_add_u32 {v(pvr[i])}, {32768 * i}, {v(pvr[0])}")
    su(f"s_lshl_b32 s5, {s(WAVE)}, 12")
    su("s_add_u32 s5, s5, s4")
    su(f"s_add_u32 s5, s5, {3 * 32768}")
    su(f"v_add_u32 {v(pvr[3])}, s5, {v(L16)}")
    su(f"s_lshl_b32 s4, s{SCB}, 10")
    su(f"s_add_u32 s{WA}, s{WS}, s4")
    su(f"s_addc_u32 s{WA + 1}, s{WS + 1}, 0")
    su(f"s_lshr_b32 s4, s{SCB}, 1")
    su("s_lshl_b32 s4, s4, 10")
    su(f"s_and_b32 s5, s{SCB}, 1")
    su("s_lshl_b32 s5, s5, 3")
    su("s_add_u32 s4, s4, s5")
    su(f"s_add_u32 s{WA + 2}, s{WS}, s4")
    su(f"s_addc_u32 s{WA + 3}, s{WS + 1}, 0")
    su.barrier()

    def red_write(st, sl):
        for tau in range(1, 4):
            st(f"ds_write_b128 {v(wa3 + tau - 1)}, {v(acc + 16 * sl + 4 * tau, 4)} offset:{12288 * (sl & 1)}")
        st.barrier()

    def red_fin(st, sl, packed):
        A = acc + 16 * sl
        for tau in range(1, 4):
            st(f"ds_read_b128 {v(A + 4 * tau, 4)}, {v(rda)} offset:{12288 * (sl & 1) + 1024 * (tau - 1)}")
        un = stash + 4
        for p in range(2):
            unpack(st, un + 2 * p, un + 2 * p + 1, z1r + 2 * sl + p)
        for tau in range(1, 4):
            for p in range(2):
                vop(st, "add", A + 2 * p, [("p", A + 2 * p), ("p", A + 4 * tau + 2 * p)], packed)
        for p in range(2):
            vop(st, "mul", A + 2 * p, [("p", A + 2 * p), ("p", un + 2 * p)], packed)
        o = z1r + 2 * sl
        for p in range(2):
            st(f"v_cvt_pk_bf16_f32 {v(o + p)}, {v(A + 2 * p)}, {v(A + 2 * p + 1)}")
        if sl & 1 or sl == 6:
            set_tag(st, o + 1, 0)

    def pstore(st, j):
        if j == 3:
            st(f"global_store_dwordx2 {v(pvr[3])}, {v(z1r + 12, 2)}, {sp(WA + 2)} offset:-4096 sc1")
        else:
            st(f"global_store_dwordx4 {v(pvr[j])}, {v(z1r + 4 * j, 4)}, {sp(WA)} offset:-4096 sc1")

    kgrp = [[(7 * c + 1) // 2 + j for c in range(8) if (7 * c + 1) // 2 + j < 27] for j in range(3)] + [[3, 10, 17, 24]]
    pbase = [acc, acc + 32, acc + 64, acc + 96]

    def ploads(j):
        def f(st):
            for i, ks in enumerate(kgrp[j]):
                st(f"global_load_dwordx4 {v(pbase[j] + 4 * i, 4)}, {v(pvr[j])}, {sp(WS)} offset:{1024 * i - 4096} sc1")
        return f

    zr = ([zp] if cfg.get("zprobe", 1) else []) + gregs(0)
    maxchain(k, mx, zr, tag=1)
    check(k, stubs, "Lz0", zfirst, zr, mx, tag=1)
    stamp(k, 23)
    for g in range(nzf, NG - 1):
        gloads(g)(k)
    for g in range(ngrp):
        m = Stream()
        for fi in range(G * g, G * g + G):
            step, sl = order[fi]
            i, ksl = step >> 1, step & 1
            for tau in range(4):
                d = v(acc + 16 * sl + 4 * tau, 4)
                cin = d if step != steps[0] else (v(bs, 4) if tau == 0 else "0")
                m(f"v_mfma_f32_16x16x32_bf16 {d}, {v(freg(fi), 4)}, {a(apos(i) + 16 * ksl + 4 * tau, 4)}, {cin}")
        sides = []
        st = Stream()
        if g + NG - 1 < ngrp:
            gloads(g + NG - 1)(st)
        if g == cfg.get("pst", ngrp - NG + 1):
            pstore(st, 0)
            pstore(st, 1)
        gi = g - (ngrp - nwg)
        if gi >= 0:
            st.ins += wd3[gi]
        sides.append((st, 0, 15))
        if g == 1:
            sides.append((su, 0, 15))
        if g == cfg.get("ct3", -1):
            sides.append((stream(code_touch, "Lz20_ok", "Lend", 254), 0, 8))
        q3t = cfg.get("q3t", [0, 3])
        if g in q3t:
            i = 0 if g == q3t[0] else 6
            st = Stream()
            st(f"v_min_u32 {v(zp + 1)}, 27, {v(LANE)}")
            st(f"s_mul_i32 s6, s{SRI}, 28")
            st(f"v_add_lshl_u32 {v(zp + 1)}, {v(zp + 1)}, s6, 7")
            st(f"global_load_dword {v(stash + i // 6)}, {v(zp + 1)}, s[{ZB + 2 * i}:{ZB + 2 * i + 1}] sc1")
            sides.append((st, 0, 4))
        tch = cfg.get("tch")
        if tch and g in tch:
            s0, s1 = tch[g]
            st = Stream()
            st(f"v_min_u32 {v(zp + 1)}, {4 * (s1 - s0) - 1}, {v(LANE)}")
            st(f"v_and_b32 {v(stash + 2)}, 3, {v(zp + 1)}")
            st(f"v_mul_u32_u24 {v(stash + 2)}, {7168 - 256}, {v(stash + 2)}")
            st(f"v_lshl_add_u32 {v(zp + 1)}, {v(zp + 1)}, 8, {v(stash + 2)}")
            st(f"s_lshl_b32 s6, s{SRI}, 7")
            st(f"s_add_u32 s6, s6, {1024 * s0}")
            st(f"v_add_u32 {v(zp + 1)}, s6, {v(zp + 1)}")
            for i in (0, 6):
                st(f"global_load_dword {v(stash + i // 6)}, {v(zp + 1)}, s[{ZB + 2 * i}:{ZB + 2 * i + 1}] sc1")
            sides.append((st, 0, 9))
        if g + 1 < ngrp:
            st = Stream()
            maxchain(st, mx, gregs(g + 1), tag=1)
            badcmp(st, mx, 1)
            sides.append((st, 10, 14))
        if g >= gA + gS:
            sl, ph = divmod(g - gA - gS, gS)
            st = Stream()
            if ph == 0:
                red_write(st, sl)
                sides.append((st, 3, 14))
                fin = stream(red_fin, sl, False).ins
            else:
                per = -(-len(fin) // (gS - 1))
                st.ins = fin[(ph - 1) * per:ph * per]
                sides.append((st, 0, 15))
        k.extend(weave(m, sides))
        if g + 1 < ngrp:
            check(k, stubs, f"Lz{g + 1}", gloads(g + 1), gregs(g + 1), mx, cmp=False, tag=1)
        if g == gA - 1:
            stamp(k, 24)
    stamp(k, 25)
    early = cfg.get("pearly", 2)
    tl = Stream()
    red_write(tl, 6)
    red_fin(tl, 6, True)
    pe = Stream()
    for j in range(early):
        ploads(j)(pe)
    k.extend(sprinkle(tl, pe, 0.0, 0.9))
    pstore(k, 2)
    pstore(k, 3)
    stamp(k, 26)

    acc3, NWF = ring, 6
    wf, gb, X = ring + 20, ring + 44, ring + 64
    ra3 = [L16, zv, zv + 1]
    k(f"v_add_u32 {v(ra3[1])}, {60 * 1024}, {v(L16)}")
    k(f"v_add_u32 {v(ra3[2])}, {120 * 1024}, {v(L16)}")
    for j in range(early, 2):
        ploads(j)(k)
    k.wait(*[x for part in wd3 for x in part if x.cls == "vmem"])
    k("s_barrier")
    seq = [(j, i, ks, dt) for j in range(4) for i, ks in enumerate(kgrp[j]) for dt in range(5)]

    def wread(st, f):
        fr = 5 * seq[f][2] + seq[f][3]
        st(f"ds_read_b128 {v(wf + 4 * (f % NWF), 4)}, {v(ra3[fr // 60])} offset:{1024 * (fr % 60)}")

    for f in range(NWF - 1):
        wread(k, f)
    Xr = [X + j for j in range(16)] + [stash + 4 + j for j in range(4)]
    ep = Stream()
    ep(f"v_lshlrev_b32 {v(t1)}, 5, {v(Q_)}")
    ep(f"v_add_u32 {v(t1)}, {GBT}, {v(t1)}")
    for j in range(4):
        ep(f"ds_read_b128 {v(gb + 4 * j, 4)}, {v(t1)} offset:{128 * (j >> 1) + 16 * (j & 1)}")
    ep(f"v_lshlrev_b32 {v(t1)}, 4, {v(Q_)}")
    ep(f"v_add_u32 {v(t1)}, {GBT}, {v(t1)}")
    ep(f"ds_read_b128 {v(gb + 16, 4)}, {v(t1)} offset:256")
    for j in range(10):
        unpack(ep, Xr[2 * j], Xr[2 * j + 1], xres + j)
    ep(f"v_add_u32 {v(zp)}, s90, {v(TROW)}")
    ep(f"v_mul_u32_u24 {v(zp)}, 1280, {v(zp)}")
    ep(f"s_mul_i32 s4, s{SCB}, 160")
    ep(f"v_add_u32 {v(zp)}, s4, {v(zp)}")
    ep(f"v_lshl_add_u32 {v(zp + 1)}, {v(Q_)}, 4, {v(zp)}")
    ep(f"v_lshl_add_u32 {v(zp)}, {v(Q_)}, 3, {v(zp)}")
    f = 0
    for j in range(4):
        pregs = list(range(pbase[j] + 3, pbase[j] + 4 * len(kgrp[j]), 4)) if j < 3 else list(range(pbase[j] + 1, pbase[j] + 16, 2))
        maxchain(k, mx, pregs, tag=0)
        check(k, stubs, f"Lp{j}", ploads(j), pregs, mx, tag=0)
        stamp(k, 27 + j)
        m = Stream()
        while f < len(seq) and seq[f][0] == j:
            _, i, ks, dt = seq[f]
            d = v(acc3 + 4 * dt, 4)
            m(f"v_mfma_f32_16x16x32_bf16 {d}, {v(wf + 4 * (f % NWF), 4)}, {v(pbase[j] + 4 * i, 4)}, {d if f >= 5 else 0}")
            if f + NWF - 1 < len(seq):
                wread(m, f + NWF - 1)
            f += 1
        sides = []
        if j == 1:
            st = Stream()
            ploads(2)(st)
            ploads(3)(st)
            sides.append((st, cfg.get("pl", 10), 39))
        k.extend(weave(m, sides))
        if j == 1:
            k.extend(ep)
    o = acc
    ost = cfg.get("ost", "")
    for B in range(2):
        for j in range(8):
            k(f"v_fmac_f32 {v(Xr[8 * B + j])}, {v(acc3 + 4 * (2 * B + (j & 1)) + (j >> 1))}, {v(gb + 8 * B + j)}")
        for j in range(4):
            k(f"v_cvt_pk_bf16_f32 {v(o + 4 * B + j)}, {v(Xr[8 * B + 2 * j])}, {v(Xr[8 * B + 2 * j + 1])}")
        k(f"global_store_dwordx4 {v(zp + 1)}, {v(o + 4 * B, 4)}, {sp(OUT)} offset:{64 * B} {ost}")
    for j in range(4):
        k(f"v_fmac_f32 {v(Xr[16 + j])}, {v(acc3 + 16 + j)}, {v(gb + 16 + j)}")
    for j in range(2):
        k(f"v_cvt_pk_bf16_f32 {v(o + 8 + j)}, {v(Xr[16 + 2 * j])}, {v(Xr[17 + 2 * j])}")
    k(f"global_store_dwordx2 {v(zp)}, {v(o + 8, 2)}, {sp(OUT)} offset:128 {ost}")
```

```python
from asmlib import Stream, Alloc, v, a, s, weave, sprinkle
from blocks import *
from fused import *

TRB = 104448
XSB = 122880


def dbg_addr(k, t, full):
    if full:
        k(f"v_min_u32 {v(t)}, 49, {v(LANE)}")
        k(f"v_cmp_lt_u32 vcc, 7, {v(t)}")
        k(f"v_cndmask_b32 {v(t + 1)}, 0, 7, vcc".replace("v_cndmask_b32", "v_cndmask_b32_e64"))
        k(f"v_add_lshl_u32 {v(t)}, {v(t)}, {v(t + 1)}, 2")
    else:
        k(f"v_and_b32 {v(t)}, 7, {v(LANE)}")
        k(f"v_lshlrev_b32 {v(t)}, 2, {v(t)}")


def dbg_load(k, t):
    return k(f"global_load_dword {v(t + 1)}, {v(t)}, {sp(DBG)} sc1")


def init_check(k, name, t):
    k(f"s_branch {name}_f")
    k(f"{name}:")
    k("s_sleep 4")
    k(f"{name}_f:")
    dbg_load(k, t)
    k.drain(lgkm=False)
    k(f"v_cmp_eq_u32 vcc, 0, {v(t + 1)}")
    k("s_add_u32 s100, s100, 1")
    k(f"s_cmp_ge_u32 s100, {SPIN}")
    k(f"s_cbranch_scc1 {name}_x")
    k(f"s_cbranch_vccnz {name}")
    k(f"{name}_x:")


def init_check_wg(k, name, t):
    st = Stream()
    st(f"s_cmp_lg_u32 {s(WAVE)}, 0")
    st(f"s_cbranch_scc1 {name}_x")
    dbg_addr(st, t, True)
    init_check(st, name, t)
    k.raw(st)


def init_fill(k, su):
    for j in range(4):
        k(f"v_mov_b32 {v(8 + j)}, -1")
    k(f"s_mul_i32 s4, s{su}, 9216")
    k(f"s_mul_i32 s5, {s(WAVE)}, 2304")
    k("s_add_u32 s4, s4, s5")
    k(f"s_add_u32 s4, s4, {INIT0}")
    k(f"v_add_u32 v6, s4, {v(L16)}")
    for o in (0, 1024, 1280):
        k(f"global_store_dwordx4 v6, v[8:11], {sp(WS)} offset:{o} sc1")
    k(f"s_lshl_b32 s4, s{su}, 2")
    k("v_mov_b32 v6, s4")
    k.drain(lgkm=False)
    k("s_barrier")
    k(f"s_cmp_lg_u32 {s(WAVE)}, 0")
    k("s_cbranch_scc1 Linit_skip")
    k(f"global_store_dword v6, v8, {sp(DBG)} sc1")
    k("Linit_skip:")
    stamp(k, 44)


class Mod:
    def __init__(self, R, sA):
        self.off, self.coff = R(), R()
        self.cv = R(10, 2)
        self.w = R(40, 4)
        self.t = R(8, 2)
        self.acc = R(8, 2)
        self.sA = sA

    @staticmethod
    def decode(k, smu, sA):
        k(f"s_lshr_b32 s4, s{smu}, 1")
        k(f"s_and_b32 s5, s{smu}, 1")
        k("s_cmp_lt_u32 s4, 50")
        k("s_cselect_b32 s6, -20, 0")
        k("s_cmp_lt_u32 s4, 20")
        k("s_cselect_b32 s6, 30, s6")
        k("s_add_u32 s4, s4, s6")
        k(f"s_mul_i32 s6, s5, {MODS}")
        k("s_lshl_b32 s7, s4, 8")
        k(f"s_add_u32 s{sA}, s6, s7")

    def issue(self, k, smu):
        sA, off, coff = self.sA, self.off, self.coff
        self.decode(k, smu, sA)
        k("s_lshl_b32 s5, s5, 2")
        k(f"s_add_u32 s5, s5, {s(WAVE)}")
        k("s_mul_i32 s5, s5, 80")
        k("s_lshl_b32 s4, s4, 7")
        k("s_mul_i32 s6, s5, 7680")
        k("s_add_u32 s4, s4, s6")
        k(f"v_min_u32 {v(off)}, 39, {v(LANE)}")
        k("s_lshl_b32 s5, s5, 1")
        k(f"v_lshl_add_u32 {v(off)}, {v(off)}, 2, s5")
        self.first = k(f"global_load_dword {v(self.t)}, {v(off)}, {sp(C)}")
        k(f"v_lshrrev_b32 {v(coff)}, 3, {v(LANE)}")
        k(f"v_mul_u32_u24 {v(off)}, {2 * 7680 - 128}, {v(coff)}")
        k(f"v_add3_u32 {v(off)}, {v(off)}, {v(L16)}, s4")
        for i in range(10):
            k(f"global_load_dwordx4 {v(self.w + 4 * i, 4)}, {v(off)}, {sp(WMOD)} nt")
            if i < 9:
                k(f"v_add_u32 {v(off)}, {7680 if i % 2 == 0 else 15 * 7680}, {v(off)}")

    def finish(self, k, lds, before_store, uid, mid=None):
        cv, t, acc, w, sA = self.cv, self.t, self.acc, self.w, self.sA
        unpack(k, t + 2, t + 3, t)
        k(f"v_lshlrev_b32 {v(self.coff)}, 2, {v(self.coff)}")
        for op in ("mul", "exp", "add", "rcp", "fin"):
            for h in range(2):
                x, y = t + 2 + h, t + 4 + h
                k({"mul": f"v_mul_f32 {v(y)}, {hex(LOG2E | 0x80000000)}, {v(x)}", "exp": f"v_exp_f32 {v(y)}, {v(y)}",
                   "add": f"v_add_f32 {v(y)}, 1.0, {v(y)}", "rcp": f"v_rcp_f32 {v(y)}, {v(y)}",
                   "fin": f"v_mul_f32 {v(x)}, {v(x)}, {v(y)}"}[op])
        k(f"v_cvt_pk_bf16_f32 {v(t)}, {v(t + 2)}, {v(t + 3)}")
        for i in range(5):
            k(f"ds_bpermute_b32 {v(acc + i)}, {v(self.coff)}, {v(t)} offset:{32 * i}")
        for i in range(5):
            unpack(k, cv + 2 * i, cv + 2 * i + 1, acc + i)
        u = t
        for i in range(10):
            if i == 5 and mid:
                mid(k)
            for j in range(4):
                unpack(k, u + 2 * j, u + 2 * j + 1, w + 4 * i + j)
            for j in range(4):
                if i == 0:
                    pk(k, "mul", acc + 2 * j, [("p", u + 2 * j), ("b", cv + i)])
                else:
                    pk(k, "fma", acc + 2 * j, [("p", u + 2 * j), ("b", cv + i), ("p", acc + 2 * j)])
        for j in range(4):
            k(f"v_permlane32_swap_b32 {v(acc + j)}, {v(acc + j + 4)}")
        for j in range(4):
            k(f"v_add_f32 {v(acc + j)}, {v(acc + j)}, {v(acc + j + 4)}")
        for j in range(2):
            k(f"v_permlane16_swap_b32 {v(acc + j)}, {v(acc + j + 2)}")
        for j in range(2):
            k(f"v_add_f32 {v(acc + j)}, {v(acc + j)}, {v(acc + j + 2)}")
        ad = u + 1
        k(f"v_and_b32 {v(ad)}, 7, {v(LANE)}")
        k(f"v_lshrrev_b32 {v(u + 2)}, 3, {v(LANE)}")
        k(f"v_add_f32_dpp {v(u)}, {v(acc)}, {v(acc)} row_ror:8 row_mask:0xf bank_mask:0x3")
        k(f"v_add_f32_dpp {v(u)}, {v(acc + 1)}, {v(acc + 1)} row_ror:8 row_mask:0xf bank_mask:0xc")
        k(f"v_lshl_add_u32 {v(ad)}, {v(ad)}, 3, {v(u + 2)}")
        k(f"s_lshl_b32 s7, {s(WAVE)}, 8")
        k(f"s_add_u32 s7, s7, {lds}")
        k(f"v_lshl_add_u32 {v(ad)}, {v(ad)}, 2, s7")
        k(f"ds_write_b32 {v(ad)}, {v(u)}")
        k.barrier()
        k(f"v_lshlrev_b32 {v(ad)}, 2, {v(LANE)}")
        k(f"v_add_u32 {v(u + 2)}, {lds}, {v(ad)}")
        for i in range(4):
            k(f"ds_read_b32 {v(acc + i)}, {v(u + 2)} offset:{256 * i}")
        k(f"v_add_u32 {v(ad)}, s{sA}, {v(ad)}")
        k(f"v_add_f32 {v(acc)}, {v(acc)}, {v(acc + 1)}")
        k(f"v_add_f32 {v(acc + 2)}, {v(acc + 2)}, {v(acc + 3)}")
        k(f"v_add_f32 {v(acc)}, {v(acc)}, {v(acc + 2)}")
        k(f"v_min_u32 {v(acc)}, -2, {v(acc)}")
        if before_store:
            before_store(k)
        st = Stream()
        st(f"s_cmp_lg_u32 {s(WAVE)}, 0")
        st(f"s_cbranch_scc1 Lmod_skip_{uid}")
        st(f"global_store_dword {v(ad)}, {v(acc)}, {sp(WS)} offset:{MODP} sc1")
        st(f"Lmod_skip_{uid}:")
        k.raw(st)


class X16:
    def __init__(self, R):
        self.d = R(20, 4)
        self.off, self.a0, self.a1, self.rho, self.gq = (R() for _ in range(5))
        self.st4 = R(4, 4)
        self.pr = R(8, 2)

    def issue(self, k, su):
        k(f"s_lshl_b32 s4, s{su}, 2")
        k(f"s_add_u32 s4, s4, {s(WAVE)}")
        k("s_mul_i32 s4, s4, 5120")
        k(f"s_cmp_lt_u32 s{su}, 128")
        k("s_cselect_b32 s5, -1, 0")
        k(f"v_add_u32 {v(self.a0)}, s4, {v(L16)}")
        k(f"v_and_b32 {v(self.a0)}, s5, {v(self.a0)}")
        k(f"v_add_u32 {v(self.a0)}, 2048, {v(self.a0)}")
        for i in range(5):
            k(f"global_load_dwordx4 {v(self.d + 4 * i, 4)}, {v(self.a0)}, {sp(Q)} offset:{1024 * i - 2048} nt")

    def stage(self, k):
        a0, a1, d = self.a0, self.a1, self.d
        k(f"s_mul_i32 s5, {s(WAVE)}, 5152")
        k(f"s_add_u32 s5, s5, {XSB}")
        k(f"v_add_u32 {v(a0)}, s5, {v(L16)}")
        k(f"v_lshrrev_b32 {v(a1)}, 5, {v(LANE)}")
        k(f"v_lshl_add_u32 {v(a1)}, {v(a1)}, 4, {v(a0)}")
        for i in range(5):
            k(f"ds_write_b128 {v(a1 if i == 2 else a0)}, {v(d + 4 * i, 4)} offset:{1024 * i + 16 * ((64 * i) // 160)}")

    def emit(self, k, su):
        a0, d, off, rho, gq, st4 = self.a0, self.d, self.off, self.rho, self.gq, self.st4
        k(f"v_mul_u32_u24 {v(a0)}, 2576, {v(rho)}")
        k(f"v_lshl_add_u32 {v(a0)}, {v(gq)}, 3, {v(a0)}")
        k(f"s_mul_i32 s5, {s(WAVE)}, 320")
        k(f"s_add_u32 s5, s5, {XSB}")
        k(f"v_add_u32 {v(a0)}, s5, {v(a0)}")
        for i in range(5):
            k(f"ds_read2_b64 {v(d + 4 * i, 4)}, {v(a0)} offset0:{8 * i} offset1:{160 + 8 * i}")
        k(f"s_lshr_b32 s4, s{su}, 2")
        k(f"s_mul_i32 s4, s4, {XRB}")
        k(f"s_and_b32 s5, s{su}, 3")
        k("s_lshl_b32 s5, s5, 7")
        k("s_add_u32 s4, s4, s5")
        k(f"s_mul_i32 s5, {s(WAVE)}, 20480")
        k("s_add_u32 s4, s4, s5")
        k(f"s_add_u32 s4, s4, {X1 + 4096}")
        k(f"v_lshl_add_u32 {v(off)}, {v(gq)}, 9, s4")
        k(f"v_lshl_add_u32 {v(off)}, {v(rho)}, 4, {v(off)}")
        k(f"s_mov_b32 s7, {hex(ONES)}")
        for j in range(4):
            k(f"v_mov_b32 {v(st4 + j)}, 0")
        for i in range(5):
            set_tag(k, d + 4 * i + 3, 0)
            k(f"global_store_dwordx4 {v(off)}, {v(d + 4 * i, 4)}, {sp(WS)} offset:{4096 * (i & 1) - 4096} sc1")
            if i & 1:
                k(f"v_add_u32 {v(off)}, 8192, {v(off)}")
        for i in range(5):
            for j in range(2):
                for r in range(2):
                    src = d + 4 * i + 2 * r + j
                    k(f"v_dot2_f32_bf16 {v(st4 + 2 * r)}, {v(src)}, s7, {v(st4 + 2 * r)}")
                    k(f"v_dot2_f32_bf16 {v(st4 + 2 * r + 1)}, {v(src)}, {v(src)}, {v(st4 + 2 * r + 1)}")
        k(f"v_permlane32_swap_b32 {v(st4)}, {v(st4 + 2)}")
        k(f"v_permlane32_swap_b32 {v(st4 + 1)}, {v(st4 + 3)}")
        k(f"v_add_f32 {v(st4)}, {v(st4)}, {v(st4 + 2)}")
        k(f"v_add_f32 {v(st4 + 1)}, {v(st4 + 1)}, {v(st4 + 3)}")
        k(f"v_permlane16_swap_b32 {v(st4)}, {v(st4 + 1)}")
        k(f"v_add_f32 {v(st4)}, {v(st4)}, {v(st4 + 1)}")
        k(f"v_lshlrev_b32 {v(a0)}, 4, {v(rho)}")
        k(f"v_lshl_add_u32 {v(a0)}, {v(Q_)}, 2, {v(a0)}")
        k(f"v_add_f32_dpp {v(st4)}, {v(st4)}, {v(st4)} row_ror:8 row_mask:0xf bank_mask:0xf")
        k(f"s_lshl_b32 s5, {s(WAVE)}, 7")
        k(f"s_add_u32 s5, s5, {XSB + 20736}")
        k(f"v_add_u32 {v(a0)}, s5, {v(a0)}")
        k(f"ds_write_b32 {v(a0)}, {v(st4)}")

    def publish(self, k, su):
        a0, pr = self.a0, self.pr
        k(f"v_lshlrev_b32 {v(a0)}, 3, {v(N_)}")
        k(f"v_add_u32 {v(self.a1)}, {XSB + 20736}, {v(a0)}")
        for i in range(4):
            k(f"ds_read_b64 {v(pr + 2 * i, 2)}, {v(self.a1)} offset:{128 * i}")
        pk(k, "add", pr, [("p", pr), ("p", pr + 2)])
        pk(k, "add", pr + 4, [("p", pr + 4), ("p", pr + 6)])
        pk(k, "add", pr, [("p", pr), ("p", pr + 4)])
        row_stats(k, pr, pr + 1, D, pr + 2)
        k(f"v_min_u32 {v(pr)}, -2, {v(pr)}")
        k(f"v_min_u32 {v(pr + 1)}, -2, {v(pr + 1)}")
        k(f"s_lshl_b32 s5, s{su}, 7")
        k(f"s_add_u32 s5, s5, {ST1}")
        k(f"v_add_u32 {v(a0)}, s5, {v(a0)}")
        k(f"global_store_dwordx2 {v(a0)}, {v(pr, 2)}, {sp(WS)} sc1")


class KVTile:
    def __init__(self, R):
        self.o0, self.o1, self.t = R(), R(), R()
        self.kr = R(22, 2)
        self.vr = R(16, 2)
        self.tr = R(8, 4)
        self.tp = R(16, 2)
        self.un = R(44, 2)
        self.kv = R(32, 4)

    def issue(self, k, sg):
        o0, o1, t = self.o0, self.o1, self.t
        k(f"s_and_b32 s4, s{sg}, 15")
        k(f"s_lshl_b32 s4, s4, 2")
        k(f"s_add_u32 s4, s4, {s(WAVE)}")
        k(f"s_mul_i32 s4, s4, {32 * 1280}")
        k(f"s_lshr_b32 s5, s{sg}, 4")
        k("s_lshl_b32 s6, s5, 7")
        k("s_add_u32 s4, s4, s6")
        k(f"v_mul_u32_u24 {v(o0)}, {8 * 1280}, {v(Q_)}")
        k(f"v_lshl_add_u32 {v(o0)}, {v(N_)}, 3, {v(o0)}")
        k(f"v_add_u32 {v(o0)}, s4, {v(o0)}")
        k(f"v_add_u32 {v(o1)}, {4 * 1280}, {v(o0)}")
        for r in range(8):
            k(f"global_load_dwordx2 {v(self.kr + 6 + 2 * r, 2)}, {v(o1 if r >= 4 else o0)}, {sp(K)} offset:{1280 * (r % 4)}")
        k(f"v_max_u32 {v(t)}, {3 * 1280}, {v(o0)}")
        for r in range(3):
            k(f"global_load_dwordx2 {v(self.kr + 2 * r, 2)}, {v(t)}, {sp(K)} offset:{1280 * (r - 3)}")
        k("s_lshl_b32 s5, s5, 9")
        k(f"v_lshl_add_u32 {v(t)}, {v(N_)}, 5, s5")
        for h in range(2):
            k(f"global_load_dwordx4 {v(self.tr + 4 * h, 4)}, {v(t)}, {sp(SHK)} offset:{16 * h}")
        for r in range(8):
            k(f"global_load_dwordx2 {v(self.vr + 2 * r, 2)}, {v(o1 if r >= 4 else o0)}, {sp(V)} offset:{1280 * (r % 4)} nt")

    def compute(self, k, hook):
        kr, vr, tr, tp, un, kv, t = self.kr, self.vr, self.tr, self.tp, self.un, self.kv, self.t
        for i in list(range(3, 11)):
            for p in range(2):
                unpack(k, un + 4 * i + 2 * p, un + 4 * i + 2 * p + 1, kr + 2 * i + p)
        stamp(k, 42)
        hook(k)
        k(f"v_cmp_le_u32 vcc, 1280, {v(self.o0)}")
        for j in range(6):
            k(f"v_cndmask_b32 {v(kr + j)}, 0, {v(kr + j)}, vcc")
        for i in range(3):
            for p in range(2):
                unpack(k, un + 4 * i + 2 * p, un + 4 * i + 2 * p + 1, kr + 2 * i + p)
        for ch in range(4):
            for h in range(2):
                unpack(k, tp + 8 * h + ch, tp + 8 * h + 4 + ch, tr + 2 * ch + h)
        for j in range(4):
            for r in range(8):
                for p in range(2):
                    src = un + 4 * (3 + r - j) + 2 * p
                    d = kv + 4 * r + 2 * p
                    if j == 0:
                        pk(k, "mul", d, [("p", src), ("p", tp + 2 * p)])
                    else:
                        pk(k, "fma", d, [("p", src), ("p", tp + 4 * j + 2 * p), ("p", d)])
        stamp(k, 43)
        k(f"s_lshl_b32 s4, {s(WAVE)}, 6")
        k(f"s_sub_u32 s4, {TRB + 240}, s4")
        k(f"v_mul_u32_u24 {v(t)}, 272, {v(N_)}")
        k(f"v_add_u32 {v(t)}, s4, {v(t)}")
        k(f"v_lshlrev_b32 {v(self.o1)}, 4, {v(Q_)}")
        k(f"v_sub_u32 {v(t)}, {v(t)}, {v(self.o1)}")
        for r in range(8):
            for p in range(2):
                unpack(k, un + 4 * r + 2 * p, un + 4 * r + 2 * p + 1, vr + 2 * r + p)
            for p in range(2):
                pk(k, "mul", kv + 4 * r + 2 * p, [("p", kv + 4 * r + 2 * p), ("p", un + 4 * r + 2 * p)])
        o = tp
        for ch in range(4):
            for j in range(4):
                k(f"v_cvt_pk_bf16_f32 {v(o + 4 * ch + j)}, {v(kv + 4 * (7 - 2 * j) + ch)}, {v(kv + 4 * (6 - 2 * j) + ch)}")
            set_tag(k, o + 4 * ch + 3, 0)
            k(f"ds_write_b128 {v(t)}, {v(o + 4 * ch, 4)} offset:{16 * 272 * ch}")

    def store(self, k, sg):
        t, o0, kv = self.t, self.o0, self.kv
        k(f"s_mul_i32 s4, {s(WAVE)}, {16 * 272}")
        k(f"s_add_u32 s4, s4, {TRB}")
        k(f"v_mul_u32_u24 {v(t)}, 272, {v(Q_)}")
        k(f"v_lshl_add_u32 {v(t)}, {v(N_)}, 4, {v(t)}")
        k(f"v_add_u32 {v(t)}, s4, {v(t)}")
        for i in range(4):
            k(f"ds_read_b128 {v(kv + 4 * i, 4)}, {v(t)} offset:{4 * 272 * i}")
        k(f"s_lshr_b32 s4, s{sg}, 4")
        k("s_lshl_b32 s4, s4, 6")
        k(f"s_add_u32 s4, s4, {s(WAVE)}")
        k("s_lshl_b32 s4, s4, 12")
        k(f"s_and_b32 s5, s{sg}, 15")
        k("s_lshl_b32 s5, s5, 8")
        k("s_sub_u32 s4, s4, s5")
        k(f"s_add_u32 s4, s4, {KVT + 15 * 256}")
        k(f"v_lshl_add_u32 {v(o0)}, {v(Q_)}, 14, s4")
        k(f"v_lshl_add_u32 {v(o0)}, {v(N_)}, 4, {v(o0)}")
        toks = []
        for i in range(4):
            toks.append(k(f"global_store_dwordx4 {v(o0)}, {v(kv + 4 * i, 4)}, {sp(WS)} sc1"))
            if i < 3:
                k(f"v_add_u32 {v(o0)}, 65536, {v(o0)}")
        return toks


def wp_unit2(k, su, cfg):
    R = Alloc(VFREE, 250)
    off = R()
    k(f"s_and_b32 s4, s{su}, 1")
    k("s_lshl_b32 s4, s4, 1")
    k(f"s_and_b32 s5, {s(WAVE)}, 1")
    k("s_add_u32 s44, s4, s5")
    k(f"s_and_b32 s4, s{su}, -2")
    k(f"s_lshr_b32 s5, {s(WAVE)}, 1")
    k("s_add_u32 s45, s4, s5")
    k(f"s_and_b32 s4, s{su}, 1")
    k("s_lshl_b32 s4, s4, 2")
    k(f"s_add_u32 s4, s4, {s(WAVE)}")
    k(f"s_mul_i32 s4, s4, {80 * 3456}")
    k(f"s_lshr_b32 s5, s{su}, 1")
    k("s_lshl_b32 s5, s5, 7")
    k("s_add_u32 s4, s4, s5")
    k(f"v_lshrrev_b32 {v(off)}, 3, {v(LANE)}")
    k(f"v_mul_u32_u24 {v(off)}, {3456 - 128}, {v(off)}")
    k(f"v_add3_u32 {v(off)}, {v(off)}, {v(L16)}, s4")
    k(f"s_mul_i32 s5, {s(WAVE)}, 10240")
    toks = []
    for i in range(10):
        k(f"s_add_u32 m0, s5, {1024 * i}")
        toks.append(k(f"global_load_lds_dwordx4 {v(off)}, {sp(WIN)} nt"))
        k(f"v_add_u32 {v(off)}, {8 * 3456}, {v(off)}")
    w = R(40, 4)
    mo, m2, ta, oe, oo, tm = (R() for _ in range(6))
    mk = R.mark()
    mx_ = Mod(R, 47)
    R.reset(mk)
    mp = R(16, 4)
    pr = R(16, 2)
    outs = R(40, 4)
    st = Stream()
    st(f"s_cmp_lt_u32 s{su}, 8")
    st("s_cselect_b32 s48, 21, 0")
    st(f"s_add_u32 s48, s48, s{su}")
    st("s_add_u32 s48, s48, 76")
    st(f"s_sub_u32 s4, s{su}, 5")
    st("s_cmp_ge_u32 s4, 21")
    st("s_cbranch_scc1 Lwp_n1")
    mx_.issue(st, 48)
    st("s_waitcnt vmcnt(11)")
    st("s_branch Lwp_n2")
    st("Lwp_n1:")
    st("s_waitcnt vmcnt(0)")
    st("Lwp_n2:")
    k(f"v_min_u32 {v(mo)}, {39 * 16}, {v(L16)}")
    k("s_mul_i32 s5, s44, 640")
    k(f"s_add_u32 s5, s5, {MODP + 3 * 2560}")
    k(f"v_add_u32 {v(m2)}, s5, {v(mo)}")
    k(f"s_mul_i32 s5, {s(WAVE)}, 1280")
    k(f"s_add_u32 s5, s5, {XSB + 2048}")
    k(f"v_add_u32 {v(mo)}, s5, {v(mo)}")
    k(f"v_lshl_add_u32 {v(ta)}, {v(Q_)}, 5, s5")
    k("s_cmp_ge_u32 s45, 27")
    k("s_cselect_b32 s6, -54, 56")
    k("s_lshl_b32 s7, s45, 1")
    k("s_add_u32 s46, s6, s7")
    k("s_mul_i32 s4, s46, 20480")
    k("s_mul_i32 s5, s44, 5120")
    k("s_add_u32 s4, s4, s5")
    k(f"s_add_u32 s4, s4, {WP + 2048}")
    k(f"v_add_u32 {v(oe)}, s4, {v(L16)}")
    k(f"v_add_u32 {v(oo)}, 20480, {v(oe)}")
    un = R(80, 2)
    k(f"s_and_b32 s4, {s(WAVE)}, 1")
    k("s_mul_i32 s4, s4, 20480")
    k(f"s_lshr_b32 s5, {s(WAVE)}, 1")
    k("s_lshl_b32 s5, s5, 6")
    k("s_add_u32 s4, s4, s5")
    k(f"v_lshl_add_u32 {v(off)}, {v(Q_)}, 10, s4")
    k(f"v_lshl_add_u32 {v(off)}, {v(N_)}, 2, {v(off)}")
    k.raw(st)
    k.forget()
    stamp(k, 3)
    k("s_barrier")
    for i in range(40):
        k(f"ds_read_b32 {v(w + i)}, {v(off)} offset:{4096 * (i // 8) + 128 * (i % 8)}")
    for i in range(40):
        unpack(k, un + 2 * i, un + 2 * i + 1, w + i)
    stamp(k, 4)

    def mloads(st):
        for part in range(NMOD):
            st(f"v_add_u32 {v(tm)}, {part * MODS}, {v(m2)}")
            st(f"global_load_dwordx4 {v(mp + 8 * part, 4)}, {v(tm)}, {sp(WS)} sc1")
            st(f"global_load_dwordx4 {v(mp + 8 * part + 4, 4)}, {v(tm)}, {sp(WS)} offset:2560 sc1")

    init_check_wg(k, "Lwic", w)
    k.drain(lgkm=False)
    k("s_barrier")
    st = Stream()
    st(f"s_sub_u32 s4, s{su}, 5")
    st("s_cmp_ge_u32 s4, 21")
    st("s_cbranch_scc1 Lwp_n3")
    mx_.finish(st, XSB, None, "w")
    st("Lwp_n3:")
    k.raw(st)
    stamp(k, 42)
    poll(k, "Lwm", mloads, list(range(mp, mp + 8 * NMOD)), tm, cfg.get("slm", 2))
    stamp(k, 5)
    for part in range(1, NMOD):
        for j in range(4):
            pk(k, "add", mp + 2 * j, [("p", mp + 2 * j), ("p", mp + 8 * part + 2 * j)])
    for j in range(8):
        round_bf16(k, mp + j)
    for j in range(4, 8):
        k(f"v_add_f32 {v(mp + j)}, 1.0, {v(mp + j)}")
    for j in range(4, 8):
        round_bf16(k, mp + j)
    k(f"ds_write_b128 {v(mo)}, {v(mp + 4, 4)}")
    k(f"ds_write_b128 {v(mo)}, {v(mp, 4)} offset:640")
    cc = w
    for ks in range(5):
        for h in range(2):
            k(f"ds_read_b128 {v(cc + 8 * ks + 4 * h, 4)}, {v(ta)} offset:{128 * ks + 16 * h}")
    for ks in range(5):
        o = outs + 8 * ks
        for e in range(8):
            pk(k, "mul", pr + 2 * e, [("p", un + 16 * ks + 2 * e), ("b", cc + 8 * ks + e)])
        for par in range(2):
            for j in range(4):
                k(f"v_cvt_pk_bf16_f32 {v(o + 4 * par + j)}, {v(pr + 4 * j + par)}, {v(pr + 4 * j + 2 + par)}")
        k(f"global_store_dwordx4 {v(oe)}, {v(o, 4)}, {sp(WS)} offset:{1024 * ks - 2048} sc1")
        k(f"global_store_dwordx4 {v(oo)}, {v(o + 4, 4)}, {sp(WS)} offset:{1024 * ks - 2048} sc1")
    for ks in range(5):
        for h in range(2):
            k(f"ds_read_b128 {v(cc + 8 * ks + 4 * h, 4)}, {v(ta)} offset:{640 + 128 * ks + 16 * h}")
    uu = mp + 8
    k(f"s_mov_b32 s7, {hex(ONES)}")
    for j in range(8):
        k(f"v_mov_b32 {v(uu + j)}, 0")
    for i in range(20):
        for par in range(2):
            k(f"v_dot2_f32_bf16 {v(uu + par)}, {v(outs + 8 * (i // 4) + 4 * par + i % 4)}, s7, {v(uu + par)}")
    for i in range(40):
        d = uu + 2 + 2 * (i % 3)
        pk(k, "fma", d, [("p", un + 2 * i), ("b", cc + i), ("p", d)])
    pk(k, "add", uu + 2, [("p", uu + 2), ("p", uu + 4)])
    pk(k, "add", uu + 2, [("p", uu + 2), ("p", uu + 6)])
    k(f"v_permlane32_swap_b32 {v(uu)}, {v(uu + 1)}")
    k(f"v_permlane32_swap_b32 {v(uu + 2)}, {v(uu + 3)}")
    k(f"v_add_f32 {v(uu)}, {v(uu)}, {v(uu + 1)}")
    k(f"v_add_f32 {v(uu + 2)}, {v(uu + 2)}, {v(uu + 3)}")
    k(f"v_permlane16_swap_b32 {v(uu)}, {v(uu + 2)}")
    k(f"v_add_f32 {v(uu)}, {v(uu)}, {v(uu + 2)}")
    k(f"v_lshlrev_b32 {v(ta)}, 2, v0")
    k(f"v_add_u32 {v(ta)}, {XSB + 8192}, {v(ta)}")
    k(f"ds_write_b32 {v(ta)}, {v(uu)}")
    k(f"v_xor_b32 {v(ta)}, 256, {v(ta)}")
    k.drain()
    k("s_barrier")
    k(f"ds_read_b32 {v(uu + 1)}, {v(ta)}")
    k("s_lshl_b32 s6, s46, 7")
    k("s_lshr_b32 s5, s44, 1")
    k(f"s_mul_i32 s5, s5, {US}")
    k("s_add_u32 s6, s6, s5")
    k(f"s_add_u32 s6, s6, {U}")
    k(f"v_lshl_add_u32 {v(ta)}, {v(LANE)}, 2, s6")
    k(f"v_add_f32 {v(uu)}, {v(uu)}, {v(uu + 1)}")
    k(f"v_min_u32 {v(uu)}, -2, {v(uu)}")
    st = Stream()
    st(f"s_bitcmp1_b32 {s(WAVE)}, 0")
    st("s_cbranch_scc1 Lwp_skip")
    st(f"global_store_dword {v(ta)}, {v(uu)}, {sp(WS)} sc1")
    st("Lwp_skip:")
    k.raw(st)


def conv_path(k, stubs, cfg):
    sg = SUN
    R = Alloc(VFREE, 254)
    t0, t1 = 28, 29
    ka, kc, ua, uw, yw, yr, xo, x1o, kfa, kfd = range(36, 46)
    R.reset(46)
    if cfg.get("x_front") == "spare":
        k("s_branch Lflush")
    kt = KVTile(R)
    m0_ = R.mark()
    x16 = X16(R)
    kt.issue(k, sg)
    SDv, DP, DL, AS, BS4 = 92, 20, 28, 64, (32, 33, 86, 87)
    k(f"s_lshl_b32 s7, {s(sg)}, 3")
    k(f"s_load_dwordx2 s[{SDv}:{SDv + 1}], {sp(SD)}, s7")
    stamp(k, 2)
    yv = kt.kv
    for j in range(4):
        k(f"v_mov_b32 {v(yv + j)}, 0")
    k(f"s_mul_i32 s5, {s(WAVE)}, {2 * KCP}")
    k(f"v_and_b32 {v(t0)}, 48, {v(L16)}")
    k(f"v_add_u32 {v(t0)}, s5, {v(t0)}")
    for cp in range(2):
        k(f"ds_write_b128 {v(t0)}, {v(yv, 4)} offset:{KT + cp * KCP}")
    k(f"v_min_u32 {v(t0)}, {28 * 16}, {v(L16)}")
    k(f"s_mul_i32 s4, {s(WAVE)}, {UCH}")
    k(f"v_add_u32 {v(t0)}, s4, {v(t0)}")
    for cp in range(2):
        k(f"ds_write_b128 {v(t0)}, {v(yv, 4)} offset:{UT + cp * UCP + 4096}")
    k(f"v_add_u32 {v(kc)}, s5, {v(L16)}")
    k(f"v_and_b32 {v(t0)}, 1, {v(N_)}")
    k(f"v_lshrrev_b32 {v(t1)}, 1, {v(N_)}")
    k(f"v_mul_u32_u24 {v(ka)}, {KCP}, {v(t0)}")
    k(f"v_lshl_add_u32 {v(ka)}, {v(t1)}, 3, {v(ka)}")
    k(f"v_lshl_add_u32 {v(ka)}, {v(Q_)}, 4, {v(ka)}")
    k(f"v_add_u32 {v(ka)}, s5, {v(ka)}")
    k(f"v_mul_u32_u24 {v(ua)}, {UCP}, {v(t0)}")
    k(f"v_lshlrev_b32 {v(t1)}, 6, {v(t1)}")
    k(f"v_sub_u32 {v(ua)}, {v(ua)}, {v(t1)}")
    k(f"v_lshl_add_u32 {v(ua)}, {v(Q_)}, 4, {v(ua)}")
    k(f"s_add_u32 s4, s4, {UT + 16 + 448}")
    k(f"v_add_u32 {v(ua)}, s4, {v(ua)}")
    k(f"v_lshl_add_u32 {v(yw)}, {v(t0)}, 2, {v(t1)}")
    k(f"v_lshl_add_u32 {v(yw)}, {v(Q_)}, 4, {v(yw)}")
    k(f"s_mul_i32 s4, {s(WAVE)}, {YCH}")
    k(f"s_add_u32 s4, s4, {YT}")
    k(f"v_add_u32 {v(yw)}, s4, {v(yw)}")
    k(f"v_lshlrev_b32 {v(t0)}, 2, v0")
    k(f"v_sub_u32 {v(uw)}, {UT + 16 + 2 * (2044 - 1536)}, {v(t0)}")
    k(f"v_add_u32 {v(yr)}, {YT}, {v(t0)}")
    k(f"v_lshrrev_b32 {v(t0)}, 5, v0")
    k(f"v_mul_u32_u24 {v(x1o)}, {XRB}, {v(t0)}")
    k(f"v_and_b32 {v(t0)}, 31, v0")
    k(f"v_lshl_add_u32 {v(x1o)}, {v(t0)}, 4, {v(x1o)}")
    k(f"s_lshl_b32 s4, {s(sg)}, 9")
    k(f"s_add_u32 s4, s4, {X1}")
    k(f"v_add_u32 {v(x1o)}, s4, {v(x1o)}")
    for ch in range(4):
        if ch & 1:
            k(f"s_and_b32 s{DP + ch}, s{SDv + (ch >> 1)}, 0xffff0000")
        else:
            k(f"s_lshl_b32 s{DP + ch}, s{SDv + (ch >> 1)}, 16")
        k(f"s_lshr_b32 s{DL + ch}, s{DP + ch}, 16")
    k(f"v_and_b32 {v(x16.rho)}, 7, {v(LANE)}")
    k(f"v_lshrrev_b32 {v(x16.gq)}, 3, {v(LANE)}")
    ktok = []

    def ssm_dma(st):
        st(f"s_lshl_b32 s4, {s(sg)}, 2")
        st(f"s_add_u32 s4, s4, {s(WAVE)}")
        st(f"s_lshl_b32 s94, s4, 12")
        st(f"v_add_u32 {v(t0)}, s94, {v(L16)}")
        st(f"s_mul_i32 s5, {s(WAVE)}, {2 * KCP}")
        st(f"s_add_u32 m0, s5, {KT + KCP + 64}")
        ktok.extend(st(f"global_load_lds_dwordx4 {v(t0)}, {sp(SSM)} offset:{1024 * i} nt") for i in range(4))

    if cfg.get("xfirst", 0):
        x16.issue(k, sg)
        stamp(k, 3)
        kt.compute(k, ssm_dma)
    else:
        ssm_dma(k)
        bias_load(k)
        stamp(k, 3)
        kt.compute(k, lambda st_: x16.issue(st_, sg))
    k.barrier()
    stamp(k, 4)
    kt.store(k, sg)
    ic = x16.pr
    dbg_addr(k, ic, False)
    k(f"v_mov_b32 {v(ic + 1)}, 1")

    def dbg_w0(name, t):
        st = Stream()
        st(f"s_cmp_lg_u32 {s(WAVE)}, 0")
        st(f"s_cbranch_scc1 {name}")
        dbg_load(st, t)
        st(f"{name}:")
        k.raw(st)

    dbg_w0("Ldb1", ic)
    R.reset(90)
    acc = R(32, 2)
    af = 48
    assert af + 48 <= kt.kv
    k.wait(*ktok)
    for i in range(4):
        k(f"ds_read_b128 {v(af + 8 * i + 2, 4)}, {v(kc)} offset:{KT + KCP + 64 + 1024 * i}")
        k(f"ds_read_b32 {v(af + 8 * i + 1)}, {v(kc)} offset:{KT + KCP + 60 + 1024 * i}")
    for i in range(4):
        for j in range(4):
            k(f"v_alignbit_b32 {v(af + 32 + 4 * i + j)}, {v(af + 8 * i + 2 + j)}, {v(af + 8 * i + 1 + j)}, 16")
        k(f"ds_write_b128 {v(kc)}, {v(af + 32 + 4 * i, 4)} offset:{KT + 64 + 1024 * i}")

    def kfrags(st, j0, j1):
        for j in range(j0, j1):
            for h in range(2):
                st(f"ds_read_b64 {a(4 * j + 2 * h, 2)}, {v(ka)} offset:{KT + 8 + 64 * j + 8 * h}")

    nk, nk2 = cfg.get("kf1", 24), cfg.get("kf2", 44)
    kfrags(k, 0, nk)
    x16.stage(k)
    k(f"s_lshl_b32 s95, {s(sg)}, 7")
    k(f"s_add_u32 s95, s95, {KF}")
    k(f"v_max_u32 {v(kfa)}, 1, {v(N_)}")
    k(f"v_lshlrev_b32 {v(kfa)}, 7, {v(kfa)}")
    k(f"v_xor_b32 {v(kfa)}, s95, {v(kfa)}")
    k(f"s_add_u32 s4, s94, {KVT}")
    k(f"v_add_u32 {v(t0)}, s4, {v(L16)}")
    k(f"s_mul_i32 s93, {s(WAVE)}, {UCH}")
    stamp(k, 44)
    k.drain(lgkm=False)
    k(f"v_cmp_eq_u32 vcc, 0, {v(ic + 1)}")
    k("s_cbranch_vccnz Lic_r")
    k("Lic_ok:")
    st = Stream()
    st("Lic_r:")
    init_check(st, "Lic_p", ic)
    st("s_branch Lic_ok")
    stubs.append(st)
    k.barrier()
    flag_store(k, "Lkf_skip", t1, 95)
    stamp(k, 5)
    kfl = lambda st_: st_(f"global_load_dword {v(kfd)}, {v(kfa)}, {sp(WS)} sc1")
    look1 = cfg.get("look1", 1)
    if look1:
        kfl(k)
    a_ = Stream()
    a_(f"s_cmp_ge_u32 s{sg}, 128")
    a_("s_cbranch_scc1 Lc_j2")
    x16.emit(a_, sg)
    a_("s_waitcnt vmcnt(5)")
    a_("s_branch Lc_j3")
    a_("Lc_j2:")
    a_("s_waitcnt vmcnt(0)")
    a_("Lc_j3:")
    k.raw(a_)
    k.forget()
    stamp(k, 6)

    def u_dma(st):
        for cp in range(2):
            st(f"s_add_u32 m0, s93, {UT + cp * (UCP + 4) + 12}")
            for c in range(4):
                st(f"global_load_lds_dwordx4 {v(t0)}, {sp(WS)} offset:{1024 * c} sc1")

    k("s_mov_b32 s95, 0")
    if look1:
        st = Stream()
        st(f"v_cmp_eq_u32 vcc, -1, {v(kfd)}")
        st("s_cbranch_vccnz Lc_k1")
        u_dma(st)
        st("s_mov_b32 s95, 1")
        st("Lc_k1:")
        k.raw(st)
    kfrags(k, nk, nk2)
    kfl(k)
    dbg_addr(k, acc + 9, True)
    k(f"v_mov_b32 {v(acc + 10)}, 1")
    dbg_w0("Ldb2", acc + 9)
    kfrags(k, nk2, 64)
    w_setup(k)
    k_order(k)
    k.drain()
    k(f"v_cmp_eq_u32 vcc, 0, {v(acc + 10)}")
    k("s_cbranch_vccnz Lic2_r")
    k("Lic2_ok:")
    st = Stream()
    st("Lic2_r:")
    init_check(st, "Lic2_p", acc + 9)
    st("s_branch Lic2_ok")
    stubs.append(st)
    k("s_barrier")
    stamp(k, 7)
    pub = Stream()
    pub(f"s_cmp_ge_u32 s{sg}, 128")
    pub("s_cbranch_scc1 Lc_j5")
    pub(f"s_cmp_lg_u32 {s(WAVE)}, 0")
    pub("s_cbranch_scc1 Lc_j5")
    x16.publish(pub, sg)
    pub("Lc_j5:")
    k.raw(pub)
    st = Stream()
    st("s_cmp_eq_u32 s95, 1")
    st("s_cbranch_scc1 Lc_k2")
    check(st, stubs, "Lkf", kfl, [kfd], kfd, sleep=cfg.get("slk", 0))
    stamp(st, 8)
    u_dma(st)
    st("Lc_k2:")
    k.raw(st)
    yv, hp, Bc, md = 48, 52, 60, 64
    NU = 10
    uf = R(4 * NU, 2)
    un = R(16, 2)
    x3 = R(16, 2)
    T = R(4, 2)
    xr = [R(4, 2) for _ in range(4)]
    sr = [R(4, 2) for _ in range(4)]
    ut = R(5, 2)
    uad = R()
    mxr = R()

    def conv_mfma():
        ops = []
        for w in range(6):
            for r in range(8):
                ops += [(w + t, t, r, (0, w, r)) for t in range(6 - w)]
        for w in range(8):
            for r in range(8):
                ops += [(i, i - w, r, (1, w, r)) for i in (7, 6) if i >= w]
        first, last, order = {}, {}, []
        for n, o in enumerate(ops):
            if o[3] not in first:
                first[o[3]] = n
                order.append(o[3])
            last[o[3]] = n
        buf = {f: uf + 4 * (n % NU) for n, f in enumerate(order)}
        prev = {f: last[order[n - NU]] if n >= NU else -1 for n, f in enumerate(order)}
        rd = lambda f: f"ds_read_b128 {v(buf[f], 4)}, {v(ua)} offset:{2 * (1792 - 256 * f[1] + 32 * f[2])}"
        st, todo, seen = Stream(), list(order), set()
        for _ in range(2):
            st(rd(todo.pop(0)))
        for n, (i, t, r, f) in enumerate(ops):
            assert f not in todo
            d = v(acc + 4 * i, 4)
            st(f"v_mfma_f32_16x16x32_bf16 {d}, {a(4 * (r + 8 * t), 4)}, {v(buf[f], 4)}, {d if i in seen else 0}")
            seen.add(i)
            if todo and prev[todo[0]] <= n and first[todo[0]] - n <= 24:
                st(rd(todo.pop(0)))
        return st

    def ywrite(st, c):
        for wl in range(2):
            i = 2 * c + wl
            st(f"v_cvt_pk_bf16_f32 {v(yv + 2 * wl)}, {v(acc + 4 * i)}, {v(acc + 4 * i + 1)}")
            st(f"v_cvt_pk_bf16_f32 {v(yv + 2 * wl + 1)}, {v(acc + 4 * i + 2)}, {v(acc + 4 * i + 3)}")
            st(f"ds_write2_b32 {v(yw)}, {v(yv + 2 * wl)}, {v(yv + 2 * wl + 1)} offset0:{128 * wl} offset1:{128 * wl + 2}")
        if c < 3:
            st(f"v_add_u32 {v(yw)}, {4 * YCH}, {v(yw)}")
        if c == 1:
            st.wait(auxtok[0])
        st.barrier()

    def EPy(st, c, packed):
        ywrite(st, c)
        yd, pkd, Y = hp, hp + 4, acc + 8 * c
        for ch in range(4):
            st(f"ds_read_b32 {v(yd + ch)}, {v(yr)} offset:{4 * YCH * c + YCH * ch}")
        if c < 3:
            kvread(st, c)
        for ch in range(4):
            unpack(st, Y + ch, Y + 4 + ch, yd + ch)
        if packed:
            for ch in range(4):
                st(f"v_dot2_f32_bf16 {v(Y + ch)}, {v(pkd + ch)}, s{DP + ch}, {v(Y + ch)}")
            for ch in range(4):
                st(f"v_dot2_f32_bf16 {v(Y + 4 + ch)}, {v(pkd + ch)}, s{DL + ch}, {v(Y + 4 + ch)}")
        else:
            for r in range(2):
                for ch in range(4):
                    st(f"v_and_b32 {v(T + ch)}, 0xffff0000, {v(pkd + ch)}" if r == 0 else f"v_lshlrev_b32 {v(T + ch)}, 16, {v(pkd + ch)}")
                for ch in range(4):
                    st(f"v_fmac_f32 {v(Y + 4 * r + ch)}, s{DP + ch}, {v(T + ch)}")

    def kvread(st, c):
        for ch in range(4):
            st(f"ds_read_b32 {v(hp + 4 + ch)}, {v(uw)} offset:{ch * UCH + 1024 * (3 - c)}")

    def EPh(st, c, X, packed):
        for i in range(4):
            unpack(st, X + 2 * i, X + 2 * i + 1, xr[c] + i)
        for i in range(4):
            r = i >> 1
            vop(st, "fma", X + 8 + 2 * i, [("p", X + 2 * i), ("b", sr[c] + 2 * r), ("b", sr[c] + 2 * r + 1)], packed)
        for i in range(4):
            p = i & 1
            vop(st, "fma", X + 8 + 2 * i, [("p", X + 8 + 2 * i), ("sp", AS + 2 * p), ("p", Bc + 2 * p)], packed)

    def EPx(st, c, X, packed):
        for i in range(4):
            vop(st, "fma", X + 2 * i, [("p", X + 8 + 2 * i), ("p", acc + 8 * c + 2 * i), ("p", X + 2 * i)], packed)
        for i in range(4):
            st(f"v_cvt_pk_bf16_f32 {v(xr[c] + i)}, {v(X + 2 * i)}, {v(X + 2 * i + 1)}")
        set_tag(st, xr[c] + 3, 1)

    def x1store(st, c):
        st(f"v_add_u32 {v(kfa)}, {c * 8 * XRB}, {v(x1o)}")
        st(f"global_store_dwordx4 {v(kfa)}, {v(xr[c], 4)}, {sp(WS)} sc1")

    def aux(st):
        st(f"v_lshlrev_b32 {v(t0)}, 4, v0")
        st(f"v_add_u32 {v(t0)}, {ST1 + 4096}, {v(t0)}")
        for c in range(4):
            if c == 2:
                st(f"v_add_u32 {v(t0)}, 8192, {v(t0)}")
            st(f"global_load_dwordx4 {v(sr[c], 4)}, {v(t0)}, {sp(WS)} offset:{4096 * (c & 1) - 4096} sc1")
        st(f"v_min_u32 {v(t0)}, 11, {v(LANE)}")
        st(f"v_lshrrev_b32 {v(t1)}, 2, {v(t0)}")
        st(f"v_mul_u32_u24 {v(t1)}, {2560 - 16}, {v(t1)}")
        st(f"v_lshl_add_u32 {v(t0)}, {v(t0)}, 2, {v(t1)}")
        st(f"s_lshl_b32 s4, {s(sg)}, 4")
        st(f"s_add_u32 s4, s4, {MODP}")
        st(f"v_add_u32 {v(t0)}, s4, {v(t0)}")
        for part in range(NMOD):
            st(f"global_load_dword {v(md + part)}, {v(t0)}, {sp(WS)} sc1")
            if part < NMOD - 1:
                st(f"v_add_u32 {v(t0)}, {MODS}, {v(t0)}")

    auxregs = [sr[c] + j for c in range(4) for j in (1, 3)] + [md, md + 1]

    def aux2(st):
        maxchain(st, mxr, auxregs)
        check(st, stubs, "Lax", aux, auxregs, mxr)
        for c in range(4):
            st(f"v_add_u32 {v(xo)}, {c * 8 * XRB}, {v(x1o)}")
            st(f"global_load_dwordx4 {v(xr[c], 4)}, {v(xo)}, {sp(WS)} sc1")
        st(f"v_add_f32 {v(md)}, {v(md)}, {v(md + 1)}")
        round_bf16(st, md)
        st(f"v_mov_b32 {v(t1)}, 1.0")
        st(f"v_add_f32_dpp {v(md)}, {v(md)}, {v(t1)} quad_perm:[0,1,2,3] row_mask:0xf bank_mask:0x2")
        round_bf16(st, md)
        st(f"v_mul_f32_dpp {v(md + 1)}, {v(md)}, {v(md)} row_shl:8 row_mask:0xf bank_mask:0x1")
        st(f"v_mul_f32_dpp {v(md + 1)}, {v(md)}, {v(md)} row_shl:4 row_mask:0xf bank_mask:0x2")
        for ch in range(8):
            st(f"v_readlane_b32 s{BS4[ch] if ch < 4 else AS + ch - 4}, {v(md + 1)}, {ch}")
        for ch in range(4):
            st(f"v_mov_b32 {v(Bc + ch)}, s{BS4[ch]}")

    up_load = lambda st: st(f"global_load_dword {v(ut + 4)}, {v(kfd)}, {sp(WS)} sc1")

    def uchk(st):
        check(st, stubs, "Lcu", up_load, [ut + 4], ut + 4)

    def fills(st):
        for j in range(4):
            st(f"v_mov_b32 {v(un + 4 + j)}, 0")
        st(f"s_min_u32 s5, s{sg}, 127")
        st("s_lshl_b32 s4, s5, 13")
        st(f"s_add_u32 s4, s4, {Z2 + S * D * 2 + 4096}")
        st(f"v_lshl_add_u32 {v(mxr)}, v0, 4, s4")
        for i in range(2):
            st(f"global_store_dwordx4 {v(mxr)}, {v(un + 4, 4)}, {sp(WS)} offset:{4096 * i - 4096} sc1")
        for j in range(4):
            st(f"v_mov_b32 {v(un + j)}, -1")
        st("s_lshr_b32 s4, s5, 2")
        st(f"s_mul_i32 s4, s4, {XRB}")
        st("s_and_b32 s5, s5, 3")
        st("s_lshl_b32 s5, s5, 13")
        st("s_add_u32 s4, s4, s5")
        st(f"s_add_u32 s4, s4, {P + 64 * D * 2 + 4096}")
        st(f"v_lshl_add_u32 {v(mxr)}, v0, 4, s4")
        for i in range(2):
            st(f"global_store_dwordx4 {v(mxr)}, {v(un, 4)}, {sp(WS)} offset:{4096 * i - 4096} sc1")
        st(f"s_min_u32 s4, s{sg}, 127")
        st("s_lshl_b32 s4, s4, 10")
        st(f"s_add_u32 s4, s4, {ST3}")
        st(f"v_lshl_add_u32 {v(mxr)}, v0, 2, s4")
        st(f"global_store_dword {v(mxr)}, {v(un)}, {sp(WS)} sc1")

    def early_stage(st):
        st("s_barrier")
        for i in range(cfg.get("ne", 0)):
            wsp_dma(st, i, DO)

    stamp(k, 9)
    if cfg.get("x_front"):
        k("s_branch Lflush")
    auxs = stream(aux)
    auxtok = [x for x in auxs.ins if x.cls == "vmem"]
    u_addr(k, uad, un + 12)
    k(f"v_and_b32 {v(kfd)}, 1, {v(Q_)}")
    k(f"v_mul_u32_u24 {v(kfd)}, {56 * 128}, {v(kfd)}")
    k(f"v_sub_u32 {v(kfd)}, {v(uad)}, {v(kfd)}")
    st = Stream()
    st("s_cmp_eq_u32 s95, 1")
    st("s_cbranch_scc1 Lc_k3")
    st("s_waitcnt vmcnt(0)")
    st("Lc_k3:")
    k.raw(st)
    stamp(k, 46)
    f0, f1, a0 = cfg.get("f0", 2), cfg.get("f1", 26), cfg.get("aux0", 96)
    a1, u0, u1 = cfg.get("aux1", 140), cfg.get("u0", 110), cfg.get("u1", 170)
    wl = [(ks, sl) for ks in range(cfg.get("wlate", 4), 20)[::-1] for sl in range(2)]

    def wpart(n):
        st = Stream()
        for _ in range(min(n, len(wl))):
            w_load(st, 0, *wl.pop(0))
        return st

    nwa, wa0 = cfg.get("nwa", 14), cfg.get("wa0", 186)
    assert wa0 >= 186 and wa0 > u1 + 3 and nwa * 2 <= 287 - wa0
    wa_, wt, wr = wpart(nwa), wpart(cfg.get("nwt", 4)), wpart(99)
    e0, es = cfg.get("e0", 204), cfg.get("es", 112)
    batch = cfg.get("batch", 0)
    ex = Stream()
    for c in range(3):
        EPh(ex, c, un, False)
        EPx(ex, c, un, False)
        if not batch:
            x1store(ex, c)
    if batch:
        for c in range(3):
            x1store(ex, c)
    EPh(ex, 3, x3, False)
    kvread(ex, 3)
    assert f1 < a0 - 30 and e0 > max(203, a1 + 24) and es >= a0
    k.extend(weave(conv_mfma(), [(stream(fills), f0, f1), (stream(g1_setup, cfg), f1 + 1, a0 - 1), (auxs, a0, a0 + 12),
                                 (stream(EPy, 0, False), 92, 138), (stream(early_stage), es, cfg.get("ee", es + 60)),
                                 (stream(stamp, 10), 119, 119), (stream(up_load), u0, u0), (stream(uchk), u1, u1 + 3),
                                 (stream(aux2), a1, a1 + 24), (stream(EPy, 1, False), 148, 174), (stream(EPy, 2, False), 175, 203),
                                 (stream(stamp, 11), 207, 207), (wa_, wa0, 287), (ex, e0, 287)]))
    stamp(k, 12)
    u_load(uad, ut)(k)
    tl = Stream()
    EPy(tl, 3, True)
    EPx(tl, 3, x3, True)
    x1store(tl, 3)
    k.extend(sprinkle(tl, wt, 0.0, cfg.get("wte", 0.6)))
    stamp(k, 45)
    k.barrier()
    maxchain(k, mxr, range(ut, ut + 4))
    check(k, stubs, "Lcv", u_load(uad, ut), list(range(ut, ut + 4)), mxr)
    u_keep(k, uad, ut)
    k.extend(wr)


def spare_path(cfg, stubs):
    out = []
    k = Stream()
    k("Lspare:")
    k(f"s_sub_u32 s{SUN}, s2, 160")
    k(f"s_cmp_lt_u32 s{SUN}, 54")
    k("s_cbranch_scc0 Lsp_b")
    k(f"s_cmp_ge_u32 s{SUN}, 8")
    k("s_cbranch_scc1 Lsp_a2")
    k(f"s_mov_b32 s48, s{SUN}")
    init_fill(k, 48)
    k("s_branch Lsp_a2")
    out.append(k)
    k = Stream()
    k("Lsp_b:")
    if cfg.get("x_front") == "conv":
        k("s_branch Lflush")
    k(f"s_sub_u32 s48, s{SUN}, 54")
    k("s_add_u32 s49, s48, 42")
    k("s_add_u32 s50, s48, 84")
    k("s_cmp_ge_u32 s50, 120")
    k("s_cselect_b32 s50, s49, s50")
    R = Alloc(VFREE, 250)
    m1, m2 = Mod(R, 44), Mod(R, 45)
    ic = R(2)
    k(f"s_cmp_eq_u32 {s(WAVE)}, 1")
    k("s_cselect_b32 s51, s49, s48")
    k(f"s_cmp_eq_u32 {s(WAVE)}, 2")
    k("s_cselect_b32 s51, s50, s51")
    Mod.decode(k, 51, 51)
    k(f"v_lshl_add_u32 {v(ic)}, {v(LANE)}, 2, s51")
    k(f"v_mov_b32 {v(ic + 1)}, -1")
    k(f"global_store_dword {v(ic)}, {v(ic + 1)}, {sp(WS)} offset:{MODP} sc1")
    m1.issue(k, 48)
    k("s_lshl_b32 s4, s48, 2")
    k("s_add_u32 s4, s4, 60")
    k(f"v_mov_b32 {v(ic)}, s4")
    k.wait(m1.first)
    k("s_barrier")
    st = Stream()
    st(f"s_cmp_lg_u32 {s(WAVE)}, 0")
    st("s_cbranch_scc1 Lsb_skip")
    st(f"global_store_dword {v(ic)}, {v(ic + 1)}, {sp(DBG)} sc1")
    st("s_branch Lsb_skip2")
    st("Lsb_skip:")
    st(f"global_load_dword {v(ic + 1)}, {v(ic)}, {sp(C)}")
    st("Lsb_skip2:")
    k.raw(st)
    k.ghost(1)
    stamp(k, 42)
    i2 = stream(lambda st_: m2.issue(st_, 49))
    cut = [i for i, x in enumerate(i2.ins) if x.cls == "vmem"][cfg.get("b2", 7)]
    k.ins.extend(i2.ins[:cut])
    m1.finish(k, XSB, None, "s1")
    k.ins.extend(i2.ins[cut:])
    stamp(k, 2)
    st = Stream()
    st("s_cmp_ge_u32 s48, 27")
    st("s_cbranch_scc1 Lsb_n3")
    wout_issue(st, 48, ic, 0)
    st("s_waitcnt vmcnt(10)")
    st("s_branch Lsb_n4")
    st("Lsb_n3:")
    st("s_add_u32 s50, s48, 78")
    m1.issue(st, 50)
    st("s_waitcnt vmcnt(11)")
    st("Lsb_n4:")
    k.raw(st)
    k.forget()
    m2.finish(k, XSB + 1024, None, "s2")
    stamp(k, 4)
    init_check_wg(k, "Lbic", ic)
    k.drain(lgkm=False)
    k("s_cmp_ge_u32 s48, 27")
    k("s_cbranch_scc1 Lsp_b3")
    out.append(k)
    k = Stream()
    k("s_barrier")
    wout_finish(k, 48, Alloc(VFREE + 2, 250), 0)
    k("s_lshl_b32 s4, s48, 7")
    k(f"s_add_u32 s51, s4, {SDF}")
    k("s_branch Lsp_d")
    out.append(k)
    k = Stream()
    k("Lsp_a2:")
    if cfg.get("x_front") == "conv":
        k("s_branch Lflush")
    wp_unit2(k, SUN, cfg)
    stamp(k, 2)
    k("s_branch Lsp_c")
    out.append(k)
    k = Stream()
    k("Lsp_b3:")
    m1.finish(k, XSB + 2048, None, "s3")
    out.append(k)
    k = Stream()
    k("Lsp_c:")
    k(f"s_mov_b32 s51, {SDF + 32 * 128}")
    k("Lsp_d:")
    k("s_mov_b32 s93, s51")
    stamp(k, 6)
    if cfg.get("x_front"):
        k("s_branch Lflush")
    t, d, ut = 100, 102, 112
    k.barrier()
    bias_load(k)
    k_order(k)
    nes, nes0 = cfg.get("ne", 0), cfg.get("nes0", 0)
    stamp(k, 7)
    w_setup(k)
    ua_ = d + 4
    u_addr(k, ua_, t + 1)
    k(f"v_and_b32 {v(t)}, 1, {v(Q_)}")
    k(f"v_mul_u32_u24 {v(t)}, {56 * 128}, {v(t)}")
    k(f"v_sub_u32 {v(t)}, {v(ua_)}, {v(t)}")
    poll(k, "Lsp", lambda st_: st_(f"global_load_dword {v(ut)}, {v(t)}, {sp(WS)} sc1"), [ut], ut, cfg.get("slu", 4))
    k("s_barrier")
    st = Stream()
    st(f"s_cmp_eq_u32 s93, {SDF + 32 * 128}")
    st("s_cbranch_scc1 Lsd_none")
    flag_store(st, "Lsd_skip", d + 1, 93)
    st("Lsd_none:")
    k.raw(st)
    stamp(k, 8)
    k.extend(sprinkle(stream(g1_setup, cfg), stream(w_loads, 0, cfg.get("wlate", 4), 20, -1), 0.0, 1.0))
    for i in range(nes):
        wsp_dma(k, i, DO)
    k(f"s_lshl_b32 s4, s{SRB}, 9")
    k(f"s_add_u32 s4, s4, {ST1 + 4}")
    k(f"v_lshl_add_u32 {v(d)}, {v(LANE)}, 3, s4")

    def us_loads(st):
        u_load(ua_, ut)(st)
        st(f"global_load_dword {v(ut + 4)}, {v(d)}, {sp(WS)} sc1")

    poll(k, "Lsu", us_loads, list(range(ut, ut + 5)), t + 1, cfg.get("slu", 4))
    u_keep(k, ua_, ut)
    if cfg.get("wtouch", 1):
        k(f"s_sub_u32 s5, s{SRI}, 5")
        k(f"v_mad_u32_u24 {v(t)}, {v(LANE)}, 3, s5")
        k(f"v_min_u32 {v(t)}, 159, {v(t)}")
        k(f"v_lshlrev_b32 {v(t)}, 7, {v(t)}")
        for sl in range(2):
            k(f"s_mul_i32 s4, s{96 + sl}, 20480")
            k(f"s_add_u32 s4, s4, {WP + 56 * 20480}")
            k(f"v_add_u32 {v(t + 1)}, s4, {v(t)}")
            k(f"global_load_dword {v(d + 2 + sl)}, {v(t + 1)}, {sp(WS)} sc1")
    stamp(k, 9)
    k("s_barrier")
    stamp(k, 10)
    k("s_branch Ljoin")
    out.append(k)
    return out
```

```python
import math
from asmlib import Stream, Alloc, v, a, s, weave, sprinkle
from blocks import *

N_, Q_, L16, TROW, WO0, WO1 = 2, 3, 4, 5, 6, 7
UZ2, UZ1 = 8, 12
VFREE = 28
SRB, SCB, SUN, SRI = 40, 41, 42, 43
SPIN = 0x40000
JB, ZB, WB, GC, MK, SW9, STGW = 44, 52, 68, 84, 86, 88, 89

KT, KCP = 0, 4224
UT, UCP = 8 * KCP, 4640
UCH = 2 * UCP
YT, YCH = 0, 1056
AI, AFR = 0, 1040
STG = 80 * AFR
SX = STG + 65536
TB = SX + 2048
RED = 135 * 1024
MAIN_LDS = 163840

C0 = -2.0 * math.sqrt(2.0 / math.pi) * math.log2(math.e)
C1 = C0 * 0.044715


def common_regs(k):
    k(f"v_and_b32 {v(N_)}, 15, {v(LANE)}")
    k(f"v_lshrrev_b32 {v(Q_)}, 4, {v(LANE)}")
    k(f"v_lshlrev_b32 {v(L16)}, 4, {v(LANE)}")
    k(f"v_lshrrev_b32 {v(WO0)}, 2, {v(N_)}")
    k(f"v_and_b32 {v(TROW)}, 3, {v(N_)}")
    k(f"v_lshl_add_u32 {v(TROW)}, {v(WO0)}, 3, {v(TROW)}")


def role_ids(k):
    k("s_mov_b32 s100, 0")
    k("s_and_b32 s4, s2, 7")
    k("s_lshr_b32 s5, s2, 3")
    k(f"s_lshr_b32 s{SRI}, s5, 2")
    k(f"s_lshr_b32 s6, s{SRI}, 1")
    k("s_lshl_b32 s6, s6, 3")
    k("s_and_b32 s7, s4, 6")
    k("s_add_u32 s6, s6, s7")
    k(f"s_and_b32 s7, s{SRI}, 1")
    k(f"s_add_u32 s{SRB}, s6, s7")
    k("s_and_b32 s6, s4, 1")
    k("s_lshl_b32 s6, s6, 2")
    k("s_and_b32 s7, s5, 3")
    k(f"s_add_u32 s{SCB}, s6, s7")


def maxchain(k, dst, regs, first=True, tag=None):
    op2 = {None: "v_max_u32", 1: "v_and_b32", 0: "v_or_b32"}[tag]
    op3 = {None: "v_max3_u32 {}", 1: "v_bitop3_b32 {} bitop3:0x80", 0: "v_or3_b32 {}"}[tag]
    regs = list(regs)
    if first:
        if len(regs) == 1:
            if dst != regs[0]:
                k(f"v_mov_b32 {v(dst)}, {v(regs[0])}")
            regs = []
        elif len(regs) % 2:
            k(op3.format(f"{v(dst)}, {v(regs[0])}, {v(regs[1])}, {v(regs[2])}"))
            regs = regs[3:]
        else:
            k(f"{op2} {v(dst)}, {v(regs[0])}, {v(regs[1])}")
            regs = regs[2:]
    for i in range(0, len(regs), 2):
        k(op3.format(f"{v(dst)}, {v(regs[i])}, {v(regs[i + 1])}, {v(dst)}"))


def badcmp(k, tmp, tag=None):
    if tag is None:
        k(f"v_cmp_eq_u32 vcc, -1, {v(tmp)}")
    else:
        k(f"v_and_b32 {v(tmp)}, 1, {v(tmp)}")
        k(f"v_cmp_ne_u32 vcc, {tag}, {v(tmp)}")


def set_tag(k, r, tag):
    k(f"v_or_b32 {v(r)}, 1, {v(r)}" if tag else f"v_and_b32 {v(r)}, -2, {v(r)}")


def poll(k, name, loads, regs, tmp, sleep=0, tag=None):
    if sleep:
        k(f"s_branch {name}_f")
    k(f"{name}:")
    if sleep:
        k(f"s_sleep {sleep}")
        k(f"{name}_f:")
    loads(k)
    k.drain(lgkm=False)
    maxchain(k, tmp, regs, tag=tag)
    badcmp(k, tmp, tag)
    k("s_add_u32 s100, s100, 1")
    k(f"s_cmp_ge_u32 s100, {SPIN}")
    k(f"s_cbranch_scc1 {name}_x")
    k(f"s_cbranch_vccnz {name}")
    k(f"{name}_x:")


def check(k, stubs, name, loads, regs, tmp, cmp=True, tag=None, sleep=0):
    if cmp:
        badcmp(k, tmp, tag)
    k(f"s_cbranch_vccnz {name}_r")
    k(f"{name}_ok:")
    st = Stream()
    st(f"{name}_r:")
    st("s_nop 7")
    poll(st, name + "_p", loads, regs, tmp, sleep, tag=tag)
    st("s_nop 1")
    st(f"s_branch {name}_ok")
    stubs.append(st)


WA = 8


def w_setup(k):
    k(f"s_and_b32 s4, s{SCB}, 1")
    k(f"s_lshl_b32 s5, {s(WAVE)}, 1")
    k("s_add_u32 s5, s5, s4")
    k("s_cmp_eq_u32 s5, 7")
    k("s_cselect_b32 s5, 0, s5")
    k(f"s_mul_i32 s96, s{SCB}, 7")
    k("s_add_u32 s96, s96, s5")
    k("s_cmp_lt_u32 s96, 54")
    k("s_cselect_b32 s101, 2, 0")
    k("s_min_u32 s96, s96, 53")
    k(f"s_cmp_eq_u32 {s(WAVE)}, 3")
    k("s_cselect_b32 s101, 1, s101")
    k("s_lshr_b32 s97, s101, 1")
    k("s_cselect_b32 s5, -1, 0")
    k(f"v_and_b32 {v(WO1)}, s5, {v(L16)}")
    k("s_add_u32 s97, s97, s96")
    for sl in range(2):
        k(f"s_mul_i32 s4, s{96 + sl}, 20480")
        for i in range(3):
            k(f"s_add_u32 s5, s4, {WP + 4096 + 8192 * i}")
            k(f"s_add_u32 s{WA + 6 * sl + 2 * i}, s{WS}, s5")
            k(f"s_addc_u32 s{WA + 6 * sl + 2 * i + 1}, s{WS + 1}, 0")


WA2 = ZB


def w_next_part(k):
    for i in range(6):
        k(f"s_add_u32 s{WA2 + 2 * i}, s{WA + 2 * i}, {56 * 20480}")
        k(f"s_addc_u32 s{WA2 + 2 * i + 1}, s{WA + 2 * i + 1}, 0")


UTB = 156672


def u_addr(k, t, t1):
    k(f"v_bfe_u32 {v(t)}, {v(LANE)}, 3, 1")
    k("s_sub_u32 s4, s97, s96")
    k(f"v_mul_u32_u24 {v(t)}, s4, {v(t)}")
    k(f"v_add_lshl_u32 {v(t)}, {v(t)}, s96, 7")
    k(f"v_mul_u32_u24 {v(t1)}, {56 * 128}, {v(Q_)}")
    k(f"v_add_u32 {v(t)}, {v(t)}, {v(t1)}")
    k(f"v_and_b32 {v(t1)}, 112, {v(L16)}")
    k(f"v_add_u32 {v(t)}, {v(t)}, {v(t1)}")
    k(f"v_add_u32 {v(t)}, {U}, {v(t)}")


def u_load(t, d):
    return lambda k: k(f"global_load_dwordx4 {v(d, 4)}, {v(t)}, {sp(WS)} sc1")


def u_keep(k, t, d):
    for j in range(2):
        k(f"v_permlane32_swap_b32 {v(d + j)}, {v(d + 2 + j)}")
    k(f"s_lshl_b32 s4, {s(WAVE)}, 9")
    k(f"s_add_u32 s4, s4, {UTB}")
    k(f"v_and_b32 {v(t)}, 496, {v(L16)}")
    for j in range(2):
        k(f"v_add_f32 {v(d + j)}, {v(d + j)}, {v(d + 2 + j)}")
    k(f"v_bfe_u32 {v(d + 2)}, {v(LANE)}, 3, 1")
    k(f"v_cmp_gt_u32 vcc, s101, {v(d + 2)}")
    k(f"v_lshrrev_b32 {v(d + 2)}, 5, {v(LANE)}")
    k(f"v_lshl_add_u32 {v(t)}, {v(d + 2)}, 3, {v(t)}")
    for j in range(2):
        k(f"v_cndmask_b32 {v(d + j)}, 0, {v(d + j)}, vcc")
    k(f"v_add_u32 {v(t)}, s4, {v(t)}")
    k(f"ds_write_b64 {v(t)}, {v(d, 2)}")


def wreg(part, ks, sl):
    return (96 if part == 0 else 0) + 8 * ks + 4 * sl


def w_load(k, part, ks, sl):
    b = (WA2 if part else WA) + 6 * sl + 2 * (ks // 8)
    k(f"global_load_dwordx4 {a(wreg(part, ks, sl), 4)}, {v(WO1 if sl else L16)}, s[{b}:{b + 1}] offset:{1024 * (ks % 8) - 4096} sc1")


def w_loads(k, part, k0, k1, step=1):
    for ks in range(k0, k1)[::step]:
        for sl in range(2):
            w_load(k, part, ks, sl)


def flag_store(st, name, t, sreg):
    st(f"v_mov_b32 {v(t)}, s{sreg}")
    fl = Stream()
    fl(f"s_cmp_lg_u32 {s(WAVE)}, 0")
    fl(f"s_cbranch_scc1 {name}")
    fl(f"global_store_dword {v(t)}, {v(t)}, {sp(WS)} sc1")
    fl(f"{name}:")
    st.raw(fl)


def stream(fn, *args):
    st = Stream()
    fn(st, *args)
    return st


def gelu(k, regs, tmp, gc):
    n = len(regs)
    for i, r in enumerate(regs):
        pk(k, "mul", tmp + 2 * i, [("p", r), ("p", r)])
    for i, r in enumerate(regs):
        pk(k, "fma", tmp + 2 * i, [("p", tmp + 2 * i), ("sb", gc + 1), ("sb", gc)])
    for i, r in enumerate(regs):
        pk(k, "mul", tmp + 2 * i, [("p", tmp + 2 * i), ("p", r)])
    for i in range(2 * n):
        k(f"v_exp_f32 {v(tmp + i)}, {v(tmp + i)}")
    for i in range(n):
        pk(k, "add", tmp + 2 * i, [("p", tmp + 2 * i), ("c", "1.0")])
    for i in range(2 * n):
        k(f"v_rcp_f32 {v(tmp + i)}, {v(tmp + i)}")
    for i, r in enumerate(regs):
        pk(k, "mul", r, [("p", r), ("p", tmp + 2 * i)])


GBT = RED + 2 * 12288


def k_order(k):
    k(f"s_and_b32 s4, s{SCB}, 3")
    k("s_cmp_eq_u32 s4, 0")
    k("s_cselect_b32 s5, 8, 0")
    k("s_cmp_le_u32 s4, 1")
    k("s_cselect_b32 s6, 16, 8")
    k("s_cmp_eq_u32 s4, 3")
    k(f"s_cselect_b32 s{JB + 6}, 16, 24")
    k(f"s_lshl_b32 s{JB}, s4, 3")
    k(f"s_bitcmp1_b32 s{SRI}, 0")
    k(f"s_cselect_b32 s{JB + 2}, s6, s5")
    k(f"s_cselect_b32 s{JB + 4}, s5, s6")
    k(f"s_lshl_b32 s5, {s(WAVE)}, 1")
    for qi in range(4):
        k(f"s_add_u32 s{JB + 2 * qi}, s{JB + 2 * qi}, s5")
        k(f"s_add_u32 s{JB + 2 * qi + 1}, s{JB + 2 * qi}, 1")
    k(f"s_lshl_b32 s5, s{SRB}, 18")
    for i in range(8):
        k(f"s_lshl_b32 s6, s{JB + i}, 7")
        k("s_add_u32 s6, s6, s5")
        k(f"s_add_u32 s{WB + 2 * i}, s{WSP}, s6")
        k(f"s_addc_u32 s{WB + 2 * i + 1}, s{WSP + 1}, 0")
    k(f"s_lshl_b32 s{STGW}, {s(WAVE)}, 14")
    k(f"s_add_u32 s{STGW}, s{STGW}, {STG}")


BSR = 27
DO = 74


def bias_load(k):
    k(f"s_lshr_b32 s5, {s(WAVE)}, 1")
    k("s_lshl_b32 s5, s5, 5")
    k(f"s_and_b32 s6, {s(WAVE)}, 1")
    k("s_lshl_b32 s6, s6, 2")
    k("s_add_u32 s6, s6, s5")
    k(f"s_lshl_b32 s5, s{SRB}, 6")
    k("s_add_u32 s90, s6, s5")
    k(f"v_add_lshl_u32 {v(BSR)}, {v(TROW)}, s90, 1")
    k(f"global_load_ushort {v(BSR)}, {v(BSR)}, {sp(BSP)}")


def dma_offsets(k, do, t0, t1):
    k(f"v_lshrrev_b32 {v(t0)}, 3, {v(LANE)}")
    k(f"v_lshlrev_b32 {v(t0)}, 12, {v(t0)}")
    k(f"v_bfe_u32 {v(t1)}, {v(LANE)}, 4, 1")
    k(f"v_xor_b32 {v(t1)}, {v(t1)}, {v(LANE)}")
    k(f"v_and_b32 {v(t1)}, 7, {v(t1)}")
    for pi in range(4):
        k(f"v_xor_b32 {v(do + pi)}, {2 * pi}, {v(t1)}")
        k(f"v_lshl_add_u32 {v(do + pi)}, {v(do + pi)}, 4, {v(t0)}")
        if pi:
            k(f"v_add_u32 {v(do + pi)}, {pi * (8 * 4096 - 1024)}, {v(do + pi)}")
        k(f"v_add_u32 {v(do + 4 + pi)}, {32 * 4096}, {v(do + pi)}")


def wsp_dma(st, i, do):
    toks = []
    for pi in range(8):
        if pi % 4 == 0:
            st(f"s_add_u32 m0, s{STGW}, {(i & 1) * 8192 + 1024 * pi}")
        toks.append(st(f"global_load_lds_dwordx4 {v(do + pi)}, s[{WB + 2 * i}:{WB + 2 * i + 1}] offset:{1024 * (pi % 4)}"))
    return toks


def g1_setup(k, cfg):
    l8, bs, xa, xo0, t0, aw0, t1, srow, pa, do, ra = 30, 32, 46, 66, 67, 68, 69, 70, 72, DO, 82
    k(f"v_and_b32 {v(t0)}, 7, {v(LANE)}")
    k(f"v_lshl_add_u32 {v(t0)}, {v(Q_)}, 3, {v(t0)}")
    k(f"v_bfe_u32 {v(t1)}, {v(LANE)}, 3, 1")
    k(f"v_lshlrev_b32 {v(xo0)}, 9, {v(t1)}")
    k(f"v_lshl_add_u32 {v(xo0)}, {v(t0)}, 4, {v(xo0)}")
    k(f"s_mul_i32 s4, {s(WAVE)}, 20480")
    k(f"s_mul_i32 s5, s{SRB}, {XRB}")
    k("s_add_u32 s4, s4, s5")
    k(f"s_add_u32 s4, s4, {X1}")
    k(f"v_add_u32 {v(xo0)}, s4, {v(xo0)}")
    k(f"v_lshl_add_u32 {v(srow)}, {v(t0)}, 1, {v(t1)}")
    psh = cfg.get("psh", 0)
    k(f"v_min_u32 {v(pa)}, {(40 >> psh) - 1}, {v(LANE)}")
    k(f"v_lshl_add_u32 {v(pa)}, {v(pa)}, {9 + psh}, s4")
    k(f"v_lshrrev_b32 {v(t0)}, 5, {v(LANE)}")
    k(f"v_bfe_u32 {v(aw0)}, {v(LANE)}, 1, 1")
    k(f"v_lshl_add_u32 {v(t0)}, {v(t0)}, 1, {v(aw0)}")
    k(f"v_mul_u32_u24 {v(aw0)}, {AFR}, {v(t0)}")
    for bit, sh in ((3, 3), (2, 6), (4, 7), (0, 5)):
        k(f"v_bfe_u32 {v(t0)}, {v(LANE)}, {bit}, 1")
        k(f"v_lshl_add_u32 {v(aw0)}, {v(t0)}, {sh}, {v(aw0)}")
    k(f"s_mul_i32 s5, {s(WAVE)}, {20 * AFR}")
    k(f"v_add_u32 {v(aw0)}, s5, {v(aw0)}")
    k(f"v_lshlrev_b32 {v(l8)}, 3, {v(LANE)}")
    k(f"s_lshl_b32 s{SW9}, {s(WAVE)}, 9")
    dma_offsets(k, do, t0, t1)
    k(f"v_lshrrev_b32 {v(t1)}, 1, {v(N_)}")
    k(f"v_xor_b32 {v(t1)}, {v(t1)}, {v(Q_)}")
    k(f"v_lshlrev_b32 {v(t1)}, 4, {v(t1)}")
    k(f"v_lshl_add_u32 {v(t1)}, {v(TROW)}, 7, {v(t1)}")
    for tau in range(4):
        k(f"s_xor_b32 s4, {s(WAVE)}, {tau}")
        k("s_lshr_b32 s5, s4, 1")
        k("s_lshl_b32 s5, s5, 12")
        k("s_and_b32 s4, s4, 1")
        k("s_lshl_b32 s4, s4, 9")
        k("s_add_u32 s4, s4, s5")
        k(f"s_add_u32 s4, s4, s{STGW}")
        k(f"v_add_u32 {v(ra + 2 * tau)}, s4, {v(t1)}")
        k(f"v_xor_b32 {v(ra + 2 * tau + 1)}, 64, {v(ra + 2 * tau)}")
    w_next_part(k)
    k(f"s_mov_b32 s{GC}, {hex(fbits(C0))}")
    k(f"s_mov_b32 s{GC + 1}, {hex(fbits(C1))}")
    for j in range(4):
        k(f"v_lshlrev_b32 {v(bs + j)}, 16, {v(BSR)}")
    k(f"s_mul_i32 s5, s{SCB}, 10")
    k(f"s_mul_i32 s6, {s(WAVE)}, {AFR}")
    for j in range(2):
        if j:
            k(f"v_lshrrev_b32 {v(t0)}, 1, {v(Q_)}")
        k(f"v_add_u32 {v(t0)}, s5, {v(t0 if j else Q_)}")
        k(f"v_lshrrev_b32 {v(t1)}, 2, {v(t0)}")
        k(f"v_mul_u32_u24 {v(t1)}, {4 * AFR - 1024}, {v(t1)}")
        k(f"v_lshl_add_u32 {v(t1)}, {v(t0)}, 8, {v(t1)}")
        k(f"v_lshl_add_u32 {v(t1)}, {v(N_)}, 4, {v(t1)}")
        k(f"v_add_u32 {v(xa + j)}, s6, {v(t1)}")
    k(f"v_and_b32 {v(t0)}, 1, {v(Q_)}")
    k(f"v_lshl_add_u32 {v(xa + 1)}, {v(t0)}, 3, {v(xa + 1)}")


def gemm_phases(k, stubs, cfg):
    if cfg.get("tch"):
        cfg["tch"] = {int(a_): b_ for a_, b_ in cfg["tch"].items()}
    t0, t1, l8, bs, xres, zp, z1r = 28, 29, 30, 32, 36, 46, 48
    afr, NAF = 48, 6
    st4, xo0, xo, aw0, aw, srow, mx, pa = 62, 66, 67, 68, 69, 70, 71, 72
    do, ra, pr, xr = 74, 82, 90, 98
    rs, tmp, rz1 = 98, 130, 162
    tw, tq, tn, ar1, so, t2 = 170, 171, 172, 173, 174, 175
    acc2, acc1, gq, xa = 178, 210, 242, 46
    if cfg.get("ct1", 1):
        code_touch(k, "Lx_go", "Lmid", 254)
    stamp(k, 14)
    k(f"s_cmp_lt_u32 s{SRI}, {cfg.get('xskip', 5)}")
    k("s_cbranch_scc1 Lx_first")
    k("Lx_redo:")
    pst = Stream()
    poll(pst, "Lxp", lambda st: st(f"global_load_dword {v(mx)}, {v(pa)}, {sp(WS)} offset:508 sc1"), [mx], mx, cfg.get("slx", 1), tag=1)
    k.raw(pst)
    k("Lx_first:")
    stamp(k, 15)
    k(f"s_mov_b32 s7, {hex(ONES)}")
    k(f"v_add_u32 {v(xo)}, 4096, {v(xo0)}")
    AHEAD = cfg.get("xahead", 10)

    def xload(i):
        k(f"global_load_dwordx4 {v(xr + 4 * i, 4)}, {v(xo)}, {sp(WS)} offset:{1024 * (i % 8) - 4096} sc1")
        if i % 8 == 7:
            k(f"v_add_u32 {v(xo)}, 8192, {v(xo)}")

    for i in range(AHEAD):
        xload(i)
    for j in range(4):
        k(f"v_mov_b32 {v(st4 + j)}, 0")
    k(f"v_mov_b32 {v(mx)}, -1")
    wl = [(ks, sl) for ks in range(cfg.get("wlate", 4)) for sl in range(2)]
    for i in range(20):
        if i + AHEAD < 20:
            xload(i + AHEAD)
        elif wl:
            w_load(k, 0, *wl.pop(0))
        if i % 4 == 0:
            k(f"v_add_u32 {v(aw)}, {(i // 4) * 4 * AFR}, {v(aw0)}")
        k(f"ds_write2_b64 {v(aw)}, {v(xr + 4 * i, 2)}, {v(xr + 4 * i + 2, 2)} offset0:{32 * (i % 4)} offset1:{32 * (i % 4) + 2}")
        if i & 1:
            maxchain(k, mx, [xr + 4 * i - 1, xr + 4 * i + 3], first=False, tag=1)
        for j in range(2):
            for r in range(2):
                src = xr + 4 * i + 2 * r + j
                k(f"v_dot2_f32_bf16 {v(st4 + 2 * r)}, {v(src)}, s7, {v(st4 + 2 * r)}")
                k(f"v_dot2_f32_bf16 {v(st4 + 2 * r + 1)}, {v(src)}, {v(src)}, {v(st4 + 2 * r + 1)}")
    badcmp(k, mx, 1)
    k(f"s_cmp_ge_u32 s100, {SPIN}")
    k("s_cbranch_scc1 Lx_go")
    k("s_cbranch_vccnz Lx_redo")
    k("Lx_go:")
    for j in range(2):
        k(f"v_add_f32_dpp {v(pr + j)}, {v(st4 + j)}, {v(st4 + j)} row_ror:8 row_mask:0xf bank_mask:0x3")
        k(f"v_add_f32_dpp {v(pr + j)}, {v(st4 + 2 + j)}, {v(st4 + 2 + j)} row_ror:8 row_mask:0xf bank_mask:0xc")
    k(f"s_add_u32 s4, s{SW9}, {SX}")
    k(f"v_lshl_add_u32 {v(t0)}, {v(srow)}, 3, s4")
    k(f"ds_write_b64 {v(t0)}, {v(pr, 2)}")
    k.barrier()
    stamp(k, 16)
    k(f"v_add_u32 {v(ar1)}, {40 * AFR}, {v(L16)}")
    wlate = cfg.get("wlate", 4)
    kord = [list(range(wlate, 20))[::-1] + list(range(wlate)), list(range(20))]

    def read_rs(st):
        for tbl in range(2):
            for h in range(2):
                for o in range(2):
                    st(f"ds_read_b128 {v(rs + 16 * tbl + 8 * h + 4 * o, 4)}, {v(tq)} offset:{256 * tbl + 128 * h + 16 * o}")

    def mainloop(acc, part):
        st = Stream()

        def aread(f):
            ks, mt = kord[part][f >> 2], f & 3
            return st(f"ds_read_b128 {v(afr + 4 * (f % NAF), 4)}, {v(ar1 if ks >= 10 else L16)} offset:{AI + (4 * (ks % 10) + mt) * AFR}")

        tok = {f: aread(f) for f in range(NAF - 1)}
        for f in range(80):
            ks, mt = kord[part][f >> 2], f & 3
            if f % 2 == 0:
                st.wait(tok[f + 1])
            for sl in range(2):
                d = v(acc + 16 * sl + 4 * mt, 4)
                x, w = v(afr + 4 * (f % NAF), 4), a(wreg(part, ks, sl), 4)
                st(f"v_mfma_f32_16x16x32_bf16 {d}, {w if part else x}, {x if part else w}, {d if f >= 4 else 0}")
                if sl == 0 and f + NAF - 1 < 80:
                    tok[f + NAF - 1] = aread(f + NAF - 1)
        return st

    sf = Stream()
    sf(f"v_add_u32 {v(t0)}, {SX}, {v(l8)}")
    for i in range(4):
        sf(f"ds_read_b64 {v(pr + 2 * i, 2)}, {v(t0)} offset:{512 * i}")
    sf(f"s_add_u32 s4, s{SW9}, {TB}")
    sf(f"v_lshl_add_u32 {v(tw)}, {v(LANE)}, 2, s4")
    sf(f"v_lshl_add_u32 {v(tq)}, {v(Q_)}, 5, s4")
    sf(f"v_lshl_add_u32 {v(tn)}, {v(TROW)}, 2, s4")
    vop(sf, "add", pr, [("p", pr), ("p", pr + 2)], False)
    vop(sf, "add", pr + 4, [("p", pr + 4), ("p", pr + 6)], False)
    vop(sf, "add", pr, [("p", pr), ("p", pr + 4)], False)
    row_stats(sf, pr, pr + 1, D, pr + 2)
    sf(f"ds_write2st64_b32 {v(tw)}, {v(pr)}, {v(pr + 1)} offset0:0 offset1:1")
    read_rs(sf)
    for mt in range(4):
        off = 128 * (mt >> 1) + 16 * (mt & 1)
        sf(f"ds_read_b32 {v(rz1 + 2 * mt)}, {v(tn)} offset:{off}")
        sf(f"ds_read_b32 {v(rz1 + 2 * mt + 1)}, {v(tn)} offset:{256 + off}")
    sf(f"s_add_u32 s4, s{SW9}, {UTB}")
    sf(f"v_lshl_add_u32 {v(t0)}, {v(N_)}, 2, s4")
    for sl in range(2):
        sf(f"ds_read2_b32 {v(UZ2 + 2 * sl, 2)}, {v(t0)} offset0:{32 * sl} offset1:{32 * sl + 16}")
    sf(f"v_lshl_add_u32 {v(t0)}, {v(Q_)}, 4, s4")
    for j in range(4):
        sf(f"ds_read_b128 {v(UZ1 + 4 * j, 4)}, {v(t0)} offset:{256 + 64 * j}")
    for i in range(32):
        sf(f"v_fma_f32 {v(tmp + i)}, {v(rs + 16 + i % 16)}, {v(UZ2 + 2 * (i // 16))}, {v(UZ2 + 2 * (i // 16) + 1)}")
    apos = lambda i: (224, 192, 160, 0, 32, 64, 96, 128)[i]
    tk, rd = {0: [], 1: []}, {}

    def dma(st, i):
        st.wait(rd[i - 2])
        tk[i] = wsp_dma(st, i, do)

    def frag(st, i):
        st.wait(*tk[i])
        for ksl in range(2):
            for tau in range(4):
                rd[i] = st(f"ds_read_b128 {a(apos(i) + 16 * ksl + 4 * tau, 4)}, {v(ra + 2 * tau + ksl)} offset:{(i & 1) * 8192}")

    def turn(st, i):
        frag(st, i)
        if i + 2 < 8:
            dma(st, i + 2)

    nw1 = cfg.get("nw1", 6)
    nz2 = cfg.get("nz2", 0)
    allstaged = cfg.get("ne", 0)
    wz = Stream()
    for ks, sl in wl:
        w_load(wz, 0, ks, sl)
    for i in range(allstaged, 2):
        tk[i] = wsp_dma(wz, i, do)
    assert nw1 <= 12
    w_loads(wz, 1, 0, nw1)
    wz2 = Stream()
    for i in range(nz2):
        turn(wz2, i)
    wze = cfg.get("wze", 120)
    assert wze >= 32 * nz2
    k.extend(weave(mainloop(acc2, 0), [(sf, 4, 155), (wz, 0, wze if nz2 else 159), (wz2, wze + 1, 159)]))
    stamp(k, 17)
    zz = Stream()
    zz("s_nop 7")
    zz("s_cmp_eq_u32 s101, 2")
    zz("s_cbranch_scc1 Lz_keep")
    for i in range(16):
        zz(f"v_mov_b32 {v(acc2 + 16 + i)}, 0")
    zz("s_cmp_eq_u32 s101, 1")
    zz("s_cbranch_scc1 Lz_keep")
    for i in range(16):
        zz(f"v_mov_b32 {v(acc2 + i)}, 0")
    zz("Lz_keep:")
    k.raw(zz)

    e2 = Stream()
    for i in range(16):
        pk(e2, "fma", acc2 + 2 * i, [("p", acc2 + 2 * i), ("p", rs + 2 * (i % 8)), ("p", tmp + 2 * i)])
    gelu(e2, [acc2 + 2 * i for i in range(16)], tmp, GC)
    for i in range(8):
        pk(e2, "add", tmp + 2 * i, [("p", acc2 + 2 * i), ("p", acc2 + 16 + 2 * i)])
        pk(e2, "mul", tmp + 16 + 2 * i, [("p", acc2 + 2 * i), ("p", acc2 + 2 * i)])
    for i in range(8):
        pk(e2, "fma", tmp + 16 + 2 * i, [("p", acc2 + 16 + 2 * i), ("p", acc2 + 16 + 2 * i), ("p", tmp + 16 + 2 * i)])
    for i in range(16):
        e2(f"v_add_f32_dpp {v(rs + i)}, {v(tmp + i)}, {v(tmp + i)} row_ror:8 row_mask:0xf bank_mask:0x3")
    for i in range(16):
        e2(f"v_add_f32_dpp {v(rs + i)}, {v(tmp + 16 + i)}, {v(tmp + 16 + i)} row_ror:8 row_mask:0xf bank_mask:0xc")
    for i in range(8):
        e2(f"v_add_f32_dpp {v(tmp + i)}, {v(rs + i)}, {v(rs + i)} row_half_mirror row_mask:0xf bank_mask:0x5")
    for i in range(8):
        e2(f"v_add_f32_dpp {v(tmp + i)}, {v(rs + 8 + i)}, {v(rs + 8 + i)} row_half_mirror row_mask:0xf bank_mask:0xa")
    for i in range(8):
        e2(f"v_add_f32_dpp {v(tmp + i)}, {v(tmp + i)}, {v(tmp + i)} quad_perm:[1,0,3,2] row_mask:0xf bank_mask:0xf")
    for i in range(8):
        e2(f"v_add_f32_dpp {v(tmp + i)}, {v(tmp + i)}, {v(tmp + i)} quad_perm:[2,3,0,1] row_mask:0xf bank_mask:0xf")
    e2(f"v_lshrrev_b32 {v(t0)}, 2, {v(N_)}")
    e2(f"v_lshl_add_u32 {v(t0)}, {v(t0)}, 7, {v(tq)}")
    e2(f"ds_write_b128 {v(t0)}, {v(tmp, 4)}")
    e2(f"ds_write_b128 {v(t0)}, {v(tmp + 4, 4)} offset:16")
    sd = Stream()
    nw2 = cfg.get("nw2", 20)
    w_loads(sd, 1, nw1, nw2)
    ne2 = cfg.get("ne2", 1)
    for i in range(nz2, ne2):
        turn(sd, i)
    k.extend(sprinkle(e2, sd, 0.0, cfg.get("e2end", 0.9)))
    k.barrier()
    k(f"v_lshlrev_b32 {v(t0)}, 2, {v(LANE)}")
    k(f"v_add_u32 {v(t0)}, {TB}, {v(t0)}")
    for i in range(4):
        k(f"ds_read2st64_b32 {v(pr + 2 * i, 2)}, {v(t0)} offset0:{2 * i} offset1:{2 * i + 1}")
    k(f"s_lshl_b32 s4, s{SRB}, 12")
    k(f"s_add_u32 s4, s4, {ST3}")
    k(f"v_add_u32 {v(so)}, s4, {v(l8)}")
    k(f"s_lshl_b32 s4, s{SCB}, 9")
    k(f"v_add_u32 {v(t0)}, s4, {v(so)}")
    k(f"v_subrev_u32 {v(tw)}, {TB - SX}, {v(tw)}")
    k(f"v_subrev_u32 {v(tq)}, {TB - SX}, {v(tq)}")
    pk(k, "add", pr, [("p", pr), ("p", pr + 2)])
    pk(k, "add", pr + 4, [("p", pr + 4), ("p", pr + 6)])
    pk(k, "add", pr, [("p", pr), ("p", pr + 4)])
    k(f"v_min_u32 {v(pr)}, -2, {v(pr)}")
    k(f"v_min_u32 {v(pr + 1)}, -2, {v(pr + 1)}")
    k(f"s_lshl_b32 s4, {s(WAVE)}, 4")
    k(f"s_lshl_b64 exec, 0xffff, s4")
    k(f"global_store_dwordx2 {v(t0)}, {v(pr, 2)}, {sp(WS)} sc1")
    k(f"s_mov_b64 exec, -1")
    stamp(k, 18)
    sides = []
    first = max(nz2, ne2)
    w0 = (20 - nw2) * 8
    if w0:
        assert w0 + 24 <= 8 * nw2
        sides.append((stream(w_loads, 1, nw2, 20), 0, w0 - 1))
    pos = [w0 + ((130 - w0) * (i - first)) // (6 - first) for i in range(first, 7)] + [150]
    for n_, i in enumerate(range(first, 7)):
        lo_ = max(pos[n_], 32 * (i - 2) + 2)
        sides.append((stream(turn, i), lo_, max(lo_, max(pos[n_ + 1], 32 * (i - 1) + 2) - 1) if i < 6 else 150))
    pl = tmp

    def st3_loads(st):
        for i in range(8):
            st(f"global_load_dwordx2 {v(pl + 2 * i, 2)}, {v(so)}, {sp(WS)} offset:{512 * i} sc1")

    def misc_loads(st):
        st(f"v_min_u32 {v(t2)}, 26, {v(LANE)}")
        st(f"v_lshlrev_b32 {v(t2)}, 7, {v(t2)}")
        st(f"v_add_u32 {v(t2)}, {SDF}, {v(t2)}")
        st(f"global_load_dword {v(gq + 8)}, {v(t2)}, {sp(WS)} sc1")
        st(f"s_mul_i32 s7, s{SCB}, 320")
        st(f"s_add_u32 s7, s7, {MODP + 5 * D * 4}")
        st(f"v_min_u32 {v(t2)}, {19 * 16}, {v(L16)}")
        st(f"v_add_u32 {v(t2)}, s7, {v(t2)}")
        st(f"global_load_dwordx4 {v(gq, 4)}, {v(t2)}, {sp(WS)} sc1")
        st(f"v_add_u32 {v(t2)}, {MODS}, {v(t2)}")
        st(f"global_load_dwordx4 {v(gq + 4, 4)}, {v(t2)}, {sp(WS)} sc1")

    zs = cfg.get("zsplit", 120)
    s3 = stream(st3_loads)
    if cfg.get("ct2", 1):
        code_touch(s3, "Lmid", "Lend", 254)
    sides.append((s3, zs - cfg.get("st3", 30), zs - cfg.get("st3", 30) + 12))
    rr = Stream()
    misc_loads(rr)
    for j in range(2):
        rr(f"ds_read_b128 {v(xres + 4 * j, 4)}, {v(xa)} offset:{AI + 4 * AFR * j}")
    rr(f"ds_read_b64 {v(xres + 8, 2)}, {v(xa + 1)} offset:{AI + 8 * AFR}")
    gr = list(range(gq, gq + 9))
    maxchain(rr, t0, gr)
    check(rr, stubs, "Lgb", misc_loads, gr, t0)
    fin_mod4(rr, gq, gq + 4)
    if cfg.get("x_scale"):
        for j in range(4):
            rr(f"v_mul_f32 {v(gq + j)}, {hex(fbits(cfg['x_scale']))}, {v(gq + j)}")
    rr(f"v_min_u32 {v(t2)}, {19 * 16}, {v(L16)}")
    rr(f"v_add_u32 {v(t2)}, {GBT}, {v(t2)}")
    rr(f"ds_write_b128 {v(t2)}, {v(gq, 4)}")
    sides.append((rr, 2, zs - cfg.get("st3", 30) - 1))
    sc = Stream()
    sc(f"s_mul_i32 s91, s{SCB}, {64 * 7168}")
    sc(f"s_add_u32 s91, s91, {Z2}")
    for i in range(0, 8, 2):
        sc(f"s_mul_i32 s6, s{JB + i}, 14336")
        sc("s_add_u32 s6, s6, s91")
        sc(f"s_add_u32 s{ZB + 2 * i}, s{WS}, s6")
        sc(f"s_addc_u32 s{ZB + 2 * i + 1}, s{WS + 1}, 0")
        sc(f"s_add_u32 s{ZB + 2 * i + 2}, s{ZB + 2 * i}, 14336")
        sc(f"s_addc_u32 s{ZB + 2 * i + 3}, s{ZB + 2 * i + 1}, 0")
    sides.append((sc, max(zs + 1, w0 + 1), 158))
    zl = weave(mainloop(acc1, 1), sides)
    cutp = len(zl.ins)
    if zs < 160:
        cutp = [i for i, x in enumerate(zl.ins) if x.cls == "mfma"][zs]
    k.ins.extend(zl.ins[:cutp])
    stamp(k, 19)
    s3r = list(range(pl + 1, pl + 16, 2))
    maxchain(k, t0, s3r)
    check(k, stubs, "Ls3", st3_loads, s3r, t0)
    stamp(k, 20)
    for stp in (2, 4, 8):
        for i in range(0, 16, 2 * stp):
            pk(k, "add", pl + i, [("p", pl + i), ("p", pl + i + stp)])
    row_stats(k, pl, pl + 1, FH, pl + 2)
    k(f"ds_write2st64_b32 {v(tw)}, {v(pl)}, {v(pl + 1)} offset0:0 offset1:1")
    read_rs(k)
    k(f"s_lshl_b32 s4, s{SCB}, 6")
    k(f"s_lshl_b32 s5, s{SRB}, 1")
    k("s_add_u32 s4, s4, s5")
    k("s_mul_i32 s4, s4, 7168")
    k(f"s_lshl_b32 s5, {s(WAVE)}, 11")
    k("s_add_u32 s4, s4, s5")
    k(f"s_add_u32 s4, s4, {Z2}")
    k(f"v_add_u32 {v(t0)}, s4, {v(L16)}")
    k(f"v_add_u32 {v(t1)}, 7168, {v(t0)}")
    for sl in range(2):
        for h in range(2):
            for i in range(4 * h, 4 * h + 4):
                r = acc2 + 16 * sl + 2 * i
                pk(k, "fma", r, [("p", r), ("p", rs + 2 * i), ("p", rs + 16 + 2 * i)])
            o = tmp + 8 * sl + 4 * h
            for i in range(4):
                r = acc2 + 16 * sl + 8 * h + 2 * i
                k(f"v_cvt_pk_bf16_f32 {v(o + i)}, {v(r)}, {v(r + 1)}")
            set_tag(k, o + 3, 1)
            zs_ = f"global_store_dwordx4 {v(t1 if h else t0)}, {v(o, 4)}, {sp(WS)} offset:{1024 * sl} sc1"
            if sl:
                sk = Stream()
                sk(f"s_cmp_eq_u32 {s(WAVE)}, 3")
                sk(f"s_cbranch_scc1 Lzs_{h}")
                sk(zs_)
                sk(f"Lzs_{h}:")
                k.raw(sk)
            else:
                k(zs_)
    stamp(k, 21)
    k.ins.extend(zl.ins[cutp:])
    frag(k, 7)
    k.barrier()

    stash = UZ2
    zv, mx = 30, t0
    ring, acc = 62, 142
    G, NG, NA = 4, 5, 4
    steps = [4, 5, 6, 7, 8, 9, 10, 11, 0, 1, 2, 3, 12, 13, 14, 15]
    order = [(st_, sl) for st_ in steps[:NA] for sl in range(7)] + [(st_, sl) for sl in range(7) for st_ in steps[NA:]]
    ngrp = len(order) // G
    gA, gS = 7 * NA // G, (16 - NA) // G
    freg = lambda f: ring + 4 * (f % (G * NG))

    def gloads(g):
        def f(st):
            for fi in range(G * g, G * g + G):
                step, sl = order[fi]
                i, ksl = step >> 1, step & 1
                st(f"global_load_dwordx4 {v(freg(fi), 4)}, {v(zv + ksl)}, s[{ZB + 2 * i}:{ZB + 2 * i + 1}] offset:{1024 * sl - 3072} sc1")
        return f

    gregs = lambda g: [freg(fi) + 3 for fi in range(G * g, G * g + G)]
    nzf = cfg.get("zf", 4)

    def zfirst(st):
        if cfg.get("zprobe", 1):
            st(f"global_load_dword {v(zp)}, {v(t1)}, s[{ZB + 4}:{ZB + 5}] offset:1020 sc1")
        for g in range(nzf):
            gloads(g)(st)

    tmp1 = acc2
    e1 = Stream()
    e1(f"s_lshl_b32 s4, {s(WAVE)}, 10")
    e1(f"s_add_u32 s4, s4, {RED}")
    e1(f"v_add_u32 {v(tw)}, s4, {v(l8)}")
    e1(f"s_lshl_b32 s4, {s(WAVE)}, 12")
    e1(f"s_add_u32 s4, s4, {RED}")
    e1(f"v_add_u32 {v(tq)}, s4, {v(l8)}")
    e1(f"v_add_u32 {v(zv)}, 3072, {v(L16)}")
    e1(f"v_add_u32 {v(zv + 1)}, {3072 + 7168}, {v(L16)}")
    e1(f"v_min_u32 {v(t1)}, 27, {v(LANE)}")
    e1(f"v_lshlrev_b32 {v(t1)}, 10, {v(t1)}")
    for sl in range(2):
        for mt in range(4):
            for p in range(2):
                pk(e1, "fma", tmp1 + 4 * mt + 2 * p, [("p", UZ1 + 8 * sl + 2 * p), ("b", rz1 + 2 * mt + 1), ("p", UZ1 + 8 * sl + 4 + 2 * p)])
        for mt in range(4):
            for p in range(2):
                r = acc1 + 16 * sl + 4 * mt + 2 * p
                pk(e1, "fma", r, [("p", r), ("b", rz1 + 2 * mt), ("p", tmp1 + 4 * mt + 2 * p)])
    gelu(e1, [acc1 + 2 * i for i in range(16)], tmp1, GC)
    for i in range(16):
        e1(f"v_cvt_pk_bf16_f32 {v(tmp1 + i)}, {v(acc1 + 2 * i)}, {v(acc1 + 2 * i + 1)}")
    for sl in range(2):
        for mt in range(4):
            e1(f"ds_write_b64 {v(tw)}, {v(tmp1 + 8 * sl + 2 * mt, 2)} offset:{4096 * mt + 512 * sl}")
    wd = Stream()
    wd(f"s_mul_i32 s5, s{SCB}, {135 * 1024}")
    wd(f"s_add_u32 s5, s5, {WO}")
    wd(f"s_add_u32 s92, s{WS}, s5")
    wd(f"s_addc_u32 s93, s{WS + 1}, 0")
    wd(f"s_mul_i32 s95, {s(WAVE)}, {34 * 1024}")
    wd(f"s_min_u32 s95, s95, {101 * 1024}")
    wd("s_add_u32 s92, s92, s95")
    wd("s_addc_u32 s93, s93, 0")
    for r in range(34):
        if r % 4 == 0:
            wd(f"s_add_u32 m0, s95, {1024 * r}")
            if r:
                wd("s_add_u32 s92, s92, 4096")
                wd("s_addc_u32 s93, s93, 0")
        wd(f"global_load_lds_dwordx4 {v(L16)}, s[92:93] offset:{1024 * (r % 4)} sc1")
    vi = [i + 1 for i, x in enumerate(wd.ins) if x.cls == "vmem"]
    n1 = cfg.get("wo1", 10)
    nwg = cfg.get("wog", 4)
    wd1 = Stream()
    wd1.ins = wd.ins[:vi[n1 - 1]]
    cuts = [vi[n1 - 1 + ((34 - n1) * i) // nwg] for i in range(nwg + 1)]
    wd3 = [wd.ins[cuts[i]:cuts[i + 1]] for i in range(nwg)]
    zpos = cfg.get("zpos", 0.55)
    k.extend(sprinkle(sprinkle(e1, wd1, 0.0, zpos), stream(zfirst), zpos, 1.0))
    k.barrier()
    for sl in range(7):
        k(f"ds_read_b64 {v(z1r + 2 * sl, 2)}, {v(tq)} offset:{512 * sl}")
    stamp(k, 22)
    k("Lmid:")

    wa3, rda = stash + 12, stash + 15
    pvr = [WO0, WO1, UZ1 + 14, UZ1 + 15]
    su = Stream()
    for tau in range(1, 4):
        su(f"s_xor_b32 s4, {s(WAVE)}, {tau}")
        su("s_mul_i32 s4, s4, 3072")
        su(f"s_add_u32 s4, s4, {RED + 1024 * (tau - 1)}")
        su(f"v_add_u32 {v(wa3 + tau - 1)}, s4, {v(L16)}")
    su(f"s_mul_i32 s4, {s(WAVE)}, 3072")
    su(f"s_add_u32 s4, s4, {RED}")
    su(f"v_add_u32 {v(rda)}, s4, {v(L16)}")
    su(f"s_mul_i32 s4, s{SRB}, {XRB}")
    su(f"s_add_u32 s4, s4, {P + 4096}")
    su(f"s_lshl_b32 s5, {s(WAVE)}, 13")
    su("s_add_u32 s5, s5, s4")
    su(f"v_add_u32 {v(pvr[0])}, s5, {v(L16)}")
    for i in range(1, 3):
        su(f"v_add_u32 {v(pvr[i])}, {32768 * i}, {v(pvr[0])}")
    su(f"s_lshl_b32 s5, {s(WAVE)}, 12")
    su("s_add_u32 s5, s5, s4")
    su(f"s_add_u32 s5, s5, {3 * 32768}")
    su(f"v_add_u32 {v(pvr[3])}, s5, {v(L16)}")
    su(f"s_lshl_b32 s4, s{SCB}, 10")
    su(f"s_add_u32 s{WA}, s{WS}, s4")
    su(f"s_addc_u32 s{WA + 1}, s{WS + 1}, 0")
    su(f"s_lshr_b32 s4, s{SCB}, 1")
    su("s_lshl_b32 s4, s4, 10")
    su(f"s_and_b32 s5, s{SCB}, 1")
    su("s_lshl_b32 s5, s5, 3")
    su("s_add_u32 s4, s4, s5")
    su(f"s_add_u32 s{WA + 2}, s{WS}, s4")
    su(f"s_addc_u32 s{WA + 3}, s{WS + 1}, 0")
    su.barrier()

    def red_write(st, sl):
        for tau in range(1, 4):
            st(f"ds_write_b128 {v(wa3 + tau - 1)}, {v(acc + 16 * sl + 4 * tau, 4)} offset:{12288 * (sl & 1)}")
        st.barrier()

    def red_fin(st, sl, packed):
        A = acc + 16 * sl
        for tau in range(1, 4):
            st(f"ds_read_b128 {v(A + 4 * tau, 4)}, {v(rda)} offset:{12288 * (sl & 1) + 1024 * (tau - 1)}")
        un = stash + 4
        for p in range(2):
            unpack(st, un + 2 * p, un + 2 * p + 1, z1r + 2 * sl + p)
        for tau in range(1, 4):
            for p in range(2):
                vop(st, "add", A + 2 * p, [("p", A + 2 * p), ("p", A + 4 * tau + 2 * p)], packed)
        for p in range(2):
            vop(st, "mul", A + 2 * p, [("p", A + 2 * p), ("p", un + 2 * p)], packed)
        o = z1r + 2 * sl
        for p in range(2):
            st(f"v_cvt_pk_bf16_f32 {v(o + p)}, {v(A + 2 * p)}, {v(A + 2 * p + 1)}")
        if sl & 1 or sl == 6:
            set_tag(st, o + 1, 0)

    def pstore(st, j):
        if j == 3:
            st(f"global_store_dwordx2 {v(pvr[3])}, {v(z1r + 12, 2)}, {sp(WA + 2)} offset:-4096 sc1")
        else:
            st(f"global_store_dwordx4 {v(pvr[j])}, {v(z1r + 4 * j, 4)}, {sp(WA)} offset:-4096 sc1")

    kgrp = [[(7 * c + 1) // 2 + j for c in range(8) if (7 * c + 1) // 2 + j < 27] for j in range(3)] + [[3, 10, 17, 24]]
    pbase = [acc, acc + 32, acc + 64, acc + 96]

    def ploads(j):
        def f(st):
            for i, ks in enumerate(kgrp[j]):
                st(f"global_load_dwordx4 {v(pbase[j] + 4 * i, 4)}, {v(pvr[j])}, {sp(WS)} offset:{1024 * i - 4096} sc1")
        return f

    zr = ([zp] if cfg.get("zprobe", 1) else []) + gregs(0)
    maxchain(k, mx, zr, tag=1)
    check(k, stubs, "Lz0", zfirst, zr, mx, tag=1)
    stamp(k, 23)
    for g in range(nzf, NG - 1):
        gloads(g)(k)
    for g in range(ngrp):
        m = Stream()
        for fi in range(G * g, G * g + G):
            step, sl = order[fi]
            i, ksl = step >> 1, step & 1
            for tau in range(4):
                d = v(acc + 16 * sl + 4 * tau, 4)
                cin = d if step != steps[0] else (v(bs, 4) if tau == 0 else "0")
                m(f"v_mfma_f32_16x16x32_bf16 {d}, {v(freg(fi), 4)}, {a(apos(i) + 16 * ksl + 4 * tau, 4)}, {cin}")
        sides = []
        st = Stream()
        if g + NG - 1 < ngrp:
            gloads(g + NG - 1)(st)
        if g == cfg.get("pst", ngrp - NG + 1):
            pstore(st, 0)
            pstore(st, 1)
        gi = g - (ngrp - nwg)
        if gi >= 0:
            st.ins += wd3[gi]
        sides.append((st, 0, 15))
        if g == 1:
            sides.append((su, 0, 15))
        if g == cfg.get("ct3", -1):
            sides.append((stream(code_touch, "Lz20_ok", "Lend", 254), 0, 8))
        q3t = cfg.get("q3t", [0, 3])
        if g in q3t:
            i = 0 if g == q3t[0] else 6
            st = Stream()
            st(f"v_min_u32 {v(zp + 1)}, 27, {v(LANE)}")
            st(f"s_mul_i32 s6, s{SRI}, 28")
            st(f"v_add_lshl_u32 {v(zp + 1)}, {v(zp + 1)}, s6, 7")
            st(f"global_load_dword {v(stash + i // 6)}, {v(zp + 1)}, s[{ZB + 2 * i}:{ZB + 2 * i + 1}] sc1")
            sides.append((st, 0, 4))
        tch = cfg.get("tch")
        if tch and g in tch:
            s0, s1 = tch[g]
            st = Stream()
            st(f"v_min_u32 {v(zp + 1)}, {4 * (s1 - s0) - 1}, {v(LANE)}")
            st(f"v_and_b32 {v(stash + 2)}, 3, {v(zp + 1)}")
            st(f"v_mul_u32_u24 {v(stash + 2)}, {7168 - 256}, {v(stash + 2)}")
            st(f"v_lshl_add_u32 {v(zp + 1)}, {v(zp + 1)}, 8, {v(stash + 2)}")
            st(f"s_lshl_b32 s6, s{SRI}, 7")
            st(f"s_add_u32 s6, s6, {1024 * s0}")
            st(f"v_add_u32 {v(zp + 1)}, s6, {v(zp + 1)}")
            for i in (0, 6):
                st(f"global_load_dword {v(stash + i // 6)}, {v(zp + 1)}, s[{ZB + 2 * i}:{ZB + 2 * i + 1}] sc1")
            sides.append((st, 0, 9))
        if g + 1 < ngrp:
            st = Stream()
            maxchain(st, mx, gregs(g + 1), tag=1)
            badcmp(st, mx, 1)
            sides.append((st, 10, 14))
        if g >= gA + gS:
            sl, ph = divmod(g - gA - gS, gS)
            st = Stream()
            if ph == 0:
                red_write(st, sl)
                sides.append((st, 3, 14))
                fin = stream(red_fin, sl, False).ins
            else:
                per = -(-len(fin) // (gS - 1))
                st.ins = fin[(ph - 1) * per:ph * per]
                sides.append((st, 0, 15))
        k.extend(weave(m, sides))
        if g + 1 < ngrp:
            check(k, stubs, f"Lz{g + 1}", gloads(g + 1), gregs(g + 1), mx, cmp=False, tag=1)
        if g == gA - 1:
            stamp(k, 24)
    stamp(k, 25)
    early = cfg.get("pearly", 2)
    tl = Stream()
    red_write(tl, 6)
    red_fin(tl, 6, True)
    pe = Stream()
    for j in range(early):
        ploads(j)(pe)
    k.extend(sprinkle(tl, pe, 0.0, 0.9))
    pstore(k, 2)
    pstore(k, 3)
    stamp(k, 26)

    acc3, NWF = ring, 6
    wf, gb, X = ring + 20, ring + 44, ring + 64
    ra3 = [L16, zv, zv + 1]
    k(f"v_add_u32 {v(ra3[1])}, {60 * 1024}, {v(L16)}")
    k(f"v_add_u32 {v(ra3[2])}, {120 * 1024}, {v(L16)}")
    for j in range(early, 2):
        ploads(j)(k)
    k.wait(*[x for part in wd3 for x in part if x.cls == "vmem"])
    k("s_barrier")
    seq = [(j, i, ks, dt) for j in range(4) for i, ks in enumerate(kgrp[j]) for dt in range(5)]

    def wread(st, f):
        fr = 5 * seq[f][2] + seq[f][3]
        st(f"ds_read_b128 {v(wf + 4 * (f % NWF), 4)}, {v(ra3[fr // 60])} offset:{1024 * (fr % 60)}")

    for f in range(NWF - 1):
        wread(k, f)
    Xr = [X + j for j in range(16)] + [stash + 4 + j for j in range(4)]
    ep = Stream()
    ep(f"v_lshlrev_b32 {v(t1)}, 5, {v(Q_)}")
    ep(f"v_add_u32 {v(t1)}, {GBT}, {v(t1)}")
    for j in range(4):
        ep(f"ds_read_b128 {v(gb + 4 * j, 4)}, {v(t1)} offset:{128 * (j >> 1) + 16 * (j & 1)}")
    ep(f"v_lshlrev_b32 {v(t1)}, 4, {v(Q_)}")
    ep(f"v_add_u32 {v(t1)}, {GBT}, {v(t1)}")
    ep(f"ds_read_b128 {v(gb + 16, 4)}, {v(t1)} offset:256")
    for j in range(10):
        unpack(ep, Xr[2 * j], Xr[2 * j + 1], xres + j)
    ep(f"v_add_u32 {v(zp)}, s90, {v(TROW)}")
    ep(f"v_mul_u32_u24 {v(zp)}, 1280, {v(zp)}")
    ep(f"s_mul_i32 s4, s{SCB}, 160")
    ep(f"v_add_u32 {v(zp)}, s4, {v(zp)}")
    ep(f"v_lshl_add_u32 {v(zp + 1)}, {v(Q_)}, 4, {v(zp)}")
    ep(f"v_lshl_add_u32 {v(zp)}, {v(Q_)}, 3, {v(zp)}")
    f = 0
    for j in range(4):
        pregs = list(range(pbase[j] + 3, pbase[j] + 4 * len(kgrp[j]), 4)) if j < 3 else list(range(pbase[j] + 1, pbase[j] + 16, 2))
        maxchain(k, mx, pregs, tag=0)
        check(k, stubs, f"Lp{j}", ploads(j), pregs, mx, tag=0)
        stamp(k, 27 + j)
        m = Stream()
        while f < len(seq) and seq[f][0] == j:
            _, i, ks, dt = seq[f]
            d = v(acc3 + 4 * dt, 4)
            m(f"v_mfma_f32_16x16x32_bf16 {d}, {v(wf + 4 * (f % NWF), 4)}, {v(pbase[j] + 4 * i, 4)}, {d if f >= 5 else 0}")
            if f + NWF - 1 < len(seq):
                wread(m, f + NWF - 1)
            f += 1
        sides = []
        if j == 1:
            st = Stream()
            ploads(2)(st)
            ploads(3)(st)
            sides.append((st, cfg.get("pl", 10), 39))
        k.extend(weave(m, sides))
        if j == 1:
            k.extend(ep)
    o = acc
    ost = cfg.get("ost", "")
    for B in range(2):
        for j in range(8):
            k(f"v_fmac_f32 {v(Xr[8 * B + j])}, {v(acc3 + 4 * (2 * B + (j & 1)) + (j >> 1))}, {v(gb + 8 * B + j)}")
        for j in range(4):
            k(f"v_cvt_pk_bf16_f32 {v(o + 4 * B + j)}, {v(Xr[8 * B + 2 * j])}, {v(Xr[8 * B + 2 * j + 1])}")
        k(f"global_store_dwordx4 {v(zp + 1)}, {v(o + 4 * B, 4)}, {sp(OUT)} offset:{64 * B} {ost}")
    for j in range(4):
        k(f"v_fmac_f32 {v(Xr[16 + j])}, {v(acc3 + 16 + j)}, {v(gb + 16 + j)}")
    for j in range(2):
        k(f"v_cvt_pk_bf16_f32 {v(o + 8 + j)}, {v(Xr[16 + 2 * j])}, {v(Xr[17 + 2 * j])}")
    k(f"global_store_dwordx2 {v(zp)}, {v(o + 8, 2)}, {sp(OUT)} offset:128 {ost}")
```

```python
import sys, os, json
sys.path.insert(0, os.path.dirname(__file__))
from asmlib import *
from blocks import *
from fused import *
from front import *

NAME = "adaLN_cond__ssm_conv_h3__mixer_gmlp__prompt"
cfg = {"ne": 1, "nw1": 10, "ne2": 2,
       "wog": 14, "wo1": 6, "pearly": 1, "q3t": [], "zsplit": 108, "xskip": 5, "aux0": 100, "aux1": 144, "u0": 120, "u1": 172, "es": 170, "ee": 203, "nwf": 11, "wa0": 204, "nwa": 10, "convfirst": 1, "wtouch": 0, "b2": 10, "look1": 0, "psh": 2, "pst": 22, "zprobe": 0, "kf2": 60, "slu": 16, "slm": 4}
cfg.update(json.loads(os.environ.get("CFG", "{}")))
PROBE = os.environ.get("PROBE")
LIST = os.environ.get("LIST") or PROBE
name = NAME + "_kernel"


def main():
    h = Stream()
    h("s_cmp_ge_u32 s2, 256")
    h("s_cbranch_scc1 Lend")
    if STAMPS:
        h("v_mov_b32 v255, 0")
    stamp(h, 0)
    prologue(h)
    if cfg.get("cpf", 1):
        code_prefetch(h, name, "Lcode_end", 254, 32)
    h("s_mov_b64 s[58:59], s[4:5]")
    common_regs(h)
    role_ids(h)
    h("s_mul_i32 s4, s4, 20")
    h(f"s_add_u32 s{SUN}, s4, s5")
    h.drain(vm=False)
    h("s_mov_b64 s[0:1], s[58:59]")
    stamp(h, 1)
    h("s_cmp_ge_u32 s2, 160")
    h("s_cbranch_scc1 Lspare" if cfg.get("convfirst") else "s_cbranch_scc0 Lconv")
    txt = f".p2align 8\n.globl {name}\n.type {name},@function\n{name}:\n" + finalize(h)
    stubs = []
    sp_ = spare_path(cfg, stubs)
    k = Stream()
    k("Lconv:")
    conv_path(k, stubs, cfg)
    k("Ljoin:")
    g = Stream()
    stamp(g, 13)
    gemm_phases(g, stubs, cfg)
    if cfg.get("x_g2"):
        import re
        kinds, on, cnt, out_ = cfg["x_g2"], False, 0, []
        for x in g.ins:
            if x.text == "; mark 23":
                on = True
            if x.text == "; mark 25":
                on = False
            if on:
                if "m" in kinds and x.cls == "mfma":
                    cnt += 1
                    if cnt % 4:
                        continue
                if "l" in kinds and x.mn == "global_load_dwordx4":
                    continue
                if "h" in kinds and x.mn == "global_load_dwordx4":
                    x.text = re.sub(r"s\[\d+:\d+\]", "s[56:57]", x.text)
                if "r" in kinds and (x.cls in ("ds", "s_barrier") or (x.cls == "valu" and x.mn in ("v_add_f32", "v_mul_f32"))):
                    continue
                if "v" in kinds and (x.cls == "branch" or x.mn in ("v_bitop3_b32", "v_cmp_ne_u32")):
                    continue
            out_.append(x)
        g.ins = out_
    if cfg.get("x_nomem"):
        kinds = cfg["x_nomem"]
        def drop(x):
            if x.cls != "vmem":
                return False
            return ("d" in kinds and "load_lds" in x.mn) or ("w" in kinds and x.mn == "global_load_dwordx4" and " a[" in x.text)
        gone = {id(x) for x in g.ins if drop(x)}
        g.ins = [x for x in g.ins if id(x) not in gone]
        for x in g.ins:
            if x.waitfor:
                x.waitfor = [t for t in x.waitfor if id(t) not in gone]
    g("Lflush:")
    stamp(g, 40)
    if STAMPS:
        g.drain()
    stamp(g, 41)
    if STAMPS:
        g("v_writelane_b32 v255, s100, 50")
    stamp_flush(g, 0)
    g("Lend:")
    g("s_endpgm")
    if cfg.get("convfirst"):
        txt += finalize(k) + finalize(g) + "".join(finalize(x) for x in sp_)
    else:
        txt += "".join(finalize(x) for x in sp_) + finalize(k) + finalize(g)
    for st in stubs:
        txt += finalize(st)
    return txt + "Lcode_end:\n    s_endpgm\n"


def desc(n, vg=512, ao=256):
    return f""".p2align 6
.amdhsa_kernel {n}
  .amdhsa_next_free_vgpr {vg}
  .amdhsa_next_free_sgpr 102
  .amdhsa_accum_offset {ao}
  .amdhsa_group_segment_fixed_size 0
  .amdhsa_kernarg_size 128
  .amdhsa_user_sgpr_count 2
  .amdhsa_user_sgpr_kernarg_segment_ptr 1
  .amdhsa_system_sgpr_workgroup_id_x 1
  .amdhsa_float_denorm_mode_32 3
.end_amdhsa_kernel
"""


ref = open(os.path.join(os.path.dirname(__file__), "..", NAME + ".s.ref")).read().split("\n")
hdr = [l for l in ref if l.startswith(";") and "@launch" not in l and "Override launch" not in l and "grid=ceil" not in l]
out = "\n".join(hdr) + "\n"
out += f"; @launch {'kernel=' + name + ' ' if LIST else ''}grid=(256,1,1) block=(256,1,1) lds={MAIN_LDS}\n"
extra = ""
if PROBE:
    pi_, plo, phi = map(int, PROBE.split(","))
    out += "; @launch kernel=probe_kernel grid=(1,1,1) block=(1024,1,1) lds=0\n"
    extra = f""".p2align 8
.globl probe_kernel
.type probe_kernel,@function
probe_kernel:
    s_cmp_ge_u32 s2, 1
    s_cbranch_scc1 Lprobe_end
    s_load_dwordx2 s[4:5], s[0:1], 120
    v_max_u32 v1, {4 * plo}, v0
    v_min_u32 v1, {4 * phi - 1}, v1
    v_lshlrev_b32 v1, 8, v1
    v_add_u32 v1, {STAMP + 4 * pi_}, v1
    s_waitcnt lgkmcnt(0)
    global_load_dword v2, v1, s[4:5]
    s_mov_b32 s9, 0
    s_waitcnt vmcnt(0)
Lprobe_loop:
    s_memrealtime s[6:7]
    s_add_u32 s9, s9, 1
    s_waitcnt lgkmcnt(0)
    v_sub_u32 v3, s6, v2
    v_cmp_gt_u32 vcc, 10000, v3
    s_cmp_ge_u32 s9, 100000
    s_cbranch_scc1 Lprobe_end
    s_cbranch_vccnz Lprobe_loop
Lprobe_end:
    s_endpgm
"""
out += '.amdgcn_target "amdgcn-amd-amdhsa--gfx950"\n.text\n' + main() + extra
out += '.section .rodata,"a"\n' + desc(name) + (desc("probe_kernel", 64, 64) if PROBE else "")
open(sys.argv[1], "w").write(out)
if os.environ.get("REPORT"):
    import asmlib
    for r in asmlib.REPORT:
        print("%6s -> %-4s instrs %5d mfma %4d est %6d" % r)
```

```python
import re

TRANS = ("v_exp_f32", "v_log_f32", "v_rcp_f32", "v_rsq_f32", "v_sqrt_f32", "v_sin_f32", "v_cos_f32")
RMW = ("v_fmac_", "v_dot2c_", "v_pk_fmac", "v_writelane")


def v(i, n=1):
    return f"v{i}" if n == 1 else f"v[{i}:{i + n - 1}]"


def a(i, n=1):
    return f"a{i}" if n == 1 else f"a[{i}:{i + n - 1}]"


def s(i, n=1):
    return f"s{i}" if n == 1 else f"s[{i}:{i + n - 1}]"


_REG = re.compile(r"^(-|\|)?(?:abs\()?([vas])(?:(\d+)|\[(\d+):(\d+)\])\)?\|?$")


def regs_of(op):
    op = op.strip()
    if op == "vcc":
        return {("s", "vcc")}
    if op in ("vcc_lo", "vcc_hi"):
        return {("s", "vcc")}
    if op in ("exec", "exec_lo", "exec_hi"):
        return {("s", "exec")}
    if op == "m0":
        return {("s", "m0")}
    m = _REG.match(op)
    if not m:
        return set()
    k = m.group(2)
    if m.group(3) is not None:
        return {(k, int(m.group(3)))}
    return {(k, i) for i in range(int(m.group(4)), int(m.group(5)) + 1)}


def split_ops(text):
    out, depth, cur = [], 0, ""
    for ch in text:
        if ch in "[(":
            depth += 1
        if ch in "])":
            depth -= 1
        if ch == "," and depth == 0:
            out.append(cur.strip())
            cur = ""
        else:
            cur += ch
    if cur.strip():
        out.append(cur.strip())
    return out


class Ins:
    __slots__ = ("text", "mn", "cls", "defs", "uses", "srcc", "srcab", "dpp", "wide_store", "tok", "waitfor", "data", "keep", "pkcross", "nocount")

    def __init__(self, text):
        self.text = text
        self.tok = None
        self.waitfor = None
        self.keep = False
        self.pkcross = False
        self.nocount = False
        self.defs, self.uses = set(), set()
        self.srcc, self.srcab, self.data = set(), set(), set()
        self.dpp = False
        self.wide_store = False
        t = text.split(";")[0].strip()
        if not t or t.endswith(":") or t.startswith("."):
            self.mn, self.cls = "", ("label" if t.endswith(":") else "none")
            return
        parts = t.split(None, 1)
        mn = parts[0]
        self.mn = mn
        rest = parts[1] if len(parts) > 1 else ""
        ops = split_ops(rest)
        if ops:
            last = ops[-1].split()
            mods = " ".join(last[1:])
            ops[-1] = last[0] if last else ""
        else:
            mods = ""
        R = [regs_of(o) for o in ops]
        allsrc = lambda lst: set().union(*lst) if lst else set()
        if mn.startswith("v_mfma"):
            self.cls = "mfma"
            self.defs = R[0]
            self.srcab = R[1] | R[2]
            self.srcc = R[3]
            self.uses = self.srcab | self.srcc
        elif mn.startswith("v_"):
            self.cls = "valu"
            self.dpp = "_dpp" in mn
            if mn.startswith("v_permlane") and "swap" in mn:
                self.defs = R[0] | R[1]
                self.uses = R[0] | R[1]
            elif mn.startswith(("v_add_co", "v_sub_co", "v_addc_co", "v_subb_co")):
                self.defs = R[0] | R[1]
                self.uses = allsrc(R[2:])
            elif mn == "v_nop":
                pass
            else:
                self.defs = R[0]
                self.uses = allsrc(R[1:])
                if mn.startswith(RMW) or self.dpp or "_sdwa" in mn:
                    self.uses |= R[0]
                if mn.startswith("v_cndmask") and len(ops) == 3:
                    self.uses |= {("s", "vcc")}
                if mn.startswith("v_dot"):
                    self.srcab = R[1] | R[2]
                if mn.startswith("v_pk_") and mn.endswith("_f32"):
                    m = re.search(r"op_sel:\[([01,]+)\]", mods)
                    sel = [int(b) for b in m.group(1).split(",")] if m else []
                    self.pkcross = any(b and ops[1 + i] == ops[2] for i, b in enumerate(sel))
        elif mn.startswith("ds_"):
            self.cls = "ds"
            if mn.startswith(("ds_read", "ds_bpermute", "ds_permute", "ds_swizzle")):
                self.defs = R[0]
                self.uses = allsrc(R[1:])
            else:
                self.uses = allsrc(R)
        elif mn.startswith(("global_", "buffer_")):
            self.cls = "vmem"
            if mn.startswith(("buffer_wbl2", "buffer_inv")):
                pass
            elif mn.startswith("global_load_lds"):
                self.uses = allsrc(R) | {("s", "m0")}
            elif mn.startswith("global_load"):
                self.defs = R[0]
                self.uses = allsrc(R[1:])
            elif mn.startswith("global_store"):
                self.uses = allsrc(R)
                self.data = R[1]
                self.wide_store = mn.endswith(("x3", "x4"))
            elif mn.startswith("global_atomic"):
                if "sc0" in mods.split():
                    self.defs = R[0]
                    self.uses = allsrc(R[1:])
                else:
                    self.uses = allsrc(R)
            else:
                raise ValueError("unsupported vmem: " + text)
        elif mn.startswith(("s_load", "s_memtime", "s_memrealtime")):
            self.cls = "smem"
            self.defs = R[0]
            self.uses = allsrc(R[1:])
        elif mn in ("s_waitcnt", "s_nop", "s_barrier", "s_endpgm", "s_sleep", "s_setprio"):
            self.cls = mn
        elif mn.startswith(("s_cbranch", "s_branch")):
            self.cls = "branch"
            if "vcc" in mn:
                self.uses = {("s", "vcc")}
        elif mn.startswith("s_"):
            self.cls = "salu"
            if mn.startswith(("s_cmp", "s_bitcmp")):
                self.uses = allsrc(R)
            else:
                self.defs = R[0]
                self.uses = allsrc(R[1:])
                if "saveexec" in mn:
                    self.defs |= {("s", "exec")}
        else:
            raise ValueError("unknown instruction: " + text)


class Stream:
    def __init__(self):
        self.ins = []

    def __call__(self, text):
        last = None
        for line in text.split("\n"):
            line = line.strip()
            if not line:
                continue
            last = Ins(line)
            self.ins.append(last)
        return last

    def wait(self, *toks):
        i = Ins("; wait")
        i.cls = "tokwait"
        i.waitfor = [t for t in toks if t is not None]
        self.ins.append(i)

    def drain(self, vm=True, lgkm=True):
        parts = []
        if vm:
            parts.append("vmcnt(0)")
        if lgkm:
            parts.append("lgkmcnt(0)")
        self("s_waitcnt " + " ".join(parts))

    def barrier(self, tok=None):
        if tok is None:
            self("s_waitcnt lgkmcnt(0)")
        else:
            self.wait(tok)
        self("s_barrier")

    def raw(self, other):
        i = Ins("; raw")
        i.cls = "none"
        i.text = finalize(other).strip()
        self.ins.append(i)

    def ghost(self, n):
        for _ in range(n):
            i = Ins("; ghost")
            i.cls = "ghost"
            self.ins.append(i)

    def forget(self):
        i = Ins("; forget")
        i.cls = "forget"
        self.ins.append(i)

    def extend(self, other):
        self.ins.extend(other.ins)
        return self

    def __len__(self):
        return len(self.ins)


def interleave(main, side, start=0.0, end=1.0, only_after=("mfma",)):
    out = Stream()
    anchors = [i for i, x in enumerate(main.ins) if x.cls in only_after]
    lo, hi = int(len(anchors) * start), max(int(len(anchors) * end), 1)
    use = anchors[lo:hi]
    n = len(side.ins)
    pos = {}
    for j in range(n):
        idx = use[min(len(use) - 1, (j * len(use)) // n)]
        pos.setdefault(idx, []).append(side.ins[j])
    for i, x in enumerate(main.ins):
        out.ins.append(x)
        out.ins.extend(pos.get(i, []))
    return out


SCC_USERS = ("s_addc", "s_subb", "s_cselect", "s_cbranch_scc", "s_cmov")
SHARED = {("s", "exec")}


def _cost(x):
    if x.cls in ("label",):
        return 0, 0
    if x.cls == "none":
        return (3, 1) if x.text.count("\n") else (0, 0)
    if x.cls == "valu":
        n = 2 if x.mn.startswith(TRANS) else 1
        return n, n
    if x.cls == "ds":
        if x.mn.startswith(("ds_write_b128", "ds_write2_b64")):
            return 3, 2
        return 1, 1
    if x.cls == "vmem":
        return 1, 1
    return 1, 0


def _groups(ins):
    out = []
    for x in ins:
        glue = x.keep or x.cls == "label" or x.mn.startswith(SCC_USERS)
        if out and (glue or out[-1][-1].cls in ("tokwait", "s_waitcnt")):
            out[-1].append(x)
        else:
            out.append([x])
    return out


def weave(main, sides, slots=3, vslots=2):
    anchors = [i for i, x in enumerate(main.ins) if x.cls == "mfma"]
    n = len(anchors)
    work = []
    for side, first, last in sides:
        if not side.ins:
            continue
        first = max(0, min(first, n - 1))
        last = max(first, min(last, n - 1))
        gr = _groups(side.ins)
        tot = sum(max(_cost(x)[0] for x in g) and sum(_cost(x)[0] for x in g) for g in gr) or 1
        d = set().union(*[x.defs for x in side.ins]) - SHARED
        u = set().union(*[x.uses for x in side.ins]) - SHARED
        work.append(dict(gr=gr, first=first, last=last, tot=tot, done=0, defs=d, uses=u))
    for i, a_ in enumerate(work):
        for b_ in work[i + 1:]:
            if a_["first"] <= b_["last"] and b_["first"] <= a_["last"]:
                clash = (a_["defs"] & (b_["defs"] | b_["uses"])) | (b_["defs"] & a_["uses"])
                assert not clash, f"concurrent side streams share registers {sorted(clash, key=str)}"
    out = Stream()
    out.ins.extend(main.ins[:anchors[0]])
    for g in range(n):
        end = anchors[g + 1] if g + 1 < n else len(main.ins)
        own = main.ins[anchors[g] + 1:end]
        fs = slots - sum(_cost(x)[0] for x in own)
        fv = vslots - sum(_cost(x)[1] for x in own)
        placed = []
        while True:
            best, lag = None, 0.0
            for w in work:
                if not w["gr"] or g < w["first"]:
                    continue
                want = w["tot"] * (g - w["first"] + 1) / (w["last"] - w["first"] + 1)
                l = (want - w["done"]) / w["tot"] if g < w["last"] else 2.0
                if l > lag:
                    cs = sum(_cost(x)[0] for x in w["gr"][0])
                    cv = sum(_cost(x)[1] for x in w["gr"][0])
                    fits = (cs <= fs and cv <= fv) or (not placed and not own) or (cs > slots and not placed)
                    left = sum(sum(_cost(x)[0] for x in q) for q in w["gr"])
                    urgent = g >= w["last"] or left > slots * (w["last"] - g)
                    if fits or urgent:
                        best, lag = w, l
            if best is None:
                break
            grp = best["gr"].pop(0)
            cs = sum(_cost(x)[0] for x in grp)
            best["done"] += cs
            fs -= cs
            fv -= sum(_cost(x)[1] for x in grp)
            placed.extend(grp)
        out.ins.append(main.ins[anchors[g]])
        tailw = [x for x in own if x.cls == "tokwait"]
        out.ins.extend([x for x in placed if x.cls == "salu" and False])
        out.ins.extend([x for x in own if x.cls != "tokwait"] + placed + tailw)
    assert all(not w["gr"] for w in work)
    return out


def estimate(ins):
    t, pipe, vfree, lastpk = 0.0, 0.0, 0.0, False
    for x in ins:
        if x.cls in ("label", "none", "tokwait", "ghost", "forget"):
            continue
        if x.cls == "mfma":
            t = max(t, pipe)
            pipe = t + 16
            vfree = t + 8
            t += 4
            continue
        heavy = x.mn.startswith(("v_pk_", "v_dot"))
        if x.cls in ("valu", "ds", "vmem"):
            t = max(t, vfree)
        if heavy:
            t = max(t, pipe + 8) if pipe > t - 8 else t
        if x.cls == "s_nop":
            t += 4 * (int(x.text.split()[1], 0) + 1)
        elif x.cls == "valu" and x.mn.startswith(TRANS):
            t += 8.5
        elif x.mn.startswith(("ds_write_b128", "ds_write2_b64")):
            t += 24
        else:
            t += 4.6
    return max(t, pipe)


def sprinkle(main, side, first=0.0, last=1.0):
    n = len(main.ins)
    lo, hi = int(n * first), max(int(n * last), int(n * first) + 1)
    cost = [0 if x.cls in ("salu", "tokwait", "label", "none", "s_waitcnt") else 1 for x in side.ins]
    total = max(sum(cost), 1)
    pos, acc, idx = {}, 0, lo
    for x, c in zip(side.ins, cost):
        if not x.keep:
            idx = min(n - 1, lo + (acc * (hi - lo)) // total)
            while main.ins[idx].keep:
                idx -= 1
        pos.setdefault(idx, []).append(x)
        acc += c
    assert not any(x.cls == "label" for x in side.ins + main.ins)
    out = Stream()
    for i, x in enumerate(main.ins):
        out.ins.extend(pos.get(i, []))
        out.ins.append(x)
    return out


_WAIT = re.compile(r"(vmcnt|lgkmcnt)\((\d+)\)")


import os
LDS_AGE = int(os.environ.get("LDS_AGE", "80"))


def insert_waits(ins):
    out = []
    vm, lg = [], []

    def need(queue, regs, toks):
        idx = -1
        for i, e in enumerate(queue):
            if (regs and (e.defs & regs)) or (toks and any(e is t for t in toks)):
                idx = i
        return idx

    seen = set()
    now, pipe, born = 0.0, 0.0, {}
    for x in ins:
        seen.add(id(x))
        if x.cls == "mfma":
            now = max(now, pipe)
            pipe = now + 16
        if x.cls not in ("label", "none", "tokwait", "ghost", "forget"):
            now += 4
        born[id(x)] = now
        if x.waitfor:
            assert all(id(t) in seen for t in x.waitfor), "wait placed before its instruction"
        if x.cls == "ghost":
            vm.append(x)
            continue
        if x.cls == "forget":
            del vm[:]
            continue
        if x.cls == "s_waitcnt":
            for name, n in _WAIT.findall(x.text):
                n = int(n)
                q = vm if name == "vmcnt" else lg
                if name == "lgkmcnt" and n > 0 and any(e.cls == "smem" for e in lg):
                    continue
                del q[: max(0, len(q) - n)]
            out.append(x)
            continue
        regs = x.defs | x.uses
        toks = x.waitfor
        parts = []
        i = need(vm, regs, toks)
        if i >= 0:
            n = min(len(vm) - 1 - i, 63)
            parts.append(f"vmcnt({n})")
            del vm[: len(vm) - n]
        i = need(lg, regs, toks)
        if i >= 0:
            while i + 1 < len(lg) and now - born[id(lg[i + 1])] >= LDS_AGE:
                i += 1
            n = min(len(lg) - 1 - i, 15)
            if any(e.cls == "smem" for e in lg):
                n = 0
            parts.append(f"lgkmcnt({n})")
            del lg[: len(lg) - n]
        if parts:
            out.append(Ins("s_waitcnt " + " ".join(parts)))
        if x.cls == "tokwait":
            continue
        out.append(x)
        if x.cls == "vmem":
            if not x.nocount:
                vm.append(x)
        elif x.cls in ("ds", "smem"):
            lg.append(x)
    return out


def _states(x):
    if x.cls in ("label", "none"):
        return 0
    if x.cls == "s_nop":
        return int(x.text.split()[1], 0) + 1
    return 1


def _isv(r):
    return r[0] in ("v", "a")


def required_gap(p, c):
    need = 0
    if p.cls == "valu":
        vdef = {r for r in p.defs if _isv(r)}
        sdef = {r for r in p.defs if r[0] == "s"}
        if c.cls == "mfma" and vdef & c.uses:
            need = max(need, 2)
        if c.cls == "mfma" and p.pkcross:
            need = max(need, 1)
        if c.cls == "valu":
            if c.dpp and vdef & c.uses:
                need = max(need, 2)
            if c.mn.startswith("v_permlane") and vdef & c.uses:
                need = max(need, 2)
            if c.mn.startswith(("v_readlane", "v_readfirstlane")) and vdef & c.uses:
                need = max(need, 1)
            if p.mn.startswith(TRANS) and vdef & c.uses:
                need = max(need, 1)
            if ("_sdwa" in p.mn or p.mn.startswith("v_fma_mix")) and vdef & (c.uses | c.defs):
                need = max(need, 1)
            if sdef & c.uses:
                need = max(need, 4 if c.mn.startswith(("v_readlane", "v_writelane")) else 2)
            if p.mn.startswith("v_dot") and vdef & (c.uses | c.defs):
                chain = p.mn == c.mn and not (vdef & c.srcab) and (vdef & c.uses)
                need = max(need, 0 if chain else 3)
        if p.mn.startswith("v_dot") and c.cls in ("ds", "vmem", "mfma") and vdef & c.uses:
            need = max(need, 3)
        if c.cls == "vmem" and sdef & c.uses:
            need = max(need, 5)
        if c.cls in ("salu", "branch", "smem") and sdef & c.uses:
            need = max(need, 1)
    elif p.cls == "mfma":
        if c.cls == "mfma":
            if p.defs & c.srcab:
                need = max(need, 8)
            if p.defs & c.srcc and p.defs != c.srcc:
                need = max(need, 6)
            if p.defs & c.defs and not (p.defs & c.srcc):
                need = max(need, 6)
        elif c.cls in ("valu", "ds", "vmem"):
            if p.defs & (c.uses | c.defs):
                need = max(need, 8)
            if c.cls == "valu" and p.srcc & c.defs:
                need = max(need, 3)
    elif p.cls == "vmem":
        if p.wide_store and (p.data & c.defs):
            need = max(need, 2)
    elif p.cls == "salu":
        if ("s", "m0") in p.defs and c.cls == "vmem" and ("s", "m0") in c.uses:
            need = max(need, 1)
    return need


def insert_nops(ins):
    out = []
    for x in ins:
        if x.cls not in ("label", "none", "s_nop", "s_waitcnt", "s_barrier"):
            dist, pad = 0, 0
            for p in reversed(out):
                if dist >= 10:
                    break
                if p.cls not in ("label", "none"):
                    pad = max(pad, required_gap(p, x) - dist)
                dist += _states(p)
            if pad > 0:
                out.append(Ins(f"s_nop {pad - 1}"))
        out.append(x)
    return out


REPORT = []


def finalize(stream):
    ins = insert_nops(insert_waits(stream.ins))
    seg, name = [], "start"
    for x in ins:
        if x.cls == "none" and x.text.startswith("; mark"):
            REPORT.append((name, x.text[7:], len(seg), sum(y.cls == "mfma" for y in seg), int(estimate(seg))))
            seg, name = [], x.text[7:]
        else:
            seg.append(x)
    lines = []
    for x in ins:
        lines.append(x.text if x.cls == "label" else "    " + x.text)
    return "\n".join(lines) + "\n"


class Alloc:
    def __init__(self, lo, hi):
        self.lo, self.hi, self.p = lo, hi, lo

    def __call__(self, n=1, align=None):
        al = align or (1 if n == 1 else 2 if n < 4 else 4)
        p = (self.p + al - 1) // al * al
        assert p + n <= self.hi, f"out of registers: need {n} at {p}, limit {self.hi}"
        self.p = p + n
        return p

    def mark(self):
        return self.p

    def reset(self, m):
        self.p = m
```

```python
import math
from asmlib import Stream, Alloc, v, a, s, weave, sprinkle
from blocks import *

N_, Q_, L16, TROW, WO0, WO1 = 2, 3, 4, 5, 6, 7
UZ2, UZ1 = 8, 12
VFREE = 28
SRB, SCB, SUN, SRI = 40, 41, 42, 43
SPIN = 0x40000
JB, ZB, WB, GC, MK, SW9, STGW = 44, 52, 68, 84, 86, 88, 89

KT, KCP = 0, 4224
UT, UCP = 8 * KCP, 4640
UCH = 2 * UCP
YT, YCH = 0, 1056
AI, AFR = 0, 1040
STG = 80 * AFR
SX = STG + 65536
TB = SX + 2048
RED = 135 * 1024
MAIN_LDS = 163840

C0 = -2.0 * math.sqrt(2.0 / math.pi) * math.log2(math.e)
C1 = C0 * 0.044715


def common_regs(k):
    k(f"v_and_b32 {v(N_)}, 15, {v(LANE)}")
    k(f"v_lshrrev_b32 {v(Q_)}, 4, {v(LANE)}")
    k(f"v_lshlrev_b32 {v(L16)}, 4, {v(LANE)}")
    k(f"v_lshrrev_b32 {v(WO0)}, 2, {v(N_)}")
    k(f"v_and_b32 {v(TROW)}, 3, {v(N_)}")
    k(f"v_lshl_add_u32 {v(TROW)}, {v(WO0)}, 3, {v(TROW)}")


def role_ids(k):
    k("s_mov_b32 s100, 0")
    k("s_and_b32 s4, s2, 7")
    k("s_lshr_b32 s5, s2, 3")
    k(f"s_lshr_b32 s{SRI}, s5, 2")
    k(f"s_lshr_b32 s6, s{SRI}, 1")
    k("s_lshl_b32 s6, s6, 3")
    k("s_and_b32 s7, s4, 6")
    k("s_add_u32 s6, s6, s7")
    k(f"s_and_b32 s7, s{SRI}, 1")
    k(f"s_add_u32 s{SRB}, s6, s7")
    k("s_and_b32 s6, s4, 1")
    k("s_lshl_b32 s6, s6, 2")
    k("s_and_b32 s7, s5, 3")
    k(f"s_add_u32 s{SCB}, s6, s7")


def maxchain(k, dst, regs, first=True, tag=None):
    op2 = {None: "v_max_u32", 1: "v_and_b32", 0: "v_or_b32"}[tag]
    op3 = {None: "v_max3_u32 {}", 1: "v_bitop3_b32 {} bitop3:0x80", 0: "v_or3_b32 {}"}[tag]
    regs = list(regs)
    if first:
        if len(regs) == 1:
            if dst != regs[0]:
                k(f"v_mov_b32 {v(dst)}, {v(regs[0])}")
            regs = []
        elif len(regs) % 2:
            k(op3.format(f"{v(dst)}, {v(regs[0])}, {v(regs[1])}, {v(regs[2])}"))
            regs = regs[3:]
        else:
            k(f"{op2} {v(dst)}, {v(regs[0])}, {v(regs[1])}")
            regs = regs[2:]
    for i in range(0, len(regs), 2):
        k(op3.format(f"{v(dst)}, {v(regs[i])}, {v(regs[i + 1])}, {v(dst)}"))


def badcmp(k, tmp, tag=None):
    if tag is None:
        k(f"v_cmp_eq_u32 vcc, -1, {v(tmp)}")
    else:
        k(f"v_and_b32 {v(tmp)}, 1, {v(tmp)}")
        k(f"v_cmp_ne_u32 vcc, {tag}, {v(tmp)}")


def set_tag(k, r, tag):
    k(f"v_or_b32 {v(r)}, 1, {v(r)}" if tag else f"v_and_b32 {v(r)}, -2, {v(r)}")


def poll(k, name, loads, regs, tmp, sleep=0, tag=None):
    if sleep:
        k(f"s_branch {name}_f")
    k(f"{name}:")
    if sleep:
        k(f"s_sleep {sleep}")
        k(f"{name}_f:")
    loads(k)
    k.drain(lgkm=False)
    maxchain(k, tmp, regs, tag=tag)
    badcmp(k, tmp, tag)
    k("s_add_u32 s100, s100, 1")
    k(f"s_cmp_ge_u32 s100, {SPIN}")
    k(f"s_cbranch_scc1 {name}_x")
    k(f"s_cbranch_vccnz {name}")
    k(f"{name}_x:")


def check(k, stubs, name, loads, regs, tmp, cmp=True, tag=None, sleep=0):
    if cmp:
        badcmp(k, tmp, tag)
    k(f"s_cbranch_vccnz {name}_r")
    k(f"{name}_ok:")
    st = Stream()
    st(f"{name}_r:")
    st("s_nop 7")
    poll(st, name + "_p", loads, regs, tmp, sleep, tag=tag)
    st("s_nop 1")
    st(f"s_branch {name}_ok")
    stubs.append(st)


WA = 8


def w_setup(k):
    k(f"s_and_b32 s4, s{SCB}, 1")
    k(f"s_lshl_b32 s5, {s(WAVE)}, 1")
    k("s_add_u32 s5, s5, s4")
    k("s_cmp_eq_u32 s5, 7")
    k("s_cselect_b32 s5, 0, s5")
    k(f"s_mul_i32 s96, s{SCB}, 7")
    k("s_add_u32 s96, s96, s5")
    k("s_cmp_lt_u32 s96, 54")
    k("s_cselect_b32 s101, 2, 0")
    k("s_min_u32 s96, s96, 53")
    k(f"s_cmp_eq_u32 {s(WAVE)}, 3")
    k("s_cselect_b32 s101, 1, s101")
    k("s_lshr_b32 s97, s101, 1")
    k("s_cselect_b32 s5, -1, 0")
    k(f"v_and_b32 {v(WO1)}, s5, {v(L16)}")
    k("s_add_u32 s97, s97, s96")
    for sl in range(2):
        k(f"s_mul_i32 s4, s{96 + sl}, 20480")
        for i in range(3):
            k(f"s_add_u32 s5, s4, {WP + 4096 + 8192 * i}")
            k(f"s_add_u32 s{WA + 6 * sl + 2 * i}, s{WS}, s5")
            k(f"s_addc_u32 s{WA + 6 * sl + 2 * i + 1}, s{WS + 1}, 0")


WA2 = ZB


def w_next_part(k):
    for i in range(6):
        k(f"s_add_u32 s{WA2 + 2 * i}, s{WA + 2 * i}, {56 * 20480}")
        k(f"s_addc_u32 s{WA2 + 2 * i + 1}, s{WA + 2 * i + 1}, 0")


UTB = 156672


def u_addr(k, t, t1):
    k(f"v_bfe_u32 {v(t)}, {v(LANE)}, 3, 1")
    k("s_sub_u32 s4, s97, s96")
    k(f"v_mul_u32_u24 {v(t)}, s4, {v(t)}")
    k(f"v_add_lshl_u32 {v(t)}, {v(t)}, s96, 7")
    k(f"v_mul_u32_u24 {v(t1)}, {56 * 128}, {v(Q_)}")
    k(f"v_add_u32 {v(t)}, {v(t)}, {v(t1)}")
    k(f"v_and_b32 {v(t1)}, 112, {v(L16)}")
    k(f"v_add_u32 {v(t)}, {v(t)}, {v(t1)}")
    k(f"v_add_u32 {v(t)}, {U}, {v(t)}")


def u_load(t, d):
    return lambda k: k(f"global_load_dwordx4 {v(d, 4)}, {v(t)}, {sp(WS)} sc1")


def u_keep(k, t, d):
    for j in range(2):
        k(f"v_permlane32_swap_b32 {v(d + j)}, {v(d + 2 + j)}")
    k(f"s_lshl_b32 s4, {s(WAVE)}, 9")
    k(f"s_add_u32 s4, s4, {UTB}")
    k(f"v_and_b32 {v(t)}, 496, {v(L16)}")
    for j in range(2):
        k(f"v_add_f32 {v(d + j)}, {v(d + j)}, {v(d + 2 + j)}")
    k(f"v_bfe_u32 {v(d + 2)}, {v(LANE)}, 3, 1")
    k(f"v_cmp_gt_u32 vcc, s101, {v(d + 2)}")
    k(f"v_lshrrev_b32 {v(d + 2)}, 5, {v(LANE)}")
    k(f"v_lshl_add_u32 {v(t)}, {v(d + 2)}, 3, {v(t)}")
    for j in range(2):
        k(f"v_cndmask_b32 {v(d + j)}, 0, {v(d + j)}, vcc")
    k(f"v_add_u32 {v(t)}, s4, {v(t)}")
    k(f"ds_write_b64 {v(t)}, {v(d, 2)}")


def wreg(part, ks, sl):
    return (96 if part == 0 else 0) + 8 * ks + 4 * sl


def w_load(k, part, ks, sl):
    b = (WA2 if part else WA) + 6 * sl + 2 * (ks // 8)
    k(f"global_load_dwordx4 {a(wreg(part, ks, sl), 4)}, {v(WO1 if sl else L16)}, s[{b}:{b + 1}] offset:{1024 * (ks % 8) - 4096} sc1")


def w_loads(k, part, k0, k1, step=1):
    for ks in range(k0, k1)[::step]:
        for sl in range(2):
            w_load(k, part, ks, sl)


def flag_store(st, name, t, sreg):
    st(f"v_mov_b32 {v(t)}, s{sreg}")
    fl = Stream()
    fl(f"s_cmp_lg_u32 {s(WAVE)}, 0")
    fl(f"s_cbranch_scc1 {name}")
    fl(f"global_store_dword {v(t)}, {v(t)}, {sp(WS)} sc1")
    fl(f"{name}:")
    st.raw(fl)


def stream(fn, *args):
    st = Stream()
    fn(st, *args)
    return st


def gelu(k, regs, tmp, gc):
    n = len(regs)
    for i, r in enumerate(regs):
        pk(k, "mul", tmp + 2 * i, [("p", r), ("p", r)])
    for i, r in enumerate(regs):
        pk(k, "fma", tmp + 2 * i, [("p", tmp + 2 * i), ("sb", gc + 1), ("sb", gc)])
    for i, r in enumerate(regs):
        pk(k, "mul", tmp + 2 * i, [("p", tmp + 2 * i), ("p", r)])
    for i in range(2 * n):
        k(f"v_exp_f32 {v(tmp + i)}, {v(tmp + i)}")
    for i in range(n):
        pk(k, "add", tmp + 2 * i, [("p", tmp + 2 * i), ("c", "1.0")])
    for i in range(2 * n):
        k(f"v_rcp_f32 {v(tmp + i)}, {v(tmp + i)}")
    for i, r in enumerate(regs):
        pk(k, "mul", r, [("p", r), ("p", tmp + 2 * i)])


GBT = RED + 2 * 12288


def k_order(k):
    k(f"s_and_b32 s4, s{SCB}, 3")
    k("s_cmp_eq_u32 s4, 0")
    k("s_cselect_b32 s5, 8, 0")
    k("s_cmp_le_u32 s4, 1")
    k("s_cselect_b32 s6, 16, 8")
    k("s_cmp_eq_u32 s4, 3")
    k(f"s_cselect_b32 s{JB + 6}, 16, 24")
    k(f"s_lshl_b32 s{JB}, s4, 3")
    k(f"s_bitcmp1_b32 s{SRI}, 0")
    k(f"s_cselect_b32 s{JB + 2}, s6, s5")
    k(f"s_cselect_b32 s{JB + 4}, s5, s6")
    k(f"s_lshl_b32 s5, {s(WAVE)}, 1")
    for qi in range(4):
        k(f"s_add_u32 s{JB + 2 * qi}, s{JB + 2 * qi}, s5")
        k(f"s_add_u32 s{JB + 2 * qi + 1}, s{JB + 2 * qi}, 1")
    k(f"s_lshl_b32 s5, s{SRB}, 18")
    for i in range(8):
        k(f"s_lshl_b32 s6, s{JB + i}, 7")
        k("s_add_u32 s6, s6, s5")
        k(f"s_add_u32 s{WB + 2 * i}, s{WSP}, s6")
        k(f"s_addc_u32 s{WB + 2 * i + 1}, s{WSP + 1}, 0")
    k(f"s_lshl_b32 s{STGW}, {s(WAVE)}, 14")
    k(f"s_add_u32 s{STGW}, s{STGW}, {STG}")


BSR = 27
DO = 74


def bias_load(k):
    k(f"s_lshr_b32 s5, {s(WAVE)}, 1")
    k("s_lshl_b32 s5, s5, 5")
    k(f"s_and_b32 s6, {s(WAVE)}, 1")
    k("s_lshl_b32 s6, s6, 2")
    k("s_add_u32 s6, s6, s5")
    k(f"s_lshl_b32 s5, s{SRB}, 6")
    k("s_add_u32 s90, s6, s5")
    k(f"v_add_lshl_u32 {v(BSR)}, {v(TROW)}, s90, 1")
    k(f"global_load_ushort {v(BSR)}, {v(BSR)}, {sp(BSP)}")


def dma_offsets(k, do, t0, t1):
    k(f"v_lshrrev_b32 {v(t0)}, 3, {v(LANE)}")
    k(f"v_lshlrev_b32 {v(t0)}, 12, {v(t0)}")
    k(f"v_bfe_u32 {v(t1)}, {v(LANE)}, 4, 1")
    k(f"v_xor_b32 {v(t1)}, {v(t1)}, {v(LANE)}")
    k(f"v_and_b32 {v(t1)}, 7, {v(t1)}")
    for pi in range(4):
        k(f"v_xor_b32 {v(do + pi)}, {2 * pi}, {v(t1)}")
        k(f"v_lshl_add_u32 {v(do + pi)}, {v(do + pi)}, 4, {v(t0)}")
        if pi:
            k(f"v_add_u32 {v(do + pi)}, {pi * (8 * 4096 - 1024)}, {v(do + pi)}")
        k(f"v_add_u32 {v(do + 4 + pi)}, {32 * 4096}, {v(do + pi)}")


def wsp_dma(st, i, do):
    toks = []
    for pi in range(8):
        if pi % 4 == 0:
            st(f"s_add_u32 m0, s{STGW}, {(i & 1) * 8192 + 1024 * pi}")
        toks.append(st(f"global_load_lds_dwordx4 {v(do + pi)}, s[{WB + 2 * i}:{WB + 2 * i + 1}] offset:{1024 * (pi % 4)}"))
    return toks


def g1_setup(k, cfg):
    l8, bs, xa, xo0, t0, aw0, t1, srow, pa, do, ra = 30, 32, 46, 66, 67, 68, 69, 70, 72, DO, 82
    k(f"v_and_b32 {v(t0)}, 7, {v(LANE)}")
    k(f"v_lshl_add_u32 {v(t0)}, {v(Q_)}, 3, {v(t0)}")
    k(f"v_bfe_u32 {v(t1)}, {v(LANE)}, 3, 1")
    k(f"v_lshlrev_b32 {v(xo0)}, 9, {v(t1)}")
    k(f"v_lshl_add_u32 {v(xo0)}, {v(t0)}, 4, {v(xo0)}")
    k(f"s_mul_i32 s4, {s(WAVE)}, 20480")
    k(f"s_mul_i32 s5, s{SRB}, {XRB}")
    k("s_add_u32 s4, s4, s5")
    k(f"s_add_u32 s4, s4, {X1}")
    k(f"v_add_u32 {v(xo0)}, s4, {v(xo0)}")
    k(f"v_lshl_add_u32 {v(srow)}, {v(t0)}, 1, {v(t1)}")
    psh = cfg.get("psh", 0)
    k(f"v_min_u32 {v(pa)}, {(40 >> psh) - 1}, {v(LANE)}")
    k(f"v_lshl_add_u32 {v(pa)}, {v(pa)}, {9 + psh}, s4")
    k(f"v_lshrrev_b32 {v(t0)}, 5, {v(LANE)}")
    k(f"v_bfe_u32 {v(aw0)}, {v(LANE)}, 1, 1")
    k(f"v_lshl_add_u32 {v(t0)}, {v(t0)}, 1, {v(aw0)}")
    k(f"v_mul_u32_u24 {v(aw0)}, {AFR}, {v(t0)}")
    for bit, sh in ((3, 3), (2, 6), (4, 7), (0, 5)):
        k(f"v_bfe_u32 {v(t0)}, {v(LANE)}, {bit}, 1")
        k(f"v_lshl_add_u32 {v(aw0)}, {v(t0)}, {sh}, {v(aw0)}")
    k(f"s_mul_i32 s5, {s(WAVE)}, {20 * AFR}")
    k(f"v_add_u32 {v(aw0)}, s5, {v(aw0)}")
    k(f"v_lshlrev_b32 {v(l8)}, 3, {v(LANE)}")
    k(f"s_lshl_b32 s{SW9}, {s(WAVE)}, 9")
    dma_offsets(k, do, t0, t1)
    k(f"v_lshrrev_b32 {v(t1)}, 1, {v(N_)}")
    k(f"v_xor_b32 {v(t1)}, {v(t1)}, {v(Q_)}")
    k(f"v_lshlrev_b32 {v(t1)}, 4, {v(t1)}")
    k(f"v_lshl_add_u32 {v(t1)}, {v(TROW)}, 7, {v(t1)}")
    for tau in range(4):
        k(f"s_xor_b32 s4, {s(WAVE)}, {tau}")
        k("s_lshr_b32 s5, s4, 1")
        k("s_lshl_b32 s5, s5, 12")
        k("s_and_b32 s4, s4, 1")
        k("s_lshl_b32 s4, s4, 9")
        k("s_add_u32 s4, s4, s5")
        k(f"s_add_u32 s4, s4, s{STGW}")
        k(f"v_add_u32 {v(ra + 2 * tau)}, s4, {v(t1)}")
        k(f"v_xor_b32 {v(ra + 2 * tau + 1)}, 64, {v(ra + 2 * tau)}")
    w_next_part(k)
    k(f"s_mov_b32 s{GC}, {hex(fbits(C0))}")
    k(f"s_mov_b32 s{GC + 1}, {hex(fbits(C1))}")
    for j in range(4):
        k(f"v_lshlrev_b32 {v(bs + j)}, 16, {v(BSR)}")
    k(f"s_mul_i32 s5, s{SCB}, 10")
    k(f"s_mul_i32 s6, {s(WAVE)}, {AFR}")
    for j in range(2):
        if j:
            k(f"v_lshrrev_b32 {v(t0)}, 1, {v(Q_)}")
        k(f"v_add_u32 {v(t0)}, s5, {v(t0 if j else Q_)}")
        k(f"v_lshrrev_b32 {v(t1)}, 2, {v(t0)}")
        k(f"v_mul_u32_u24 {v(t1)}, {4 * AFR - 1024}, {v(t1)}")
        k(f"v_lshl_add_u32 {v(t1)}, {v(t0)}, 8, {v(t1)}")
        k(f"v_lshl_add_u32 {v(t1)}, {v(N_)}, 4, {v(t1)}")
        k(f"v_add_u32 {v(xa + j)}, s6, {v(t1)}")
    k(f"v_and_b32 {v(t0)}, 1, {v(Q_)}")
    k(f"v_lshl_add_u32 {v(xa + 1)}, {v(t0)}, 3, {v(xa + 1)}")


def gemm_phases(k, stubs, cfg):
    if cfg.get("tch"):
        cfg["tch"] = {int(a_): b_ for a_, b_ in cfg["tch"].items()}
    t0, t1, l8, bs, xres, zp, z1r = 28, 29, 30, 32, 36, 46, 48
    afr, NAF = 48, 6
    st4, xo0, xo, aw0, aw, srow, mx, pa = 62, 66, 67, 68, 69, 70, 71, 72
    do, ra, pr, xr = 74, 82, 90, 98
    rs, tmp, rz1 = 98, 130, 162
    tw, tq, tn, ar1, so, t2 = 170, 171, 172, 173, 174, 175
    acc2, acc1, gq, xa = 178, 210, 242, 46
    if cfg.get("ct1", 1):
        code_touch(k, "Lx_go", "Lmid", 254)
    stamp(k, 14)
    k(f"s_cmp_lt_u32 s{SRI}, {cfg.get('xskip', 5)}")
    k("s_cbranch_scc1 Lx_first")
    k("Lx_redo:")
    pst = Stream()
    poll(pst, "Lxp", lambda st: st(f"global_load_dword {v(mx)}, {v(pa)}, {sp(WS)} offset:508 sc1"), [mx], mx, cfg.get("slx", 1), tag=1)
    k.raw(pst)
    k("Lx_first:")
    stamp(k, 15)
    k(f"s_mov_b32 s7, {hex(ONES)}")
    k(f"v_add_u32 {v(xo)}, 4096, {v(xo0)}")
    AHEAD = cfg.get("xahead", 10)

    def xload(i):
        k(f"global_load_dwordx4 {v(xr + 4 * i, 4)}, {v(xo)}, {sp(WS)} offset:{1024 * (i % 8) - 4096} sc1")
        if i % 8 == 7:
            k(f"v_add_u32 {v(xo)}, 8192, {v(xo)}")

    for i in range(AHEAD):
        xload(i)
    for j in range(4):
        k(f"v_mov_b32 {v(st4 + j)}, 0")
    k(f"v_mov_b32 {v(mx)}, -1")
    wl = [(ks, sl) for ks in range(cfg.get("wlate", 4)) for sl in range(2)]
    for i in range(20):
        if i + AHEAD < 20:
            xload(i + AHEAD)
        elif wl:
            w_load(k, 0, *wl.pop(0))
        if i % 4 == 0:
            k(f"v_add_u32 {v(aw)}, {(i // 4) * 4 * AFR}, {v(aw0)}")
        k(f"ds_write2_b64 {v(aw)}, {v(xr + 4 * i, 2)}, {v(xr + 4 * i + 2, 2)} offset0:{32 * (i % 4)} offset1:{32 * (i % 4) + 2}")
        if i & 1:
            maxchain(k, mx, [xr + 4 * i - 1, xr + 4 * i + 3], first=False, tag=1)
        for j in range(2):
            for r in range(2):
                src = xr + 4 * i + 2 * r + j
                k(f"v_dot2_f32_bf16 {v(st4 + 2 * r)}, {v(src)}, s7, {v(st4 + 2 * r)}")
                k(f"v_dot2_f32_bf16 {v(st4 + 2 * r + 1)}, {v(src)}, {v(src)}, {v(st4 + 2 * r + 1)}")
    badcmp(k, mx, 1)
    k(f"s_cmp_ge_u32 s100, {SPIN}")
    k("s_cbranch_scc1 Lx_go")
    k("s_cbranch_vccnz Lx_redo")
    k("Lx_go:")
    for j in range(2):
        k(f"v_add_f32_dpp {v(pr + j)}, {v(st4 + j)}, {v(st4 + j)} row_ror:8 row_mask:0xf bank_mask:0x3")
        k(f"v_add_f32_dpp {v(pr + j)}, {v(st4 + 2 + j)}, {v(st4 + 2 + j)} row_ror:8 row_mask:0xf bank_mask:0xc")
    k(f"s_add_u32 s4, s{SW9}, {SX}")
    k(f"v_lshl_add_u32 {v(t0)}, {v(srow)}, 3, s4")
    k(f"ds_write_b64 {v(t0)}, {v(pr, 2)}")
    k.barrier()
    stamp(k, 16)
    k(f"v_add_u32 {v(ar1)}, {40 * AFR}, {v(L16)}")
    wlate = cfg.get("wlate", 4)
    kord = [list(range(wlate, 20))[::-1] + list(range(wlate)), list(range(20))]

    def read_rs(st):
        for tbl in range(2):
            for h in range(2):
                for o in range(2):
                    st(f"ds_read_b128 {v(rs + 16 * tbl + 8 * h + 4 * o, 4)}, {v(tq)} offset:{256 * tbl + 128 * h + 16 * o}")

    def mainloop(acc, part):
        st = Stream()

        def aread(f):
            ks, mt = kord[part][f >> 2], f & 3
            return st(f"ds_read_b128 {v(afr + 4 * (f % NAF), 4)}, {v(ar1 if ks >= 10 else L16)} offset:{AI + (4 * (ks % 10) + mt) * AFR}")

        tok = {f: aread(f) for f in range(NAF - 1)}
        for f in range(80):
            ks, mt = kord[part][f >> 2], f & 3
            if f % 2 == 0 and cfg.get("pairw", 1):
                st.wait(tok[f + 1])
            for sl in range(2):
                d = v(acc + 16 * sl + 4 * mt, 4)
                x, w = v(afr + 4 * (f % NAF), 4), a(wreg(part, ks, sl), 4)
                st(f"v_mfma_f32_16x16x32_bf16 {d}, {w if part else x}, {x if part else w}, {d if f >= 4 else 0}")
                if sl == 0 and f + NAF - 1 < 80:
                    tok[f + NAF - 1] = aread(f + NAF - 1)
        return st

    sf = Stream()
    sf(f"v_add_u32 {v(t0)}, {SX}, {v(l8)}")
    for i in range(4):
        sf(f"ds_read_b64 {v(pr + 2 * i, 2)}, {v(t0)} offset:{512 * i}")
    sf(f"s_add_u32 s4, s{SW9}, {TB}")
    sf(f"v_lshl_add_u32 {v(tw)}, {v(LANE)}, 2, s4")
    sf(f"v_lshl_add_u32 {v(tq)}, {v(Q_)}, 5, s4")
    sf(f"v_lshl_add_u32 {v(tn)}, {v(TROW)}, 2, s4")
    vop(sf, "add", pr, [("p", pr), ("p", pr + 2)], False)
    vop(sf, "add", pr + 4, [("p", pr + 4), ("p", pr + 6)], False)
    vop(sf, "add", pr, [("p", pr), ("p", pr + 4)], False)
    row_stats(sf, pr, pr + 1, D, pr + 2)
    sf(f"ds_write2st64_b32 {v(tw)}, {v(pr)}, {v(pr + 1)} offset0:0 offset1:1")
    read_rs(sf)
    for mt in range(4):
        off = 128 * (mt >> 1) + 16 * (mt & 1)
        sf(f"ds_read_b32 {v(rz1 + 2 * mt)}, {v(tn)} offset:{off}")
        sf(f"ds_read_b32 {v(rz1 + 2 * mt + 1)}, {v(tn)} offset:{256 + off}")
    sf(f"s_add_u32 s4, s{SW9}, {UTB}")
    sf(f"v_lshl_add_u32 {v(t0)}, {v(N_)}, 2, s4")
    for sl in range(2):
        sf(f"ds_read2_b32 {v(UZ2 + 2 * sl, 2)}, {v(t0)} offset0:{32 * sl} offset1:{32 * sl + 16}")
    sf(f"v_lshl_add_u32 {v(t0)}, {v(Q_)}, 4, s4")
    for j in range(4):
        sf(f"ds_read_b128 {v(UZ1 + 4 * j, 4)}, {v(t0)} offset:{256 + 64 * j}")
    for i in range(32):
        sf(f"v_fma_f32 {v(tmp + i)}, {v(rs + 16 + i % 16)}, {v(UZ2 + 2 * (i // 16))}, {v(UZ2 + 2 * (i // 16) + 1)}")
    apos = lambda i: (224, 192, 160, 0, 32, 64, 96, 128)[i]
    tk, rd = {0: [], 1: []}, {}

    def dma(st, i):
        st.wait(rd[i - 2])
        tk[i] = wsp_dma(st, i, do)

    def frag(st, i):
        st.wait(*tk[i])
        for ksl in range(2):
            for tau in range(4):
                rd[i] = st(f"ds_read_b128 {a(apos(i) + 16 * ksl + 4 * tau, 4)}, {v(ra + 2 * tau + ksl)} offset:{(i & 1) * 8192}")

    def turn(st, i):
        frag(st, i)
        if i + 2 < 8:
            dma(st, i + 2)

    nw1 = cfg.get("nw1", 6)
    nz2 = cfg.get("nz2", 0)
    allstaged = cfg.get("ne", 0)
    wz = Stream()
    for ks, sl in wl:
        w_load(wz, 0, ks, sl)
    for i in range(allstaged, 2):
        tk[i] = wsp_dma(wz, i, do)
    assert nw1 <= 12
    w_loads(wz, 1, 0, nw1)
    wz2 = Stream()
    for i in range(nz2):
        turn(wz2, i)
    wze = cfg.get("wze", 120)
    assert wze >= 32 * nz2
    k.extend(weave(mainloop(acc2, 0), [(sf, 4, 155), (wz, 0, wze if nz2 else 159), (wz2, wze + 1, 159)]))
    stamp(k, 17)
    zz = Stream()
    zz("s_nop 7")
    zz("s_cmp_eq_u32 s101, 2")
    zz("s_cbranch_scc1 Lz_keep")
    for i in range(16):
        zz(f"v_mov_b32 {v(acc2 + 16 + i)}, 0")
    zz("s_cmp_eq_u32 s101, 1")
    zz("s_cbranch_scc1 Lz_keep")
    for i in range(16):
        zz(f"v_mov_b32 {v(acc2 + i)}, 0")
    zz("Lz_keep:")
    k.raw(zz)

    e2 = Stream()
    for i in range(16):
        pk(e2, "fma", acc2 + 2 * i, [("p", acc2 + 2 * i), ("p", rs + 2 * (i % 8)), ("p", tmp + 2 * i)])
    gelu(e2, [acc2 + 2 * i for i in range(16)], tmp, GC)
    for i in range(8):
        pk(e2, "add", tmp + 2 * i, [("p", acc2 + 2 * i), ("p", acc2 + 16 + 2 * i)])
        pk(e2, "mul", tmp + 16 + 2 * i, [("p", acc2 + 2 * i), ("p", acc2 + 2 * i)])
    for i in range(8):
        pk(e2, "fma", tmp + 16 + 2 * i, [("p", acc2 + 16 + 2 * i), ("p", acc2 + 16 + 2 * i), ("p", tmp + 16 + 2 * i)])
    for i in range(16):
        e2(f"v_add_f32_dpp {v(rs + i)}, {v(tmp + i)}, {v(tmp + i)} row_ror:8 row_mask:0xf bank_mask:0x3")
    for i in range(16):
        e2(f"v_add_f32_dpp {v(rs + i)}, {v(tmp + 16 + i)}, {v(tmp + 16 + i)} row_ror:8 row_mask:0xf bank_mask:0xc")
    for i in range(8):
        e2(f"v_add_f32_dpp {v(tmp + i)}, {v(rs + i)}, {v(rs + i)} row_half_mirror row_mask:0xf bank_mask:0x5")
    for i in range(8):
        e2(f"v_add_f32_dpp {v(tmp + i)}, {v(rs + 8 + i)}, {v(rs + 8 + i)} row_half_mirror row_mask:0xf bank_mask:0xa")
    for i in range(8):
        e2(f"v_add_f32_dpp {v(tmp + i)}, {v(tmp + i)}, {v(tmp + i)} quad_perm:[1,0,3,2] row_mask:0xf bank_mask:0xf")
    for i in range(8):
        e2(f"v_add_f32_dpp {v(tmp + i)}, {v(tmp + i)}, {v(tmp + i)} quad_perm:[2,3,0,1] row_mask:0xf bank_mask:0xf")
    e2(f"v_lshrrev_b32 {v(t0)}, 2, {v(N_)}")
    e2(f"v_lshl_add_u32 {v(t0)}, {v(t0)}, 7, {v(tq)}")
    e2(f"ds_write_b128 {v(t0)}, {v(tmp, 4)}")
    e2(f"ds_write_b128 {v(t0)}, {v(tmp + 4, 4)} offset:16")
    sd = Stream()
    nw2 = cfg.get("nw2", 20)
    w_loads(sd, 1, nw1, nw2)
    ne2 = cfg.get("ne2", 1)
    for i in range(nz2, ne2):
        turn(sd, i)
    k.extend(sprinkle(e2, sd, 0.0, cfg.get("e2end", 0.9)))
    k.barrier()
    k(f"v_lshlrev_b32 {v(t0)}, 2, {v(LANE)}")
    k(f"v_add_u32 {v(t0)}, {TB}, {v(t0)}")
    for i in range(4):
        k(f"ds_read2st64_b32 {v(pr + 2 * i, 2)}, {v(t0)} offset0:{2 * i} offset1:{2 * i + 1}")
    k(f"s_lshl_b32 s4, s{SRB}, 12")
    k(f"s_add_u32 s4, s4, {ST3}")
    k(f"v_add_u32 {v(so)}, s4, {v(l8)}")
    k(f"s_lshl_b32 s4, s{SCB}, 9")
    k(f"v_add_u32 {v(t0)}, s4, {v(so)}")
    k(f"v_subrev_u32 {v(tw)}, {TB - SX}, {v(tw)}")
    k(f"v_subrev_u32 {v(tq)}, {TB - SX}, {v(tq)}")
    pk(k, "add", pr, [("p", pr), ("p", pr + 2)])
    pk(k, "add", pr + 4, [("p", pr + 4), ("p", pr + 6)])
    pk(k, "add", pr, [("p", pr), ("p", pr + 4)])
    k(f"v_min_u32 {v(pr)}, -2, {v(pr)}")
    k(f"v_min_u32 {v(pr + 1)}, -2, {v(pr + 1)}")
    k(f"s_lshl_b32 s4, {s(WAVE)}, 4")
    k(f"s_lshl_b64 exec, 0xffff, s4")
    k(f"global_store_dwordx2 {v(t0)}, {v(pr, 2)}, {sp(WS)} sc1")
    k(f"s_mov_b64 exec, -1")
    stamp(k, 18)
    sides = []
    first = max(nz2, ne2)
    w0 = (20 - nw2) * 8
    if w0:
        assert w0 + 24 <= 8 * nw2
        sides.append((stream(w_loads, 1, nw2, 20), 0, w0 - 1))
    pos = [w0 + ((130 - w0) * (i - first)) // (6 - first) for i in range(first, 7)] + [150]
    for n_, i in enumerate(range(first, 7)):
        lo_ = max(pos[n_], 32 * (i - 2) + 2)
        sides.append((stream(turn, i), lo_, max(lo_, max(pos[n_ + 1], 32 * (i - 1) + 2) - 1) if i < 6 else 150))
    pl = tmp

    def st3_loads(st):
        for i in range(8):
            st(f"global_load_dwordx2 {v(pl + 2 * i, 2)}, {v(so)}, {sp(WS)} offset:{512 * i} sc1")

    def misc_loads(st):
        st(f"v_min_u32 {v(t2)}, 26, {v(LANE)}")
        st(f"v_lshlrev_b32 {v(t2)}, 7, {v(t2)}")
        st(f"v_add_u32 {v(t2)}, {SDF}, {v(t2)}")
        st(f"global_load_dword {v(gq + 8)}, {v(t2)}, {sp(WS)} sc1")
        st(f"s_mul_i32 s7, s{SCB}, 320")
        st(f"s_add_u32 s7, s7, {MODP + 5 * D * 4}")
        st(f"v_min_u32 {v(t2)}, {19 * 16}, {v(L16)}")
        st(f"v_add_u32 {v(t2)}, s7, {v(t2)}")
        st(f"global_load_dwordx4 {v(gq, 4)}, {v(t2)}, {sp(WS)} sc1")
        st(f"v_add_u32 {v(t2)}, {MODS}, {v(t2)}")
        st(f"global_load_dwordx4 {v(gq + 4, 4)}, {v(t2)}, {sp(WS)} sc1")

    zs = cfg.get("zsplit", 120)
    s3 = stream(st3_loads)
    if cfg.get("ct2", 1):
        code_touch(s3, "Lmid", "Lend", 254)
    sides.append((s3, zs - cfg.get("st3", 30), zs - cfg.get("st3", 30) + 12))
    rr = Stream()
    misc_loads(rr)
    for j in range(2):
        rr(f"ds_read_b128 {v(xres + 4 * j, 4)}, {v(xa)} offset:{AI + 4 * AFR * j}")
    rr(f"ds_read_b64 {v(xres + 8, 2)}, {v(xa + 1)} offset:{AI + 8 * AFR}")
    gr = list(range(gq, gq + 9))
    maxchain(rr, t0, gr)
    check(rr, stubs, "Lgb", misc_loads, gr, t0)
    fin_mod4(rr, gq, gq + 4)
    if cfg.get("x_scale"):
        for j in range(4):
            rr(f"v_mul_f32 {v(gq + j)}, {hex(fbits(cfg['x_scale']))}, {v(gq + j)}")
    rr(f"v_min_u32 {v(t2)}, {19 * 16}, {v(L16)}")
    rr(f"v_add_u32 {v(t2)}, {GBT}, {v(t2)}")
    rr(f"ds_write_b128 {v(t2)}, {v(gq, 4)}")
    sides.append((rr, 2, zs - cfg.get("st3", 30) - 1))
    sc = Stream()
    sc(f"s_mul_i32 s91, s{SCB}, {64 * 7168}")
    sc(f"s_add_u32 s91, s91, {Z2}")
    for i in range(0, 8, 2):
        sc(f"s_mul_i32 s6, s{JB + i}, 14336")
        sc("s_add_u32 s6, s6, s91")
        sc(f"s_add_u32 s{ZB + 2 * i}, s{WS}, s6")
        sc(f"s_addc_u32 s{ZB + 2 * i + 1}, s{WS + 1}, 0")
        sc(f"s_add_u32 s{ZB + 2 * i + 2}, s{ZB + 2 * i}, 14336")
        sc(f"s_addc_u32 s{ZB + 2 * i + 3}, s{ZB + 2 * i + 1}, 0")
    sides.append((sc, max(zs + 1, w0 + 1), 158))
    zl = weave(mainloop(acc1, 1), sides)
    cutp = len(zl.ins)
    if zs < 160:
        cutp = [i for i, x in enumerate(zl.ins) if x.cls == "mfma"][zs]
    k.ins.extend(zl.ins[:cutp])
    stamp(k, 19)
    s3r = list(range(pl + 1, pl + 16, 2))
    maxchain(k, t0, s3r)
    check(k, stubs, "Ls3", st3_loads, s3r, t0)
    stamp(k, 20)
    for stp in (2, 4, 8):
        for i in range(0, 16, 2 * stp):
            pk(k, "add", pl + i, [("p", pl + i), ("p", pl + i + stp)])
    row_stats(k, pl, pl + 1, FH, pl + 2)
    k(f"ds_write2st64_b32 {v(tw)}, {v(pl)}, {v(pl + 1)} offset0:0 offset1:1")
    read_rs(k)
    k(f"s_lshl_b32 s4, s{SCB}, 6")
    k(f"s_lshl_b32 s5, s{SRB}, 1")
    k("s_add_u32 s4, s4, s5")
    k("s_mul_i32 s4, s4, 7168")
    k(f"s_lshl_b32 s5, {s(WAVE)}, 11")
    k("s_add_u32 s4, s4, s5")
    k(f"s_add_u32 s4, s4, {Z2}")
    k(f"v_add_u32 {v(t0)}, s4, {v(L16)}")
    k(f"v_add_u32 {v(t1)}, 7168, {v(t0)}")
    for sl in range(2):
        for h in range(2):
            for i in range(4 * h, 4 * h + 4):
                r = acc2 + 16 * sl + 2 * i
                pk(k, "fma", r, [("p", r), ("p", rs + 2 * i), ("p", rs + 16 + 2 * i)])
            o = tmp + 8 * sl + 4 * h
            for i in range(4):
                r = acc2 + 16 * sl + 8 * h + 2 * i
                k(f"v_cvt_pk_bf16_f32 {v(o + i)}, {v(r)}, {v(r + 1)}")
            set_tag(k, o + 3, 1)
            zs_ = f"global_store_dwordx4 {v(t1 if h else t0)}, {v(o, 4)}, {sp(WS)} offset:{1024 * sl} sc1"
            if sl:
                sk = Stream()
                sk(f"s_cmp_eq_u32 {s(WAVE)}, 3")
                sk(f"s_cbranch_scc1 Lzs_{h}")
                sk(zs_)
                sk(f"Lzs_{h}:")
                k.raw(sk)
            else:
                k(zs_)
    stamp(k, 21)
    k.ins.extend(zl.ins[cutp:])
    frag(k, 7)
    k.barrier()

    stash = UZ2
    zv, mx = 30, t0
    ring, acc = 62, 142
    G, NG, NA = 4, 5, 4
    steps = [4, 5, 6, 7, 8, 9, 10, 11, 0, 1, 2, 3, 12, 13, 14, 15]
    order = [(st_, sl) for st_ in steps[:NA] for sl in range(7)] + [(st_, sl) for sl in range(7) for st_ in steps[NA:]]
    ngrp = len(order) // G
    gA, gS = 7 * NA // G, (16 - NA) // G
    freg = lambda f: ring + 4 * (f % (G * NG))

    def gloads(g):
        def f(st):
            for fi in range(G * g, G * g + G):
                step, sl = order[fi]
                i, ksl = step >> 1, step & 1
                st(f"global_load_dwordx4 {v(freg(fi), 4)}, {v(zv + ksl)}, s[{ZB + 2 * i}:{ZB + 2 * i + 1}] offset:{1024 * sl - 3072} sc1")
        return f

    gregs = lambda g: [freg(fi) + 3 for fi in range(G * g, G * g + G)]
    nzf = cfg.get("zf", 4)

    def zfirst(st):
        if cfg.get("zprobe", 1):
            st(f"global_load_dword {v(zp)}, {v(t1)}, s[{ZB + 4}:{ZB + 5}] offset:1020 sc1")
        for g in range(nzf):
            gloads(g)(st)

    tmp1 = acc2
    e1 = Stream()
    e1(f"s_lshl_b32 s4, {s(WAVE)}, 10")
    e1(f"s_add_u32 s4, s4, {RED}")
    e1(f"v_add_u32 {v(tw)}, s4, {v(l8)}")
    e1(f"s_lshl_b32 s4, {s(WAVE)}, 12")
    e1(f"s_add_u32 s4, s4, {RED}")
    e1(f"v_add_u32 {v(tq)}, s4, {v(l8)}")
    e1(f"v_add_u32 {v(zv)}, 3072, {v(L16)}")
    e1(f"v_add_u32 {v(zv + 1)}, {3072 + 7168}, {v(L16)}")
    e1(f"v_min_u32 {v(t1)}, 27, {v(LANE)}")
    e1(f"v_lshlrev_b32 {v(t1)}, 10, {v(t1)}")
    for sl in range(2):
        for mt in range(4):
            for p in range(2):
                pk(e1, "fma", tmp1 + 4 * mt + 2 * p, [("p", UZ1 + 8 * sl + 2 * p), ("b", rz1 + 2 * mt + 1), ("p", UZ1 + 8 * sl + 4 + 2 * p)])
        for mt in range(4):
            for p in range(2):
                r = acc1 + 16 * sl + 4 * mt + 2 * p
                pk(e1, "fma", r, [("p", r), ("b", rz1 + 2 * mt), ("p", tmp1 + 4 * mt + 2 * p)])
    gelu(e1, [acc1 + 2 * i for i in range(16)], tmp1, GC)
    for i in range(16):
        e1(f"v_cvt_pk_bf16_f32 {v(tmp1 + i)}, {v(acc1 + 2 * i)}, {v(acc1 + 2 * i + 1)}")
    for sl in range(2):
        for mt in range(4):
            e1(f"ds_write_b64 {v(tw)}, {v(tmp1 + 8 * sl + 2 * mt, 2)} offset:{4096 * mt + 512 * sl}")
    wd = Stream()
    wd(f"s_mul_i32 s5, s{SCB}, {135 * 1024}")
    wd(f"s_add_u32 s5, s5, {WO}")
    wd(f"s_add_u32 s92, s{WS}, s5")
    wd(f"s_addc_u32 s93, s{WS + 1}, 0")
    wd(f"s_mul_i32 s95, {s(WAVE)}, {34 * 1024}")
    wd(f"s_min_u32 s95, s95, {101 * 1024}")
    wd("s_add_u32 s92, s92, s95")
    wd("s_addc_u32 s93, s93, 0")
    for r in range(34):
        if r % 4 == 0:
            wd(f"s_add_u32 m0, s95, {1024 * r}")
            if r:
                wd("s_add_u32 s92, s92, 4096")
                wd("s_addc_u32 s93, s93, 0")
        wd(f"global_load_lds_dwordx4 {v(L16)}, s[92:93] offset:{1024 * (r % 4)} sc1")
    vi = [i + 1 for i, x in enumerate(wd.ins) if x.cls == "vmem"]
    n1 = cfg.get("wo1", 10)
    nwg = cfg.get("wog", 4)
    wd1 = Stream()
    wd1.ins = wd.ins[:vi[n1 - 1]]
    cuts = [vi[n1 - 1 + ((34 - n1) * i) // nwg] for i in range(nwg + 1)]
    wd3 = [wd.ins[cuts[i]:cuts[i + 1]] for i in range(nwg)]
    zpos = cfg.get("zpos", 0.55)
    k.extend(sprinkle(sprinkle(e1, wd1, 0.0, zpos), stream(zfirst), zpos, 1.0))
    k.barrier()
    for sl in range(7):
        k(f"ds_read_b64 {v(z1r + 2 * sl, 2)}, {v(tq)} offset:{512 * sl}")
    stamp(k, 22)
    k("Lmid:")

    wa3, rda = stash + 12, stash + 15
    pvr = [WO0, WO1, UZ1 + 14, UZ1 + 15]
    su = Stream()
    for tau in range(1, 4):
        su(f"s_xor_b32 s4, {s(WAVE)}, {tau}")
        su("s_mul_i32 s4, s4, 3072")
        su(f"s_add_u32 s4, s4, {RED + 1024 * (tau - 1)}")
        su(f"v_add_u32 {v(wa3 + tau - 1)}, s4, {v(L16)}")
    su(f"s_mul_i32 s4, {s(WAVE)}, 3072")
    su(f"s_add_u32 s4, s4, {RED}")
    su(f"v_add_u32 {v(rda)}, s4, {v(L16)}")
    su(f"s_mul_i32 s4, s{SRB}, {XRB}")
    su(f"s_add_u32 s4, s4, {P + 4096}")
    su(f"s_lshl_b32 s5, {s(WAVE)}, 13")
    su("s_add_u32 s5, s5, s4")
    su(f"v_add_u32 {v(pvr[0])}, s5, {v(L16)}")
    for i in range(1, 3):
        su(f"v_add_u32 {v(pvr[i])}, {32768 * i}, {v(pvr[0])}")
    su(f"s_lshl_b32 s5, {s(WAVE)}, 12")
    su("s_add_u32 s5, s5, s4")
    su(f"s_add_u32 s5, s5, {3 * 32768}")
    su(f"v_add_u32 {v(pvr[3])}, s5, {v(L16)}")
    su(f"s_lshl_b32 s4, s{SCB}, 10")
    su(f"s_add_u32 s{WA}, s{WS}, s4")
    su(f"s_addc_u32 s{WA + 1}, s{WS + 1}, 0")
    su(f"s_lshr_b32 s4, s{SCB}, 1")
    su("s_lshl_b32 s4, s4, 10")
    su(f"s_and_b32 s5, s{SCB}, 1")
    su("s_lshl_b32 s5, s5, 3")
    su("s_add_u32 s4, s4, s5")
    su(f"s_add_u32 s{WA + 2}, s{WS}, s4")
    su(f"s_addc_u32 s{WA + 3}, s{WS + 1}, 0")
    su.barrier()

    def red_write(st, sl):
        for tau in range(1, 4):
            tok = st(f"ds_write_b128 {v(wa3 + tau - 1)}, {v(acc + 16 * sl + 4 * tau, 4)} offset:{12288 * (sl & 1)}")
        st.barrier(tok)

    def red_fin(st, sl, packed):
        A = acc + 16 * sl
        for tau in range(1, 4):
            st(f"ds_read_b128 {v(A + 4 * tau, 4)}, {v(rda)} offset:{12288 * (sl & 1) + 1024 * (tau - 1)}")
        un = stash + 4
        for p in range(2):
            unpack(st, un + 2 * p, un + 2 * p + 1, z1r + 2 * sl + p)
        for tau in range(1, 4):
            for p in range(2):
                vop(st, "add", A + 2 * p, [("p", A + 2 * p), ("p", A + 4 * tau + 2 * p)], packed)
        for p in range(2):
            vop(st, "mul", A + 2 * p, [("p", A + 2 * p), ("p", un + 2 * p)], packed)
        o = z1r + 2 * sl
        for p in range(2):
            st(f"v_cvt_pk_bf16_f32 {v(o + p)}, {v(A + 2 * p)}, {v(A + 2 * p + 1)}")
        if sl & 1 or sl == 6:
            set_tag(st, o + 1, 0)

    def pstore(st, j):
        if j == 3:
            st(f"global_store_dwordx2 {v(pvr[3])}, {v(z1r + 12, 2)}, {sp(WA + 2)} offset:-4096 sc1")
        else:
            st(f"global_store_dwordx4 {v(pvr[j])}, {v(z1r + 4 * j, 4)}, {sp(WA)} offset:-4096 sc1")

    kgrp = [[(7 * c + 1) // 2 + j for c in range(8) if (7 * c + 1) // 2 + j < 27] for j in range(3)] + [[3, 10, 17, 24]]
    pbase = [acc, acc + 32, acc + 64, acc + 96]

    def ploads(j):
        def f(st):
            for i, ks in enumerate(kgrp[j]):
                st(f"global_load_dwordx4 {v(pbase[j] + 4 * i, 4)}, {v(pvr[j])}, {sp(WS)} offset:{1024 * i - 4096} sc1")
        return f

    zr = ([zp] if cfg.get("zprobe", 1) else []) + gregs(0)
    maxchain(k, mx, zr, tag=1)
    check(k, stubs, "Lz0", zfirst, zr, mx, tag=1)
    stamp(k, 23)
    for g in range(nzf, NG - 1):
        gloads(g)(k)
    for g in range(ngrp):
        m = Stream()
        for fi in range(G * g, G * g + G):
            step, sl = order[fi]
            i, ksl = step >> 1, step & 1
            for tau in range(4):
                d = v(acc + 16 * sl + 4 * tau, 4)
                cin = d if step != steps[0] else (v(bs, 4) if tau == 0 else "0")
                m(f"v_mfma_f32_16x16x32_bf16 {d}, {v(freg(fi), 4)}, {a(apos(i) + 16 * ksl + 4 * tau, 4)}, {cin}")
        sides = []
        st = Stream()
        if g + NG - 1 < ngrp:
            gloads(g + NG - 1)(st)
        if g == cfg.get("pst", ngrp - NG + 1):
            pstore(st, 0)
            pstore(st, 1)
        gi = g - (cfg.get("wge", ngrp - 1) + 1 - nwg)
        if 0 <= gi < nwg:
            st.ins += wd3[gi]
        for j, gj in enumerate(cfg.get("plg", [])):
            if g == gj:
                ploads(j)(st)
        sides.append((st, 0, 15))
        if g == 1:
            sides.append((su, 0, 15))
        if g == cfg.get("ct3", -1):
            sides.append((stream(code_touch, "Lz20_ok", "Lend", 254), 0, 8))
        q3t = cfg.get("q3t", [0, 3])
        if g in q3t:
            i = 0 if g == q3t[0] else 6
            st = Stream()
            st(f"v_min_u32 {v(zp + 1)}, 27, {v(LANE)}")
            st(f"s_mul_i32 s6, s{SRI}, 28")
            st(f"v_add_lshl_u32 {v(zp + 1)}, {v(zp + 1)}, s6, 7")
            st(f"global_load_dword {v(stash + i // 6)}, {v(zp + 1)}, s[{ZB + 2 * i}:{ZB + 2 * i + 1}] sc1")
            sides.append((st, 0, 4))
        tch = cfg.get("tch")
        if tch and g in tch:
            s0, s1 = tch[g]
            st = Stream()
            st(f"v_min_u32 {v(zp + 1)}, {4 * (s1 - s0) - 1}, {v(LANE)}")
            st(f"v_and_b32 {v(stash + 2)}, 3, {v(zp + 1)}")
            st(f"v_mul_u32_u24 {v(stash + 2)}, {7168 - 256}, {v(stash + 2)}")
            st(f"v_lshl_add_u32 {v(zp + 1)}, {v(zp + 1)}, 8, {v(stash + 2)}")
            st(f"s_lshl_b32 s6, s{SRI}, 7")
            st(f"s_add_u32 s6, s6, {1024 * s0}")
            st(f"v_add_u32 {v(zp + 1)}, s6, {v(zp + 1)}")
            for i in (0, 6):
                st(f"global_load_dword {v(stash + i // 6)}, {v(zp + 1)}, s[{ZB + 2 * i}:{ZB + 2 * i + 1}] sc1")
            sides.append((st, 0, 9))
        if g + 1 < ngrp:
            st = Stream()
            maxchain(st, mx, gregs(g + 1), tag=1)
            badcmp(st, mx, 1)
            sides.append((st, 10, 14))
        if g >= gA + gS:
            sl, ph = divmod(g - gA - gS, gS)
            st = Stream()
            if ph == 0:
                red_write(st, sl)
                sides.append((st, 3, 14))
                fin = stream(red_fin, sl, False).ins
            else:
                per = -(-len(fin) // (gS - 1))
                st.ins = fin[(ph - 1) * per:ph * per]
                sides.append((st, 0, 15))
        k.extend(weave(m, sides))
        if g + 1 < ngrp:
            check(k, stubs, f"Lz{g + 1}", gloads(g + 1), gregs(g + 1), mx, cmp=False, tag=1)
        if g == gA - 1:
            stamp(k, 24)
    stamp(k, 25)
    early = cfg.get("pearly", 2)
    tl = Stream()
    red_write(tl, 6)
    red_fin(tl, 6, True)
    pe = Stream()
    early = max(early, len(cfg.get("plg", [])))
    for j in range(len(cfg.get("plg", [])), early):
        ploads(j)(pe)
    if cfg.get("ps2", 0):
        pstore(k, 2)
    k.extend(sprinkle(tl, pe, 0.0, 0.9))
    if not cfg.get("ps2", 0):
        pstore(k, 2)
    pstore(k, 3)
    stamp(k, 26)

    acc3, NWF = ring, cfg.get("nwf", 24)
    wf, gb, X = ring + 20, ring + 44, ring + 64
    ra3 = [L16, zv, zv + 1]
    k(f"v_add_u32 {v(ra3[1])}, {60 * 1024}, {v(L16)}")
    k(f"v_add_u32 {v(ra3[2])}, {120 * 1024}, {v(L16)}")
    for j in range(early, 2):
        ploads(j)(k)
    k.wait(*[x for part in wd3 for x in part if x.cls == "vmem"])
    k("s_barrier")
    seq = [(j, i, ks, dt) for j in range(4) for i, ks in enumerate(kgrp[j]) for dt in range(5)]

    def wread(st, f):
        fr = 5 * seq[f][2] + seq[f][3]
        st(f"ds_read_b128 {a(4 * (f % NWF), 4)}, {v(ra3[fr // 60])} offset:{1024 * (fr % 60)}")

    for f in range(NWF - 1):
        wread(k, f)
    Xr = [X + j for j in range(16)] + [stash + 4 + j for j in range(4)]
    ep = Stream()
    ep(f"v_lshlrev_b32 {v(t1)}, 5, {v(Q_)}")
    ep(f"v_add_u32 {v(t1)}, {GBT}, {v(t1)}")
    for j in range(4):
        ep(f"ds_read_b128 {v(gb + 4 * j, 4)}, {v(t1)} offset:{128 * (j >> 1) + 16 * (j & 1)}")
    ep(f"v_lshlrev_b32 {v(t1)}, 4, {v(Q_)}")
    ep(f"v_add_u32 {v(t1)}, {GBT}, {v(t1)}")
    ep(f"ds_read_b128 {v(gb + 16, 4)}, {v(t1)} offset:256")
    for j in range(10):
        unpack(ep, Xr[2 * j], Xr[2 * j + 1], xres + j)
    ep(f"v_add_u32 {v(zp)}, s90, {v(TROW)}")
    ep(f"v_mul_u32_u24 {v(zp)}, 1280, {v(zp)}")
    ep(f"s_mul_i32 s4, s{SCB}, 160")
    ep(f"v_add_u32 {v(zp)}, s4, {v(zp)}")
    ep(f"v_lshl_add_u32 {v(zp + 1)}, {v(Q_)}, 4, {v(zp)}")
    ep(f"v_lshl_add_u32 {v(zp)}, {v(Q_)}, 3, {v(zp)}")
    f = 0
    for j in range(4):
        pregs = list(range(pbase[j] + 3, pbase[j] + 4 * len(kgrp[j]), 4)) if j < 3 else list(range(pbase[j] + 1, pbase[j] + 16, 2))
        maxchain(k, mx, pregs, tag=0)
        check(k, stubs, f"Lp{j}", ploads(j), pregs, mx, tag=0)
        stamp(k, 27 + j)
        m = Stream()
        while f < len(seq) and seq[f][0] == j:
            _, i, ks, dt = seq[f]
            d = v(acc3 + 4 * dt, 4)
            m(f"v_mfma_f32_16x16x32_bf16 {d}, {a(4 * (f % NWF), 4)}, {v(pbase[j] + 4 * i, 4)}, {d if f >= 5 else 0}")
            if f + NWF - 1 < len(seq):
                wread(m, f + NWF - 1)
            f += 1
        sides = []
        if j == 1:
            st = Stream()
            ploads(2)(st)
            ploads(3)(st)
            sides.append((st, cfg.get("pl", 10), cfg.get("ple", 39)))
        k.extend(weave(m, sides))
        if j == 1:
            k.extend(ep)
    o = acc
    ost = cfg.get("ost", "")
    for B in range(2):
        for j in range(8):
            k(f"v_fmac_f32 {v(Xr[8 * B + j])}, {v(acc3 + 4 * (2 * B + (j & 1)) + (j >> 1))}, {v(gb + 8 * B + j)}")
        for j in range(4):
            k(f"v_cvt_pk_bf16_f32 {v(o + 4 * B + j)}, {v(Xr[8 * B + 2 * j])}, {v(Xr[8 * B + 2 * j + 1])}")
        k(f"global_store_dwordx4 {v(zp + 1)}, {v(o + 4 * B, 4)}, {sp(OUT)} offset:{64 * B} {ost}")
    for j in range(4):
        k(f"v_fmac_f32 {v(Xr[16 + j])}, {v(acc3 + 16 + j)}, {v(gb + 16 + j)}")
    for j in range(2):
        k(f"v_cvt_pk_bf16_f32 {v(o + 8 + j)}, {v(Xr[16 + 2 * j])}, {v(Xr[17 + 2 * j])}")
    k(f"global_store_dwordx2 {v(zp)}, {v(o + 8, 2)}, {sp(OUT)} offset:128 {ost}")
```

```python
from asmlib import Stream, Alloc, v, a, s, weave, sprinkle
from blocks import *
from fused import *

TRB = 104448
XSB = 122880


def dbg_addr(k, t, full):
    if full:
        k(f"v_min_u32 {v(t)}, 49, {v(LANE)}")
        k(f"v_cmp_lt_u32 vcc, 7, {v(t)}")
        k(f"v_cndmask_b32 {v(t + 1)}, 0, 7, vcc".replace("v_cndmask_b32", "v_cndmask_b32_e64"))
        k(f"v_add_lshl_u32 {v(t)}, {v(t)}, {v(t + 1)}, 2")
    else:
        k(f"v_and_b32 {v(t)}, 7, {v(LANE)}")
        k(f"v_lshlrev_b32 {v(t)}, 2, {v(t)}")


def dbg_load(k, t):
    return k(f"global_load_dword {v(t + 1)}, {v(t)}, {sp(DBG)} sc1")


def init_check(k, name, t):
    k(f"s_branch {name}_f")
    k(f"{name}:")
    k("s_sleep 4")
    k(f"{name}_f:")
    dbg_load(k, t)
    k.drain(lgkm=False)
    k(f"v_cmp_eq_u32 vcc, 0, {v(t + 1)}")
    k("s_add_u32 s100, s100, 1")
    k(f"s_cmp_ge_u32 s100, {SPIN}")
    k(f"s_cbranch_scc1 {name}_x")
    k(f"s_cbranch_vccnz {name}")
    k(f"{name}_x:")


def init_check_wg(k, name, t):
    st = Stream()
    st(f"s_cmp_lg_u32 {s(WAVE)}, 0")
    st(f"s_cbranch_scc1 {name}_x")
    dbg_addr(st, t, True)
    init_check(st, name, t)
    k.raw(st)


def init_fill(k, su):
    for j in range(4):
        k(f"v_mov_b32 {v(8 + j)}, -1")
    k(f"s_mul_i32 s4, s{su}, 9216")
    k(f"s_mul_i32 s5, {s(WAVE)}, 2304")
    k("s_add_u32 s4, s4, s5")
    k(f"s_add_u32 s4, s4, {INIT0}")
    k(f"v_add_u32 v6, s4, {v(L16)}")
    for o in (0, 1024, 1280):
        k(f"global_store_dwordx4 v6, v[8:11], {sp(WS)} offset:{o} sc1")
    k(f"s_lshl_b32 s4, s{su}, 2")
    k("v_mov_b32 v6, s4")
    k.drain(lgkm=False)
    k("s_barrier")
    k(f"s_cmp_lg_u32 {s(WAVE)}, 0")
    k("s_cbranch_scc1 Linit_skip")
    k(f"global_store_dword v6, v8, {sp(DBG)} sc1")
    k("Linit_skip:")
    stamp(k, 44)


class Mod:
    def __init__(self, R, sA):
        self.off, self.coff = R(), R()
        self.cv = R(10, 2)
        self.w = R(40, 4)
        self.t = R(8, 2)
        self.acc = R(8, 2)
        self.sA = sA

    @staticmethod
    def decode(k, smu, sA):
        k(f"s_lshr_b32 s4, s{smu}, 1")
        k(f"s_and_b32 s5, s{smu}, 1")
        k("s_cmp_lt_u32 s4, 50")
        k("s_cselect_b32 s6, -20, 0")
        k("s_cmp_lt_u32 s4, 20")
        k("s_cselect_b32 s6, 30, s6")
        k("s_add_u32 s4, s4, s6")
        k(f"s_mul_i32 s6, s5, {MODS}")
        k("s_lshl_b32 s7, s4, 8")
        k(f"s_add_u32 s{sA}, s6, s7")

    def issue(self, k, smu):
        sA, off, coff = self.sA, self.off, self.coff
        self.decode(k, smu, sA)
        k("s_lshl_b32 s5, s5, 2")
        k(f"s_add_u32 s5, s5, {s(WAVE)}")
        k("s_mul_i32 s5, s5, 80")
        k("s_lshl_b32 s4, s4, 7")
        k("s_mul_i32 s6, s5, 7680")
        k("s_add_u32 s4, s4, s6")
        k(f"v_min_u32 {v(off)}, 39, {v(LANE)}")
        k("s_lshl_b32 s5, s5, 1")
        k(f"v_lshl_add_u32 {v(off)}, {v(off)}, 2, s5")
        self.first = k(f"global_load_dword {v(self.t)}, {v(off)}, {sp(C)}")
        k(f"v_lshrrev_b32 {v(coff)}, 3, {v(LANE)}")
        k(f"v_mul_u32_u24 {v(off)}, {2 * 7680 - 128}, {v(coff)}")
        k(f"v_add3_u32 {v(off)}, {v(off)}, {v(L16)}, s4")
        for i in range(10):
            k(f"global_load_dwordx4 {v(self.w + 4 * i, 4)}, {v(off)}, {sp(WMOD)} nt")
            if i < 9:
                k(f"v_add_u32 {v(off)}, {7680 if i % 2 == 0 else 15 * 7680}, {v(off)}")

    def finish(self, k, lds, before_store, uid, mid=None):
        cv, t, acc, w, sA = self.cv, self.t, self.acc, self.w, self.sA
        unpack(k, t + 2, t + 3, t)
        k(f"v_lshlrev_b32 {v(self.coff)}, 2, {v(self.coff)}")
        for op in ("mul", "exp", "add", "rcp", "fin"):
            for h in range(2):
                x, y = t + 2 + h, t + 4 + h
                k({"mul": f"v_mul_f32 {v(y)}, {hex(LOG2E | 0x80000000)}, {v(x)}", "exp": f"v_exp_f32 {v(y)}, {v(y)}",
                   "add": f"v_add_f32 {v(y)}, 1.0, {v(y)}", "rcp": f"v_rcp_f32 {v(y)}, {v(y)}",
                   "fin": f"v_mul_f32 {v(x)}, {v(x)}, {v(y)}"}[op])
        k(f"v_cvt_pk_bf16_f32 {v(t)}, {v(t + 2)}, {v(t + 3)}")
        for i in range(5):
            k(f"ds_bpermute_b32 {v(acc + i)}, {v(self.coff)}, {v(t)} offset:{32 * i}")
        for i in range(5):
            unpack(k, cv + 2 * i, cv + 2 * i + 1, acc + i)
        u = t
        for i in range(10):
            if i == 5 and mid:
                mid(k)
            for j in range(4):
                unpack(k, u + 2 * j, u + 2 * j + 1, w + 4 * i + j)
            for j in range(4):
                if i == 0:
                    pk(k, "mul", acc + 2 * j, [("p", u + 2 * j), ("b", cv + i)])
                else:
                    pk(k, "fma", acc + 2 * j, [("p", u + 2 * j), ("b", cv + i), ("p", acc + 2 * j)])
        for j in range(4):
            k(f"v_permlane32_swap_b32 {v(acc + j)}, {v(acc + j + 4)}")
        for j in range(4):
            k(f"v_add_f32 {v(acc + j)}, {v(acc + j)}, {v(acc + j + 4)}")
        for j in range(2):
            k(f"v_permlane16_swap_b32 {v(acc + j)}, {v(acc + j + 2)}")
        for j in range(2):
            k(f"v_add_f32 {v(acc + j)}, {v(acc + j)}, {v(acc + j + 2)}")
        ad = u + 1
        k(f"v_and_b32 {v(ad)}, 7, {v(LANE)}")
        k(f"v_lshrrev_b32 {v(u + 2)}, 3, {v(LANE)}")
        k(f"v_add_f32_dpp {v(u)}, {v(acc)}, {v(acc)} row_ror:8 row_mask:0xf bank_mask:0x3")
        k(f"v_add_f32_dpp {v(u)}, {v(acc + 1)}, {v(acc + 1)} row_ror:8 row_mask:0xf bank_mask:0xc")
        k(f"v_lshl_add_u32 {v(ad)}, {v(ad)}, 3, {v(u + 2)}")
        k(f"s_lshl_b32 s7, {s(WAVE)}, 8")
        k(f"s_add_u32 s7, s7, {lds}")
        k(f"v_lshl_add_u32 {v(ad)}, {v(ad)}, 2, s7")
        k(f"ds_write_b32 {v(ad)}, {v(u)}")
        k.barrier()
        k(f"v_lshlrev_b32 {v(ad)}, 2, {v(LANE)}")
        k(f"v_add_u32 {v(u + 2)}, {lds}, {v(ad)}")
        for i in range(4):
            k(f"ds_read_b32 {v(acc + i)}, {v(u + 2)} offset:{256 * i}")
        k(f"v_add_u32 {v(ad)}, s{sA}, {v(ad)}")
        k(f"v_add_f32 {v(acc)}, {v(acc)}, {v(acc + 1)}")
        k(f"v_add_f32 {v(acc + 2)}, {v(acc + 2)}, {v(acc + 3)}")
        k(f"v_add_f32 {v(acc)}, {v(acc)}, {v(acc + 2)}")
        k(f"v_min_u32 {v(acc)}, -2, {v(acc)}")
        if before_store:
            before_store(k)
        st = Stream()
        st(f"s_cmp_lg_u32 {s(WAVE)}, 0")
        st(f"s_cbranch_scc1 Lmod_skip_{uid}")
        st(f"global_store_dword {v(ad)}, {v(acc)}, {sp(WS)} offset:{MODP} sc1")
        st(f"Lmod_skip_{uid}:")
        k.raw(st)


class X16:
    def __init__(self, R):
        self.d = R(20, 4)
        self.off, self.a0, self.a1, self.rho, self.gq = (R() for _ in range(5))
        self.st4 = R(4, 4)
        self.pr = R(8, 2)

    def issue(self, k, su):
        k(f"s_lshl_b32 s4, s{su}, 2")
        k(f"s_add_u32 s4, s4, {s(WAVE)}")
        k("s_mul_i32 s4, s4, 5120")
        k(f"s_cmp_lt_u32 s{su}, 128")
        k("s_cselect_b32 s5, -1, 0")
        k(f"v_add_u32 {v(self.a0)}, s4, {v(L16)}")
        k(f"v_and_b32 {v(self.a0)}, s5, {v(self.a0)}")
        k(f"v_add_u32 {v(self.a0)}, 2048, {v(self.a0)}")
        for i in range(5):
            k(f"global_load_dwordx4 {v(self.d + 4 * i, 4)}, {v(self.a0)}, {sp(Q)} offset:{1024 * i - 2048} nt")

    def stage(self, k):
        a0, a1, d = self.a0, self.a1, self.d
        k(f"s_mul_i32 s5, {s(WAVE)}, 5152")
        k(f"s_add_u32 s5, s5, {XSB}")
        k(f"v_add_u32 {v(a0)}, s5, {v(L16)}")
        k(f"v_lshrrev_b32 {v(a1)}, 5, {v(LANE)}")
        k(f"v_lshl_add_u32 {v(a1)}, {v(a1)}, 4, {v(a0)}")
        for i in range(5):
            k(f"ds_write_b128 {v(a1 if i == 2 else a0)}, {v(d + 4 * i, 4)} offset:{1024 * i + 16 * ((64 * i) // 160)}")

    def emit(self, k, su):
        a0, d, off, rho, gq, st4 = self.a0, self.d, self.off, self.rho, self.gq, self.st4
        k(f"v_mul_u32_u24 {v(a0)}, 2576, {v(rho)}")
        k(f"v_lshl_add_u32 {v(a0)}, {v(gq)}, 3, {v(a0)}")
        k(f"s_mul_i32 s5, {s(WAVE)}, 320")
        k(f"s_add_u32 s5, s5, {XSB}")
        k(f"v_add_u32 {v(a0)}, s5, {v(a0)}")
        for i in range(5):
            k(f"ds_read2_b64 {v(d + 4 * i, 4)}, {v(a0)} offset0:{8 * i} offset1:{160 + 8 * i}")
        k(f"s_lshr_b32 s4, s{su}, 2")
        k(f"s_mul_i32 s4, s4, {XRB}")
        k(f"s_and_b32 s5, s{su}, 3")
        k("s_lshl_b32 s5, s5, 7")
        k("s_add_u32 s4, s4, s5")
        k(f"s_mul_i32 s5, {s(WAVE)}, 20480")
        k("s_add_u32 s4, s4, s5")
        k(f"s_add_u32 s4, s4, {X1 + 4096}")
        k(f"v_lshl_add_u32 {v(off)}, {v(gq)}, 9, s4")
        k(f"v_lshl_add_u32 {v(off)}, {v(rho)}, 4, {v(off)}")
        k(f"s_mov_b32 s7, {hex(ONES)}")
        for j in range(4):
            k(f"v_mov_b32 {v(st4 + j)}, 0")
        for i in range(5):
            set_tag(k, d + 4 * i + 3, 0)
            k(f"global_store_dwordx4 {v(off)}, {v(d + 4 * i, 4)}, {sp(WS)} offset:{4096 * (i & 1) - 4096} sc1")
            if i & 1:
                k(f"v_add_u32 {v(off)}, 8192, {v(off)}")
        for i in range(5):
            for j in range(2):
                for r in range(2):
                    src = d + 4 * i + 2 * r + j
                    k(f"v_dot2_f32_bf16 {v(st4 + 2 * r)}, {v(src)}, s7, {v(st4 + 2 * r)}")
                    k(f"v_dot2_f32_bf16 {v(st4 + 2 * r + 1)}, {v(src)}, {v(src)}, {v(st4 + 2 * r + 1)}")
        k(f"v_permlane32_swap_b32 {v(st4)}, {v(st4 + 2)}")
        k(f"v_permlane32_swap_b32 {v(st4 + 1)}, {v(st4 + 3)}")
        k(f"v_add_f32 {v(st4)}, {v(st4)}, {v(st4 + 2)}")
        k(f"v_add_f32 {v(st4 + 1)}, {v(st4 + 1)}, {v(st4 + 3)}")
        k(f"v_permlane16_swap_b32 {v(st4)}, {v(st4 + 1)}")
        k(f"v_add_f32 {v(st4)}, {v(st4)}, {v(st4 + 1)}")
        k(f"v_lshlrev_b32 {v(a0)}, 4, {v(rho)}")
        k(f"v_lshl_add_u32 {v(a0)}, {v(Q_)}, 2, {v(a0)}")
        k(f"v_add_f32_dpp {v(st4)}, {v(st4)}, {v(st4)} row_ror:8 row_mask:0xf bank_mask:0xf")
        k(f"s_lshl_b32 s5, {s(WAVE)}, 7")
        k(f"s_add_u32 s5, s5, {XSB + 20736}")
        k(f"v_add_u32 {v(a0)}, s5, {v(a0)}")
        k(f"ds_write_b32 {v(a0)}, {v(st4)}")

    def publish(self, k, su):
        a0, pr = self.a0, self.pr
        k(f"v_lshlrev_b32 {v(a0)}, 3, {v(N_)}")
        k(f"v_add_u32 {v(self.a1)}, {XSB + 20736}, {v(a0)}")
        for i in range(4):
            k(f"ds_read_b64 {v(pr + 2 * i, 2)}, {v(self.a1)} offset:{128 * i}")
        pk(k, "add", pr, [("p", pr), ("p", pr + 2)])
        pk(k, "add", pr + 4, [("p", pr + 4), ("p", pr + 6)])
        pk(k, "add", pr, [("p", pr), ("p", pr + 4)])
        row_stats(k, pr, pr + 1, D, pr + 2)
        k(f"v_min_u32 {v(pr)}, -2, {v(pr)}")
        k(f"v_min_u32 {v(pr + 1)}, -2, {v(pr + 1)}")
        k(f"s_lshl_b32 s5, s{su}, 7")
        k(f"s_add_u32 s5, s5, {ST1}")
        k(f"v_add_u32 {v(a0)}, s5, {v(a0)}")
        k(f"global_store_dwordx2 {v(a0)}, {v(pr, 2)}, {sp(WS)} sc1")


class KVTile:
    def __init__(self, R):
        self.o0, self.o1, self.t = R(), R(), R()
        self.kr = R(22, 2)
        self.vr = R(16, 2)
        self.tr = R(8, 4)
        self.tp = R(16, 2)
        self.un = R(44, 2)
        self.kv = R(32, 4)

    def issue(self, k, sg):
        o0, o1, t = self.o0, self.o1, self.t
        k(f"s_and_b32 s4, s{sg}, 15")
        k(f"s_lshl_b32 s4, s4, 2")
        k(f"s_add_u32 s4, s4, {s(WAVE)}")
        k(f"s_mul_i32 s4, s4, {32 * 1280}")
        k(f"s_lshr_b32 s5, s{sg}, 4")
        k("s_lshl_b32 s6, s5, 7")
        k("s_add_u32 s4, s4, s6")
        k(f"v_mul_u32_u24 {v(o0)}, {8 * 1280}, {v(Q_)}")
        k(f"v_lshl_add_u32 {v(o0)}, {v(N_)}, 3, {v(o0)}")
        k(f"v_add_u32 {v(o0)}, s4, {v(o0)}")
        k(f"v_add_u32 {v(o1)}, {4 * 1280}, {v(o0)}")
        for r in range(8):
            k(f"global_load_dwordx2 {v(self.kr + 6 + 2 * r, 2)}, {v(o1 if r >= 4 else o0)}, {sp(K)} offset:{1280 * (r % 4)}")
        k(f"v_max_u32 {v(t)}, {3 * 1280}, {v(o0)}")
        for r in range(3):
            k(f"global_load_dwordx2 {v(self.kr + 2 * r, 2)}, {v(t)}, {sp(K)} offset:{1280 * (r - 3)}")
        k("s_lshl_b32 s5, s5, 9")
        k(f"v_lshl_add_u32 {v(t)}, {v(N_)}, 5, s5")
        for h in range(2):
            k(f"global_load_dwordx4 {v(self.tr + 4 * h, 4)}, {v(t)}, {sp(SHK)} offset:{16 * h}")
        for r in range(8):
            k(f"global_load_dwordx2 {v(self.vr + 2 * r, 2)}, {v(o1 if r >= 4 else o0)}, {sp(V)} offset:{1280 * (r % 4)} nt")

    def compute(self, k, hook):
        kr, vr, tr, tp, un, kv, t = self.kr, self.vr, self.tr, self.tp, self.un, self.kv, self.t
        for i in list(range(3, 11)):
            for p in range(2):
                unpack(k, un + 4 * i + 2 * p, un + 4 * i + 2 * p + 1, kr + 2 * i + p)
        stamp(k, 42)
        hook(k)
        k(f"v_cmp_le_u32 vcc, 1280, {v(self.o0)}")
        for j in range(6):
            k(f"v_cndmask_b32 {v(kr + j)}, 0, {v(kr + j)}, vcc")
        for i in range(3):
            for p in range(2):
                unpack(k, un + 4 * i + 2 * p, un + 4 * i + 2 * p + 1, kr + 2 * i + p)
        for ch in range(4):
            for h in range(2):
                unpack(k, tp + 8 * h + ch, tp + 8 * h + 4 + ch, tr + 2 * ch + h)
        for j in range(4):
            for r in range(8):
                for p in range(2):
                    src = un + 4 * (3 + r - j) + 2 * p
                    d = kv + 4 * r + 2 * p
                    if j == 0:
                        pk(k, "mul", d, [("p", src), ("p", tp + 2 * p)])
                    else:
                        pk(k, "fma", d, [("p", src), ("p", tp + 4 * j + 2 * p), ("p", d)])
        stamp(k, 43)
        k(f"s_lshl_b32 s4, {s(WAVE)}, 6")
        k(f"s_sub_u32 s4, {TRB + 240}, s4")
        k(f"v_mul_u32_u24 {v(t)}, 272, {v(N_)}")
        k(f"v_add_u32 {v(t)}, s4, {v(t)}")
        k(f"v_lshlrev_b32 {v(self.o1)}, 4, {v(Q_)}")
        k(f"v_sub_u32 {v(t)}, {v(t)}, {v(self.o1)}")
        for r in range(8):
            for p in range(2):
                unpack(k, un + 4 * r + 2 * p, un + 4 * r + 2 * p + 1, vr + 2 * r + p)
            for p in range(2):
                pk(k, "mul", kv + 4 * r + 2 * p, [("p", kv + 4 * r + 2 * p), ("p", un + 4 * r + 2 * p)])
        o = tp
        for ch in range(4):
            for j in range(4):
                k(f"v_cvt_pk_bf16_f32 {v(o + 4 * ch + j)}, {v(kv + 4 * (7 - 2 * j) + ch)}, {v(kv + 4 * (6 - 2 * j) + ch)}")
            set_tag(k, o + 4 * ch + 3, 0)
            k(f"ds_write_b128 {v(t)}, {v(o + 4 * ch, 4)} offset:{16 * 272 * ch}")

    def store(self, k, sg):
        t, o0, kv = self.t, self.o0, self.kv
        k(f"s_mul_i32 s4, {s(WAVE)}, {16 * 272}")
        k(f"s_add_u32 s4, s4, {TRB}")
        k(f"v_mul_u32_u24 {v(t)}, 272, {v(Q_)}")
        k(f"v_lshl_add_u32 {v(t)}, {v(N_)}, 4, {v(t)}")
        k(f"v_add_u32 {v(t)}, s4, {v(t)}")
        for i in range(4):
            k(f"ds_read_b128 {v(kv + 4 * i, 4)}, {v(t)} offset:{4 * 272 * i}")
        k(f"s_lshr_b32 s4, s{sg}, 4")
        k("s_lshl_b32 s4, s4, 6")
        k(f"s_add_u32 s4, s4, {s(WAVE)}")
        k("s_lshl_b32 s4, s4, 12")
        k(f"s_and_b32 s5, s{sg}, 15")
        k("s_lshl_b32 s5, s5, 8")
        k("s_sub_u32 s4, s4, s5")
        k(f"s_add_u32 s4, s4, {KVT + 15 * 256}")
        k(f"v_lshl_add_u32 {v(o0)}, {v(Q_)}, 14, s4")
        k(f"v_lshl_add_u32 {v(o0)}, {v(N_)}, 4, {v(o0)}")
        toks = []
        for i in range(4):
            toks.append(k(f"global_store_dwordx4 {v(o0)}, {v(kv + 4 * i, 4)}, {sp(WS)} sc1"))
            if i < 3:
                k(f"v_add_u32 {v(o0)}, 65536, {v(o0)}")
        return toks


def wp_unit2(k, su, cfg):
    R = Alloc(VFREE, 250)
    off = R()
    k(f"s_and_b32 s4, s{su}, 1")
    k("s_lshl_b32 s4, s4, 1")
    k(f"s_and_b32 s5, {s(WAVE)}, 1")
    k("s_add_u32 s44, s4, s5")
    k(f"s_and_b32 s4, s{su}, -2")
    k(f"s_lshr_b32 s5, {s(WAVE)}, 1")
    k("s_add_u32 s45, s4, s5")
    k(f"s_and_b32 s4, s{su}, 1")
    k("s_lshl_b32 s4, s4, 2")
    k(f"s_add_u32 s4, s4, {s(WAVE)}")
    k(f"s_mul_i32 s4, s4, {80 * 3456}")
    k(f"s_lshr_b32 s5, s{su}, 1")
    k("s_lshl_b32 s5, s5, 7")
    k("s_add_u32 s4, s4, s5")
    k(f"v_lshrrev_b32 {v(off)}, 3, {v(LANE)}")
    k(f"v_mul_u32_u24 {v(off)}, {3456 - 128}, {v(off)}")
    k(f"v_add3_u32 {v(off)}, {v(off)}, {v(L16)}, s4")
    k(f"s_mul_i32 s5, {s(WAVE)}, 10240")
    toks = []
    for i in range(10):
        k(f"s_add_u32 m0, s5, {1024 * i}")
        toks.append(k(f"global_load_lds_dwordx4 {v(off)}, {sp(WIN)} nt"))
        k(f"v_add_u32 {v(off)}, {8 * 3456}, {v(off)}")
    w = R(40, 4)
    mo, m2, ta, oe, oo, tm = (R() for _ in range(6))
    mk = R.mark()
    mx_ = Mod(R, 47)
    R.reset(mk)
    mp = R(16, 4)
    pr = R(16, 2)
    outs = R(40, 4)
    st = Stream()
    st(f"s_cmp_lt_u32 s{su}, 8")
    st("s_cselect_b32 s48, 21, 0")
    st(f"s_add_u32 s48, s48, s{su}")
    st("s_add_u32 s48, s48, 76")
    st(f"s_sub_u32 s4, s{su}, 5")
    st("s_cmp_ge_u32 s4, 21")
    st("s_cbranch_scc1 Lwp_n1")
    mx_.issue(st, 48)
    st("s_waitcnt vmcnt(11)")
    st("s_branch Lwp_n2")
    st("Lwp_n1:")
    st("s_waitcnt vmcnt(0)")
    st("Lwp_n2:")
    k(f"v_min_u32 {v(mo)}, {39 * 16}, {v(L16)}")
    k("s_mul_i32 s5, s44, 640")
    k(f"s_add_u32 s5, s5, {MODP + 3 * 2560}")
    k(f"v_add_u32 {v(m2)}, s5, {v(mo)}")
    k(f"s_mul_i32 s5, {s(WAVE)}, 1280")
    k(f"s_add_u32 s5, s5, {XSB + 2048}")
    k(f"v_add_u32 {v(mo)}, s5, {v(mo)}")
    k(f"v_lshl_add_u32 {v(ta)}, {v(Q_)}, 5, s5")
    k("s_cmp_ge_u32 s45, 27")
    k("s_cselect_b32 s6, -54, 56")
    k("s_lshl_b32 s7, s45, 1")
    k("s_add_u32 s46, s6, s7")
    k("s_mul_i32 s4, s46, 20480")
    k("s_mul_i32 s5, s44, 5120")
    k("s_add_u32 s4, s4, s5")
    k(f"s_add_u32 s4, s4, {WP + 2048}")
    k(f"v_add_u32 {v(oe)}, s4, {v(L16)}")
    k(f"v_add_u32 {v(oo)}, 20480, {v(oe)}")
    un = R(80, 2)
    k(f"s_and_b32 s4, {s(WAVE)}, 1")
    k("s_mul_i32 s4, s4, 20480")
    k(f"s_lshr_b32 s5, {s(WAVE)}, 1")
    k("s_lshl_b32 s5, s5, 6")
    k("s_add_u32 s4, s4, s5")
    k(f"v_lshl_add_u32 {v(off)}, {v(Q_)}, 10, s4")
    k(f"v_lshl_add_u32 {v(off)}, {v(N_)}, 2, {v(off)}")
    k.raw(st)
    k.forget()
    stamp(k, 3)
    k("s_barrier")
    for i in range(40):
        k(f"ds_read_b32 {v(w + i)}, {v(off)} offset:{4096 * (i // 8) + 128 * (i % 8)}")
    for i in range(40):
        unpack(k, un + 2 * i, un + 2 * i + 1, w + i)
    stamp(k, 4)

    def mloads(st):
        for part in range(NMOD):
            st(f"v_add_u32 {v(tm)}, {part * MODS}, {v(m2)}")
            st(f"global_load_dwordx4 {v(mp + 8 * part, 4)}, {v(tm)}, {sp(WS)} sc1")
            st(f"global_load_dwordx4 {v(mp + 8 * part + 4, 4)}, {v(tm)}, {sp(WS)} offset:2560 sc1")

    init_check_wg(k, "Lwic", w)
    k.drain(lgkm=False)
    k("s_barrier")
    st = Stream()
    st(f"s_sub_u32 s4, s{su}, 5")
    st("s_cmp_ge_u32 s4, 21")
    st("s_cbranch_scc1 Lwp_n3")
    mx_.finish(st, XSB, None, "w")
    st("Lwp_n3:")
    k.raw(st)
    stamp(k, 42)
    poll(k, "Lwm", mloads, list(range(mp, mp + 8 * NMOD)), tm, cfg.get("slm", 2))
    stamp(k, 5)
    for part in range(1, NMOD):
        for j in range(4):
            pk(k, "add", mp + 2 * j, [("p", mp + 2 * j), ("p", mp + 8 * part + 2 * j)])
    for j in range(8):
        round_bf16(k, mp + j)
    for j in range(4, 8):
        k(f"v_add_f32 {v(mp + j)}, 1.0, {v(mp + j)}")
    for j in range(4, 8):
        round_bf16(k, mp + j)
    k(f"ds_write_b128 {v(mo)}, {v(mp + 4, 4)}")
    k(f"ds_write_b128 {v(mo)}, {v(mp, 4)} offset:640")
    cc = w
    for ks in range(5):
        for h in range(2):
            k(f"ds_read_b128 {v(cc + 8 * ks + 4 * h, 4)}, {v(ta)} offset:{128 * ks + 16 * h}")
    for ks in range(5):
        o = outs + 8 * ks
        for e in range(8):
            pk(k, "mul", pr + 2 * e, [("p", un + 16 * ks + 2 * e), ("b", cc + 8 * ks + e)])
        for par in range(2):
            for j in range(4):
                k(f"v_cvt_pk_bf16_f32 {v(o + 4 * par + j)}, {v(pr + 4 * j + par)}, {v(pr + 4 * j + 2 + par)}")
        k(f"global_store_dwordx4 {v(oe)}, {v(o, 4)}, {sp(WS)} offset:{1024 * ks - 2048} sc1")
        k(f"global_store_dwordx4 {v(oo)}, {v(o + 4, 4)}, {sp(WS)} offset:{1024 * ks - 2048} sc1")
    for ks in range(5):
        for h in range(2):
            k(f"ds_read_b128 {v(cc + 8 * ks + 4 * h, 4)}, {v(ta)} offset:{640 + 128 * ks + 16 * h}")
    uu = mp + 8
    k(f"s_mov_b32 s7, {hex(ONES)}")
    for j in range(8):
        k(f"v_mov_b32 {v(uu + j)}, 0")
    for i in range(20):
        for par in range(2):
            k(f"v_dot2_f32_bf16 {v(uu + par)}, {v(outs + 8 * (i // 4) + 4 * par + i % 4)}, s7, {v(uu + par)}")
    for i in range(40):
        d = uu + 2 + 2 * (i % 3)
        pk(k, "fma", d, [("p", un + 2 * i), ("b", cc + i), ("p", d)])
    pk(k, "add", uu + 2, [("p", uu + 2), ("p", uu + 4)])
    pk(k, "add", uu + 2, [("p", uu + 2), ("p", uu + 6)])
    k(f"v_permlane32_swap_b32 {v(uu)}, {v(uu + 1)}")
    k(f"v_permlane32_swap_b32 {v(uu + 2)}, {v(uu + 3)}")
    k(f"v_add_f32 {v(uu)}, {v(uu)}, {v(uu + 1)}")
    k(f"v_add_f32 {v(uu + 2)}, {v(uu + 2)}, {v(uu + 3)}")
    k(f"v_permlane16_swap_b32 {v(uu)}, {v(uu + 2)}")
    k(f"v_add_f32 {v(uu)}, {v(uu)}, {v(uu + 2)}")
    k(f"v_lshlrev_b32 {v(ta)}, 2, v0")
    k(f"v_add_u32 {v(ta)}, {XSB + 8192}, {v(ta)}")
    k(f"ds_write_b32 {v(ta)}, {v(uu)}")
    k(f"v_xor_b32 {v(ta)}, 256, {v(ta)}")
    k.drain()
    k("s_barrier")
    k(f"ds_read_b32 {v(uu + 1)}, {v(ta)}")
    k("s_lshl_b32 s6, s46, 7")
    k("s_lshr_b32 s5, s44, 1")
    k(f"s_mul_i32 s5, s5, {US}")
    k("s_add_u32 s6, s6, s5")
    k(f"s_add_u32 s6, s6, {U}")
    k(f"v_lshl_add_u32 {v(ta)}, {v(LANE)}, 2, s6")
    k(f"v_add_f32 {v(uu)}, {v(uu)}, {v(uu + 1)}")
    k(f"v_min_u32 {v(uu)}, -2, {v(uu)}")
    st = Stream()
    st(f"s_bitcmp1_b32 {s(WAVE)}, 0")
    st("s_cbranch_scc1 Lwp_skip")
    st(f"global_store_dword {v(ta)}, {v(uu)}, {sp(WS)} sc1")
    st("Lwp_skip:")
    k.raw(st)


def conv_path(k, stubs, cfg):
    sg = SUN
    R = Alloc(VFREE, 254)
    t0, t1 = 28, 29
    ka, kc, ua, uw, yw, yr, xo, x1o, kfa, kfd = range(36, 46)
    R.reset(46)
    if cfg.get("x_front") == "spare":
        k("s_branch Lflush")
    kt = KVTile(R)
    m0_ = R.mark()
    x16 = X16(R)
    kt.issue(k, sg)
    SDv, DP, DL, AS, BS4 = 92, 20, 28, 64, (32, 33, 86, 87)
    k(f"s_lshl_b32 s7, {s(sg)}, 3")
    k(f"s_load_dwordx2 s[{SDv}:{SDv + 1}], {sp(SD)}, s7")
    stamp(k, 2)
    yv = kt.kv
    for j in range(4):
        k(f"v_mov_b32 {v(yv + j)}, 0")
    k(f"s_mul_i32 s5, {s(WAVE)}, {2 * KCP}")
    k(f"v_and_b32 {v(t0)}, 48, {v(L16)}")
    k(f"v_add_u32 {v(t0)}, s5, {v(t0)}")
    for cp in range(2):
        k(f"ds_write_b128 {v(t0)}, {v(yv, 4)} offset:{KT + cp * KCP}")
    k(f"v_min_u32 {v(t0)}, {28 * 16}, {v(L16)}")
    k(f"s_mul_i32 s4, {s(WAVE)}, {UCH}")
    k(f"v_add_u32 {v(t0)}, s4, {v(t0)}")
    for cp in range(2):
        k(f"ds_write_b128 {v(t0)}, {v(yv, 4)} offset:{UT + cp * UCP + 4096}")
    k(f"v_add_u32 {v(kc)}, s5, {v(L16)}")
    k(f"v_and_b32 {v(t0)}, 1, {v(N_)}")
    k(f"v_lshrrev_b32 {v(t1)}, 1, {v(N_)}")
    k(f"v_mul_u32_u24 {v(ka)}, {KCP}, {v(t0)}")
    k(f"v_lshl_add_u32 {v(ka)}, {v(t1)}, 3, {v(ka)}")
    k(f"v_lshl_add_u32 {v(ka)}, {v(Q_)}, 4, {v(ka)}")
    k(f"v_add_u32 {v(ka)}, s5, {v(ka)}")
    k(f"v_mul_u32_u24 {v(ua)}, {UCP}, {v(t0)}")
    k(f"v_lshlrev_b32 {v(t1)}, 6, {v(t1)}")
    k(f"v_sub_u32 {v(ua)}, {v(ua)}, {v(t1)}")
    k(f"v_lshl_add_u32 {v(ua)}, {v(Q_)}, 4, {v(ua)}")
    k(f"s_add_u32 s4, s4, {UT + 16 + 448}")
    k(f"v_add_u32 {v(ua)}, s4, {v(ua)}")
    k(f"v_lshl_add_u32 {v(yw)}, {v(t0)}, 2, {v(t1)}")
    k(f"v_lshl_add_u32 {v(yw)}, {v(Q_)}, 4, {v(yw)}")
    k(f"s_mul_i32 s4, {s(WAVE)}, {YCH}")
    k(f"s_add_u32 s4, s4, {YT}")
    k(f"v_add_u32 {v(yw)}, s4, {v(yw)}")
    k(f"v_lshlrev_b32 {v(t0)}, 2, v0")
    k(f"v_sub_u32 {v(uw)}, {UT + 16 + 2 * (2044 - 1536)}, {v(t0)}")
    k(f"v_add_u32 {v(yr)}, {YT}, {v(t0)}")
    k(f"v_lshrrev_b32 {v(t0)}, 5, v0")
    k(f"v_mul_u32_u24 {v(x1o)}, {XRB}, {v(t0)}")
    k(f"v_and_b32 {v(t0)}, 31, v0")
    k(f"v_lshl_add_u32 {v(x1o)}, {v(t0)}, 4, {v(x1o)}")
    k(f"s_lshl_b32 s4, {s(sg)}, 9")
    k(f"s_add_u32 s4, s4, {X1}")
    k(f"v_add_u32 {v(x1o)}, s4, {v(x1o)}")
    for ch in range(4):
        if ch & 1:
            k(f"s_and_b32 s{DP + ch}, s{SDv + (ch >> 1)}, 0xffff0000")
        else:
            k(f"s_lshl_b32 s{DP + ch}, s{SDv + (ch >> 1)}, 16")
        k(f"s_lshr_b32 s{DL + ch}, s{DP + ch}, 16")
    k(f"v_and_b32 {v(x16.rho)}, 7, {v(LANE)}")
    k(f"v_lshrrev_b32 {v(x16.gq)}, 3, {v(LANE)}")
    ktok = []

    def ssm_dma(st):
        st(f"s_lshl_b32 s4, {s(sg)}, 2")
        st(f"s_add_u32 s4, s4, {s(WAVE)}")
        st(f"s_lshl_b32 s94, s4, 12")
        st(f"v_add_u32 {v(t0)}, s94, {v(L16)}")
        st(f"s_mul_i32 s5, {s(WAVE)}, {2 * KCP}")
        st(f"s_add_u32 m0, s5, {KT + KCP + 64}")
        ktok.extend(st(f"global_load_lds_dwordx4 {v(t0)}, {sp(SSM)} offset:{1024 * i} nt") for i in range(4))

    if cfg.get("xfirst", 0):
        x16.issue(k, sg)
        stamp(k, 3)
        kt.compute(k, ssm_dma)
    else:
        ssm_dma(k)
        bias_load(k)
        stamp(k, 3)
        kt.compute(k, lambda st_: x16.issue(st_, sg))
    k.barrier()
    stamp(k, 4)
    kt.store(k, sg)
    ic = x16.pr
    dbg_addr(k, ic, False)
    k(f"v_mov_b32 {v(ic + 1)}, 1")

    def dbg_w0(name, t):
        st = Stream()
        st(f"s_cmp_lg_u32 {s(WAVE)}, 0")
        st(f"s_cbranch_scc1 {name}")
        dbg_load(st, t)
        st(f"{name}:")
        k.raw(st)

    dbg_w0("Ldb1", ic)
    R.reset(90)
    acc = R(32, 2)
    af = 48
    assert af + 48 <= kt.kv
    k.wait(*ktok)
    for i in range(4):
        k(f"ds_read_b128 {v(af + 8 * i + 2, 4)}, {v(kc)} offset:{KT + KCP + 64 + 1024 * i}")
        k(f"ds_read_b32 {v(af + 8 * i + 1)}, {v(kc)} offset:{KT + KCP + 60 + 1024 * i}")
    for i in range(4):
        for j in range(4):
            k(f"v_alignbit_b32 {v(af + 32 + 4 * i + j)}, {v(af + 8 * i + 2 + j)}, {v(af + 8 * i + 1 + j)}, 16")
        k(f"ds_write_b128 {v(kc)}, {v(af + 32 + 4 * i, 4)} offset:{KT + 64 + 1024 * i}")

    def kfrags(st, j0, j1):
        for j in range(j0, j1):
            for h in range(2):
                st(f"ds_read_b64 {a(4 * j + 2 * h, 2)}, {v(ka)} offset:{KT + 8 + 64 * j + 8 * h}")

    nk, nk2 = cfg.get("kf1", 24), cfg.get("kf2", 44)
    kfrags(k, 0, nk)
    x16.stage(k)
    k(f"s_lshl_b32 s95, {s(sg)}, 7")
    k(f"s_add_u32 s95, s95, {KF}")
    k(f"v_max_u32 {v(kfa)}, 1, {v(N_)}")
    k(f"v_lshlrev_b32 {v(kfa)}, 7, {v(kfa)}")
    k(f"v_xor_b32 {v(kfa)}, s95, {v(kfa)}")
    k(f"s_add_u32 s4, s94, {KVT}")
    k(f"v_add_u32 {v(t0)}, s4, {v(L16)}")
    k(f"s_mul_i32 s93, {s(WAVE)}, {UCH}")
    stamp(k, 44)
    k.drain(lgkm=False)
    k(f"v_cmp_eq_u32 vcc, 0, {v(ic + 1)}")
    k("s_cbranch_vccnz Lic_r")
    k("Lic_ok:")
    st = Stream()
    st("Lic_r:")
    init_check(st, "Lic_p", ic)
    st("s_branch Lic_ok")
    stubs.append(st)
    k.barrier()
    flag_store(k, "Lkf_skip", t1, 95)
    stamp(k, 5)
    kfl = lambda st_: st_(f"global_load_dword {v(kfd)}, {v(kfa)}, {sp(WS)} sc1")
    look1 = cfg.get("look1", 1)
    if look1:
        kfl(k)
    a_ = Stream()
    a_(f"s_cmp_ge_u32 s{sg}, 128")
    a_("s_cbranch_scc1 Lc_j2")
    x16.emit(a_, sg)
    a_("s_waitcnt vmcnt(5)")
    a_("s_branch Lc_j3")
    a_("Lc_j2:")
    a_("s_waitcnt vmcnt(0)")
    a_("Lc_j3:")
    k.raw(a_)
    k.forget()
    stamp(k, 6)

    def u_dma(st):
        for cp in range(2):
            st(f"s_add_u32 m0, s93, {UT + cp * (UCP + 4) + 12}")
            for c in range(4):
                st(f"global_load_lds_dwordx4 {v(t0)}, {sp(WS)} offset:{1024 * c} sc1")

    k("s_mov_b32 s95, 0")
    if look1:
        st = Stream()
        st(f"v_cmp_eq_u32 vcc, -1, {v(kfd)}")
        st("s_cbranch_vccnz Lc_k1")
        u_dma(st)
        st("s_mov_b32 s95, 1")
        st("Lc_k1:")
        k.raw(st)
    kfrags(k, nk, nk2)
    kfl(k)
    dbg_addr(k, acc + 9, True)
    k(f"v_mov_b32 {v(acc + 10)}, 1")
    dbg_w0("Ldb2", acc + 9)
    kfrags(k, nk2, 64)
    w_setup(k)
    k_order(k)
    k.drain()
    k(f"v_cmp_eq_u32 vcc, 0, {v(acc + 10)}")
    k("s_cbranch_vccnz Lic2_r")
    k("Lic2_ok:")
    st = Stream()
    st("Lic2_r:")
    init_check(st, "Lic2_p", acc + 9)
    st("s_branch Lic2_ok")
    stubs.append(st)
    k("s_barrier")
    stamp(k, 7)
    pub = Stream()
    pub(f"s_cmp_ge_u32 s{sg}, 128")
    pub("s_cbranch_scc1 Lc_j5")
    pub(f"s_cmp_lg_u32 {s(WAVE)}, 0")
    pub("s_cbranch_scc1 Lc_j5")
    x16.publish(pub, sg)
    pub("Lc_j5:")
    k.raw(pub)
    st = Stream()
    st("s_cmp_eq_u32 s95, 1")
    st("s_cbranch_scc1 Lc_k2")
    check(st, stubs, "Lkf", kfl, [kfd], kfd, sleep=cfg.get("slk", 0))
    stamp(st, 8)
    u_dma(st)
    st("Lc_k2:")
    k.raw(st)
    yv, hp, Bc, md = 48, 52, 60, 64
    NU = 10
    uf = R(4 * NU, 2)
    un = R(16, 2)
    x3 = R(16, 2)
    T = R(4, 2)
    xr = [R(4, 2) for _ in range(4)]
    sr = [R(4, 2) for _ in range(4)]
    ut = R(5, 2)
    uad = R()
    mxr = R()

    def conv_mfma():
        ops = []
        for w in range(6):
            for r in range(8):
                ops += [(w + t, t, r, (0, w, r)) for t in range(6 - w)]
        for w in range(8):
            for r in range(8):
                ops += [(i, i - w, r, (1, w, r)) for i in (7, 6) if i >= w]
        first, last, order = {}, {}, []
        for n, o in enumerate(ops):
            if o[3] not in first:
                first[o[3]] = n
                order.append(o[3])
            last[o[3]] = n
        buf = {f: uf + 4 * (n % NU) for n, f in enumerate(order)}
        prev = {f: last[order[n - NU]] if n >= NU else -1 for n, f in enumerate(order)}
        rd = lambda f: f"ds_read_b128 {v(buf[f], 4)}, {v(ua)} offset:{2 * (1792 - 256 * f[1] + 32 * f[2])}"
        st, todo, seen = Stream(), list(order), set()
        for _ in range(2):
            st(rd(todo.pop(0)))
        for n, (i, t, r, f) in enumerate(ops):
            assert f not in todo
            d = v(acc + 4 * i, 4)
            st(f"v_mfma_f32_16x16x32_bf16 {d}, {a(4 * (r + 8 * t), 4)}, {v(buf[f], 4)}, {d if i in seen else 0}")
            seen.add(i)
            if todo and prev[todo[0]] <= n and first[todo[0]] - n <= 24:
                st(rd(todo.pop(0)))
        return st

    def ywrite(st, c):
        for wl in range(2):
            i = 2 * c + wl
            st(f"v_cvt_pk_bf16_f32 {v(yv + 2 * wl)}, {v(acc + 4 * i)}, {v(acc + 4 * i + 1)}")
            st(f"v_cvt_pk_bf16_f32 {v(yv + 2 * wl + 1)}, {v(acc + 4 * i + 2)}, {v(acc + 4 * i + 3)}")
            tok = st(f"ds_write2_b32 {v(yw)}, {v(yv + 2 * wl)}, {v(yv + 2 * wl + 1)} offset0:{128 * wl} offset1:{128 * wl + 2}")
        if c < 3:
            st(f"v_add_u32 {v(yw)}, {4 * YCH}, {v(yw)}")
            if c:
                kvread(st, c)
        if c == 1:
            st.wait(auxtok[0])
        st.barrier(tok)

    def EPy(st, c, packed):
        ywrite(st, c)
        yd, pkd, Y = hp, hp + 4, acc + 8 * c
        for ch in range(4):
            st(f"ds_read_b32 {v(yd + ch)}, {v(yr)} offset:{4 * YCH * c + YCH * ch}")
        if c == 0:
            kvread(st, c)
        for ch in range(4):
            unpack(st, Y + ch, Y + 4 + ch, yd + ch)
        if packed:
            for ch in range(4):
                st(f"v_dot2_f32_bf16 {v(Y + ch)}, {v(pkd + ch)}, s{DP + ch}, {v(Y + ch)}")
            for ch in range(4):
                st(f"v_dot2_f32_bf16 {v(Y + 4 + ch)}, {v(pkd + ch)}, s{DL + ch}, {v(Y + 4 + ch)}")
        else:
            for r in range(2):
                for ch in range(4):
                    st(f"v_and_b32 {v(T + ch)}, 0xffff0000, {v(pkd + ch)}" if r == 0 else f"v_lshlrev_b32 {v(T + ch)}, 16, {v(pkd + ch)}")
                for ch in range(4):
                    st(f"v_fmac_f32 {v(Y + 4 * r + ch)}, s{DP + ch}, {v(T + ch)}")

    def kvread(st, c):
        for ch in range(4):
            st(f"ds_read_b32 {v(hp + 4 + ch)}, {v(uw)} offset:{ch * UCH + 1024 * (3 - c)}")

    def EPh(st, c, X, packed):
        for i in range(4):
            unpack(st, X + 2 * i, X + 2 * i + 1, xr[c] + i)
        for i in range(4):
            r = i >> 1
            vop(st, "fma", X + 8 + 2 * i, [("p", X + 2 * i), ("b", sr[c] + 2 * r), ("b", sr[c] + 2 * r + 1)], packed)
        for i in range(4):
            p = i & 1
            vop(st, "fma", X + 8 + 2 * i, [("p", X + 8 + 2 * i), ("sp", AS + 2 * p), ("p", Bc + 2 * p)], packed)

    def EPx(st, c, X, packed):
        for i in range(4):
            vop(st, "fma", X + 2 * i, [("p", X + 8 + 2 * i), ("p", acc + 8 * c + 2 * i), ("p", X + 2 * i)], packed)
        for i in range(4):
            st(f"v_cvt_pk_bf16_f32 {v(xr[c] + i)}, {v(X + 2 * i)}, {v(X + 2 * i + 1)}")
        set_tag(st, xr[c] + 3, 1)

    def x1store(st, c):
        st(f"v_add_u32 {v(kfa)}, {c * 8 * XRB}, {v(x1o)}")
        st(f"global_store_dwordx4 {v(kfa)}, {v(xr[c], 4)}, {sp(WS)} sc1")

    def aux(st):
        st(f"v_lshlrev_b32 {v(t0)}, 4, v0")
        st(f"v_add_u32 {v(t0)}, {ST1 + 4096}, {v(t0)}")
        for c in range(4):
            if c == 2:
                st(f"v_add_u32 {v(t0)}, 8192, {v(t0)}")
            st(f"global_load_dwordx4 {v(sr[c], 4)}, {v(t0)}, {sp(WS)} offset:{4096 * (c & 1) - 4096} sc1")
        st(f"v_min_u32 {v(t0)}, 11, {v(LANE)}")
        st(f"v_lshrrev_b32 {v(t1)}, 2, {v(t0)}")
        st(f"v_mul_u32_u24 {v(t1)}, {2560 - 16}, {v(t1)}")
        st(f"v_lshl_add_u32 {v(t0)}, {v(t0)}, 2, {v(t1)}")
        st(f"s_lshl_b32 s4, {s(sg)}, 4")
        st(f"s_add_u32 s4, s4, {MODP}")
        st(f"v_add_u32 {v(t0)}, s4, {v(t0)}")
        for part in range(NMOD):
            st(f"global_load_dword {v(md + part)}, {v(t0)}, {sp(WS)} sc1")
            if part < NMOD - 1:
                st(f"v_add_u32 {v(t0)}, {MODS}, {v(t0)}")

    auxregs = [sr[c] + j for c in range(4) for j in (1, 3)] + [md, md + 1]

    def aux2(st):
        maxchain(st, mxr, auxregs)
        check(st, stubs, "Lax", aux, auxregs, mxr)
        for c in range(4):
            st(f"v_add_u32 {v(xo)}, {c * 8 * XRB}, {v(x1o)}")
            st(f"global_load_dwordx4 {v(xr[c], 4)}, {v(xo)}, {sp(WS)} sc1")
        st(f"v_add_f32 {v(md)}, {v(md)}, {v(md + 1)}")
        round_bf16(st, md)
        st(f"v_mov_b32 {v(t1)}, 1.0")
        st(f"v_add_f32_dpp {v(md)}, {v(md)}, {v(t1)} quad_perm:[0,1,2,3] row_mask:0xf bank_mask:0x2")
        round_bf16(st, md)
        st(f"v_mul_f32_dpp {v(md + 1)}, {v(md)}, {v(md)} row_shl:8 row_mask:0xf bank_mask:0x1")
        st(f"v_mul_f32_dpp {v(md + 1)}, {v(md)}, {v(md)} row_shl:4 row_mask:0xf bank_mask:0x2")
        for ch in range(8):
            st(f"v_readlane_b32 s{BS4[ch] if ch < 4 else AS + ch - 4}, {v(md + 1)}, {ch}")
        for ch in range(4):
            st(f"v_mov_b32 {v(Bc + ch)}, s{BS4[ch]}")

    up_load = lambda st: st(f"global_load_dword {v(ut + 4)}, {v(kfd)}, {sp(WS)} sc1")

    def uchk(st):
        check(st, stubs, "Lcu", up_load, [ut + 4], ut + 4)

    def fills(st):
        for j in range(4):
            st(f"v_mov_b32 {v(un + 4 + j)}, 0")
        st(f"s_min_u32 s5, s{sg}, 127")
        st("s_lshl_b32 s4, s5, 13")
        st(f"s_add_u32 s4, s4, {Z2 + S * D * 2 + 4096}")
        st(f"v_lshl_add_u32 {v(mxr)}, v0, 4, s4")
        for i in range(2):
            st(f"global_store_dwordx4 {v(mxr)}, {v(un + 4, 4)}, {sp(WS)} offset:{4096 * i - 4096} sc1")
        for j in range(4):
            st(f"v_mov_b32 {v(un + j)}, -1")
        st("s_lshr_b32 s4, s5, 2")
        st(f"s_mul_i32 s4, s4, {XRB}")
        st("s_and_b32 s5, s5, 3")
        st("s_lshl_b32 s5, s5, 13")
        st("s_add_u32 s4, s4, s5")
        st(f"s_add_u32 s4, s4, {P + 64 * D * 2 + 4096}")
        st(f"v_lshl_add_u32 {v(mxr)}, v0, 4, s4")
        for i in range(2):
            st(f"global_store_dwordx4 {v(mxr)}, {v(un, 4)}, {sp(WS)} offset:{4096 * i - 4096} sc1")
        st(f"s_min_u32 s4, s{sg}, 127")
        st("s_lshl_b32 s4, s4, 10")
        st(f"s_add_u32 s4, s4, {ST3}")
        st(f"v_lshl_add_u32 {v(mxr)}, v0, 2, s4")
        st(f"global_store_dword {v(mxr)}, {v(un)}, {sp(WS)} sc1")

    def early_stage(st):
        st("s_barrier")
        for i in range(cfg.get("ne", 0)):
            wsp_dma(st, i, DO)

    stamp(k, 9)
    if cfg.get("x_front"):
        k("s_branch Lflush")
    auxs = stream(aux)
    auxtok = [x for x in auxs.ins if x.cls == "vmem"]
    u_addr(k, uad, un + 12)
    k(f"v_and_b32 {v(kfd)}, 1, {v(Q_)}")
    k(f"v_mul_u32_u24 {v(kfd)}, {56 * 128}, {v(kfd)}")
    k(f"v_sub_u32 {v(kfd)}, {v(uad)}, {v(kfd)}")
    gs = stream(g1_setup, cfg)
    cut = int(len(gs.ins) * cfg.get("gsw", 0.75))
    while gs.ins[cut].cls == "salu" or gs.ins[cut - 1].cls == "salu":
        cut -= 1
    k.ins.extend(gs.ins[:cut])
    del gs.ins[:cut]
    st = Stream()
    st("s_cmp_eq_u32 s95, 1")
    st("s_cbranch_scc1 Lc_k3")
    st("s_waitcnt vmcnt(0)")
    st("Lc_k3:")
    k.raw(st)
    stamp(k, 46)
    f0, f1, a0 = cfg.get("f0", 36), cfg.get("f1", 70), cfg.get("aux0", 96)
    a1, u0, u1 = cfg.get("aux1", 140), cfg.get("u0", 110), cfg.get("u1", 170)
    wl = [(ks, sl) for ks in range(cfg.get("wlate", 4), 20)[::-1] for sl in range(2)]

    def wpart(n):
        st = Stream()
        for _ in range(min(n, len(wl))):
            w_load(st, 0, *wl.pop(0))
        return st

    nwa, wa0 = cfg.get("nwa", 14), cfg.get("wa0", 186)
    assert wa0 >= 186 and wa0 > u1 + 3 and nwa * 2 <= 287 - wa0
    wa_, wt, wr = wpart(nwa), wpart(cfg.get("nwt", 4)), wpart(99)
    e0, es = cfg.get("e0", 204), cfg.get("es", 112)
    batch = cfg.get("batch", 0)
    ex = Stream()
    for c in range(3):
        EPh(ex, c, un, False)
        EPx(ex, c, un, False)
        if not batch:
            x1store(ex, c)
    if batch:
        for c in range(3):
            x1store(ex, c)
    EPh(ex, 3, x3, False)
    kvread(ex, 3)
    assert f1 < a0 and e0 > max(203, a1 + 24) and es >= a0
    k.extend(weave(conv_mfma(), [(gs, 0, f0 - 1), (stream(fills), f0, f1), (auxs, a0, a0 + 12),
                                 (stream(EPy, 0, False), 92, 138), (stream(early_stage), es, cfg.get("ee", es + 60)),
                                 (stream(stamp, 10), 119, 119), (stream(up_load), u0, u0), (stream(uchk), u1, u1 + 3),
                                 (stream(aux2), a1, a1 + 24), (stream(EPy, 1, False), 148, 174), (stream(EPy, 2, False), 175, 203),
                                 (stream(stamp, 11), 207, 207), (wa_, wa0, 287), (ex, e0, 287)]))
    stamp(k, 12)
    u_load(uad, ut)(k)
    tl = Stream()
    EPy(tl, 3, True)
    EPx(tl, 3, x3, True)
    x1store(tl, 3)
    k.extend(sprinkle(tl, wt, 0.0, cfg.get("wte", 0.6)))
    stamp(k, 45)
    k.barrier()
    maxchain(k, mxr, range(ut, ut + 4))
    check(k, stubs, "Lcv", u_load(uad, ut), list(range(ut, ut + 4)), mxr)
    u_keep(k, uad, ut)
    k.extend(wr)


def spare_path(cfg, stubs):
    out = []
    k = Stream()
    k("Lspare:")
    k(f"s_sub_u32 s{SUN}, s2, 160")
    k(f"s_cmp_lt_u32 s{SUN}, 54")
    k("s_cbranch_scc0 Lsp_b")
    k(f"s_cmp_ge_u32 s{SUN}, 8")
    k("s_cbranch_scc1 Lsp_a2")
    k(f"s_mov_b32 s48, s{SUN}")
    init_fill(k, 48)
    k("s_branch Lsp_a2")
    out.append(k)
    k = Stream()
    k("Lsp_b:")
    if cfg.get("x_front") == "conv":
        k("s_branch Lflush")
    k(f"s_sub_u32 s48, s{SUN}, 54")
    k("s_add_u32 s49, s48, 42")
    k("s_add_u32 s50, s48, 84")
    k("s_cmp_ge_u32 s50, 120")
    k("s_cselect_b32 s50, s49, s50")
    R = Alloc(VFREE, 250)
    m1, m2 = Mod(R, 44), Mod(R, 45)
    ic = R(2)
    k(f"s_cmp_eq_u32 {s(WAVE)}, 1")
    k("s_cselect_b32 s51, s49, s48")
    k(f"s_cmp_eq_u32 {s(WAVE)}, 2")
    k("s_cselect_b32 s51, s50, s51")
    Mod.decode(k, 51, 51)
    k(f"v_lshl_add_u32 {v(ic)}, {v(LANE)}, 2, s51")
    k(f"v_mov_b32 {v(ic + 1)}, -1")
    k(f"global_store_dword {v(ic)}, {v(ic + 1)}, {sp(WS)} offset:{MODP} sc1")
    m1.issue(k, 48)
    k("s_lshl_b32 s4, s48, 2")
    k("s_add_u32 s4, s4, 60")
    k(f"v_mov_b32 {v(ic)}, s4")
    k.wait(m1.first)
    k("s_barrier")
    st = Stream()
    st(f"s_cmp_lg_u32 {s(WAVE)}, 0")
    st("s_cbranch_scc1 Lsb_skip")
    st(f"global_store_dword {v(ic)}, {v(ic + 1)}, {sp(DBG)} sc1")
    st("s_branch Lsb_skip2")
    st("Lsb_skip:")
    st(f"global_load_dword {v(ic + 1)}, {v(ic)}, {sp(C)}")
    st("Lsb_skip2:")
    k.raw(st)
    k.ghost(1)
    stamp(k, 42)
    i2 = stream(lambda st_: m2.issue(st_, 49))
    cut = [i for i, x in enumerate(i2.ins) if x.cls == "vmem"][cfg.get("b2", 7)]
    k.ins.extend(i2.ins[:cut])
    m1.finish(k, XSB, None, "s1")
    k.ins.extend(i2.ins[cut:])
    stamp(k, 2)
    st = Stream()
    st("s_cmp_ge_u32 s48, 27")
    st("s_cbranch_scc1 Lsb_n3")
    wout_issue(st, 48, ic, 0)
    st("s_waitcnt vmcnt(10)")
    st("s_branch Lsb_n4")
    st("Lsb_n3:")
    st("s_add_u32 s50, s48, 78")
    m1.issue(st, 50)
    st("s_waitcnt vmcnt(11)")
    st("Lsb_n4:")
    k.raw(st)
    k.forget()
    m2.finish(k, XSB + 1024, None, "s2")
    stamp(k, 4)
    init_check_wg(k, "Lbic", ic)
    k.drain(lgkm=False)
    k("s_cmp_ge_u32 s48, 27")
    k("s_cbranch_scc1 Lsp_b3")
    out.append(k)
    k = Stream()
    k("s_barrier")
    wout_finish(k, 48, Alloc(VFREE + 2, 250), 0)
    k("s_lshl_b32 s4, s48, 7")
    k(f"s_add_u32 s51, s4, {SDF}")
    k("s_branch Lsp_d")
    out.append(k)
    k = Stream()
    k("Lsp_a2:")
    if cfg.get("x_front") == "conv":
        k("s_branch Lflush")
    wp_unit2(k, SUN, cfg)
    stamp(k, 2)
    k("s_branch Lsp_c")
    out.append(k)
    k = Stream()
    k("Lsp_b3:")
    m1.finish(k, XSB + 2048, None, "s3")
    out.append(k)
    k = Stream()
    k("Lsp_c:")
    k(f"s_mov_b32 s51, {SDF + 32 * 128}")
    k("Lsp_d:")
    k("s_mov_b32 s93, s51")
    stamp(k, 6)
    if cfg.get("x_front"):
        k("s_branch Lflush")
    t, d, ut = 100, 102, 112
    k.barrier()
    bias_load(k)
    k_order(k)
    nes, nes0 = cfg.get("ne", 0), cfg.get("nes0", 0)
    stamp(k, 7)
    w_setup(k)
    ua_ = d + 4
    u_addr(k, ua_, t + 1)
    k(f"v_and_b32 {v(t)}, 1, {v(Q_)}")
    k(f"v_mul_u32_u24 {v(t)}, {56 * 128}, {v(t)}")
    k(f"v_sub_u32 {v(t)}, {v(ua_)}, {v(t)}")
    poll(k, "Lsp", lambda st_: st_(f"global_load_dword {v(ut)}, {v(t)}, {sp(WS)} sc1"), [ut], ut, cfg.get("slu", 4))
    k("s_barrier")
    st = Stream()
    st(f"s_cmp_eq_u32 s93, {SDF + 32 * 128}")
    st("s_cbranch_scc1 Lsd_none")
    flag_store(st, "Lsd_skip", d + 1, 93)
    st("Lsd_none:")
    k.raw(st)
    stamp(k, 8)
    k.extend(sprinkle(stream(g1_setup, cfg), stream(w_loads, 0, cfg.get("wlate", 4), 20, -1), 0.0, 1.0))
    for i in range(nes):
        wsp_dma(k, i, DO)
    k(f"s_lshl_b32 s4, s{SRB}, 9")
    k(f"s_add_u32 s4, s4, {ST1 + 4}")
    k(f"v_lshl_add_u32 {v(d)}, {v(LANE)}, 3, s4")

    def us_loads(st):
        u_load(ua_, ut)(st)
        st(f"global_load_dword {v(ut + 4)}, {v(d)}, {sp(WS)} sc1")

    poll(k, "Lsu", us_loads, list(range(ut, ut + 5)), t + 1, cfg.get("slu", 4))
    u_keep(k, ua_, ut)
    if cfg.get("wtouch", 1):
        k(f"s_sub_u32 s5, s{SRI}, 5")
        k(f"v_mad_u32_u24 {v(t)}, {v(LANE)}, 3, s5")
        k(f"v_min_u32 {v(t)}, 159, {v(t)}")
        k(f"v_lshlrev_b32 {v(t)}, 7, {v(t)}")
        for sl in range(2):
            k(f"s_mul_i32 s4, s{96 + sl}, 20480")
            k(f"s_add_u32 s4, s4, {WP + 56 * 20480}")
            k(f"v_add_u32 {v(t + 1)}, s4, {v(t)}")
            k(f"global_load_dword {v(d + 2 + sl)}, {v(t + 1)}, {sp(WS)} sc1")
    stamp(k, 9)
    k("s_barrier")
    stamp(k, 10)
    k("s_branch Ljoin")
    out.append(k)
    return out
```

```python
import math
from asmlib import Stream, Alloc, v, a, s, weave, sprinkle
from blocks import *

N_, Q_, L16, TROW, WO0, WO1 = 2, 3, 4, 5, 6, 7
UZ2, UZ1 = 8, 12
VFREE = 28
SRB, SCB, SUN, SRI = 40, 41, 42, 43
SPIN = 0x40000
JB, ZB, WB, GC, MK, SW9, STGW = 44, 52, 68, 84, 86, 88, 89

KT, KCP = 0, 4224
UT, UCP = 8 * KCP, 4640
UCH = 2 * UCP
YT, YCH = 0, 1056
AI, AFR = 0, 1040
STG = 80 * AFR
SX = STG + 65536
TB = SX + 2048
RED = 135 * 1024
MAIN_LDS = 163840

C0 = -2.0 * math.sqrt(2.0 / math.pi) * math.log2(math.e)
C1 = C0 * 0.044715


def common_regs(k):
    k(f"v_and_b32 {v(N_)}, 15, {v(LANE)}")
    k(f"v_lshrrev_b32 {v(Q_)}, 4, {v(LANE)}")
    k(f"v_lshlrev_b32 {v(L16)}, 4, {v(LANE)}")
    k(f"v_lshrrev_b32 {v(WO0)}, 2, {v(N_)}")
    k(f"v_and_b32 {v(TROW)}, 3, {v(N_)}")
    k(f"v_lshl_add_u32 {v(TROW)}, {v(WO0)}, 3, {v(TROW)}")


def role_ids(k):
    k("s_mov_b32 s100, 0")
    k("s_and_b32 s4, s2, 7")
    k("s_lshr_b32 s5, s2, 3")
    k(f"s_lshr_b32 s{SRI}, s5, 2")
    k(f"s_lshr_b32 s6, s{SRI}, 1")
    k("s_lshl_b32 s6, s6, 3")
    k("s_and_b32 s7, s4, 6")
    k("s_add_u32 s6, s6, s7")
    k(f"s_and_b32 s7, s{SRI}, 1")
    k(f"s_add_u32 s{SRB}, s6, s7")
    k("s_and_b32 s6, s4, 1")
    k("s_lshl_b32 s6, s6, 2")
    k("s_and_b32 s7, s5, 3")
    k(f"s_add_u32 s{SCB}, s6, s7")


def maxchain(k, dst, regs, first=True, tag=None):
    op2 = {None: "v_max_u32", 1: "v_and_b32", 0: "v_or_b32"}[tag]
    op3 = {None: "v_max3_u32 {}", 1: "v_bitop3_b32 {} bitop3:0x80", 0: "v_or3_b32 {}"}[tag]
    regs = list(regs)
    if first:
        if len(regs) == 1:
            if dst != regs[0]:
                k(f"v_mov_b32 {v(dst)}, {v(regs[0])}")
            regs = []
        elif len(regs) % 2:
            k(op3.format(f"{v(dst)}, {v(regs[0])}, {v(regs[1])}, {v(regs[2])}"))
            regs = regs[3:]
        else:
            k(f"{op2} {v(dst)}, {v(regs[0])}, {v(regs[1])}")
            regs = regs[2:]
    for i in range(0, len(regs), 2):
        k(op3.format(f"{v(dst)}, {v(regs[i])}, {v(regs[i + 1])}, {v(dst)}"))


def badcmp(k, tmp, tag=None):
    if tag is None:
        k(f"v_cmp_eq_u32 vcc, -1, {v(tmp)}")
    else:
        k(f"v_and_b32 {v(tmp)}, 1, {v(tmp)}")
        k(f"v_cmp_ne_u32 vcc, {tag}, {v(tmp)}")


def set_tag(k, r, tag):
    k(f"v_or_b32 {v(r)}, 1, {v(r)}" if tag else f"v_and_b32 {v(r)}, -2, {v(r)}")


def poll(k, name, loads, regs, tmp, sleep=0, tag=None):
    if sleep:
        k(f"s_branch {name}_f")
    k(f"{name}:")
    if sleep:
        k(f"s_sleep {sleep}")
        k(f"{name}_f:")
    loads(k)
    k.drain(lgkm=False)
    maxchain(k, tmp, regs, tag=tag)
    badcmp(k, tmp, tag)
    k("s_add_u32 s100, s100, 1")
    k(f"s_cmp_ge_u32 s100, {SPIN}")
    k(f"s_cbranch_scc1 {name}_x")
    k(f"s_cbranch_vccnz {name}")
    k(f"{name}_x:")


def check(k, stubs, name, loads, regs, tmp, cmp=True, tag=None, sleep=0):
    if cmp:
        badcmp(k, tmp, tag)
    k(f"s_cbranch_vccnz {name}_r")
    k(f"{name}_ok:")
    st = Stream()
    st(f"{name}_r:")
    st("s_nop 7")
    poll(st, name + "_p", loads, regs, tmp, sleep, tag=tag)
    st("s_nop 1")
    st(f"s_branch {name}_ok")
    stubs.append(st)


WA = 8


def w_setup(k):
    k(f"s_and_b32 s4, s{SCB}, 1")
    k(f"s_lshl_b32 s5, {s(WAVE)}, 1")
    k("s_add_u32 s5, s5, s4")
    k("s_cmp_eq_u32 s5, 7")
    k("s_cselect_b32 s5, 0, s5")
    k(f"s_mul_i32 s96, s{SCB}, 7")
    k("s_add_u32 s96, s96, s5")
    k("s_cmp_lt_u32 s96, 54")
    k("s_cselect_b32 s101, 2, 0")
    k("s_min_u32 s96, s96, 53")
    k(f"s_cmp_eq_u32 {s(WAVE)}, 3")
    k("s_cselect_b32 s101, 1, s101")
    k("s_lshr_b32 s97, s101, 1")
    k("s_cselect_b32 s5, -1, 0")
    k(f"v_and_b32 {v(WO1)}, s5, {v(L16)}")
    k("s_add_u32 s97, s97, s96")
    for sl in range(2):
        k(f"s_mul_i32 s4, s{96 + sl}, 20480")
        for i in range(3):
            k(f"s_add_u32 s5, s4, {WP + 4096 + 8192 * i}")
            k(f"s_add_u32 s{WA + 6 * sl + 2 * i}, s{WS}, s5")
            k(f"s_addc_u32 s{WA + 6 * sl + 2 * i + 1}, s{WS + 1}, 0")


WA2 = ZB


def w_next_part(k):
    for i in range(6):
        k(f"s_add_u32 s{WA2 + 2 * i}, s{WA + 2 * i}, {56 * 20480}")
        k(f"s_addc_u32 s{WA2 + 2 * i + 1}, s{WA + 2 * i + 1}, 0")


UTB = 156672


def u_addr(k, t, t1):
    k(f"v_bfe_u32 {v(t)}, {v(LANE)}, 3, 1")
    k("s_sub_u32 s4, s97, s96")
    k(f"v_mul_u32_u24 {v(t)}, s4, {v(t)}")
    k(f"v_add_lshl_u32 {v(t)}, {v(t)}, s96, 7")
    k(f"v_mul_u32_u24 {v(t1)}, {56 * 128}, {v(Q_)}")
    k(f"v_add_u32 {v(t)}, {v(t)}, {v(t1)}")
    k(f"v_and_b32 {v(t1)}, 112, {v(L16)}")
    k(f"v_add_u32 {v(t)}, {v(t)}, {v(t1)}")
    k(f"v_add_u32 {v(t)}, {U}, {v(t)}")


def u_load(t, d):
    return lambda k: k(f"global_load_dwordx4 {v(d, 4)}, {v(t)}, {sp(WS)} sc1")


def u_keep(k, t, d):
    for j in range(2):
        k(f"v_permlane32_swap_b32 {v(d + j)}, {v(d + 2 + j)}")
    k(f"s_lshl_b32 s4, {s(WAVE)}, 9")
    k(f"s_add_u32 s4, s4, {UTB}")
    k(f"v_and_b32 {v(t)}, 496, {v(L16)}")
    for j in range(2):
        k(f"v_add_f32 {v(d + j)}, {v(d + j)}, {v(d + 2 + j)}")
    k(f"v_bfe_u32 {v(d + 2)}, {v(LANE)}, 3, 1")
    k(f"v_cmp_gt_u32 vcc, s101, {v(d + 2)}")
    k(f"v_lshrrev_b32 {v(d + 2)}, 5, {v(LANE)}")
    k(f"v_lshl_add_u32 {v(t)}, {v(d + 2)}, 3, {v(t)}")
    for j in range(2):
        k(f"v_cndmask_b32 {v(d + j)}, 0, {v(d + j)}, vcc")
    k(f"v_add_u32 {v(t)}, s4, {v(t)}")
    k(f"ds_write_b64 {v(t)}, {v(d, 2)}")


def wreg(part, ks, sl):
    return (96 if part == 0 else 0) + 8 * ks + 4 * sl


def w_load(k, part, ks, sl):
    b = (WA2 if part else WA) + 6 * sl + 2 * (ks // 8)
    k(f"global_load_dwordx4 {a(wreg(part, ks, sl), 4)}, {v(WO1 if sl else L16)}, s[{b}:{b + 1}] offset:{1024 * (ks % 8) - 4096} sc1")


def w_loads(k, part, k0, k1, step=1):
    for ks in range(k0, k1)[::step]:
        for sl in range(2):
            w_load(k, part, ks, sl)


def flag_store(st, name, t, sreg):
    st(f"v_mov_b32 {v(t)}, s{sreg}")
    fl = Stream()
    fl(f"s_cmp_lg_u32 {s(WAVE)}, 0")
    fl(f"s_cbranch_scc1 {name}")
    fl(f"global_store_dword {v(t)}, {v(t)}, {sp(WS)} sc1")
    fl(f"{name}:")
    st.raw(fl)


def stream(fn, *args):
    st = Stream()
    fn(st, *args)
    return st


def gelu(k, regs, tmp, gc):
    n = len(regs)
    for i, r in enumerate(regs):
        pk(k, "mul", tmp + 2 * i, [("p", r), ("p", r)])
    for i, r in enumerate(regs):
        pk(k, "fma", tmp + 2 * i, [("p", tmp + 2 * i), ("sb", gc + 1), ("sb", gc)])
    for i, r in enumerate(regs):
        pk(k, "mul", tmp + 2 * i, [("p", tmp + 2 * i), ("p", r)])
    for i in range(2 * n):
        k(f"v_exp_f32 {v(tmp + i)}, {v(tmp + i)}")
    for i in range(n):
        pk(k, "add", tmp + 2 * i, [("p", tmp + 2 * i), ("c", "1.0")])
    for i in range(2 * n):
        k(f"v_rcp_f32 {v(tmp + i)}, {v(tmp + i)}")
    for i, r in enumerate(regs):
        pk(k, "mul", r, [("p", r), ("p", tmp + 2 * i)])


GBT = RED + 2 * 12288


def k_order(k):
    k(f"s_and_b32 s4, s{SCB}, 3")
    k("s_cmp_eq_u32 s4, 0")
    k("s_cselect_b32 s5, 8, 0")
    k("s_cmp_le_u32 s4, 1")
    k("s_cselect_b32 s6, 16, 8")
    k("s_cmp_eq_u32 s4, 3")
    k(f"s_cselect_b32 s{JB + 6}, 16, 24")
    k(f"s_lshl_b32 s{JB}, s4, 3")
    k(f"s_bitcmp1_b32 s{SRI}, 0")
    k(f"s_cselect_b32 s{JB + 2}, s6, s5")
    k(f"s_cselect_b32 s{JB + 4}, s5, s6")
    k(f"s_lshl_b32 s5, {s(WAVE)}, 1")
    for qi in range(4):
        k(f"s_add_u32 s{JB + 2 * qi}, s{JB + 2 * qi}, s5")
        k(f"s_add_u32 s{JB + 2 * qi + 1}, s{JB + 2 * qi}, 1")
    k(f"s_lshl_b32 s5, s{SRB}, 18")
    for i in range(8):
        k(f"s_lshl_b32 s6, s{JB + i}, 7")
        k("s_add_u32 s6, s6, s5")
        k(f"s_add_u32 s{WB + 2 * i}, s{WSP}, s6")
        k(f"s_addc_u32 s{WB + 2 * i + 1}, s{WSP + 1}, 0")
    k(f"s_lshl_b32 s{STGW}, {s(WAVE)}, 14")
    k(f"s_add_u32 s{STGW}, s{STGW}, {STG}")


BSR = 27
DO = 74


def bias_load(k):
    k(f"s_lshr_b32 s5, {s(WAVE)}, 1")
    k("s_lshl_b32 s5, s5, 5")
    k(f"s_and_b32 s6, {s(WAVE)}, 1")
    k("s_lshl_b32 s6, s6, 2")
    k("s_add_u32 s6, s6, s5")
    k(f"s_lshl_b32 s5, s{SRB}, 6")
    k("s_add_u32 s90, s6, s5")
    k(f"v_add_lshl_u32 {v(BSR)}, {v(TROW)}, s90, 1")
    k(f"global_load_ushort {v(BSR)}, {v(BSR)}, {sp(BSP)}")


def dma_offsets(k, do, t0, t1):
    k(f"v_lshrrev_b32 {v(t0)}, 3, {v(LANE)}")
    k(f"v_lshlrev_b32 {v(t0)}, 12, {v(t0)}")
    k(f"v_bfe_u32 {v(t1)}, {v(LANE)}, 4, 1")
    k(f"v_xor_b32 {v(t1)}, {v(t1)}, {v(LANE)}")
    k(f"v_and_b32 {v(t1)}, 7, {v(t1)}")
    for pi in range(4):
        k(f"v_xor_b32 {v(do + pi)}, {2 * pi}, {v(t1)}")
        k(f"v_lshl_add_u32 {v(do + pi)}, {v(do + pi)}, 4, {v(t0)}")
        if pi:
            k(f"v_add_u32 {v(do + pi)}, {pi * (8 * 4096 - 1024)}, {v(do + pi)}")
        k(f"v_add_u32 {v(do + 4 + pi)}, {32 * 4096}, {v(do + pi)}")


def wsp_dma(st, i, do):
    toks = []
    for pi in range(8):
        if pi % 4 == 0:
            st(f"s_add_u32 m0, s{STGW}, {(i & 1) * 8192 + 1024 * pi}")
        toks.append(st(f"global_load_lds_dwordx4 {v(do + pi)}, s[{WB + 2 * i}:{WB + 2 * i + 1}] offset:{1024 * (pi % 4)}"))
    return toks


def g1_setup(k, cfg):
    l8, bs, xa, xo0, t0, aw0, t1, srow, pa, do, ra = 30, 32, 46, 66, 67, 68, 69, 70, 72, DO, 82
    k(f"v_and_b32 {v(t0)}, 7, {v(LANE)}")
    k(f"v_lshl_add_u32 {v(t0)}, {v(Q_)}, 3, {v(t0)}")
    k(f"v_bfe_u32 {v(t1)}, {v(LANE)}, 3, 1")
    k(f"v_lshlrev_b32 {v(xo0)}, 9, {v(t1)}")
    k(f"v_lshl_add_u32 {v(xo0)}, {v(t0)}, 4, {v(xo0)}")
    k(f"s_mul_i32 s4, {s(WAVE)}, 20480")
    k(f"s_mul_i32 s5, s{SRB}, {XRB}")
    k("s_add_u32 s4, s4, s5")
    k(f"s_add_u32 s4, s4, {X1}")
    k(f"v_add_u32 {v(xo0)}, s4, {v(xo0)}")
    k(f"v_lshl_add_u32 {v(srow)}, {v(t0)}, 1, {v(t1)}")
    psh = cfg.get("psh", 0)
    k(f"v_min_u32 {v(pa)}, {(40 >> psh) - 1}, {v(LANE)}")
    k(f"v_lshl_add_u32 {v(pa)}, {v(pa)}, {9 + psh}, s4")
    k(f"v_lshrrev_b32 {v(t0)}, 5, {v(LANE)}")
    k(f"v_bfe_u32 {v(aw0)}, {v(LANE)}, 1, 1")
    k(f"v_lshl_add_u32 {v(t0)}, {v(t0)}, 1, {v(aw0)}")
    k(f"v_mul_u32_u24 {v(aw0)}, {AFR}, {v(t0)}")
    for bit, sh in ((3, 3), (2, 6), (4, 7), (0, 5)):
        k(f"v_bfe_u32 {v(t0)}, {v(LANE)}, {bit}, 1")
        k(f"v_lshl_add_u32 {v(aw0)}, {v(t0)}, {sh}, {v(aw0)}")
    k(f"s_mul_i32 s5, {s(WAVE)}, {20 * AFR}")
    k(f"v_add_u32 {v(aw0)}, s5, {v(aw0)}")
    k(f"v_lshlrev_b32 {v(l8)}, 3, {v(LANE)}")
    k(f"s_lshl_b32 s{SW9}, {s(WAVE)}, 9")
    dma_offsets(k, do, t0, t1)
    k(f"v_lshrrev_b32 {v(t1)}, 1, {v(N_)}")
    k(f"v_xor_b32 {v(t1)}, {v(t1)}, {v(Q_)}")
    k(f"v_lshlrev_b32 {v(t1)}, 4, {v(t1)}")
    k(f"v_lshl_add_u32 {v(t1)}, {v(TROW)}, 7, {v(t1)}")
    for tau in range(4):
        k(f"s_xor_b32 s4, {s(WAVE)}, {tau}")
        k("s_lshr_b32 s5, s4, 1")
        k("s_lshl_b32 s5, s5, 12")
        k("s_and_b32 s4, s4, 1")
        k("s_lshl_b32 s4, s4, 9")
        k("s_add_u32 s4, s4, s5")
        k(f"s_add_u32 s4, s4, s{STGW}")
        k(f"v_add_u32 {v(ra + 2 * tau)}, s4, {v(t1)}")
        k(f"v_xor_b32 {v(ra + 2 * tau + 1)}, 64, {v(ra + 2 * tau)}")
    w_next_part(k)
    k(f"s_mov_b32 s{GC}, {hex(fbits(C0))}")
    k(f"s_mov_b32 s{GC + 1}, {hex(fbits(C1))}")
    for j in range(4):
        k(f"v_lshlrev_b32 {v(bs + j)}, 16, {v(BSR)}")
    k(f"s_mul_i32 s5, s{SCB}, 10")
    k(f"s_mul_i32 s6, {s(WAVE)}, {AFR}")
    for j in range(2):
        if j:
            k(f"v_lshrrev_b32 {v(t0)}, 1, {v(Q_)}")
        k(f"v_add_u32 {v(t0)}, s5, {v(t0 if j else Q_)}")
        k(f"v_lshrrev_b32 {v(t1)}, 2, {v(t0)}")
        k(f"v_mul_u32_u24 {v(t1)}, {4 * AFR - 1024}, {v(t1)}")
        k(f"v_lshl_add_u32 {v(t1)}, {v(t0)}, 8, {v(t1)}")
        k(f"v_lshl_add_u32 {v(t1)}, {v(N_)}, 4, {v(t1)}")
        k(f"v_add_u32 {v(xa + j)}, s6, {v(t1)}")
    k(f"v_and_b32 {v(t0)}, 1, {v(Q_)}")
    k(f"v_lshl_add_u32 {v(xa + 1)}, {v(t0)}, 3, {v(xa + 1)}")


def gemm_phases(k, stubs, cfg):
    if cfg.get("tch"):
        cfg["tch"] = {int(a_): b_ for a_, b_ in cfg["tch"].items()}
    t0, t1, l8, bs, xres, zp, z1r = 28, 29, 30, 32, 36, 46, 48
    afr, NAF = 48, 6
    st4, xo0, xo, aw0, aw, srow, mx, pa = 62, 66, 67, 68, 69, 70, 71, 72
    do, ra, pr, xr = 74, 82, 90, 98
    rs, tmp, rz1 = 98, 130, 162
    tw, tq, tn, ar1, so, t2 = 170, 171, 172, 173, 174, 175
    acc2, acc1, gq, xa = 178, 210, 242, 46
    if cfg.get("ct1", 1):
        code_touch(k, "Lx_go", "Lmid", 254)
    stamp(k, 14)
    k(f"s_cmp_lt_u32 s{SRI}, {cfg.get('xskip', 5)}")
    k("s_cbranch_scc1 Lx_first")
    k("Lx_redo:")
    pst = Stream()
    poll(pst, "Lxp", lambda st: st(f"global_load_dword {v(mx)}, {v(pa)}, {sp(WS)} offset:508 sc1"), [mx], mx, cfg.get("slx", 1), tag=1)
    k.raw(pst)
    k("Lx_first:")
    stamp(k, 15)
    k(f"s_mov_b32 s7, {hex(ONES)}")
    k(f"v_add_u32 {v(xo)}, 4096, {v(xo0)}")
    AHEAD = cfg.get("xahead", 10)

    def xload(i):
        k(f"global_load_dwordx4 {v(xr + 4 * i, 4)}, {v(xo)}, {sp(WS)} offset:{1024 * (i % 8) - 4096} sc1")
        if i % 8 == 7:
            k(f"v_add_u32 {v(xo)}, 8192, {v(xo)}")

    for i in range(AHEAD):
        xload(i)
    for j in range(4):
        k(f"v_mov_b32 {v(st4 + j)}, 0")
    k(f"v_mov_b32 {v(mx)}, -1")
    wl = [(ks, sl) for ks in range(cfg.get("wlate", 4)) for sl in range(2)]
    for i in range(20):
        if i + AHEAD < 20:
            xload(i + AHEAD)
        elif wl:
            w_load(k, 0, *wl.pop(0))
        if i % 4 == 0:
            k(f"v_add_u32 {v(aw)}, {(i // 4) * 4 * AFR}, {v(aw0)}")
        k(f"ds_write2_b64 {v(aw)}, {v(xr + 4 * i, 2)}, {v(xr + 4 * i + 2, 2)} offset0:{32 * (i % 4)} offset1:{32 * (i % 4) + 2}")
        if i & 1:
            maxchain(k, mx, [xr + 4 * i - 1, xr + 4 * i + 3], first=False, tag=1)
        for j in range(2):
            for r in range(2):
                src = xr + 4 * i + 2 * r + j
                k(f"v_dot2_f32_bf16 {v(st4 + 2 * r)}, {v(src)}, s7, {v(st4 + 2 * r)}")
                k(f"v_dot2_f32_bf16 {v(st4 + 2 * r + 1)}, {v(src)}, {v(src)}, {v(st4 + 2 * r + 1)}")
    badcmp(k, mx, 1)
    k(f"s_cmp_ge_u32 s100, {SPIN}")
    k("s_cbranch_scc1 Lx_go")
    k("s_cbranch_vccnz Lx_redo")
    k("Lx_go:")
    for j in range(2):
        k(f"v_add_f32_dpp {v(pr + j)}, {v(st4 + j)}, {v(st4 + j)} row_ror:8 row_mask:0xf bank_mask:0x3")
        k(f"v_add_f32_dpp {v(pr + j)}, {v(st4 + 2 + j)}, {v(st4 + 2 + j)} row_ror:8 row_mask:0xf bank_mask:0xc")
    k(f"s_add_u32 s4, s{SW9}, {SX}")
    k(f"v_lshl_add_u32 {v(t0)}, {v(srow)}, 3, s4")
    k(f"ds_write_b64 {v(t0)}, {v(pr, 2)}")
    k.barrier()
    stamp(k, 16)
    k(f"v_add_u32 {v(ar1)}, {40 * AFR}, {v(L16)}")
    wlate = cfg.get("wlate", 4)
    kord = [list(range(wlate, 20))[::-1] + list(range(wlate)), list(range(20))]

    def read_rs(st):
        for tbl in range(2):
            for h in range(2):
                for o in range(2):
                    st(f"ds_read_b128 {v(rs + 16 * tbl + 8 * h + 4 * o, 4)}, {v(tq)} offset:{256 * tbl + 128 * h + 16 * o}")

    def mainloop(acc, part):
        st = Stream()

        def aread(f):
            ks, mt = kord[part][f >> 2], f & 3
            return st(f"ds_read_b128 {v(afr + 4 * (f % NAF), 4)}, {v(ar1 if ks >= 10 else L16)} offset:{AI + (4 * (ks % 10) + mt) * AFR}")

        tok = {f: aread(f) for f in range(NAF - 1)}
        for f in range(80):
            ks, mt = kord[part][f >> 2], f & 3
            if f % 2 == 0 and cfg.get("pairw", 1):
                st.wait(tok[f + 1])
            for sl in range(2):
                d = v(acc + 16 * sl + 4 * mt, 4)
                x, w = v(afr + 4 * (f % NAF), 4), a(wreg(part, ks, sl), 4)
                st(f"v_mfma_f32_16x16x32_bf16 {d}, {w if part else x}, {x if part else w}, {d if f >= 4 else 0}")
                if sl == 0 and f + NAF - 1 < 80:
                    tok[f + NAF - 1] = aread(f + NAF - 1)
        return st

    sf = Stream()
    sf(f"v_add_u32 {v(t0)}, {SX}, {v(l8)}")
    for i in range(4):
        sf(f"ds_read_b64 {v(pr + 2 * i, 2)}, {v(t0)} offset:{512 * i}")
    sf(f"s_add_u32 s4, s{SW9}, {TB}")
    sf(f"v_lshl_add_u32 {v(tw)}, {v(LANE)}, 2, s4")
    sf(f"v_lshl_add_u32 {v(tq)}, {v(Q_)}, 5, s4")
    sf(f"v_lshl_add_u32 {v(tn)}, {v(TROW)}, 2, s4")
    vop(sf, "add", pr, [("p", pr), ("p", pr + 2)], False)
    vop(sf, "add", pr + 4, [("p", pr + 4), ("p", pr + 6)], False)
    vop(sf, "add", pr, [("p", pr), ("p", pr + 4)], False)
    row_stats(sf, pr, pr + 1, D, pr + 2)
    sf(f"ds_write2st64_b32 {v(tw)}, {v(pr)}, {v(pr + 1)} offset0:0 offset1:1")
    read_rs(sf)
    for mt in range(4):
        off = 128 * (mt >> 1) + 16 * (mt & 1)
        sf(f"ds_read_b32 {v(rz1 + 2 * mt)}, {v(tn)} offset:{off}")
        sf(f"ds_read_b32 {v(rz1 + 2 * mt + 1)}, {v(tn)} offset:{256 + off}")
    sf(f"s_add_u32 s4, s{SW9}, {UTB}")
    sf(f"v_lshl_add_u32 {v(t0)}, {v(N_)}, 2, s4")
    for sl in range(2):
        sf(f"ds_read2_b32 {v(UZ2 + 2 * sl, 2)}, {v(t0)} offset0:{32 * sl} offset1:{32 * sl + 16}")
    sf(f"v_lshl_add_u32 {v(t0)}, {v(Q_)}, 4, s4")
    for j in range(4):
        sf(f"ds_read_b128 {v(UZ1 + 4 * j, 4)}, {v(t0)} offset:{256 + 64 * j}")
    for i in range(32):
        sf(f"v_fma_f32 {v(tmp + i)}, {v(rs + 16 + i % 16)}, {v(UZ2 + 2 * (i // 16))}, {v(UZ2 + 2 * (i // 16) + 1)}")
    apos = lambda i: (224, 192, 160, 0, 32, 64, 96, 128)[i]
    tk, rd = {0: [], 1: []}, {}

    def dma(st, i):
        st.wait(rd[i - 2])
        tk[i] = wsp_dma(st, i, do)

    def frag(st, i):
        st.wait(*tk[i])
        for ksl in range(2):
            for tau in range(4):
                rd[i] = st(f"ds_read_b128 {a(apos(i) + 16 * ksl + 4 * tau, 4)}, {v(ra + 2 * tau + ksl)} offset:{(i & 1) * 8192}")

    def turn(st, i):
        frag(st, i)
        if i + 2 < 8:
            dma(st, i + 2)

    nw1 = cfg.get("nw1", 6)
    nz2 = cfg.get("nz2", 0)
    allstaged = cfg.get("ne", 0)
    wz = Stream()
    for ks, sl in wl:
        w_load(wz, 0, ks, sl)
    for i in range(allstaged, 2):
        tk[i] = wsp_dma(wz, i, do)
    assert nw1 <= 12
    w_loads(wz, 1, 0, nw1)
    wz2 = Stream()
    for i in range(nz2):
        turn(wz2, i)
    wze = cfg.get("wze", 120)
    assert wze >= 32 * nz2
    k.extend(weave(mainloop(acc2, 0), [(sf, 4, 155), (wz, 0, wze if nz2 else 159), (wz2, wze + 1, 159)]))
    stamp(k, 17)
    zz = Stream()
    zz("s_nop 7")
    zz("s_cmp_eq_u32 s101, 2")
    zz("s_cbranch_scc1 Lz_keep")
    for i in range(16):
        zz(f"v_mov_b32 {v(acc2 + 16 + i)}, 0")
    zz("s_cmp_eq_u32 s101, 1")
    zz("s_cbranch_scc1 Lz_keep")
    for i in range(16):
        zz(f"v_mov_b32 {v(acc2 + i)}, 0")
    zz("Lz_keep:")
    k.raw(zz)

    e2 = Stream()
    for i in range(16):
        pk(e2, "fma", acc2 + 2 * i, [("p", acc2 + 2 * i), ("p", rs + 2 * (i % 8)), ("p", tmp + 2 * i)])
    gelu(e2, [acc2 + 2 * i for i in range(16)], tmp, GC)
    for i in range(8):
        pk(e2, "add", tmp + 2 * i, [("p", acc2 + 2 * i), ("p", acc2 + 16 + 2 * i)])
        pk(e2, "mul", tmp + 16 + 2 * i, [("p", acc2 + 2 * i), ("p", acc2 + 2 * i)])
    for i in range(8):
        pk(e2, "fma", tmp + 16 + 2 * i, [("p", acc2 + 16 + 2 * i), ("p", acc2 + 16 + 2 * i), ("p", tmp + 16 + 2 * i)])
    for i in range(16):
        e2(f"v_add_f32_dpp {v(rs + i)}, {v(tmp + i)}, {v(tmp + i)} row_ror:8 row_mask:0xf bank_mask:0x3")
    for i in range(16):
        e2(f"v_add_f32_dpp {v(rs + i)}, {v(tmp + 16 + i)}, {v(tmp + 16 + i)} row_ror:8 row_mask:0xf bank_mask:0xc")
    for i in range(8):
        e2(f"v_add_f32_dpp {v(tmp + i)}, {v(rs + i)}, {v(rs + i)} row_half_mirror row_mask:0xf bank_mask:0x5")
    for i in range(8):
        e2(f"v_add_f32_dpp {v(tmp + i)}, {v(rs + 8 + i)}, {v(rs + 8 + i)} row_half_mirror row_mask:0xf bank_mask:0xa")
    for i in range(8):
        e2(f"v_add_f32_dpp {v(tmp + i)}, {v(tmp + i)}, {v(tmp + i)} quad_perm:[1,0,3,2] row_mask:0xf bank_mask:0xf")
    for i in range(8):
        e2(f"v_add_f32_dpp {v(tmp + i)}, {v(tmp + i)}, {v(tmp + i)} quad_perm:[2,3,0,1] row_mask:0xf bank_mask:0xf")
    e2(f"v_lshrrev_b32 {v(t0)}, 2, {v(N_)}")
    e2(f"v_lshl_add_u32 {v(t0)}, {v(t0)}, 7, {v(tq)}")
    e2(f"ds_write_b128 {v(t0)}, {v(tmp, 4)}")
    e2(f"ds_write_b128 {v(t0)}, {v(tmp + 4, 4)} offset:16")
    sd = Stream()
    nw2 = cfg.get("nw2", 20)
    w_loads(sd, 1, nw1, nw2)
    ne2 = cfg.get("ne2", 1)
    for i in range(nz2, ne2):
        turn(sd, i)
    k.extend(sprinkle(e2, sd, 0.0, cfg.get("e2end", 0.9)))
    k.barrier()
    k(f"v_lshlrev_b32 {v(t0)}, 2, {v(LANE)}")
    k(f"v_add_u32 {v(t0)}, {TB}, {v(t0)}")
    for i in range(4):
        k(f"ds_read2st64_b32 {v(pr + 2 * i, 2)}, {v(t0)} offset0:{2 * i} offset1:{2 * i + 1}")
    k(f"s_lshl_b32 s4, s{SRB}, 12")
    k(f"s_add_u32 s4, s4, {ST3}")
    k(f"v_add_u32 {v(so)}, s4, {v(l8)}")
    k(f"s_lshl_b32 s4, s{SCB}, 9")
    k(f"v_add_u32 {v(t0)}, s4, {v(so)}")
    k(f"v_subrev_u32 {v(tw)}, {TB - SX}, {v(tw)}")
    k(f"v_subrev_u32 {v(tq)}, {TB - SX}, {v(tq)}")
    pk(k, "add", pr, [("p", pr), ("p", pr + 2)])
    pk(k, "add", pr + 4, [("p", pr + 4), ("p", pr + 6)])
    pk(k, "add", pr, [("p", pr), ("p", pr + 4)])
    k(f"v_min_u32 {v(pr)}, -2, {v(pr)}")
    k(f"v_min_u32 {v(pr + 1)}, -2, {v(pr + 1)}")
    k(f"s_lshl_b32 s4, {s(WAVE)}, 4")
    k(f"s_lshl_b64 exec, 0xffff, s4")
    k(f"global_store_dwordx2 {v(t0)}, {v(pr, 2)}, {sp(WS)} sc1")
    k(f"s_mov_b64 exec, -1")
    stamp(k, 18)
    sides = []
    first = max(nz2, ne2)
    w0 = (20 - nw2) * 8
    if w0:
        assert w0 + 24 <= 8 * nw2
        sides.append((stream(w_loads, 1, nw2, 20), 0, w0 - 1))
    pos = [w0 + ((130 - w0) * (i - first)) // (6 - first) for i in range(first, 7)] + [150]
    for n_, i in enumerate(range(first, 7)):
        lo_ = max(pos[n_], 32 * (i - 2) + 2)
        sides.append((stream(turn, i), lo_, max(lo_, max(pos[n_ + 1], 32 * (i - 1) + 2) - 1) if i < 6 else 150))
    pl = tmp

    def st3_loads(st):
        for i in range(8):
            st(f"global_load_dwordx2 {v(pl + 2 * i, 2)}, {v(so)}, {sp(WS)} offset:{512 * i} sc1")

    def misc_loads(st):
        st(f"v_min_u32 {v(t2)}, 26, {v(LANE)}")
        st(f"v_lshlrev_b32 {v(t2)}, 7, {v(t2)}")
        st(f"v_add_u32 {v(t2)}, {SDF}, {v(t2)}")
        st(f"global_load_dword {v(gq + 8)}, {v(t2)}, {sp(WS)} sc1")
        st(f"s_mul_i32 s7, s{SCB}, 320")
        st(f"s_add_u32 s7, s7, {MODP + 5 * D * 4}")
        st(f"v_min_u32 {v(t2)}, {19 * 16}, {v(L16)}")
        st(f"v_add_u32 {v(t2)}, s7, {v(t2)}")
        st(f"global_load_dwordx4 {v(gq, 4)}, {v(t2)}, {sp(WS)} sc1")
        st(f"v_add_u32 {v(t2)}, {MODS}, {v(t2)}")
        st(f"global_load_dwordx4 {v(gq + 4, 4)}, {v(t2)}, {sp(WS)} sc1")

    zs = cfg.get("zsplit", 120)
    s3 = stream(st3_loads)
    if cfg.get("ct2", 1):
        code_touch(s3, "Lmid", "Lend", 254)
    sides.append((s3, zs - cfg.get("st3", 30), zs - cfg.get("st3", 30) + 12))
    rr = Stream()
    misc_loads(rr)
    for j in range(2):
        rr(f"ds_read_b128 {v(xres + 4 * j, 4)}, {v(xa)} offset:{AI + 4 * AFR * j}")
    rr(f"ds_read_b64 {v(xres + 8, 2)}, {v(xa + 1)} offset:{AI + 8 * AFR}")
    gr = list(range(gq, gq + 9))
    maxchain(rr, t0, gr)
    check(rr, stubs, "Lgb", misc_loads, gr, t0)
    fin_mod4(rr, gq, gq + 4)
    if cfg.get("x_scale"):
        for j in range(4):
            rr(f"v_mul_f32 {v(gq + j)}, {hex(fbits(cfg['x_scale']))}, {v(gq + j)}")
    rr(f"v_min_u32 {v(t2)}, {19 * 16}, {v(L16)}")
    rr(f"v_add_u32 {v(t2)}, {GBT}, {v(t2)}")
    rr(f"ds_write_b128 {v(t2)}, {v(gq, 4)}")
    sides.append((rr, 2, zs - cfg.get("st3", 30) - 1))
    sc = Stream()
    sc(f"s_mul_i32 s91, s{SCB}, {64 * 7168}")
    sc(f"s_add_u32 s91, s91, {Z2}")
    for i in range(0, 8, 2):
        sc(f"s_mul_i32 s6, s{JB + i}, 14336")
        sc("s_add_u32 s6, s6, s91")
        sc(f"s_add_u32 s{ZB + 2 * i}, s{WS}, s6")
        sc(f"s_addc_u32 s{ZB + 2 * i + 1}, s{WS + 1}, 0")
        sc(f"s_add_u32 s{ZB + 2 * i + 2}, s{ZB + 2 * i}, 14336")
        sc(f"s_addc_u32 s{ZB + 2 * i + 3}, s{ZB + 2 * i + 1}, 0")
    sides.append((sc, max(zs + 1, w0 + 1), 158))
    zl = weave(mainloop(acc1, 1), sides)
    cutp = len(zl.ins)
    if zs < 160:
        cutp = [i for i, x in enumerate(zl.ins) if x.cls == "mfma"][zs]
    k.ins.extend(zl.ins[:cutp])
    stamp(k, 19)
    s3r = list(range(pl + 1, pl + 16, 2))
    maxchain(k, t0, s3r)
    check(k, stubs, "Ls3", st3_loads, s3r, t0)
    stamp(k, 20)
    for stp in (2, 4, 8):
        for i in range(0, 16, 2 * stp):
            pk(k, "add", pl + i, [("p", pl + i), ("p", pl + i + stp)])
    row_stats(k, pl, pl + 1, FH, pl + 2)
    k(f"ds_write2st64_b32 {v(tw)}, {v(pl)}, {v(pl + 1)} offset0:0 offset1:1")
    read_rs(k)
    k(f"s_lshl_b32 s4, s{SCB}, 6")
    k(f"s_lshl_b32 s5, s{SRB}, 1")
    k("s_add_u32 s4, s4, s5")
    k("s_mul_i32 s4, s4, 7168")
    k(f"s_lshl_b32 s5, {s(WAVE)}, 11")
    k("s_add_u32 s4, s4, s5")
    k(f"s_add_u32 s4, s4, {Z2}")
    k(f"v_add_u32 {v(t0)}, s4, {v(L16)}")
    k(f"v_add_u32 {v(t1)}, 7168, {v(t0)}")
    for sl in range(2):
        for h in range(2):
            for i in range(4 * h, 4 * h + 4):
                r = acc2 + 16 * sl + 2 * i
                pk(k, "fma", r, [("p", r), ("p", rs + 2 * i), ("p", rs + 16 + 2 * i)])
            o = tmp + 8 * sl + 4 * h
            for i in range(4):
                r = acc2 + 16 * sl + 8 * h + 2 * i
                k(f"v_cvt_pk_bf16_f32 {v(o + i)}, {v(r)}, {v(r + 1)}")
            set_tag(k, o + 3, 1)
            zs_ = f"global_store_dwordx4 {v(t1 if h else t0)}, {v(o, 4)}, {sp(WS)} offset:{1024 * sl} sc1"
            if sl:
                sk = Stream()
                sk(f"s_cmp_eq_u32 {s(WAVE)}, 3")
                sk(f"s_cbranch_scc1 Lzs_{h}")
                sk(zs_)
                sk(f"Lzs_{h}:")
                k.raw(sk)
            else:
                k(zs_)
    stamp(k, 21)
    k.ins.extend(zl.ins[cutp:])
    frag(k, 7)
    k.barrier()

    stash = UZ2
    zv, mx = 30, t0
    ring, acc = 62, 142
    G, NG, NA = 4, 5, 4
    steps = [4, 5, 6, 7, 8, 9, 10, 11, 0, 1, 2, 3, 12, 13, 14, 15]
    order = [(st_, sl) for st_ in steps[:NA] for sl in range(7)] + [(st_, sl) for sl in range(7) for st_ in steps[NA:]]
    ngrp = len(order) // G
    gA, gS = 7 * NA // G, (16 - NA) // G
    freg = lambda f: ring + 4 * (f % (G * NG))

    def gloads(g):
        def f(st):
            for fi in range(G * g, G * g + G):
                step, sl = order[fi]
                i, ksl = step >> 1, step & 1
                st(f"global_load_dwordx4 {v(freg(fi), 4)}, {v(zv + ksl)}, s[{ZB + 2 * i}:{ZB + 2 * i + 1}] offset:{1024 * sl - 3072} sc1")
        return f

    gregs = lambda g: [freg(fi) + 3 for fi in range(G * g, G * g + G)]
    nzf = cfg.get("zf", 4)

    def zfirst(st):
        if cfg.get("zprobe", 1):
            st(f"global_load_dword {v(zp)}, {v(t1)}, s[{ZB + 4}:{ZB + 5}] offset:1020 sc1")
        for g in range(nzf):
            gloads(g)(st)

    tmp1 = acc2
    e1 = Stream()
    e1(f"s_lshl_b32 s4, {s(WAVE)}, 10")
    e1(f"s_add_u32 s4, s4, {RED}")
    e1(f"v_add_u32 {v(tw)}, s4, {v(l8)}")
    e1(f"s_lshl_b32 s4, {s(WAVE)}, 12")
    e1(f"s_add_u32 s4, s4, {RED}")
    e1(f"v_add_u32 {v(tq)}, s4, {v(l8)}")
    e1(f"v_add_u32 {v(zv)}, 3072, {v(L16)}")
    e1(f"v_add_u32 {v(zv + 1)}, {3072 + 7168}, {v(L16)}")
    e1(f"v_min_u32 {v(t1)}, 27, {v(LANE)}")
    e1(f"v_lshlrev_b32 {v(t1)}, 10, {v(t1)}")
    for sl in range(2):
        for mt in range(4):
            for p in range(2):
                pk(e1, "fma", tmp1 + 4 * mt + 2 * p, [("p", UZ1 + 8 * sl + 2 * p), ("b", rz1 + 2 * mt + 1), ("p", UZ1 + 8 * sl + 4 + 2 * p)])
        for mt in range(4):
            for p in range(2):
                r = acc1 + 16 * sl + 4 * mt + 2 * p
                pk(e1, "fma", r, [("p", r), ("b", rz1 + 2 * mt), ("p", tmp1 + 4 * mt + 2 * p)])
    gelu(e1, [acc1 + 2 * i for i in range(16)], tmp1, GC)
    for i in range(16):
        e1(f"v_cvt_pk_bf16_f32 {v(tmp1 + i)}, {v(acc1 + 2 * i)}, {v(acc1 + 2 * i + 1)}")
    for sl in range(2):
        for mt in range(4):
            e1(f"ds_write_b64 {v(tw)}, {v(tmp1 + 8 * sl + 2 * mt, 2)} offset:{4096 * mt + 512 * sl}")
    wd = Stream()
    wd(f"s_mul_i32 s5, s{SCB}, {135 * 1024}")
    wd(f"s_add_u32 s5, s5, {WO}")
    wd(f"s_add_u32 s92, s{WS}, s5")
    wd(f"s_addc_u32 s93, s{WS + 1}, 0")
    wd(f"s_mul_i32 s95, {s(WAVE)}, {34 * 1024}")
    wd(f"s_min_u32 s95, s95, {101 * 1024}")
    wd("s_add_u32 s92, s92, s95")
    wd("s_addc_u32 s93, s93, 0")
    for r in range(34):
        if r % 4 == 0:
            wd(f"s_add_u32 m0, s95, {1024 * r}")
            if r:
                wd("s_add_u32 s92, s92, 4096")
                wd("s_addc_u32 s93, s93, 0")
        wd(f"global_load_lds_dwordx4 {v(L16)}, s[92:93] offset:{1024 * (r % 4)} sc1")
    vi = [i + 1 for i, x in enumerate(wd.ins) if x.cls == "vmem"]
    n1 = cfg.get("wo1", 10)
    nwg = cfg.get("wog", 4)
    wd1 = Stream()
    wd1.ins = wd.ins[:vi[n1 - 1]]
    cuts = [vi[n1 - 1 + ((34 - n1) * i) // nwg] for i in range(nwg + 1)]
    wd3 = [wd.ins[cuts[i]:cuts[i + 1]] for i in range(nwg)]
    zpos = cfg.get("zpos", 0.55)
    k.extend(sprinkle(sprinkle(e1, wd1, 0.0, zpos), stream(zfirst), zpos, 1.0))
    k.barrier()
    for sl in range(7):
        k(f"ds_read_b64 {v(z1r + 2 * sl, 2)}, {v(tq)} offset:{512 * sl}")
    stamp(k, 22)
    k("Lmid:")

    wa3, rda = stash + 12, stash + 15
    pvr = [WO0, WO1, UZ1 + 14, UZ1 + 15]
    su = Stream()
    for tau in range(1, 4):
        su(f"s_xor_b32 s4, {s(WAVE)}, {tau}")
        su("s_mul_i32 s4, s4, 3072")
        su(f"s_add_u32 s4, s4, {RED + 1024 * (tau - 1)}")
        su(f"v_add_u32 {v(wa3 + tau - 1)}, s4, {v(L16)}")
    su(f"s_mul_i32 s4, {s(WAVE)}, 3072")
    su(f"s_add_u32 s4, s4, {RED}")
    su(f"v_add_u32 {v(rda)}, s4, {v(L16)}")
    su(f"s_mul_i32 s4, s{SRB}, {XRB}")
    su(f"s_add_u32 s4, s4, {P + 4096}")
    su(f"s_lshl_b32 s5, {s(WAVE)}, 13")
    su("s_add_u32 s5, s5, s4")
    su(f"v_add_u32 {v(pvr[0])}, s5, {v(L16)}")
    for i in range(1, 3):
        su(f"v_add_u32 {v(pvr[i])}, {32768 * i}, {v(pvr[0])}")
    su(f"s_lshl_b32 s5, {s(WAVE)}, 12")
    su("s_add_u32 s5, s5, s4")
    su(f"s_add_u32 s5, s5, {3 * 32768}")
    su(f"v_add_u32 {v(pvr[3])}, s5, {v(L16)}")
    su(f"s_lshl_b32 s4, s{SCB}, 10")
    su(f"s_add_u32 s{WA}, s{WS}, s4")
    su(f"s_addc_u32 s{WA + 1}, s{WS + 1}, 0")
    su(f"s_lshr_b32 s4, s{SCB}, 1")
    su("s_lshl_b32 s4, s4, 10")
    su(f"s_and_b32 s5, s{SCB}, 1")
    su("s_lshl_b32 s5, s5, 3")
    su("s_add_u32 s4, s4, s5")
    su(f"s_add_u32 s{WA + 2}, s{WS}, s4")
    su(f"s_addc_u32 s{WA + 3}, s{WS + 1}, 0")
    su.barrier()

    def red_write(st, sl):
        for tau in range(1, 4):
            tok = st(f"ds_write_b128 {v(wa3 + tau - 1)}, {v(acc + 16 * sl + 4 * tau, 4)} offset:{12288 * (sl & 1)}")
        st.barrier(tok)

    def red_fin(st, sl, packed):
        A = acc + 16 * sl
        for tau in range(1, 4):
            st(f"ds_read_b128 {v(A + 4 * tau, 4)}, {v(rda)} offset:{12288 * (sl & 1) + 1024 * (tau - 1)}")
        un = stash + 4
        for p in range(2):
            unpack(st, un + 2 * p, un + 2 * p + 1, z1r + 2 * sl + p)
        for tau in range(1, 4):
            for p in range(2):
                vop(st, "add", A + 2 * p, [("p", A + 2 * p), ("p", A + 4 * tau + 2 * p)], packed)
        for p in range(2):
            vop(st, "mul", A + 2 * p, [("p", A + 2 * p), ("p", un + 2 * p)], packed)
        o = z1r + 2 * sl
        for p in range(2):
            st(f"v_cvt_pk_bf16_f32 {v(o + p)}, {v(A + 2 * p)}, {v(A + 2 * p + 1)}")
        if sl & 1 or sl == 6:
            set_tag(st, o + 1, 0)

    def pstore(st, j):
        if j == 3:
            st(f"global_store_dwordx2 {v(pvr[3])}, {v(z1r + 12, 2)}, {sp(WA + 2)} offset:-4096 sc1")
        else:
            st(f"global_store_dwordx4 {v(pvr[j])}, {v(z1r + 4 * j, 4)}, {sp(WA)} offset:-4096 sc1")

    kgrp = [[(7 * c + 1) // 2 + j for c in range(8) if (7 * c + 1) // 2 + j < 27] for j in range(3)] + [[3, 10, 17, 24]]
    pbase = [acc, acc + 32, acc + 64, acc + 96]

    def ploads(j):
        def f(st):
            for i, ks in enumerate(kgrp[j]):
                st(f"global_load_dwordx4 {v(pbase[j] + 4 * i, 4)}, {v(pvr[j])}, {sp(WS)} offset:{1024 * i - 4096} sc1")
        return f

    zr = ([zp] if cfg.get("zprobe", 1) else []) + gregs(0)
    maxchain(k, mx, zr, tag=1)
    check(k, stubs, "Lz0", zfirst, zr, mx, tag=1)
    stamp(k, 23)
    for g in range(nzf, NG - 1):
        gloads(g)(k)
    for g in range(ngrp):
        m = Stream()
        pairs = [(fi, tau) for fi in range(G * g, G * g + G) for tau in range(4)]
        if g >= gA and cfg.get("chain2", 1):
            pairs.sort(key=lambda p_: (3 - p_[1], p_[0]))
        for fi, tau in pairs:
            step, sl = order[fi]
            i, ksl = step >> 1, step & 1
            d = v(acc + 16 * sl + 4 * tau, 4)
            cin = d if step != steps[0] else (v(bs, 4) if tau == 0 else "0")
            m(f"v_mfma_f32_16x16x32_bf16 {d}, {v(freg(fi), 4)}, {a(apos(i) + 16 * ksl + 4 * tau, 4)}, {cin}")
        sides = []
        st = Stream()
        if g + NG - 1 < ngrp:
            gloads(g + NG - 1)(st)
        if g == cfg.get("pst", ngrp - NG + 1):
            pstore(st, 0)
            pstore(st, 1)
        gi = g - (cfg.get("wge", ngrp - 1) + 1 - nwg)
        if 0 <= gi < nwg:
            st.ins += wd3[gi]
        for j, gj in enumerate(cfg.get("plg", [])):
            if g == gj:
                ploads(j)(st)
        sides.append((st, 0, 15))
        if g == 1:
            sides.append((su, 0, 15))
        if g == cfg.get("ct3", -1):
            sides.append((stream(code_touch, "Lz20_ok", "Lend", 254), 0, 8))
        q3t = cfg.get("q3t", [0, 3])
        if g in q3t:
            i = 0 if g == q3t[0] else 6
            st = Stream()
            st(f"v_min_u32 {v(zp + 1)}, 27, {v(LANE)}")
            st(f"s_mul_i32 s6, s{SRI}, 28")
            st(f"v_add_lshl_u32 {v(zp + 1)}, {v(zp + 1)}, s6, 7")
            st(f"global_load_dword {v(stash + i // 6)}, {v(zp + 1)}, s[{ZB + 2 * i}:{ZB + 2 * i + 1}] sc1")
            sides.append((st, 0, 4))
        tch = cfg.get("tch")
        if tch and g in tch:
            s0, s1 = tch[g]
            st = Stream()
            st(f"v_min_u32 {v(zp + 1)}, {4 * (s1 - s0) - 1}, {v(LANE)}")
            st(f"v_and_b32 {v(stash + 2)}, 3, {v(zp + 1)}")
            st(f"v_mul_u32_u24 {v(stash + 2)}, {7168 - 256}, {v(stash + 2)}")
            st(f"v_lshl_add_u32 {v(zp + 1)}, {v(zp + 1)}, 8, {v(stash + 2)}")
            st(f"s_lshl_b32 s6, s{SRI}, 7")
            st(f"s_add_u32 s6, s6, {1024 * s0}")
            st(f"v_add_u32 {v(zp + 1)}, s6, {v(zp + 1)}")
            for i in (0, 6):
                st(f"global_load_dword {v(stash + i // 6)}, {v(zp + 1)}, s[{ZB + 2 * i}:{ZB + 2 * i + 1}] sc1")
            sides.append((st, 0, 9))
        if g + 1 < ngrp:
            st = Stream()
            maxchain(st, mx, gregs(g + 1), tag=1)
            badcmp(st, mx, 1)
            sides.append((st, 10, 14))
        if g >= gA + gS:
            sl, ph = divmod(g - gA - gS, gS)
            st = Stream()
            if ph == 0:
                red_write(st, sl)
                sides.append((st, 3, 14))
                fin = stream(red_fin, sl, False).ins
            else:
                per = -(-len(fin) // (gS - 1))
                st.ins = fin[(ph - 1) * per:ph * per]
                sides.append((st, 0, 15))
        k.extend(weave(m, sides))
        if g + 1 < ngrp:
            check(k, stubs, f"Lz{g + 1}", gloads(g + 1), gregs(g + 1), mx, cmp=False, tag=1)
        if g == gA - 1:
            stamp(k, 24)
    stamp(k, 25)
    early = cfg.get("pearly", 2)
    tl = Stream()
    red_write(tl, 6)
    red_fin(tl, 6, True)
    pe = Stream()
    early = max(early, len(cfg.get("plg", [])))
    for j in range(len(cfg.get("plg", [])), early):
        ploads(j)(pe)
    if cfg.get("ps2", 0):
        pstore(k, 2)
    k.extend(sprinkle(tl, pe, 0.0, 0.9))
    if not cfg.get("ps2", 0):
        pstore(k, 2)
    pstore(k, 3)
    stamp(k, 26)

    acc3, NWF = ring, cfg.get("nwf", 24)
    wf, gb, X = ring + 20, ring + 44, ring + 64
    ra3 = [L16, zv, zv + 1]
    k(f"v_add_u32 {v(ra3[1])}, {60 * 1024}, {v(L16)}")
    k(f"v_add_u32 {v(ra3[2])}, {120 * 1024}, {v(L16)}")
    for j in range(early, 2):
        ploads(j)(k)
    k.wait(*[x for part in wd3 for x in part if x.cls == "vmem"])
    k("s_barrier")
    seq = [(j, i, ks, dt) for j in range(4) for i, ks in enumerate(kgrp[j]) for dt in range(5)]
    if cfg.get("chain3", 1):
        seq.sort(key=lambda q_: (q_[0], q_[3], q_[1]))

    def wread(st, f):
        fr = 5 * seq[f][2] + seq[f][3]
        st(f"ds_read_b128 {a(4 * (f % NWF), 4)}, {v(ra3[fr // 60])} offset:{1024 * (fr % 60)}")

    for f in range(NWF - 1):
        wread(k, f)
    Xr = [X + j for j in range(16)] + [stash + 4 + j for j in range(4)]
    ep = Stream()
    ep(f"v_lshlrev_b32 {v(t1)}, 5, {v(Q_)}")
    ep(f"v_add_u32 {v(t1)}, {GBT}, {v(t1)}")
    for j in range(4):
        ep(f"ds_read_b128 {v(gb + 4 * j, 4)}, {v(t1)} offset:{128 * (j >> 1) + 16 * (j & 1)}")
    ep(f"v_lshlrev_b32 {v(t1)}, 4, {v(Q_)}")
    ep(f"v_add_u32 {v(t1)}, {GBT}, {v(t1)}")
    ep(f"ds_read_b128 {v(gb + 16, 4)}, {v(t1)} offset:256")
    for j in range(10):
        unpack(ep, Xr[2 * j], Xr[2 * j + 1], xres + j)
    ep(f"v_add_u32 {v(zp)}, s90, {v(TROW)}")
    ep(f"v_mul_u32_u24 {v(zp)}, 1280, {v(zp)}")
    ep(f"s_mul_i32 s4, s{SCB}, 160")
    ep(f"v_add_u32 {v(zp)}, s4, {v(zp)}")
    ep(f"v_lshl_add_u32 {v(zp + 1)}, {v(Q_)}, 4, {v(zp)}")
    ep(f"v_lshl_add_u32 {v(zp)}, {v(Q_)}, 3, {v(zp)}")
    f = 0
    for j in range(4):
        pregs = list(range(pbase[j] + 3, pbase[j] + 4 * len(kgrp[j]), 4)) if j < 3 else list(range(pbase[j] + 1, pbase[j] + 16, 2))
        maxchain(k, mx, pregs, tag=0)
        check(k, stubs, f"Lp{j}", ploads(j), pregs, mx, tag=0)
        stamp(k, 27 + j)
        m = Stream()
        while f < len(seq) and seq[f][0] == j:
            _, i, ks, dt = seq[f]
            d = v(acc3 + 4 * dt, 4)
            m(f"v_mfma_f32_16x16x32_bf16 {d}, {a(4 * (f % NWF), 4)}, {v(pbase[j] + 4 * i, 4)}, {d if j or i else 0}")
            if f + NWF - 1 < len(seq):
                wread(m, f + NWF - 1)
            f += 1
        sides = []
        if j == 1:
            st = Stream()
            ploads(2)(st)
            ploads(3)(st)
            sides.append((st, cfg.get("pl", 10), cfg.get("ple", 39)))
        k.extend(weave(m, sides))
        if j == 1:
            k.extend(ep)
    o = acc
    ost = cfg.get("ost", "")
    for B in range(2):
        for j in range(8):
            k(f"v_fmac_f32 {v(Xr[8 * B + j])}, {v(acc3 + 4 * (2 * B + (j & 1)) + (j >> 1))}, {v(gb + 8 * B + j)}")
        for j in range(4):
            k(f"v_cvt_pk_bf16_f32 {v(o + 4 * B + j)}, {v(Xr[8 * B + 2 * j])}, {v(Xr[8 * B + 2 * j + 1])}")
        k(f"global_store_dwordx4 {v(zp + 1)}, {v(o + 4 * B, 4)}, {sp(OUT)} offset:{64 * B} {ost}")
    for j in range(4):
        k(f"v_fmac_f32 {v(Xr[16 + j])}, {v(acc3 + 16 + j)}, {v(gb + 16 + j)}")
    for j in range(2):
        k(f"v_cvt_pk_bf16_f32 {v(o + 8 + j)}, {v(Xr[16 + 2 * j])}, {v(Xr[17 + 2 * j])}")
    k(f"global_store_dwordx2 {v(zp)}, {v(o + 8, 2)}, {sp(OUT)} offset:128 {ost}")
```
